```python
import torch

def _softmax(x, axis=-1):
    return torch.softmax(x, dim=axis)
def _gelu(x):
    return torch.nn.functional.gelu(x, approximate="tanh")
def _silu(x):
    return torch.nn.functional.silu(x)
def _sigmoid(x):
    return torch.sigmoid(x)
def _layernorm(x, axis=-1, eps=1e-5):
    m = x.mean(dim=axis, keepdim=True)
    v = x.var(dim=axis, keepdim=True, unbiased=False)
    return (x - m) / torch.sqrt(v + eps)
def _scatter_add(tgt, idx, src, axis=0):
    return tgt.clone().index_add_(axis, idx, src)
def _segment_sum(src, seg, n):
    out = torch.zeros((n,) + src.shape[1:], dtype=src.dtype)
    return out.index_add_(0, seg, src)
def _pad(x, pw):
    flat = tuple(v for pair in reversed(pw) for v in pair)
    return torch.nn.functional.pad(x, flat)

kernel_name = 'standalone__gqa_softmax__near_ridge'

def setup_inputs():

    _w = (lambda a: (lambda t: t.to(torch.bfloat16) if t.is_floating_point() else t)(torch.as_tensor(a)))
    B, Hq, Hkv, Sq, Sk, D = 8, 32, 32, 384, 1024, 192
    return {
        "q": _w((lambda *s: torch.randn(*s, dtype=torch.bfloat16) * 0.8)(B, Hq, Sq, D)),
        "k": _w((lambda *s: torch.randn(*s, dtype=torch.bfloat16) * 0.8)(B, Hkv, Sk, D)),
        "v": _w((lambda *s: torch.randn(*s, dtype=torch.bfloat16) * 0.05)(B, Hkv, Sk, D)),
    }

def reference(q, k, v):
    B, Hq, Sq, D = q.shape
    Hkv = k.shape[1]
    rep = Hq // Hkv
    k = (lambda x, n, axis: torch.repeat_interleave(x, n, dim=axis))(k, rep, axis=1)
    v = (lambda x, n, axis: torch.repeat_interleave(x, n, dim=axis))(v, rep, axis=1)
    scale = D ** -0.5
    scores = torch.einsum("bhqd,bhkd->bhqk", q, k) * scale
    p = _softmax(scores, axis=-1)
    return torch.einsum("bhqk,bhkd->bhqd", p, v)
```

```python
KNAME = "standalone__gqa_softmax__near_ridge_kernel"

HEADER_COMMENT = """; Kernarg layout for this problem (48 bytes, ptrs only, base s[0:1]):
"""


def wrap(body, grid, block, lds, vgpr, accum, sgpr=102, extra_comment=""):
    s = HEADER_COMMENT + extra_comment
    s += f"; @launch grid=({grid},1,1) block=({block},1,1) lds={lds}\n"
    s += '.amdgcn_target "amdgcn-amd-amdhsa--gfx950"\n.text\n'
    s += f".globl {KNAME}\n.p2align 8\n.type {KNAME},@function\n{KNAME}:\n"
    s += body
    s += f"""
.section .rodata,"a"
.p2align 6
.amdhsa_kernel {KNAME}
  .amdhsa_next_free_vgpr {vgpr}
  .amdhsa_next_free_sgpr {sgpr}
  .amdhsa_accum_offset {accum}
  .amdhsa_group_segment_fixed_size 0
  .amdhsa_kernarg_size 48
  .amdhsa_user_sgpr_count 2
  .amdhsa_user_sgpr_kernarg_segment_ptr 1
  .amdhsa_system_sgpr_workgroup_id_x 1
.end_amdhsa_kernel
"""
    return s
```

```python
import re


def R(p, i, n=1):
    return f"{p}{i}" if n == 1 else f"{p}[{i}:{i+n-1}]"


def regs(p, i, n=1):
    return [f"{p}{k}" for k in range(i, i + n)]


def expand(op):
    op = op.strip()
    op = op.lstrip("-")
    if op.startswith("|") and op.endswith("|"):
        op = op[1:-1]
    m = re.fullmatch(r"([vas])\[(\d+):(\d+)\]", op)
    if m:
        return regs(m.group(1), int(m.group(2)), int(m.group(3)) - int(m.group(2)) + 1)
    m = re.fullmatch(r"([vas])(\d+)", op)
    if m:
        return [op]
    if op in ("vcc", "m0", "exec"):
        return [op]
    return []


TRANS = ("v_exp_f32", "v_rcp_f32", "v_log_f32", "v_rsq_f32", "v_sqrt_f32")


class I:
    def __init__(self, text, kind, rd=(), wr=(), tag=None, srcc=()):
        self.text, self.kind = text, kind
        self.rd, self.wr = set(rd), set(wr)
        self.srcc = set(srcc)
        self.tag = tag

    def __repr__(self):
        return self.text

    @property
    def is_valu(self):
        return self.kind in ("valu", "trans", "perm")

    @property
    def is_scalar(self):
        return self.kind in ("salu", "wait", "barrier", "nop", "branch", "smem")

    @property
    def states(self):
        if self.kind == "label":
            return 0
        if self.kind == "nop":
            return int(self.text.split()[1]) + 1
        return 1


def valu(op, dst, *src):
    kind = "trans" if op in TRANS else "valu"
    rd = [r for s in src for r in expand(str(s))]
    wr = expand(dst)
    if op.startswith("v_fmac") or op.startswith("v_permlane"):
        rd += wr
    if op.startswith("v_permlane"):
        kind = "perm"
        wr = wr + expand(src[0])
    if op.startswith("v_cndmask") and len(src) == 2:
        rd.append("vcc")
    return I(f"{op} {dst}, " + ", ".join(str(s) for s in src), kind, rd, wr)


def salu(op, dst, *src):
    rd = [r for s in src for r in expand(str(s))]
    if op.startswith("s_cmp"):
        return I(f"{op} {dst}, {src[0]}", "salu", rd + expand(str(dst)), ["scc"])
    wr = expand(dst)
    if op.startswith("s_cselect") or op in ("s_addc_u32", "s_subb_u32"):
        rd.append("scc")
    if not (op.startswith("s_mov") or op.startswith("s_cselect") or op.startswith("s_mul")):
        wr = wr + ["scc"]
    if "saveexec" in op:
        wr = wr + ["exec"]
    return I(f"{op} {dst}, " + ", ".join(str(s) for s in src), "salu", rd, wr)


def mfma(d, a, b, c):
    return I(f"v_mfma_f32_16x16x32_bf16 {d}, {a}, {b}, {c}", "mfma",
             expand(a) + expand(b) + expand(c), expand(d), srcc=expand(c))


def ds_read(op, dst, addr, off, tag=None):
    assert 0 <= off < 65536, off
    return I(f"{op} {dst}, {addr} offset:{off}", "lds_rd", [addr], expand(dst), tag)


def ds_write(op, addr, src, off):
    assert 0 <= off < 65536, off
    return I(f"{op} {addr}, {src} offset:{off}", "lds_wr", [addr] + expand(src), [])


def buf_load(dst, voff, srd, soff, off, pol="", op="buffer_load_dwordx4", tag=None):
    assert 0 <= off < 4096
    return I(f"{op} {dst}, {voff}, {srd}, {soff} offen offset:{off} {pol}".rstrip(), "vm_ld",
             [voff] + expand(srd) + expand(str(soff)), expand(dst), tag)


def buf_dma(voff, srd, soff, off, pol="", tag=None):
    assert 0 <= off < 4096
    return I(f"buffer_load_dwordx4 {voff}, {srd}, {soff} offen offset:{off} {pol} lds".replace("  ", " "), "dma",
             [voff, "m0"] + expand(srd) + expand(str(soff)), [], tag)


def buf_store(src, voff, srd, soff, off, pol="", op="buffer_store_dwordx4"):
    assert 0 <= off < 4096
    return I(f"{op} {src}, {voff}, {srd}, {soff} offen offset:{off} {pol}".rstrip(), "vm_st",
             [voff] + expand(src) + expand(srd) + expand(str(soff)), [], tag=("data", tuple(expand(src))))


def wait(vm=None, lgkm=None):
    parts = []
    if vm is not None:
        assert 0 <= vm < 64
        parts.append(f"vmcnt({vm})")
    if lgkm is not None:
        assert 0 <= lgkm < 16
        parts.append(f"lgkmcnt({lgkm})")
    i = I("s_waitcnt " + " ".join(parts), "wait")
    i.vm, i.lgkm = vm, lgkm
    return i


def nop(n=0):
    return I(f"s_nop {n}", "nop")


def barrier():
    return I("s_barrier", "barrier")


def label(name):
    return I(f"{name}:", "label")


def branch(op, target):
    rd = ["scc"] if "scc" in op else (["vcc"] if "vcc" in op else [])
    return I(f"{op} {target}", "branch", rd)


def raw(text, kind="salu", rd=(), wr=()):
    return I(text, kind, rd, wr)


def need_states(p, c):
    n = 0
    if p.is_valu:
        vw = {r for r in p.wr if r[0] in "va" and r != "vcc"}
        sw = {r for r in p.wr if r[0] == "s" or r == "vcc"}
        if c.kind == "mfma" and vw & c.rd:
            n = max(n, 2)
        if c.kind == "perm" and vw & c.rd:
            n = max(n, 2)
        if c.text.startswith(("v_readfirstlane", "v_readlane")) and vw & c.rd:
            n = max(n, 1)
        if p.kind == "trans" and c.is_valu and c.kind != "trans" and vw & c.rd:
            n = max(n, 1)
        if c.is_valu and sw & c.rd:
            n = max(n, 2)
        if c.kind in ("vm_ld", "vm_st", "dma") and sw & c.rd:
            n = max(n, 5)
        if c.kind in ("salu", "branch") and sw & c.rd:
            n = max(n, 2)
        if "_dpp" in c.text and vw & c.rd:
            n = max(n, 2)
        if "exec" in p.wr and c.kind == "mfma":
            n = max(n, 4)
    if p.kind == "mfma":
        if c.kind == "mfma":
            if p.wr & (c.rd - c.srcc):
                n = max(n, 8)
            if p.wr & c.srcc and p.wr != c.srcc:
                n = max(n, 6)
            if p.wr & c.wr and p.wr != c.srcc and not (p.wr & c.srcc):
                n = max(n, 0)
        elif c.is_valu or c.kind in ("lds_rd", "lds_wr", "vm_ld", "vm_st", "dma"):
            if p.wr & (c.rd | c.wr):
                n = max(n, 8)
            if c.is_valu and p.srcc & c.wr:
                n = max(n, 3)
    if p.kind == "salu" and "m0" in p.wr and c.kind == "dma":
        n = max(n, 1)
    if p.kind == "vm_st" and (c.is_valu or c.kind in ("lds_rd", "vm_ld", "mfma")):
        if set(p.tag[1]) & c.wr:
            n = max(n, 2)
    return n


class State:
    def __init__(self):
        self.lgkm = []
        self.vm = []
        self.recent = []

    def copy(self):
        s = State()
        s.lgkm, s.vm, s.recent = list(self.lgkm), list(self.vm), list(self.recent)
        return s

    def step(self, ins):
        if ins.kind == "wait":
            if ins.lgkm is not None:
                self.lgkm = self.lgkm[len(self.lgkm) - ins.lgkm:] if ins.lgkm < len(self.lgkm) else self.lgkm
            if ins.vm is not None:
                self.vm = self.vm[len(self.vm) - ins.vm:] if ins.vm < len(self.vm) else self.vm
        elif ins.kind in ("lds_rd", "lds_wr"):
            self.lgkm.append(ins)
        elif ins.kind in ("vm_ld", "vm_st", "dma"):
            self.vm.append(ins)
        if ins.kind != "label":
            self.recent.append(ins)
            self.recent = self.recent[-24:]

    def pending_need(self, ins):
        touch = ins.rd | ins.wr
        nl = nv = None
        for k, p in enumerate(self.lgkm):
            if p.wr & touch:
                nl = len(self.lgkm) - 1 - k
        for k, p in enumerate(self.vm):
            if p.wr & touch:
                nv = len(self.vm) - 1 - k
        return nl, nv

    def missing_states(self, ins):
        d = 0
        miss = 0
        for p in reversed(self.recent):
            n = need_states(p, ins)
            if n > d:
                miss = max(miss, n - d)
            d += p.states
            if d >= 12:
                break
        return miss


def fix(block, state, hoist=False, log=None):
    out = []
    st = state.copy()
    hist = []
    for ins in block:
        nl, nv = st.pending_need(ins)
        if nl is not None or nv is not None:
            pos = len(out)
            if hoist:
                stops = ("label", "barrier")
                cands = []
                k = len(out) - 1
                while k >= 0 and len(cands) < 4 and out[k].kind not in stops:
                    if out[k].kind == "mfma":
                        cands.append(k)
                    k -= 1
                best = None
                for k in cands:
                    later = out[k + 1:]
                    if any((x.wr & (ins.rd | ins.wr)) for x in later if x.kind in ("lds_rd", "vm_ld")):
                        break
                    s2 = hist[k + 1] if k + 1 < len(hist) else st
                    l2, v2 = s2.pending_need(ins)
                    e = k + 1
                    while e < len(out) and out[e].kind != "mfma":
                        e += 1
                    g = out[k + 1:e]
                    free = gap_cost([nop(0)] + g) == gap_cost(g)
                    if best is None or free:
                        best = (k + 1, l2, v2)
                    if free:
                        break
                if best is not None:
                    pos, nl, nv = best
            w = wait(vm=min(nv, 63) if nv is not None else None, lgkm=min(nl, 15) if nl is not None else None)
            tail = out[pos:]
            if pos < len(out):
                st = hist[pos].copy()
            out = out[:pos]
            hist = hist[:pos]
            for x in [w] + tail:
                hist.append(st.copy())
                st.step(x)
                out.append(x)
            if log is not None:
                log.append(("wait", w.text, ins.text))
        miss = st.missing_states(ins)
        if miss:
            nn = nop(miss - 1)
            hist.append(st.copy())
            st.step(nn)
            out.append(nn)
            if log is not None:
                log.append(("nop", nn.text, ins.text))
        hist.append(st.copy())
        st.step(ins)
        out.append(ins)
    return out, st


def verify(trace, state=None):
    st = state.copy() if state else State()
    errs = []
    for ins in trace:
        nl, nv = st.pending_need(ins)
        if nl is not None or nv is not None:
            errs.append(f"pending load touched by: {ins.text}")
        if st.missing_states(ins):
            errs.append(f"hazard before: {ins.text}")
        st.step(ins)
    return errs, st


def gap_cost(ops):
    t = 1
    prev = None
    for o in ops:
        if o.kind == "label":
            continue
        if o.is_scalar:
            t += o.states
        else:
            t = max(t, 2)
            if o.kind in ("lds_rd", "lds_wr", "vm_ld", "vm_st", "dma") and prev is not None and prev.is_valu:
                t += 2
            t += 2 if o.kind in ("trans", "perm") else 1
            if o.kind in ("lds_wr", "vm_st"):
                t += 3
        prev = o
    return max(t, 4) * 4


def estimate(block):
    total = 0
    over = []
    cur = None
    n = 0
    for ins in block:
        if ins.kind == "mfma":
            if cur is not None:
                c = gap_cost(cur)
                total += c
                if c > 16:
                    over.append((n - 1, c, [x.text for x in cur]))
            cur = []
            n += 1
        elif cur is not None:
            cur.append(ins)
    if cur is not None:
        c = gap_cost(cur)
        total += c
        if c > 16:
            over.append((n - 1, c, [x.text for x in cur]))
    return total, over


def emit(block):
    return "".join((x.text if x.kind == "label" else "  " + x.text) + "\n" for x in block)
```

```python
import argparse
import math
import struct
from fw import *
from asmlib import wrap

NQB = 6
TILE_G = 12288
TAU = 4224
TILE_L = 3 * TAU
HEAD_Q = 147456
HEAD_KV = 393216

V_KA, V_VA, V_DMA, V_QA = "v0", "v1", "v2", "v3"
L0 = 4
T0, T1 = "v10", "v11"
S0 = 12
P0 = 20
OV0, NOV = 68, 47
QA0 = 0
QBUF = 120
KA0 = 124
VA0 = 148
OA0 = 156
SRD_K, SRD_V, SRD_Q, SRD_O = "s[16:19]", "s[20:23]", "s[24:27]", "s[28:31]"
S_W, S_KOFF, S_VOFF, S_DMA, S_SLOT, S_NEW, S_DELTA, S_CNT, S_C, S_WOFF, S_T = (f"s{i}" for i in range(32, 43))


def f32(x):
    return "0x%08x" % struct.unpack("<I", struct.pack("<f", x))[0]


def Oreg(j, db):
    n = j * 12 + db
    return R("v", OV0 + 4 * n, 4) if n < NOV else R("a", OA0 + 4 * (n - NOV), 4)


def Qreg(j, s):
    return R("a", QA0 + 4 * (j * 5 + s), 4) if s < 5 else R("a", QBUF, 4)


def Kreg(s):
    return R("a", KA0 + 4 * s, 4)


def Preg(par, j):
    return P0 + 24 * par + 4 * j


class Gen:
    def __init__(self, ring=5, pol="nt", opol="", stamps=False, cinit="-4.0"):
        self.R = ring
        self.pol, self.opol, self.stamps, self.cinit = pol, opol, stamps, cinit
        self.VBASE = ring * TILE_L
        self.QBASE = 2 * ring * TILE_L
        self.FLAG = self.QBASE + 24576
        self.lds = self.FLAG + 256
        self.nstamp = 0

    def stamp(self):
        if not self.stamps:
            return []
        r = 64 + 2 * self.nstamp
        self.nstamp += 1
        return [raw(f"s_memtime s[{r}:{r+1}]", "salu")]

    def kread(self, kb, s):
        return ds_read("ds_read_b128", Kreg(s), V_KA, (s >> 1) * TAU + (s & 1) * 64 + kb * 512)

    def vread(self, db, half, base):
        return ds_read("ds_read_b64_tr_b16", R("a", base + 2 * half, 2), V_VA, (db >> 2) * TAU + (db & 3) * 32 + half * 512)

    def qread(self, j):
        return ds_read("ds_read_b128", R("a", QBUF, 4), V_QA, j * 1024)

    def dma_pair(self, k, base_sgpr=S_DMA, koff=S_KOFF, voff=S_VOFF, slot_off=0):
        tau = k % 3
        isv = k >= 3
        imm = (self.VBASE if isv else 0) + slot_off + tau * TAU - tau * 128
        return (salu("s_add_u32", "m0", base_sgpr, imm),
                buf_dma(V_DMA, SRD_V if isv else SRD_K, voff if isv else koff, tau * 128, self.pol))

    def softmax_ops(self, n, ppar):
        kb, j = divmod(n % 12, 6)
        s = S0 + 4 * (n % 2)
        p = Preg(ppar, j) + 2 * kb
        e = [valu("v_exp_f32", f"v{s+i}", f"v{s+i}") for i in range(4)]
        a = [valu("v_add_f32", f"v{L0+j}", f"v{s+i}", f"v{L0+j}") for i in range(4)]
        c = [valu("v_cvt_pk_bf16_f32", f"v{p+i}", f"v{s+2*i}", f"v{s+2*i+1}") for i in range(2)]
        return e, a, c

    def qk(self, n, s):
        j = n % 6
        d = R("v", S0 + 4 * (n % 2), 4)
        return mfma(d, Kreg(s), Qreg(j, s), self.cinit if s == 0 else d)

    def pv(self, db, j, par, vbase):
        return mfma(Oreg(j, db), R("a", vbase, 4), R("v", Preg(par, j), 4), Oreg(j, db))

    def period(self, par, fill=False):
        N = 144
        sc = [[] for _ in range(N + 12)]
        mem = [[] for _ in range(N + 12)]
        va = [[] for _ in range(N + 12)]
        heavy = lambda n: n % 6 == 5
        for n in range(-1, 12):
            if n == -1 and fill:
                continue
            e, a, c = self.softmax_ops(n, par if n == -1 else 1 - par)
            g = 12 * n
            if heavy(n):
                plan = [(10, e[0]), (11, e[1]), (12, e[2]), (13, e[3]), (14, a[0]), (15, a[1]), (16, c[0]), (16, a[2]),
                        (17, a[3]), (18, c[1])]
            elif heavy(n + 1):
                plan = [(9, e[0]), (10, e[1]), (11, e[2]), (12, e[3]), (13, a[0]), (14, a[1]), (15, c[0]), (16, a[2]),
                        (17, a[3]), (18, c[1])]
            else:
                plan = [(9, e[0]), (10, e[1]), (11, e[2]), (12, e[3]), (13, a[0]), (14, a[1]), (15, c[0]), (16, a[2]),
                        (17, a[3]), (19, c[1])]
            for o, ins in plan:
                if g + o >= 0:
                    va[g + o].append(ins)
        for n in range(12):
            g = 12 * n
            nv = (n + 1) % 12
            vb = VA0 + 4 * ((n + 1) % 2)
            tpos = (8, 9) if heavy(n) else ((2, 3) if heavy(n - 1) else (1, 2))
            if not fill or n == 11:
                for h in range(2):
                    mem[g + tpos[h]].append(self.vread(nv, h, vb))
            mem[g + (7 if heavy(n) else 5)].append(self.qread((n + 1) % 6))
            if heavy(n):
                for s in range(6):
                    mem[g + 1 + s].append(self.kread(1 if n == 5 else 0, s))
        if not fill:
            for k, n in enumerate((1, 2, 3, 4, 7, 8)):
                m, d = self.dma_pair(k)
                sc[12 * n + 5].append(m)
                mem[12 * n + 6].append(d)
        g = 12 * 9
        book = [salu("s_add_u32", S_DMA, S_SLOT, S_WOFF),
                salu("s_add_u32", S_NEW, S_SLOT, TILE_L),
                salu("s_cmp_eq_u32", S_NEW, self.R * TILE_L),
                salu("s_cselect_b32", S_NEW, 0, S_NEW),
                salu("s_sub_u32", S_DELTA, S_NEW, S_SLOT),
                salu("s_mov_b32", S_SLOT, S_NEW)]
        if not fill:
            book += [salu("s_add_u32", S_KOFF, S_KOFF, TILE_G), salu("s_add_u32", S_VOFF, S_VOFF, TILE_G)]
        for o, ins in zip((0, 1, 2, 3, 6, 7, 8, 9), book):
            sc[g + o].append(ins)
        g = 12 * 10
        va[g + 6] += [valu("v_add_u32", V_KA, S_DELTA, V_KA), valu("v_add_u32", V_VA, S_DELTA, V_VA)]
        sc[g + 7].append(wait(vm=6 * (self.R - 2), lgkm=1))
        sc[g + 8].append(barrier())
        mf = []
        for n in range(12):
            mf += [self.qk(n, s) for s in range(6)]
            mf += [None if fill else self.pv(n, j, par, VA0 + 4 * (n % 2)) for j in range(6)]
        gaps = [sc[i] + mem[i] + va[i] for i in range(N)]
        tail = [x for i in range(N, N + 12) for x in va[i]]
        return mf, gaps, tail

    @staticmethod
    def flat(mf, gaps, lo, hi):
        out = []
        for i in range(lo, hi):
            if mf[i] is not None:
                out.append(mf[i])
            out += gaps[i]
        return out

    def prologue(self):
        b = []
        b += [salu("s_cmp_ge_u32", "s2", 256), branch("s_cbranch_scc1", "L_end"),
              raw("s_load_dwordx4 s[4:7], s[0:1], 0", "smem"), raw("s_load_dwordx4 s[8:11], s[0:1], 16", "smem")]
        if self.stamps:
            b += [raw("s_load_dwordx4 s[12:15], s[0:1], 32", "smem"),
                  raw("s_memrealtime s[56:57]"), raw("s_memtime s[58:59]")]
        lane, w = "v4", "v5"
        b += [valu("v_and_b32", lane, 63, "v0"), valu("v_lshrrev_b32", w, 6, "v0"),
              valu("v_readfirstlane_b32", S_W, w)]
        b += [valu("v_lshrrev_b32", "v6", 4, lane), valu("v_lshlrev_b32", "v6", 3, "v6"),
              valu("v_bfe_u32", "v7", lane, 3, 1), valu("v_add_u32", "v6", "v6", "v7"),
              valu("v_lshl_add_u32", "v6", w, 1, "v6"), valu("v_mul_u32_u24", "v6", 384, "v6"),
              valu("v_and_b32", "v7", 7, lane), valu("v_lshl_add_u32", V_DMA, "v7", 4, "v6")]

        def lds_row(dst, key):
            return [valu("v_bfe_u32", "v8", key, 1, 2), valu("v_mul_u32_u24", "v8", 1056, "v8"),
                    valu("v_lshrrev_b32", "v9", 3, key), valu("v_lshlrev_b32", "v9", 1, "v9"),
                    valu("v_and_b32", dst, 1, key), valu("v_add_u32", "v9", "v9", dst),
                    valu("v_lshl_add_u32", dst, "v9", 7, "v8")]
        q16, g = "v6", "v7"
        b += [valu("v_and_b32", q16, 15, lane), valu("v_lshrrev_b32", g, 4, lane)]
        b += lds_row(V_KA, q16) + [valu("v_lshl_add_u32", V_KA, g, 4, V_KA)]
        b += [valu("v_mul_u32_u24", T0, 96, w), valu("v_add_u32", T0, T0, q16),
              valu("v_mul_u32_u24", T0, 384, T0), valu("v_lshl_add_u32", T0, g, 4, T0)]
        b += [valu("v_lshrrev_b32", "v6", 2, lane)] + lds_row(V_VA, "v6")
        b += [valu("v_and_b32", "v6", 3, lane), valu("v_lshl_add_u32", V_VA, "v6", 3, V_VA),
              valu("v_add_u32", V_VA, self.VBASE, V_VA)]
        b += [valu("v_mul_u32_u24", V_QA, 6144, w), valu("v_lshl_add_u32", V_QA, lane, 4, V_QA),
              valu("v_add_u32", V_QA, self.QBASE, V_QA)]
        b += [raw("s_waitcnt lgkmcnt(0)", "salu")]
        b += [salu("s_mul_i32", S_T, "s2", HEAD_KV),
              salu("s_add_u32", "s16", "s6", S_T), salu("s_addc_u32", "s17", "s7", 0),
              salu("s_mov_b32", "s18", HEAD_KV), salu("s_mov_b32", "s19", "0x20000"),
              salu("s_add_u32", "s20", "s8", S_T), salu("s_addc_u32", "s21", "s9", 0),
              salu("s_mov_b32", "s22", HEAD_KV), salu("s_mov_b32", "s23", "0x20000"),
              salu("s_mul_i32", S_T, "s2", HEAD_Q),
              salu("s_add_u32", "s24", "s4", S_T), salu("s_addc_u32", "s25", "s5", 0),
              salu("s_mov_b32", "s26", HEAD_Q), salu("s_mov_b32", "s27", "0x20000"),
              salu("s_add_u32", "s28", "s10", S_T), salu("s_addc_u32", "s29", "s11", 0),
              salu("s_mov_b32", "s30", HEAD_Q), salu("s_mov_b32", "s31", "0x20000"),
              salu("s_mul_i32", S_WOFF, S_W, 1056),
              salu("s_mov_b32", S_C, f32(math.log2(math.e) / math.sqrt(192.0))),
              salu("s_mov_b32", S_SLOT, 0), salu("s_mov_b32", S_CNT, 15)]

        def group(ktile, vtile):
            o = []
            for k in range(6):
                tile = vtile if k >= 3 else ktile
                if tile is None:
                    continue
                slot = (tile + 1) % self.R if k >= 3 else tile % self.R
                if k % 3 == 0:
                    o.append(salu("s_mov_b32", S_T, tile * TILE_G))
                o += list(self.dma_pair(k, S_WOFF, S_T, S_T, slot * TILE_L))
            return o
        b += group(0, None)
        stage = lambda j, s: OV0 + 4 * (j * 6 + s)
        for j in range(NQB):
            b.append(salu("s_mov_b32", S_T, j * 16 * 384))
            for s in range(6):
                b.append(buf_load(R("v", stage(j, s), 4), T0, SRD_Q, S_T, s * 64, self.pol))
        b += group(1, 0)
        for r in range(OA0, 256):
            b.append(valu("v_accvgpr_write_b32", f"a{r}", 0))
        for r in list(range(OV0 + 144, 256)) + list(range(L0, L0 + 6)):
            b.append(valu("v_mov_b32", f"v{r}", 0))
        tmp = P0
        for j in range(NQB):
            for s in range(6):
                r0 = stage(j, s)
                for i in range(4):
                    b += [valu("v_lshlrev_b32", f"v{tmp+2*i}", 16, f"v{r0+i}"),
                          valu("v_and_b32", f"v{tmp+2*i+1}", "0xffff0000", f"v{r0+i}")]
                for i in range(8):
                    b.append(valu("v_mul_f32", f"v{tmp+i}", S_C, f"v{tmp+i}"))
                for i in range(4):
                    b.append(valu("v_cvt_pk_bf16_f32", f"v{tmp+8+i}", f"v{tmp+2*i}", f"v{tmp+2*i+1}"))
                if s < 5:
                    for i in range(4):
                        b.append(valu("v_accvgpr_write_b32", f"a{QA0+4*(j*5+s)+i}", f"v{tmp+8+i}"))
                else:
                    b.append(ds_write("ds_write_b128", V_QA, R("v", tmp + 8, 4), j * 1024))
                    tmp = P0 + 12 if tmp == P0 else P0
                for i in range(4):
                    b.append(valu("v_mov_b32", f"v{r0+i}", 0))
        b += self.stamp()
        b += [wait(lgkm=0), barrier()]
        b += [self.kread(0, s) for s in range(6)] + [self.qread(0)]
        late = []
        for t in range(2, self.R):
            late += group(t, t - 1)
        b += late
        b += [salu("s_mov_b32", S_KOFF, self.R * TILE_G), salu("s_mov_b32", S_VOFF, (self.R - 1) * TILE_G)]
        return b

    def drain(self, par, tail):
        b = list(tail)
        bufs = [VA0, VA0 + 4] + [KA0 + 4 * i for i in range(6)]
        ahead = 3
        for db in range(1, ahead):
            b += [self.vread(db, h, bufs[db % 8]) for h in range(2)]
        for db in range(12):
            for j in range(6):
                b.append(self.pv(db, j, par, bufs[db % 8]))
                if j < 2 and db + ahead < 12:
                    b.append(self.vread(db + ahead, j, bufs[(db + ahead) % 8]))
        return b

    def epilogue(self):
        b = []
        for j in range(NQB):
            l = f"v{L0+j}"
            b += [valu("v_mov_b32", T0, l), valu("v_permlane32_swap_b32", l, T0), valu("v_add_f32", l, l, T0),
                  valu("v_mov_b32", T0, l), valu("v_permlane16_swap_b32", l, T0), valu("v_add_f32", l, l, T0),
                  valu("v_rcp_f32", l, l)]
        b += [raw("v_mbcnt_lo_u32_b32 v0, -1, 0", "valu", [], ["v0"]),
              raw("v_mbcnt_hi_u32_b32 v0, -1, v0", "valu", ["v0"], ["v0"]),
              valu("v_and_b32", "v1", 15, "v0"), salu("s_mul_i32", S_T, S_W, 96), valu("v_add_u32", "v1", S_T, "v1"),
              valu("v_mul_u32_u24", "v1", 384, "v1"),
              valu("v_bfe_u32", "v2", "v0", 4, 1), valu("v_lshl_add_u32", "v1", "v2", 5, "v1"),
              valu("v_lshrrev_b32", "v2", 5, "v0"), valu("v_lshl_add_u32", "v1", "v2", 4, "v1")]
        k = 0
        for j in range(NQB):
            b.append(salu("s_mov_b32", S_T, j * 16 * 384))
            for m in range(6):
                t = P0 + 12 * (k % 4)
                k += 1
                for h in range(2):
                    src = expand(Oreg(j, 2 * m + h))
                    if src[0][0] == "a":
                        b += [valu("v_accvgpr_read_b32", f"v{t+4*h+i}", src[i]) for i in range(4)]
                        src = [f"v{t+4*h+i}" for i in range(4)]
                    b += [valu("v_mul_f32", f"v{t+4*h+i}", src[i], f"v{L0+j}") for i in range(4)]
                b += [valu("v_cvt_pk_bf16_f32", f"v{t+8+i}", f"v{t+2*i}", f"v{t+2*i+1}") for i in range(4)]
                b += [valu("v_permlane16_swap_b32", f"v{t+8}", f"v{t+10}"),
                      valu("v_permlane16_swap_b32", f"v{t+9}", f"v{t+11}"),
                      buf_store(R("v", t + 8, 4), "v1", SRD_O, S_T, m * 64, self.opol)]
        return b

    def stamp_out(self):
        if not self.stamps:
            return ""
        n = 4 + self.nstamp
        s = "  s_waitcnt vmcnt(0)\n  s_barrier\n  s_memrealtime s[60:61]\n  s_memtime s[62:63]\n  s_waitcnt lgkmcnt(0)\n"
        s += f"  s_cmp_lg_u32 {S_W}, 0\n  s_cbranch_scc1 L_end\n  s_mov_b64 exec, 1\n"
        s += f"  s_mul_i32 s3, s2, {8*n}\n  v_mov_b32 v1, s3\n"
        for i in range(n):
            r = 56 + 2 * i
            s += f"  v_mov_b32 v2, s{r}\n  v_mov_b32 v3, s{r+1}\n  global_store_dwordx2 v1, v[2:3], s[14:15] offset:{8*i}\n  s_nop 1\n"
        return s

    def build(self, verbose=False):
        ROT = 8
        pro = self.prologue()
        mfF, gF, _ = self.period(1, fill=True)
        mfE, gE, tailE = self.period(0)
        mfO, gO, _ = self.period(1)
        gE[12 * 11 + 7].append(salu("s_cmp_eq_u32", S_CNT, 0))
        exit_tail = gE[143] + tailE
        gE[143] = [branch("s_cbranch_scc1", "L_drain")] + gE[143]
        gO[12 * 11 + 7].append(salu("s_sub_u32", S_CNT, S_CNT, 1))
        fill = self.flat(mfF, gF, 0, 144) + self.stamp()
        head = self.flat(mfE, gE, 0, ROT)
        body = self.flat(mfE, gE, ROT, 144) + self.flat(mfO, gO, 0, 144) + self.flat(mfE, gE, 0, ROT)
        body.append(branch("s_branch", "L_top"))

        log = []
        pro, st = fix(pro + fill, State())
        head1, st1 = fix(head, st, hoist=True)
        body1, st2 = fix(body, st1, hoist=True)
        body2, st3 = fix(body, st2, hoist=True, log=log)
        errs, _ = verify(pro + head1 + body2 + body2 + body2)
        assert not errs, errs[:10]
        kx = next(i for i, x in enumerate(body2) if x.kind == "branch")
        _, stx = verify(pro + head1 + body2 + body2[:kx + 1])
        post = self.drain(1, exit_tail) + self.stamp() + self.epilogue()
        post, _ = fix(post, stx, hoist=False)
        errs, _ = verify(pro + head1 + body2[:kx + 1] + post)
        assert not errs, errs[:10]
        if verbose:
            tot, over = estimate(body2)
            print("loop estimate cycles (288 mfma, ideal 4608):", tot)
            for o in over:
                print("  over:", o)
            print("  inserted:", [x for x in log if x[0] == "nop"])
            print("  waits:", len([x for x in log if x[0] == "wait"]), "instrs:", len(body2))
        text = emit(pro + head1) + ".p2align 6\nL_top:\n" + emit(body2) + "L_drain:\n" + emit(post)
        text += self.stamp_out() + "L_end:\n  s_endpgm\n"
        return wrap(text, 256, 256, self.lds, 512, 256)


if __name__ == "__main__":
    ap = argparse.ArgumentParser()
    ap.add_argument("-o", default="k.s")
    ap.add_argument("--stamps", action="store_true")
    ap.add_argument("--ring", type=int, default=5)
    ap.add_argument("--pol", default="nt")
    ap.add_argument("--opol", default="")
    ap.add_argument("-v", action="store_true")
    a = ap.parse_args()
    g = Gen(ring=a.ring, pol=a.pol, opol=a.opol, stamps=a.stamps)
    open(a.o, "w").write(g.build(a.v))
```

```python
import argparse
import math
import struct
from fw import *
from asmlib import wrap

NQB = 6
TILE_G = 12288
TAU = 4224
TILE_L = 3 * TAU
HEAD_Q = 147456
HEAD_KV = 393216

V_KA, V_VA, V_DMA, V_QA = "v0", "v1", "v2", "v3"
L0 = 4
T0, T1 = "v10", "v11"
S0 = 12
P0 = 20
OV0, NOV = 68, 47
QA0 = 0
QBUF = 120
KA0 = 124
VA0 = 148
OA0 = 156
SRD_K, SRD_V, SRD_Q, SRD_O = "s[16:19]", "s[20:23]", "s[24:27]", "s[28:31]"
S_W, S_KOFF, S_VOFF, S_DMA, S_SLOT, S_NEW, S_DELTA, S_CNT, S_C, S_WOFF, S_T = (f"s{i}" for i in range(32, 43))


def f32(x):
    return "0x%08x" % struct.unpack("<I", struct.pack("<f", x))[0]


def Oreg(j, db):
    n = j * 12 + db
    return R("v", OV0 + 4 * n, 4) if n < NOV else R("a", OA0 + 4 * (n - NOV), 4)


def Qreg(j, s):
    return R("a", QA0 + 4 * (j * 5 + s), 4) if s < 5 else R("a", QBUF, 4)


def Kreg(s):
    return R("a", KA0 + 4 * s, 4)


def Preg(par, j):
    return P0 + 24 * par + 4 * j


class Gen:
    def __init__(self, ring=5, pol="nt", opol="", stamps=False, cinit="-4.0"):
        self.R = ring
        self.pol, self.opol, self.stamps, self.cinit = pol, opol, stamps, cinit
        self.VBASE = ring * TILE_L
        self.QBASE = 2 * ring * TILE_L
        self.FLAG = self.QBASE + 24576
        self.lds = self.FLAG + 256
        self.nstamp = 0

    def stamp(self):
        if not self.stamps:
            return []
        r = 64 + 4 * self.nstamp
        self.nstamp += 1
        return [raw(f"s_memtime s[{r}:{r+1}]", "salu"), raw(f"s_memrealtime s[{r+2}:{r+3}]", "salu")]

    def kread(self, kb, s):
        return ds_read("ds_read_b128", Kreg(s), V_KA, (s >> 1) * TAU + (s & 1) * 64 + kb * 512)

    def vread(self, db, half, base):
        return ds_read("ds_read_b64_tr_b16", R("a", base + 2 * half, 2), V_VA, (db >> 2) * TAU + (db & 3) * 32 + half * 512)

    def qread(self, j):
        return ds_read("ds_read_b128", R("a", QBUF, 4), V_QA, j * 1024)

    def dma_pair(self, k, base_sgpr=S_DMA, koff=S_KOFF, voff=S_VOFF, slot_off=0):
        tau = k % 3
        isv = k >= 3
        imm = (self.VBASE if isv else 0) + slot_off + tau * TAU - tau * 128
        return (salu("s_add_u32", "m0", base_sgpr, imm),
                buf_dma(V_DMA, SRD_V if isv else SRD_K, voff if isv else koff, tau * 128, self.pol))

    def softmax_ops(self, n, ppar):
        kb, j = divmod(n % 12, 6)
        s = S0 + 4 * (n % 2)
        p = Preg(ppar, j) + 2 * kb
        e = [valu("v_exp_f32", f"v{s+i}", f"v{s+i}") for i in range(4)]
        a = [valu("v_add_f32", f"v{L0+j}", f"v{s+i}", f"v{L0+j}") for i in range(4)]
        c = [valu("v_cvt_pk_bf16_f32", f"v{p+i}", f"v{s+2*i}", f"v{s+2*i+1}") for i in range(2)]
        return e, a, c

    def qk(self, n, s):
        j = n % 6
        d = R("v", S0 + 4 * (n % 2), 4)
        return mfma(d, Kreg(s), Qreg(j, s), self.cinit if s == 0 else d)

    def pv(self, db, j, par, vbase):
        return mfma(Oreg(j, db), R("a", vbase, 4), R("v", Preg(par, j), 4), Oreg(j, db))

    def period(self, par, fill=False):
        N = 144
        sc = [[] for _ in range(N + 12)]
        mem = [[] for _ in range(N + 12)]
        va = [[] for _ in range(N + 12)]
        heavy = lambda n: n % 6 == 5
        for n in range(-1, 12):
            if n == -1 and fill:
                continue
            e, a, c = self.softmax_ops(n, par if n == -1 else 1 - par)
            g = 12 * n
            if heavy(n):
                plan = [(10, e[0]), (11, e[1]), (12, e[2]), (13, e[3]), (14, a[0]), (15, a[1]), (16, c[0]), (16, a[2]),
                        (17, a[3]), (18, c[1])]
            elif heavy(n + 1):
                plan = [(9, e[0]), (10, e[1]), (11, e[2]), (12, e[3]), (13, a[0]), (14, a[1]), (15, c[0]), (16, a[2]),
                        (17, a[3]), (18, c[1])]
            else:
                plan = [(9, e[0]), (10, e[1]), (11, e[2]), (12, e[3]), (13, a[0]), (14, a[1]), (15, c[0]), (16, a[2]),
                        (17, a[3]), (19, c[1])]
            for o, ins in plan:
                if g + o >= 0:
                    va[g + o].append(ins)
        for n in range(12):
            g = 12 * n
            nv = (n + 1) % 12
            vb = VA0 + 4 * ((n + 1) % 2)
            tpos = (8, 9) if heavy(n) else ((2, 3) if heavy(n - 1) else (1, 2))
            if not fill or n == 11:
                for h in range(2):
                    mem[g + tpos[h]].append(self.vread(nv, h, vb))
            mem[g + (7 if heavy(n) else 5)].append(self.qread((n + 1) % 6))
            if heavy(n):
                for s in range(6):
                    mem[g + 1 + s].append(self.kread(1 if n == 5 else 0, s))
        if not fill:
            for k, n in enumerate((1, 2, 3, 4, 7, 8)):
                m, d = self.dma_pair(k)
                sc[12 * n + 5].append(m)
                mem[12 * n + 6].append(d)
        g = 12 * 9
        book = [salu("s_add_u32", S_DMA, S_SLOT, S_WOFF),
                salu("s_add_u32", S_NEW, S_SLOT, TILE_L),
                salu("s_cmp_eq_u32", S_NEW, self.R * TILE_L),
                salu("s_cselect_b32", S_NEW, 0, S_NEW),
                salu("s_sub_u32", S_DELTA, S_NEW, S_SLOT),
                salu("s_mov_b32", S_SLOT, S_NEW)]
        if not fill:
            book += [salu("s_add_u32", S_KOFF, S_KOFF, TILE_G), salu("s_add_u32", S_VOFF, S_VOFF, TILE_G)]
        for o, ins in zip((0, 1, 2, 3, 6, 7, 8, 9), book):
            sc[g + o].append(ins)
        g = 12 * 10
        va[g + 6] += [valu("v_add_u32", V_KA, S_DELTA, V_KA), valu("v_add_u32", V_VA, S_DELTA, V_VA)]
        sc[g + 7].append(wait(vm=6 * (self.R - 2), lgkm=1))
        sc[g + 8].append(barrier())
        mf = []
        for n in range(12):
            mf += [self.qk(n, s) for s in range(6)]
            mf += [None if fill else self.pv(n, j, par, VA0 + 4 * (n % 2)) for j in range(6)]
        gaps = [sc[i] + mem[i] + va[i] for i in range(N)]
        tail = [x for i in range(N, N + 12) for x in va[i]]
        return mf, gaps, tail

    @staticmethod
    def flat(mf, gaps, lo, hi):
        out = []
        for i in range(lo, hi):
            if mf[i] is not None:
                out.append(mf[i])
            out += gaps[i]
        return out

    def prologue(self):
        b = []
        b += [salu("s_cmp_ge_u32", "s2", 256), branch("s_cbranch_scc1", "L_end"),
              raw("s_load_dwordx4 s[4:7], s[0:1], 0", "smem"), raw("s_load_dwordx4 s[8:11], s[0:1], 16", "smem")]
        if self.stamps:
            b += [raw("s_load_dwordx4 s[12:15], s[0:1], 32", "smem"),
                  raw("s_memrealtime s[56:57]"), raw("s_memtime s[58:59]")]
        lane, w = "v4", "v5"
        b += [valu("v_and_b32", lane, 63, "v0"), valu("v_lshrrev_b32", w, 6, "v0"),
              valu("v_readfirstlane_b32", S_W, w)]
        b += [valu("v_lshrrev_b32", "v6", 4, lane), valu("v_lshlrev_b32", "v6", 3, "v6"),
              valu("v_bfe_u32", "v7", lane, 3, 1), valu("v_add_u32", "v6", "v6", "v7"),
              valu("v_lshl_add_u32", "v6", w, 1, "v6"), valu("v_mul_u32_u24", "v6", 384, "v6"),
              valu("v_and_b32", "v7", 7, lane), valu("v_lshl_add_u32", V_DMA, "v7", 4, "v6")]

        def lds_row(dst, key):
            return [valu("v_bfe_u32", "v8", key, 1, 2), valu("v_mul_u32_u24", "v8", 1056, "v8"),
                    valu("v_lshrrev_b32", "v9", 3, key), valu("v_lshlrev_b32", "v9", 1, "v9"),
                    valu("v_and_b32", dst, 1, key), valu("v_add_u32", "v9", "v9", dst),
                    valu("v_lshl_add_u32", dst, "v9", 7, "v8")]
        q16, g = "v6", "v7"
        b += [valu("v_and_b32", q16, 15, lane), valu("v_lshrrev_b32", g, 4, lane)]
        b += lds_row(V_KA, q16) + [valu("v_lshl_add_u32", V_KA, g, 4, V_KA)]
        b += [valu("v_mul_u32_u24", T0, 96, w), valu("v_add_u32", T0, T0, q16),
              valu("v_mul_u32_u24", T0, 384, T0), valu("v_lshl_add_u32", T0, g, 4, T0)]
        b += [valu("v_lshrrev_b32", "v6", 2, lane)] + lds_row(V_VA, "v6")
        b += [valu("v_and_b32", "v6", 3, lane), valu("v_lshl_add_u32", V_VA, "v6", 3, V_VA),
              valu("v_add_u32", V_VA, self.VBASE, V_VA)]
        b += [valu("v_mul_u32_u24", V_QA, 6144, w), valu("v_lshl_add_u32", V_QA, lane, 4, V_QA),
              valu("v_add_u32", V_QA, self.QBASE, V_QA)]
        b += [raw("s_waitcnt lgkmcnt(0)", "salu")]
        b += [salu("s_mul_i32", S_T, "s2", HEAD_KV),
              salu("s_add_u32", "s16", "s6", S_T), salu("s_addc_u32", "s17", "s7", 0),
              salu("s_mov_b32", "s18", HEAD_KV), salu("s_mov_b32", "s19", "0x20000"),
              salu("s_add_u32", "s20", "s8", S_T), salu("s_addc_u32", "s21", "s9", 0),
              salu("s_mov_b32", "s22", HEAD_KV), salu("s_mov_b32", "s23", "0x20000"),
              salu("s_mul_i32", S_T, "s2", HEAD_Q),
              salu("s_add_u32", "s24", "s4", S_T), salu("s_addc_u32", "s25", "s5", 0),
              salu("s_mov_b32", "s26", HEAD_Q), salu("s_mov_b32", "s27", "0x20000"),
              salu("s_add_u32", "s28", "s10", S_T), salu("s_addc_u32", "s29", "s11", 0),
              salu("s_mov_b32", "s30", HEAD_Q), salu("s_mov_b32", "s31", "0x20000"),
              salu("s_mul_i32", S_WOFF, S_W, 1056),
              salu("s_mov_b32", S_C, f32(math.log2(math.e) / math.sqrt(192.0))),
              salu("s_mov_b32", S_SLOT, 0), salu("s_mov_b32", S_CNT, 15)]

        def group(ktile, vtile):
            o = []
            for k in range(6):
                tile = vtile if k >= 3 else ktile
                if tile is None:
                    continue
                slot = (tile + 1) % self.R if k >= 3 else tile % self.R
                if k % 3 == 0:
                    o.append(salu("s_mov_b32", S_T, tile * TILE_G))
                o += list(self.dma_pair(k, S_WOFF, S_T, S_T, slot * TILE_L))
            return o
        b += group(0, None)
        stage = lambda j, s: OV0 + 4 * (j * 6 + s)
        for j in range(NQB):
            b.append(salu("s_mov_b32", S_T, j * 16 * 384))
            for s in range(6):
                b.append(buf_load(R("v", stage(j, s), 4), T0, SRD_Q, S_T, s * 64, self.pol))
        b += group(1, 0)
        for r in range(OA0, 256):
            b.append(valu("v_accvgpr_write_b32", f"a{r}", 0))
        for r in list(range(OV0 + 144, 256)) + list(range(L0, L0 + 6)):
            b.append(valu("v_mov_b32", f"v{r}", 0))
        tmp = P0
        for j in range(NQB):
            for s in range(6):
                r0 = stage(j, s)
                for i in range(4):
                    b += [valu("v_lshlrev_b32", f"v{tmp+2*i}", 16, f"v{r0+i}"),
                          valu("v_and_b32", f"v{tmp+2*i+1}", "0xffff0000", f"v{r0+i}")]
                for i in range(8):
                    b.append(valu("v_mul_f32", f"v{tmp+i}", S_C, f"v{tmp+i}"))
                for i in range(4):
                    b.append(valu("v_cvt_pk_bf16_f32", f"v{tmp+8+i}", f"v{tmp+2*i}", f"v{tmp+2*i+1}"))
                if s < 5:
                    for i in range(4):
                        b.append(valu("v_accvgpr_write_b32", f"a{QA0+4*(j*5+s)+i}", f"v{tmp+8+i}"))
                else:
                    b.append(ds_write("ds_write_b128", V_QA, R("v", tmp + 8, 4), j * 1024))
                    tmp = P0 + 12 if tmp == P0 else P0
                for i in range(4):
                    b.append(valu("v_mov_b32", f"v{r0+i}", 0))
        b += self.stamp()
        b += [wait(lgkm=0), barrier()]
        b += [self.kread(0, s) for s in range(6)] + [self.qread(0)]
        late = []
        for t in range(2, self.R):
            late += group(t, t - 1)
        b += late
        b += [salu("s_mov_b32", S_KOFF, self.R * TILE_G), salu("s_mov_b32", S_VOFF, (self.R - 1) * TILE_G)]
        return b

    def drain(self, par, tail):
        b = list(tail)
        bufs = [VA0, VA0 + 4] + [KA0 + 4 * i for i in range(6)]
        ahead = 3
        for db in range(1, ahead):
            b += [self.vread(db, h, bufs[db % 8]) for h in range(2)]
        for db in range(12):
            for j in range(6):
                b.append(self.pv(db, j, par, bufs[db % 8]))
                if j < 2 and db + ahead < 12:
                    b.append(self.vread(db + ahead, j, bufs[(db + ahead) % 8]))
        return b

    def epilogue(self):
        b = []
        for j in range(NQB):
            l = f"v{L0+j}"
            b += [valu("v_mov_b32", T0, l), valu("v_permlane32_swap_b32", l, T0), valu("v_add_f32", l, l, T0),
                  valu("v_mov_b32", T0, l), valu("v_permlane16_swap_b32", l, T0), valu("v_add_f32", l, l, T0),
                  valu("v_rcp_f32", l, l)]
        b += [raw("v_mbcnt_lo_u32_b32 v0, -1, 0", "valu", [], ["v0"]),
              raw("v_mbcnt_hi_u32_b32 v0, -1, v0", "valu", ["v0"], ["v0"]),
              valu("v_and_b32", "v1", 15, "v0"), salu("s_mul_i32", S_T, S_W, 96), valu("v_add_u32", "v1", S_T, "v1"),
              valu("v_mul_u32_u24", "v1", 384, "v1"),
              valu("v_bfe_u32", "v2", "v0", 4, 1), valu("v_lshl_add_u32", "v1", "v2", 5, "v1"),
              valu("v_lshrrev_b32", "v2", 5, "v0"), valu("v_lshl_add_u32", "v1", "v2", 4, "v1")]
        k = 0
        for j in range(NQB):
            b.append(salu("s_mov_b32", S_T, j * 16 * 384))
            for m in range(6):
                t = P0 + 12 * (k % 4)
                k += 1
                for h in range(2):
                    src = expand(Oreg(j, 2 * m + h))
                    if src[0][0] == "a":
                        b += [valu("v_accvgpr_read_b32", f"v{t+4*h+i}", src[i]) for i in range(4)]
                        src = [f"v{t+4*h+i}" for i in range(4)]
                    b += [valu("v_mul_f32", f"v{t+4*h+i}", src[i], f"v{L0+j}") for i in range(4)]
                b += [valu("v_cvt_pk_bf16_f32", f"v{t+8+i}", f"v{t+2*i}", f"v{t+2*i+1}") for i in range(4)]
                b += [valu("v_permlane16_swap_b32", f"v{t+8}", f"v{t+10}"),
                      valu("v_permlane16_swap_b32", f"v{t+9}", f"v{t+11}"),
                      buf_store(R("v", t + 8, 4), "v1", SRD_O, S_T, m * 64, self.opol)]
        return b

    def stamp_out(self):
        if not self.stamps:
            return ""
        n = 4 + 2 * self.nstamp
        s = "  s_waitcnt vmcnt(0)\n  s_barrier\n  s_memrealtime s[60:61]\n  s_memtime s[62:63]\n  s_waitcnt lgkmcnt(0)\n"
        s += f"  s_cmp_lg_u32 {S_W}, 0\n  s_cbranch_scc1 L_end\n  s_mov_b64 exec, 1\n"
        if self.stamps == "dbg":
            s += "  v_mov_b32 v1, 0\n  v_mov_b32 v2, s60\n  global_atomic_umax v1, v2, s[12:13]\n"
            s += "  s_not_b32 s3, s56\n  v_mov_b32 v3, s3\n  global_atomic_umax v1, v3, s[12:13] offset:4\n"
            s += "  v_mov_b32 v4, s56\n  global_atomic_umax v1, v4, s[12:13] offset:8\n"
            s += "  s_cmp_lg_u32 s2, 100\n  s_cbranch_scc1 L_end\n"
            vals = [(66 + 4 * i, 56) for i in range(self.nstamp)] + [(60, 56)] + [(64 + 4 * i, 58) for i in range(self.nstamp)] + [(62, 58)]
            for i, (x, y) in enumerate(vals):
                s += f"  s_sub_u32 s3, s{x}, s{y}\n  v_mov_b32 v2, s3\n  global_store_dword v1, v2, s[12:13] offset:{16+4*i}\n"
            return s
        s += f"  s_mul_i32 s3, s2, {8*n}\n  v_mov_b32 v1, s3\n"
        for i in range(n):
            r = 56 + 2 * i
            s += f"  v_mov_b32 v2, s{r}\n  v_mov_b32 v3, s{r+1}\n  global_store_dwordx2 v1, v[2:3], s[14:15] offset:{8*i}\n  s_nop 1\n"
        return s

    def build(self, verbose=False):
        ROT = 8
        pro = self.prologue()
        mfF, gF, _ = self.period(1, fill=True)
        mfE, gE, tailE = self.period(0)
        mfO, gO, _ = self.period(1)
        gE[12 * 11 + 7].append(salu("s_cmp_eq_u32", S_CNT, 0))
        exit_tail = gE[143] + tailE
        gE[143] = [branch("s_cbranch_scc1", "L_drain")] + gE[143]
        gO[12 * 11 + 7].append(salu("s_sub_u32", S_CNT, S_CNT, 1))
        fill = self.flat(mfF, gF, 0, 144) + self.stamp()
        head = self.flat(mfE, gE, 0, ROT)
        body = self.flat(mfE, gE, ROT, 144) + self.flat(mfO, gO, 0, 144) + self.flat(mfE, gE, 0, ROT)
        body.append(branch("s_branch", "L_top"))

        log = []
        pro, st = fix(pro + fill, State())
        head1, st1 = fix(head, st, hoist=True)
        body1, st2 = fix(body, st1, hoist=True)
        body2, st3 = fix(body, st2, hoist=True, log=log)
        errs, _ = verify(pro + head1 + body2 + body2 + body2)
        assert not errs, errs[:10]
        kx = next(i for i, x in enumerate(body2) if x.kind == "branch")
        _, stx = verify(pro + head1 + body2 + body2[:kx + 1])
        post = self.drain(1, exit_tail) + self.stamp() + self.epilogue()
        post, _ = fix(post, stx, hoist=False)
        errs, _ = verify(pro + head1 + body2[:kx + 1] + post)
        assert not errs, errs[:10]
        if verbose:
            tot, over = estimate(body2)
            print("loop estimate cycles (288 mfma, ideal 4608):", tot)
            for o in over:
                print("  over:", o)
            print("  inserted:", [x for x in log if x[0] == "nop"])
            print("  waits:", len([x for x in log if x[0] == "wait"]), "instrs:", len(body2))
        text = emit(pro + head1) + ".p2align 6\nL_top:\n" + emit(body2) + "L_drain:\n" + emit(post)
        text += self.stamp_out() + "L_end:\n  s_endpgm\n"
        return wrap(text, 256, 256, self.lds, 512, 256)


if __name__ == "__main__":
    ap = argparse.ArgumentParser()
    ap.add_argument("-o", default="k.s")
    ap.add_argument("--stamps", default="")
    ap.add_argument("--ring", type=int, default=5)
    ap.add_argument("--pol", default="nt")
    ap.add_argument("--opol", default="")
    ap.add_argument("-v", action="store_true")
    a = ap.parse_args()
    g = Gen(ring=a.ring, pol=a.pol, opol=a.opol, stamps=a.stamps)
    open(a.o, "w").write(g.build(a.v))
```

```python
import argparse
import math
import struct
from fw import *
from asmlib import wrap

NQB = 6
TILE_G = 12288
TAU = 4192
TILE_L = 3 * TAU
HEAD_Q = 147456
HEAD_KV = 393216

V_KA, V_VA, V_DMA, V_QA = "v0", "v1", "v2", "v3"
L0 = 4
T0, T1 = "v10", "v11"
S0 = 12
P0 = 20
OV0, NOV = 68, 47
QA0 = 0
QBUF = 120
KA0 = 124
VA0 = 148
OA0 = 156
SRD_K, SRD_V, SRD_Q, SRD_O = "s[16:19]", "s[20:23]", "s[24:27]", "s[28:31]"
S_W, S_KOFF, S_VOFF, S_DMA, S_SLOT, S_NEW, S_DELTA, S_CNT, S_C, S_WOFF, S_T = (f"s{i}" for i in range(32, 43))


def f32(x):
    return "0x%08x" % struct.unpack("<I", struct.pack("<f", x))[0]


def Oreg(j, db):
    n = j * 12 + db
    return R("v", OV0 + 4 * n, 4) if n < NOV else R("a", OA0 + 4 * (n - NOV), 4)


def Qreg(j, s):
    return R("a", QA0 + 4 * (j * 5 + s), 4) if s < 5 else R("a", QBUF, 4)


def Kreg(s):
    return R("a", KA0 + 4 * s, 4)


def Preg(par, j):
    return P0 + 24 * par + 4 * j


class Gen:
    def __init__(self, ring=5, pol="nt", opol="", stamps=False, cinit="-4.0", abl="", provar=0):
        self.provar = provar
        self.abl = abl
        self.R = ring
        self.pol, self.opol, self.stamps, self.cinit = pol, opol, stamps, cinit
        self.VBASE = ring * TILE_L
        assert ring == 5
        self.QBASE = (2 * ring + 1) * TILE_L
        self.FLAG = self.QBASE + 24576
        self.lds = self.FLAG + 256
        self.nstamp = 0

    def stamp(self):
        if not self.stamps:
            return []
        r = 64 + 4 * self.nstamp
        self.nstamp += 1
        return [raw(f"s_memtime s[{r}:{r+1}]", "salu"), raw(f"s_memrealtime s[{r+2}:{r+3}]", "salu")]

    def kread(self, kb, s):
        return ds_read("ds_read_b128", Kreg(s), V_KA, (s >> 1) * TAU + (s & 1) * 64 + kb * 512)

    def vread(self, db, half, base):
        return ds_read("ds_read_b64_tr_b16", R("a", base + 2 * half, 2), V_VA, (db >> 2) * TAU + (db & 3) * 32 + half * 512)

    def qread(self, j):
        return ds_read("ds_read_b128", R("a", QBUF, 4), V_QA, j * 1024)

    def dma_pair(self, k, base_sgpr=S_DMA, koff=S_KOFF, voff=S_VOFF, slot_off=0):
        tau = k % 3
        isv = k >= 3
        imm = (self.VBASE if isv else 0) + slot_off + tau * TAU - tau * 128
        return (salu("s_add_u32", "m0", base_sgpr, imm),
                buf_dma(V_DMA, SRD_V if isv else SRD_K, voff if isv else koff, tau * 128, self.pol))

    def softmax_ops(self, n, ppar):
        kb, j = divmod(n % 12, 6)
        s = S0 + 4 * (n % 2)
        p = Preg(ppar, j) + 2 * kb
        e = [valu("v_exp_f32", f"v{s+i}", f"v{s+i}") for i in range(4)]
        a = [valu("v_add_f32", f"v{L0+j}", f"v{s+i}", f"v{L0+j}") for i in range(4)]
        c = [valu("v_cvt_pk_bf16_f32", f"v{p+i}", f"v{s+2*i}", f"v{s+2*i+1}") for i in range(2)]
        return e, a, c

    def qk(self, n, s):
        j = n % 6
        d = R("v", S0 + 4 * (n % 2), 4)
        return mfma(d, Kreg(s), Qreg(j, s), self.cinit if s == 0 else d)

    def pv(self, db, j, par, vbase):
        return mfma(Oreg(j, db), R("a", vbase, 4), R("v", Preg(par, j), 4), Oreg(j, db))

    def period(self, par, fill=False):
        N = 144
        sc = [[] for _ in range(N + 12)]
        mem = [[] for _ in range(N + 12)]
        va = [[] for _ in range(N + 12)]
        heavy = lambda n: n % 6 == 5
        for n in range(-1, 12):
            if n == -1 and fill:
                continue
            e, a, c = self.softmax_ops(n, par if n == -1 else 1 - par)
            g = 12 * n
            if heavy(n):
                plan = [(10, e[0]), (11, e[1]), (12, e[2]), (13, e[3]), (14, a[0]), (15, a[1]), (16, c[0]), (16, a[2]),
                        (17, a[3]), (18, c[1])]
            elif heavy(n + 1):
                plan = [(9, e[0]), (10, e[1]), (11, e[2]), (12, e[3]), (13, a[0]), (14, a[1]), (15, c[0]), (16, a[2]),
                        (17, a[3]), (18, c[1])]
            else:
                plan = [(9, e[0]), (10, e[1]), (11, e[2]), (12, e[3]), (13, a[0]), (14, a[1]), (15, c[0]), (16, a[2]),
                        (17, a[3]), (19, c[1])]
            for o, ins in plan:
                if g + o >= 0:
                    va[g + o].append(ins)
        for n in range(12):
            g = 12 * n
            nv = (n + 1) % 12
            vb = VA0 + 4 * ((n + 1) % 2)
            tpos = (8, 9) if heavy(n) else ((2, 3) if heavy(n - 1) else (1, 2))
            if not fill or n == 11:
                for h in range(2):
                    mem[g + tpos[h]].append(self.vread(nv, h, vb))
            mem[g + (7 if heavy(n) else 5)].append(self.qread((n + 1) % 6))
            if heavy(n):
                for s in range(6):
                    mem[g + 1 + s].append(self.kread(1 if n == 5 else 0, s))
        if not fill:
            for k, n in enumerate((1, 2, 3, 4, 7, 8)):
                m, d = self.dma_pair(k)
                sc[12 * n + 5].append(m)
                mem[12 * n + 6].append(d)
        g = 12 * 9
        book = [salu("s_add_u32", S_DMA, S_SLOT, S_WOFF),
                salu("s_add_u32", S_NEW, S_SLOT, TILE_L),
                salu("s_cmp_eq_u32", S_NEW, self.R * TILE_L),
                salu("s_cselect_b32", S_NEW, 0, S_NEW),
                salu("s_sub_u32", S_DELTA, S_NEW, S_SLOT),
                salu("s_mov_b32", S_SLOT, S_NEW)]
        if not fill:
            book += [salu("s_add_u32", S_KOFF, S_KOFF, TILE_G), salu("s_add_u32", S_VOFF, S_VOFF, TILE_G)]
        for o, ins in zip((0, 1, 2, 3, 6, 7, 8, 9), book):
            sc[g + o].append(ins)
        g = 12 * 10
        va[g + 6] += [valu("v_add_u32", V_KA, S_DELTA, V_KA), valu("v_add_u32", V_VA, S_DELTA, V_VA)]
        sc[g + 7].append(wait(vm=6 * (self.R - 2), lgkm=1))
        sc[g + 8].append(barrier())
        mf = []
        for n in range(12):
            mf += [self.qk(n, s) for s in range(6)]
            mf += [None if fill else self.pv(n, j, par, VA0 + 4 * (n % 2)) for j in range(6)]
        if not fill and self.abl:
            def keep(x):
                t = x.text
                if "e" in self.abl and t.startswith("v_exp"): return False
                if "a" in self.abl and t.startswith("v_add_f32"): return False
                if "c" in self.abl and t.startswith("v_cvt"): return False
                if "k" in self.abl and x.kind == "lds_rd" and V_KA in x.rd: return False
                if "v" in self.abl and x.kind == "lds_rd" and V_VA in x.rd: return False
                if "q" in self.abl and x.kind == "lds_rd" and V_QA in x.rd: return False
                if "d" in self.abl and x.kind == "dma": return False
                if "b" in self.abl and x.kind == "barrier": return False
                return True
            mem = [[x for x in g_ if keep(x)] for g_ in mem]
            va = [[x for x in g_ if keep(x)] for g_ in va]
            sc = [[x for x in g_ if keep(x)] for g_ in sc]
            if "c" in self.abl:
                mf = [m if (i % 12) < 6 else self.pv(i // 12, i % 12 - 6, 0, VA0 + 4 * ((i // 12) % 2)) for i, m in enumerate(mf)]
        gaps = [sc[i] + mem[i] + va[i] for i in range(N)]
        tail = [x for i in range(N, N + 12) for x in va[i]]
        return mf, gaps, tail

    @staticmethod
    def flat(mf, gaps, lo, hi):
        out = []
        for i in range(lo, hi):
            if mf[i] is not None:
                out.append(mf[i])
            out += gaps[i]
        return out

    def addr_setup(self, lane, w):
        b = [valu("v_lshrrev_b32", "v6", 4, lane), valu("v_lshlrev_b32", "v6", 3, "v6"),
             valu("v_bfe_u32", "v7", lane, 3, 1), valu("v_add_u32", "v6", "v6", "v7"),
             valu("v_lshl_add_u32", "v6", w, 1, "v6"), valu("v_mul_u32_u24", "v6", 384, "v6"),
             valu("v_and_b32", "v7", 7, lane), valu("v_lshl_add_u32", V_DMA, "v7", 4, "v6")]

        def lds_row(dst, key):
            return [valu("v_bfe_u32", "v8", key, 1, 2), valu("v_mul_u32_u24", "v8", 1056, "v8"),
                    valu("v_lshrrev_b32", "v9", 3, key), valu("v_lshlrev_b32", "v9", 1, "v9"),
                    valu("v_and_b32", dst, 1, key), valu("v_add_u32", "v9", "v9", dst),
                    valu("v_lshl_add_u32", dst, "v9", 7, "v8")]
        b += [valu("v_and_b32", "v6", 15, lane), valu("v_lshrrev_b32", "v7", 4, lane)]
        b += lds_row(V_KA, "v6") + [valu("v_lshl_add_u32", V_KA, "v7", 4, V_KA)]
        b += [valu("v_lshrrev_b32", "v6", 2, lane)] + lds_row(V_VA, "v6")
        b += [valu("v_and_b32", "v6", 3, lane), valu("v_lshl_add_u32", V_VA, "v6", 3, V_VA),
              valu("v_add_u32", V_VA, self.VBASE, V_VA)]
        return b

    def slow_path(self):
        M = ["v16", "v17", "v18", "v19", T0, T1]
        S = S0
        SD = R("v", S, 4)
        QL = Preg(1, 0)
        lane, w, vq = "v4", "v5", V_QA

        def qreg(j, s):
            return Qreg(j, s) if s < 5 else R("v", QL + 4 * j, 4)
        setup = [wait(vm=0, lgkm=0), barrier(),
                 raw(f"v_mbcnt_lo_u32_b32 {lane}, -1, 0", "valu", [], [lane]),
                 raw(f"v_mbcnt_hi_u32_b32 {lane}, -1, {lane}", "valu", [lane], [lane]),
                 valu("v_mov_b32", w, S_W)]
        setup += self.addr_setup(lane, w)
        setup += [valu("v_mul_u32_u24", vq, 96, w), valu("v_and_b32", "v6", 15, lane), valu("v_add_u32", vq, vq, "v6"),
                  valu("v_mul_u32_u24", vq, 384, vq), valu("v_lshl_add_u32", vq, "v7", 4, vq)]
        for j in range(NQB):
            setup.append(salu("s_mov_b32", S_T, j * 16 * 384))
            setup += [buf_load(qreg(j, s), vq, SRD_Q, S_T, s * 64) for s in range(6)]
        setup += [wait(vm=0)]
        setup += [valu("v_mov_b32", m, "0xff800000") for m in M]
        setup += [salu("s_mov_b32", S_KOFF, 0)]

        def load(with_v):
            o = []
            for k in range(6 if with_v else 3):
                o += list(self.dma_pair(k, S_WOFF, S_KOFF, S_KOFF))
            return o + [wait(vm=0), barrier()]

        def chain(j):
            return [mfma(SD, Kreg(s), qreg(j, s), "0" if s == 0 else SD) for s in range(6)]

        def close(name):
            return [wait(lgkm=0), barrier(), salu("s_add_u32", S_KOFF, S_KOFF, TILE_G),
                    salu("s_cmp_lt_u32", S_KOFF, HEAD_KV), branch("s_cbranch_scc1", name)]
        maxl = load(False)
        for kb in range(2):
            maxl += [self.kread(kb, s) for s in range(6)]
            for j in range(NQB):
                maxl += chain(j) + [valu("v_max3_f32", M[j], M[j], f"v{S}", f"v{S+1}"),
                                    valu("v_max3_f32", M[j], M[j], f"v{S+2}", f"v{S+3}")]
        maxl += close("L_slow_max")
        mid = []
        for m in M:
            for op in ("v_permlane32_swap_b32", "v_permlane16_swap_b32"):
                mid += [valu("v_mov_b32", vq, m), valu(op, m, vq), valu("v_max_f32", m, m, vq)]
        mid += [valu("v_mul_f32", m, S_C, m) for m in M]
        mid += [valu("v_accvgpr_write_b32", f"a{r}", 0) for r in range(OA0, 256)]
        mid += [valu("v_mov_b32", f"v{r}", 0) for r in list(range(OV0, 256)) + list(range(L0, L0 + 6))]
        mid += [salu("s_mov_b32", S_KOFF, 0)]
        main = load(True)
        for kb in range(2):
            main += [self.kread(kb, s) for s in range(6)]
            for j in range(NQB):
                p = Preg(0, j) + 2 * kb
                main += chain(j)
                main += [valu("v_fma_f32", f"v{S+i}", f"v{S+i}", S_C, "-" + M[j]) for i in range(4)]
                main += [valu("v_exp_f32", f"v{S+i}", f"v{S+i}") for i in range(4)]
                main += [valu("v_add_f32", f"v{L0+j}", f"v{S+i}", f"v{L0+j}") for i in range(4)]
                main += [valu("v_cvt_pk_bf16_f32", f"v{p+i}", f"v{S+2*i}", f"v{S+2*i+1}") for i in range(2)]
        for db in range(12):
            vb = VA0 + 4 * (db % 2)
            main += [self.vread(db, h, vb) for h in range(2)]
            main += [self.pv(db, j, 0, vb) for j in range(NQB)]
        main += close("L_slow_main")
        return setup, maxl, mid, main, self.epilogue(check=False)

    def prologue(self):
        b = []
        b += [salu("s_cmp_ge_u32", "s2", 256), branch("s_cbranch_scc1", "L_end"),
              raw("s_load_dwordx4 s[4:7], s[0:1], 0", "smem"), raw("s_load_dwordx4 s[8:11], s[0:1], 16", "smem")]
        if self.stamps:
            b += [raw("s_load_dwordx4 s[12:15], s[0:1], 32", "smem"),
                  raw("s_memrealtime s[56:57]"), raw("s_memtime s[58:59]")]
        lane, w = "v4", "v5"
        b += [valu("v_and_b32", lane, 63, "v0"), valu("v_lshrrev_b32", w, 6, "v0"),
              valu("v_readfirstlane_b32", S_W, w)]
        b += self.addr_setup(lane, w)
        g = "v7"
        b += [valu("v_mul_u32_u24", V_QA, 6144, w), valu("v_lshl_add_u32", V_QA, lane, 4, V_QA),
              valu("v_add_u32", V_QA, self.QBASE, V_QA)]
        for i_ in range(3):
            d = f"v{OV0+64+i_}"
            b += [valu("v_add_u32", d, 64 * i_, lane), valu("v_mul_u32_u24", "v6", 2731, d),
                  valu("v_lshrrev_b32", "v6", 16, "v6"), valu("v_and_b32", "v6", 6, "v6"),
                  valu("v_xor_b32", d, d, "v6"), valu("v_lshlrev_b32", d, 4, d)]
        b += [valu("v_and_b32", "v6", 15, lane), valu("v_and_b32", "v8", 6, lane), valu("v_xor_b32", "v8", "v8", g),
              valu("v_mul_u32_u24", "v6", 384, "v6"), valu("v_lshl_add_u32", f"v{OV0+67}", "v8", 4, "v6"),
              valu("v_xor_b32", f"v{OV0+68}", 64, f"v{OV0+67}")]
        b += [raw("s_waitcnt lgkmcnt(0)", "salu")]
        b += [salu("s_mul_i32", S_T, "s2", HEAD_KV),
              salu("s_add_u32", "s16", "s6", S_T), salu("s_addc_u32", "s17", "s7", 0),
              salu("s_mov_b32", "s18", HEAD_KV), salu("s_mov_b32", "s19", "0x20000"),
              salu("s_add_u32", "s20", "s8", S_T), salu("s_addc_u32", "s21", "s9", 0),
              salu("s_mov_b32", "s22", HEAD_KV), salu("s_mov_b32", "s23", "0x20000"),
              salu("s_mul_i32", S_T, "s2", HEAD_Q),
              salu("s_add_u32", "s24", "s4", S_T), salu("s_addc_u32", "s25", "s5", 0),
              salu("s_mov_b32", "s26", HEAD_Q), salu("s_mov_b32", "s27", "0x20000"),
              salu("s_add_u32", "s28", "s10", S_T), salu("s_addc_u32", "s29", "s11", 0),
              salu("s_mov_b32", "s30", HEAD_Q), salu("s_mov_b32", "s31", "0x20000"),
              salu("s_mul_i32", S_WOFF, S_W, 1056),
              salu("s_mov_b32", S_C, f32(math.log2(math.e) / math.sqrt(192.0))),
              salu("s_mov_b32", S_SLOT, 0), salu("s_mov_b32", S_CNT, 15)]

        def group(ktile, vtile):
            o = []
            for k in range(6):
                tile = vtile if k >= 3 else ktile
                if tile is None:
                    continue
                slot = (tile + 1) % self.R if k >= 3 else tile % self.R
                if k % 3 == 0:
                    o.append(salu("s_mov_b32", S_T, tile * TILE_G))
                o += list(self.dma_pair(k, S_WOFF, S_T, S_T, slot * TILE_L))
            return o
        S_SA, S_SB = "s43", "s44"
        RAW = OV0
        TMP = OV0 + 48
        Q5 = OV0 + 56
        VQ = [f"v{OV0+64+i_}" for i_ in range(3)]
        VR = [f"v{OV0+67+i_}" for i_ in range(2)]
        LAST = OV0 + 69
        KB = Preg(1, 0)
        b += [salu("s_lshr_b32", S_T, S_W, 1), salu("s_mul_i32", S_T, S_T, 3), salu("s_add_u32", S_T, S_T, S_W),
              salu("s_add_u32", S_T, S_T, 2), salu("s_mul_i32", S_SB, S_T, TILE_L),
              salu("s_add_u32", S_SA, S_SB, 2 * TILE_L), salu("s_mul_i32", S_T, S_W, 36864)]
        b += [valu("v_add_u32", VQ[i_], S_T, VQ[i_]) for i_ in range(3)]

        def ubase(u):
            return (S_SB if u in (2, 3) else S_SA), (u & 1) * 6144

        def qunit(u):
            sb, off = ubase(u)
            o = []
            for i_ in range(3):
                o += [salu("s_add_u32", "m0", sb, off + i_ * 1024)]
                o += [salu("s_mov_b32", S_T, u * 6144)] if i_ == 0 else [nop(0)]
                o += [buf_dma(VQ[i_], SRD_Q, S_T, h * 3072, self.pol) for h in range(2)]
            return o

        def qraw(u):
            sb, off = ubase(u)
            o = [valu("v_add_u32", T0, sb, VR[0]), valu("v_add_u32", T1, sb, VR[1])]
            for s_ in range(6):
                o.append(ds_read("ds_read_b128", R("v", RAW + 4 * ((u % 2) * 6 + s_), 4), (T0, T1)[s_ & 1],
                                 off + (s_ >> 1) * 128))
            return o

        def prescale(j):
            o = []
            for s_ in range(6):
                r0 = RAW + 4 * ((j % 2) * 6 + s_)
                for i_ in range(4):
                    o += [valu("v_lshlrev_b32", f"v{TMP+2*i_}", 16, f"v{r0+i_}"),
                          valu("v_and_b32", f"v{TMP+2*i_+1}", "0xffff0000", f"v{r0+i_}")]
                o += [valu("v_mul_f32", f"v{TMP+i_}", S_C, f"v{TMP+i_}") for i_ in range(8)]
                dst = r0 if s_ < 5 else Q5 + 4 * (j % 2)
                o += [valu("v_cvt_pk_bf16_f32", f"v{dst+i_}", f"v{TMP+2*i_}", f"v{TMP+2*i_+1}") for i_ in range(4)]
                if s_ < 5:
                    o += [valu("v_accvgpr_write_b32", f"a{QA0+4*(j*5+s_)+i_}", f"v{dst+i_}") for i_ in range(4)]
                else:
                    o.append(ds_write("ds_write_b128", V_QA, R("v", dst, 4), j * 1024))
            return o

        def chains(j):
            o = []
            for kb in range(2):
                d = R("v", S0 + 4 * kb, 4)
                for s_ in range(6):
                    a_ = Kreg(s_) if kb == 0 else R("v", KB + 4 * s_, 4)
                    q_ = Qreg(j, s_) if s_ < 5 else R("v", Q5 + 4 * (j % 2), 4)
                    o.append(mfma(d, a_, q_, self.cinit if s_ == 0 else d))
            return o

        def soft(j, kb):
            sreg = S0 + 4 * kb
            p = Preg(0, j) + 2 * kb
            e = [valu("v_exp_f32", f"v{sreg+i_}", f"v{sreg+i_}") for i_ in range(4)]
            a_ = [valu("v_add_f32", f"v{L0+j}", f"v{sreg+i_}", f"v{L0+j}") for i_ in range(4)]
            c = [valu("v_cvt_pk_bf16_f32", f"v{p+i_}", f"v{sreg+2*i_}", f"v{sreg+2*i_+1}") for i_ in range(2)]
            return e + a_ + c

        def weave(ms, ops, per=2):
            o = []
            ops = list(ops)
            for m in ms:
                o.append(m)
                o += ops[:per]
                ops = ops[per:]
            return o, ops

        plan = {0: (3, 4, 5), 1: (4, 5, 6), 2: (3, 5, 6), 3: (2, 4, 5), 4: (3, 3, 5), 5: (5, 6, 6)}[self.provar]
        queue = []

        def issue(name, ops):
            queue.append((name, sum(1 for x in ops if x.kind == "dma")))
            return ops

        def landed(name, **kw):
            k = [n for n, _ in queue].index(name)
            return wait(vm=sum(c for _, c in queue[k + 1:]), **kw)

        def extras(u):
            o = []
            if plan[0] == u:
                o += issue("KV0", group(1, 0))
            if plan[1] == u:
                o += issue("G4", group(2, 1))
            if plan[2] == u:
                o += issue("G3", group(3, 2))
            return o

        b += issue("K0", group(0, None))
        for u in range(4):
            b += issue(f"U{u}", qunit(u))
        for r in range(OA0, 256):
            b.append(valu("v_accvgpr_write_b32", f"a{r}", 0))
        for r in list(range(LAST, 256)) + list(range(L0, L0 + 6)):
            b.append(valu("v_mov_b32", f"v{r}", 0))
        b += [valu("v_mov_b32", "v14", self.FLAG), valu("v_mov_b32", "v15", 0), ds_write("ds_write_b32", "v14", "v15", 0)]
        b += [landed("U0")] + self.stamp() + qraw(0) + [wait(lgkm=0)] + issue("U4", qunit(4)) + [barrier()]
        b += [self.kread(0, s_) for s_ in range(6)]
        b += [ds_read("ds_read_b128", R("v", KB + 4 * s_, 4), V_KA, (s_ >> 1) * TAU + (s_ & 1) * 64 + 512) for s_ in range(6)]
        b += prescale(0)
        for u in range(1, 6):
            b += [landed(f"U{u}")] + (self.stamp() if u in (3, 5) else []) + qraw(u)
            if u == 1:
                b += [wait(lgkm=0)] + issue("U5", qunit(5))
            if u == 3:
                b += [wait(lgkm=0), barrier()]
            b += extras(u)
            ps = prescale(u)
            ch = chains(u - 1)
            w1, rest = weave(ch[6:], ps)
            b += ch[:6] + w1 + soft(u - 1, 0) + rest[:24] + soft(u - 1, 1) + rest[24:]
        zero = [valu("v_mov_b32", f"v{r}", 0) for r in list(range(RAW, Q5 + 4)) + list(range(Q5 + 8, LAST))]
        b += [valu("v_add_u32", V_KA, TILE_L, V_KA), valu("v_add_u32", V_VA, TILE_L, V_VA),
              salu("s_mov_b32", S_SLOT, TILE_L), salu("s_mov_b32", S_DMA, S_WOFF),
              salu("s_mov_b32", S_KOFF, self.R * TILE_G), salu("s_mov_b32", S_VOFF, (self.R - 1) * TILE_G)]
        b += [landed("KV0", lgkm=0), barrier()]
        ch = chains(5)
        for s_ in range(6):
            b += [ch[s_], self.kread(0, s_), zero.pop(0)]
        b += [ch[6], self.qread(0), zero.pop(0), ch[7], self.vread(0, 0, VA0), zero.pop(0), ch[8], self.vread(0, 1, VA0), zero.pop(0)]
        w1, rest = weave(ch[9:], zero)
        b += w1 + soft(5, 0) + extras(6) + group(4, 3) + rest
        b += [valu("v_mov_b32", f"v{r}", 0) for r in range(Q5 + 4, Q5 + 8)]
        b += soft(5, 1)[:2]
        return b

    def drain(self, par, tail):
        b = list(tail)
        bufs = [VA0, VA0 + 4] + [KA0 + 4 * i for i in range(6)]
        ahead = 3
        for db in range(1, ahead):
            b += [self.vread(db, h, bufs[db % 8]) for h in range(2)]
        for db in range(12):
            for j in range(6):
                b.append(self.pv(db, j, par, bufs[db % 8]))
                if j < 2 and db + ahead < 12:
                    b.append(self.vread(db + ahead, j, bufs[(db + ahead) % 8]))
        return b

    def row_sums(self):
        b = []
        for j in range(NQB):
            l = f"v{L0+j}"
            t = f"v{S0+j}"
            b += [valu("v_mov_b32", t, l)]
        for j in range(NQB):
            b += [valu("v_permlane32_swap_b32", f"v{L0+j}", f"v{S0+j}")]
        for j in range(NQB):
            b += [valu("v_add_f32", f"v{L0+j}", f"v{L0+j}", f"v{S0+j}")]
        for j in range(NQB):
            b += [valu("v_mov_b32", f"v{S0+j}", f"v{L0+j}")]
        for j in range(NQB):
            b += [valu("v_permlane16_swap_b32", f"v{L0+j}", f"v{S0+j}")]
        for j in range(NQB):
            b += [valu("v_add_f32", f"v{L0+j}", f"v{L0+j}", f"v{S0+j}")]
        return b

    def range_check(self):
        b = [salu("s_mov_b32", S_NEW, f32(2.0 ** 12)), salu("s_mov_b32", S_DELTA, f32(2.0 ** -20)),
             salu("s_mov_b64", "s[44:45]", 0)]
        for j in range(NQB):
            b += [valu("v_cmp_nge_f32", "s[46:47]", S_NEW, f"v{L0+j}"), valu("v_cmp_nle_f32", "s[48:49]", S_DELTA, f"v{L0+j}"),
                  salu("s_or_b64", "s[44:45]", "s[44:45]", "s[46:47]"), salu("s_or_b64", "s[44:45]", "s[44:45]", "s[48:49]")]
        b += [branch("s_cbranch_scc0", "L_inrange"),
              valu("v_mov_b32", T0, self.FLAG), valu("v_mov_b32", T1, 1), ds_write("ds_write_b32", T0, T1, 0),
              label("L_inrange")]
        return b

    def epilogue(self, check=True):
        PITCH, WREG = 400, 38400
        b = self.row_sums()
        if check:
            b += self.range_check()
        b += [valu("v_rcp_f32", f"v{L0+j}", f"v{L0+j}") for j in range(NQB)]
        vw, vr, vg, lane = "v0", ("v1", "v2", "v3"), T0, T1
        b += [raw(f"v_mbcnt_lo_u32_b32 {lane}, -1, 0", "valu", [], [lane]),
              raw(f"v_mbcnt_hi_u32_b32 {lane}, -1, {lane}", "valu", [lane], [lane]),
              salu("s_mul_i32", S_T, S_W, WREG),
              valu("v_and_b32", vw, 15, lane), valu("v_mul_u32_u24", vw, PITCH, vw),
              valu("v_lshrrev_b32", vg, 4, lane), valu("v_lshl_add_u32", vw, vg, 3, vw), valu("v_add_u32", vw, S_T, vw)]
        for i in range(3):
            b += [valu("v_add_u32", vr[i], 64 * i, lane), valu("v_mul_u32_u24", vg, 2731, vr[i]),
                  valu("v_lshrrev_b32", vg, 16, vg), valu("v_add_lshl_u32", vr[i], vr[i], vg, 4),
                  valu("v_add_u32", vr[i], S_T, vr[i])]
        b += [salu("s_mul_i32", S_T, S_W, 36864), valu("v_lshlrev_b32", vg, 4, lane), valu("v_add_u32", vg, S_T, vg)]
        b += [wait(vm=0, lgkm=0), barrier()]
        if check:
            b += [valu("v_mov_b32", T1, self.FLAG), ds_read("ds_read_b32", T1, T1, 0)]

        def rbuf(j, i):
            return R("a", (j % 2) * 24 + 4 * i, 4)

        def readout(j):
            return [ds_read("ds_read_b128", rbuf(j, i), vr[i % 3], (2 * j + i // 3) * 8 * PITCH) for i in range(6)]

        def stores(j):
            o = []
            for i in range(6):
                if i % 4 == 0:
                    o.append(salu("s_mov_b32", S_T, j * 6144 + i * 1024))
                o.append(buf_store(rbuf(j, i), vg, SRD_O, S_T, (i % 4) * 1024, self.opol))
            return o
        k = 0
        for j in range(NQB):
            pend = stores(j - 1) if j else []
            for db in range(12):
                t = P0 + 6 * (k % 8)
                k += 1
                src = expand(Oreg(j, db))
                if src[0][0] == "a":
                    b += [valu("v_accvgpr_read_b32", f"v{t+i}", src[i]) for i in range(4)]
                    src = [f"v{t+i}" for i in range(4)]
                b += [valu("v_mul_f32", f"v{t+i}", src[i], f"v{L0+j}") for i in range(4)]
                b += [valu("v_cvt_pk_bf16_f32", f"v{t+4+i}", f"v{t+2*i}", f"v{t+2*i+1}") for i in range(2)]
                b += [ds_write("ds_write_b64", vw, R("v", t + 4, 2), j * 16 * PITCH + db * 32)]
                if db >= 3 and pend:
                    b.append(pend.pop(0))
                    if b[-1].kind == "salu":
                        b.append(pend.pop(0))
            b += pend
            b += readout(j)
        b += stores(NQB - 1)
        if check:
            b += [valu("v_readfirstlane_b32", S_T, T1), salu("s_cmp_lg_u32", S_T, 0), branch("s_cbranch_scc1", "L_slow")]
        return b

    def stamp_out(self):
        if not self.stamps:
            return ""
        n = 4 + 2 * self.nstamp
        s = "  s_waitcnt vmcnt(0)\n  s_barrier\n  s_memrealtime s[60:61]\n  s_memtime s[62:63]\n  s_waitcnt lgkmcnt(0)\n"
        s += f"  s_cmp_lg_u32 {S_W}, 0\n  s_cbranch_scc1 L_end\n  s_mov_b64 exec, 1\n"
        if self.stamps == "dbg":
            s += "  v_mov_b32 v1, 0\n  v_mov_b32 v2, s60\n  global_atomic_umax v1, v2, s[12:13]\n"
            s += "  s_not_b32 s3, s56\n  v_mov_b32 v3, s3\n  global_atomic_umax v1, v3, s[12:13] offset:4\n"
            s += "  v_mov_b32 v4, s56\n  global_atomic_umax v1, v4, s[12:13] offset:8\n"
            s += "  s_cmp_lg_u32 s2, 100\n  s_cbranch_scc1 L_end\n"
            vals = [(66 + 4 * i, 56) for i in range(self.nstamp)] + [(60, 56)] + [(64 + 4 * i, 58) for i in range(self.nstamp)] + [(62, 58)]
            for i, (x, y) in enumerate(vals):
                s += f"  s_sub_u32 s3, s{x}, s{y}\n  v_mov_b32 v2, s3\n  global_store_dword v1, v2, s[12:13] offset:{16+4*i}\n"
            return s
        s += f"  s_mul_i32 s3, s2, {8*n}\n  v_mov_b32 v1, s3\n"
        for i in range(n):
            r = 56 + 2 * i
            s += f"  v_mov_b32 v2, s{r}\n  v_mov_b32 v3, s{r+1}\n  global_store_dwordx2 v1, v[2:3], s[14:15] offset:{8*i}\n  s_nop 1\n"
        return s

    def build(self, verbose=False):
        ROT = 8
        pro = self.prologue()
        mfE, gE, tailE = self.period(0)
        mfO, gO, _ = self.period(1)
        gE[12 * 11 + 7].append(salu("s_cmp_eq_u32", S_CNT, 0))
        exit_tail = gE[143] + tailE
        gE[143] = [branch("s_cbranch_scc1", "L_drain")] + gE[143]
        gO[12 * 11 + 7].append(salu("s_sub_u32", S_CNT, S_CNT, 1))
        fill = self.stamp()
        head = self.flat(mfE, gE, 0, ROT)
        body = self.flat(mfE, gE, ROT, 144) + self.flat(mfO, gO, 0, 144) + self.flat(mfE, gE, 0, ROT)
        body.append(branch("s_branch", "L_top"))

        log = []
        pro, st = fix(pro + fill, State())
        head1, st1 = fix(head, st, hoist=True)
        body1, st2 = fix(body, st1, hoist=True, log=log)
        body2, st3 = fix(body1, st2, hoist=True, log=log)
        errs, _ = verify(pro + head1 + body2 + body2 + body2)
        assert not errs, errs[:10]
        kx = next(i for i, x in enumerate(body2) if x.kind == "branch")
        _, stx = verify(pro + head1 + body2 + body2[:kx + 1])
        post = self.drain(1, exit_tail) + self.stamp() + self.epilogue()
        post, _ = fix(post, stx, hoist=False)
        errs, _ = verify(pro + head1 + body2[:kx + 1] + post)
        assert not errs, errs[:10]
        if verbose:
            tot, over = estimate(body2)
            print("loop estimate cycles (288 mfma, ideal 4608):", tot)
            for o in over:
                print("  over:", o)
            print("  inserted:", [x for x in log if x[0] == "nop"])
            print("  waits:", len([x for x in log if x[0] == "wait"]), "instrs:", len(body2))
        text = emit(pro + head1) + ".p2align 6\nL_top:\n" + emit(body2) + "L_drain:\n" + emit(post)
        text += self.stamp_out() + "L_end:\n  s_endpgm\n"
        setup, maxl, mid, main, epi = self.slow_path()
        st = State()
        blocks = []
        for blk, loop in ((setup, False), (maxl, True), (mid, False), (main, True), (epi, False)):
            blk, st = fix(blk, st)
            if loop:
                blk, st = fix(blk, st)
            blocks.append(blk)
        setup, maxl, mid, main, epi = blocks
        errs, _ = verify(post + setup + maxl + maxl + mid + main + main + epi)
        assert not errs, errs[:10]
        text += "L_slow:\n" + emit(setup) + "L_slow_max:\n" + emit(maxl) + emit(mid) + "L_slow_main:\n" + emit(main)
        text += emit(epi) + "  s_endpgm\n"
        return wrap(text, 256, 256, self.lds, 512, 256)


if __name__ == "__main__":
    ap = argparse.ArgumentParser()
    ap.add_argument("-o", default="k.s")
    ap.add_argument("--stamps", default="")
    ap.add_argument("--ring", type=int, default=5)
    ap.add_argument("--pol", default="nt")
    ap.add_argument("--opol", default="nt")
    ap.add_argument("--abl", default="")
    ap.add_argument("--provar", type=int, default=2)
    ap.add_argument("-v", action="store_true")
    a = ap.parse_args()
    g = Gen(ring=a.ring, pol=a.pol, opol=a.opol, stamps=a.stamps, abl=a.abl, provar=a.provar)
    open(a.o, "w").write(g.build(a.v))
```

```python
import re


def R(p, i, n=1):
    return f"{p}{i}" if n == 1 else f"{p}[{i}:{i+n-1}]"


def regs(p, i, n=1):
    return [f"{p}{k}" for k in range(i, i + n)]


def expand(op):
    op = op.strip()
    op = op.lstrip("-")
    if op.startswith("|") and op.endswith("|"):
        op = op[1:-1]
    m = re.fullmatch(r"([vas])\[(\d+):(\d+)\]", op)
    if m:
        return regs(m.group(1), int(m.group(2)), int(m.group(3)) - int(m.group(2)) + 1)
    m = re.fullmatch(r"([vas])(\d+)", op)
    if m:
        return [op]
    if op in ("vcc", "m0", "exec"):
        return [op]
    return []


TRANS = ("v_exp_f32", "v_rcp_f32", "v_log_f32", "v_rsq_f32", "v_sqrt_f32")


class I:
    def __init__(self, text, kind, rd=(), wr=(), tag=None, srcc=()):
        self.text, self.kind = text, kind
        self.rd, self.wr = set(rd), set(wr)
        self.srcc = set(srcc)
        self.tag = tag

    def __repr__(self):
        return self.text

    @property
    def is_valu(self):
        return self.kind in ("valu", "trans", "perm")

    @property
    def is_scalar(self):
        return self.kind in ("salu", "wait", "barrier", "nop", "branch", "smem")

    @property
    def states(self):
        if self.kind == "label":
            return 0
        if self.kind == "nop":
            return int(self.text.split()[1]) + 1
        return 1


def valu(op, dst, *src):
    kind = "trans" if op in TRANS else "valu"
    rd = [r for s in src for r in expand(str(s))]
    wr = expand(dst)
    if op.startswith("v_fmac") or op.startswith("v_permlane"):
        rd += wr
    if op.startswith("v_permlane"):
        kind = "perm"
        wr = wr + expand(src[0])
    if op.startswith("v_cndmask") and len(src) == 2:
        rd.append("vcc")
    return I(f"{op} {dst}, " + ", ".join(str(s) for s in src), kind, rd, wr)


def salu(op, dst, *src):
    rd = [r for s in src for r in expand(str(s))]
    if op.startswith("s_cmp"):
        return I(f"{op} {dst}, {src[0]}", "salu", rd + expand(str(dst)), ["scc"])
    wr = expand(dst)
    if op.startswith("s_cselect") or op in ("s_addc_u32", "s_subb_u32"):
        rd.append("scc")
    if not (op.startswith("s_mov") or op.startswith("s_cselect") or op.startswith("s_mul")):
        wr = wr + ["scc"]
    if "saveexec" in op:
        wr = wr + ["exec"]
    return I(f"{op} {dst}, " + ", ".join(str(s) for s in src), "salu", rd, wr)


def mfma(d, a, b, c):
    return I(f"v_mfma_f32_16x16x32_bf16 {d}, {a}, {b}, {c}", "mfma",
             expand(a) + expand(b) + expand(c), expand(d), srcc=expand(c))


def ds_read(op, dst, addr, off, tag=None):
    assert 0 <= off < 65536, off
    return I(f"{op} {dst}, {addr} offset:{off}", "lds_rd", [addr], expand(dst), tag)


def ds_write(op, addr, src, off):
    assert 0 <= off < 65536, off
    return I(f"{op} {addr}, {src} offset:{off}", "lds_wr", [addr] + expand(src), [])


def buf_load(dst, voff, srd, soff, off, pol="", op="buffer_load_dwordx4", tag=None):
    assert 0 <= off < 4096
    return I(f"{op} {dst}, {voff}, {srd}, {soff} offen offset:{off} {pol}".rstrip(), "vm_ld",
             [voff] + expand(srd) + expand(str(soff)), expand(dst), tag)


def buf_dma(voff, srd, soff, off, pol="", tag=None):
    assert 0 <= off < 4096
    return I(f"buffer_load_dwordx4 {voff}, {srd}, {soff} offen offset:{off} {pol} lds".replace("  ", " "), "dma",
             [voff, "m0"] + expand(srd) + expand(str(soff)), [], tag)


def buf_store(src, voff, srd, soff, off, pol="", op="buffer_store_dwordx4"):
    assert 0 <= off < 4096
    return I(f"{op} {src}, {voff}, {srd}, {soff} offen offset:{off} {pol}".rstrip(), "vm_st",
             [voff] + expand(src) + expand(srd) + expand(str(soff)), [], tag=("data", tuple(expand(src))))


def wait(vm=None, lgkm=None):
    parts = []
    if vm is not None:
        assert 0 <= vm < 64
        parts.append(f"vmcnt({vm})")
    if lgkm is not None:
        assert 0 <= lgkm < 16
        parts.append(f"lgkmcnt({lgkm})")
    i = I("s_waitcnt " + " ".join(parts), "wait")
    i.vm, i.lgkm = vm, lgkm
    return i


def nop(n=0):
    return I(f"s_nop {n}", "nop")


def barrier():
    return I("s_barrier", "barrier")


def label(name):
    return I(f"{name}:", "label")


def branch(op, target):
    rd = ["scc"] if "scc" in op else (["vcc"] if "vcc" in op else [])
    return I(f"{op} {target}", "branch", rd)


def raw(text, kind="salu", rd=(), wr=()):
    return I(text, kind, rd, wr)


def need_states(p, c):
    n = 0
    if p.is_valu:
        vw = {r for r in p.wr if r[0] in "va" and r != "vcc"}
        sw = {r for r in p.wr if r[0] == "s" or r == "vcc"}
        if c.kind == "mfma" and vw & c.rd:
            n = max(n, 2)
        if c.kind == "perm" and vw & c.rd:
            n = max(n, 2)
        if c.text.startswith(("v_readfirstlane", "v_readlane")) and vw & c.rd:
            n = max(n, 1)
        if p.kind == "trans" and c.is_valu and c.kind != "trans" and vw & c.rd:
            n = max(n, 1)
        if c.is_valu and sw & c.rd:
            n = max(n, 2)
        if c.kind in ("vm_ld", "vm_st", "dma") and sw & c.rd:
            n = max(n, 5)
        if c.kind in ("salu", "branch") and sw & c.rd:
            n = max(n, 2)
        if "_dpp" in c.text and vw & c.rd:
            n = max(n, 2)
        if "exec" in p.wr and c.kind == "mfma":
            n = max(n, 4)
    if p.kind == "mfma":
        if c.kind == "mfma":
            if p.wr & (c.rd - c.srcc):
                n = max(n, 8)
            if p.wr & c.srcc and p.wr != c.srcc:
                n = max(n, 6)
            if p.wr & c.wr and p.wr != c.srcc and not (p.wr & c.srcc):
                n = max(n, 0)
        elif c.is_valu or c.kind in ("lds_rd", "lds_wr", "vm_ld", "vm_st", "dma"):
            if p.wr & (c.rd | c.wr):
                n = max(n, 8)
            if c.is_valu and p.srcc & c.wr:
                n = max(n, 3)
    if p.kind == "salu" and "m0" in p.wr and c.kind == "dma":
        n = max(n, 1)
    if p.kind == "vm_st" and (c.is_valu or c.kind in ("lds_rd", "vm_ld", "mfma")):
        if set(p.tag[1]) & c.wr:
            n = max(n, 2)
    return n


class State:
    def __init__(self):
        self.lgkm = []
        self.vm = []
        self.recent = []

    def copy(self):
        s = State()
        s.lgkm, s.vm, s.recent = list(self.lgkm), list(self.vm), list(self.recent)
        return s

    def step(self, ins):
        if ins.kind == "wait":
            if ins.lgkm is not None:
                self.lgkm = self.lgkm[len(self.lgkm) - ins.lgkm:] if ins.lgkm < len(self.lgkm) else self.lgkm
            if ins.vm is not None:
                self.vm = self.vm[len(self.vm) - ins.vm:] if ins.vm < len(self.vm) else self.vm
        elif ins.kind in ("lds_rd", "lds_wr"):
            self.lgkm.append(ins)
        elif ins.kind in ("vm_ld", "vm_st", "dma"):
            self.vm.append(ins)
        if ins.kind != "label":
            self.recent.append(ins)
            self.recent = self.recent[-24:]

    def pending_need(self, ins):
        touch = ins.rd | ins.wr
        nl = nv = None
        for k, p in enumerate(self.lgkm):
            if p.wr & touch:
                nl = len(self.lgkm) - 1 - k
        for k, p in enumerate(self.vm):
            if p.wr & touch:
                nv = len(self.vm) - 1 - k
        return nl, nv

    def missing_states(self, ins):
        d = 0
        miss = 0
        for p in reversed(self.recent):
            n = need_states(p, ins)
            if n > d:
                miss = max(miss, n - d)
            d += p.states
            if d >= 12:
                break
        return miss


def fix(block, state, hoist=False, log=None):
    out = []
    st = state.copy()
    hist = []
    for ins in block:
        nl, nv = st.pending_need(ins)
        if nl is not None or nv is not None:
            pos = len(out)
            if hoist:
                stops = ("label", "barrier")
                cands = []
                k = len(out) - 1
                while k >= 0 and len(cands) < 4 and out[k].kind not in stops:
                    if out[k].kind == "mfma":
                        cands.append(k)
                    k -= 1
                best = None
                for k in cands:
                    later = out[k + 1:]
                    if any((x.wr & (ins.rd | ins.wr)) for x in later if x.kind in ("lds_rd", "vm_ld")):
                        break
                    s2 = hist[k + 1] if k + 1 < len(hist) else st
                    l2, v2 = s2.pending_need(ins)
                    e = k + 1
                    while e < len(out) and out[e].kind != "mfma":
                        e += 1
                    g = out[k + 1:e]
                    free = gap_cost([nop(0)] + g) == gap_cost(g)
                    if best is None or free:
                        best = (k + 1, l2, v2)
                    if free:
                        break
                if best is not None:
                    pos, nl, nv = best
            w = wait(vm=min(nv, 63) if nv is not None else None, lgkm=min(nl, 15) if nl is not None else None)
            tail = out[pos:]
            if pos < len(out):
                st = hist[pos].copy()
            out = out[:pos]
            hist = hist[:pos]
            for x in [w] + tail:
                hist.append(st.copy())
                st.step(x)
                out.append(x)
            if log is not None:
                log.append(("wait", w.text, ins.text))
        miss = st.missing_states(ins)
        if miss:
            nn = nop(miss - 1)
            hist.append(st.copy())
            st.step(nn)
            out.append(nn)
            if log is not None:
                log.append(("nop", nn.text, ins.text))
        hist.append(st.copy())
        st.step(ins)
        out.append(ins)
    return out, st


def verify(trace, state=None):
    st = state.copy() if state else State()
    errs = []
    for ins in trace:
        nl, nv = st.pending_need(ins)
        if nl is not None or nv is not None:
            errs.append(f"pending load touched by: {ins.text}")
        if st.missing_states(ins):
            errs.append(f"hazard before: {ins.text}")
        st.step(ins)
    return errs, st


def gap_cost(ops):
    t = 1
    prev = None
    for o in ops:
        if o.kind == "label":
            continue
        if o.is_scalar:
            t += o.states
        else:
            t = max(t, 2)
            if o.kind in ("lds_rd", "lds_wr", "vm_ld", "vm_st", "dma") and prev is not None and prev.is_valu:
                t += 2
            t += 2 if o.kind in ("trans", "perm") else 1
            if o.kind in ("lds_wr", "vm_st"):
                t += 3
        prev = o
    return max(t, 4) * 4


def estimate(block):
    total = 0
    over = []
    cur = None
    n = 0
    for ins in block:
        if ins.kind == "mfma":
            if cur is not None:
                c = gap_cost(cur)
                total += c
                if c > 16:
                    over.append((n - 1, c, [x.text for x in cur]))
            cur = []
            n += 1
        elif cur is not None:
            cur.append(ins)
    if cur is not None:
        c = gap_cost(cur)
        total += c
        if c > 16:
            over.append((n - 1, c, [x.text for x in cur]))
    return total, over


def emit(block):
    return "".join((x.text if x.kind == "label" else "  " + x.text) + "\n" for x in block)


class Op:
    def __init__(self, ins, lo=0, hi=10 ** 9):
        self.ins, self.lo, self.hi = ins, lo, hi


def sched(mf, streams, pre=(), rate=None):
    streams = [list(s) for s in streams]
    for s in streams:
        hi = 10 ** 9
        for o in reversed(s):
            hi = o.hi = min(o.hi, hi)
    rate = rate or {}
    out = list(pre)
    ismem = lambda i: i.kind in ("lds_rd", "lds_wr", "vm_ld", "vm_st", "dma")

    def order(g):
        return [x for x in g if x.is_scalar] + [x for x in g if ismem(x)] + [x for x in g if not x.is_scalar and not ismem(x)]
    for g, m in enumerate(mf):
        gap = []
        taken = {k: 0 for k in range(len(streams))}
        while True:
            ready = [(s[0].hi, k) for k, s in enumerate(streams) if s and s[0].lo <= g]
            ready.sort()
            done = True
            for hi, k in ready:
                ins = streams[k][0].ins
                same = [x for x in gap if (x.wr & (ins.rd | ins.wr)) or (x.rd & ins.wr)]
                trial = order(gap + [ins])
                if any(trial.index(x) > trial.index(ins) for x in same):
                    trial = order(gap) + [ins]
                force = hi <= g or taken[k] < rate.get(k, 0)
                if gap_cost(trial) <= 16 or force:
                    if any(x.kind == "trans" and x.wr & ins.rd for x in gap) and not hi <= g:
                        continue
                    gap = trial
                    streams[k].pop(0)
                    taken[k] += 1
                    done = False
                    break
            if done:
                break
        out += [m] + gap
    rest = sorted(((o.hi, k, i, o.ins) for k, s in enumerate(streams) for i, o in enumerate(s)), key=lambda t: (t[1], t[2]))
    return out + [r[3] for r in rest]
```

```python
import argparse
import math
import struct
from fw import *
from asmlib import wrap

NQB = 6
TILE_G = 12288
TAU = 4192
TILE_L = 3 * TAU
HEAD_Q = 147456
HEAD_KV = 393216

V_KA, V_VA, V_DMA, V_QA = "v0", "v1", "v2", "v3"
L0 = 4
T0, T1 = "v10", "v11"
S0 = 12
P0 = 20
OV0, NOV = 68, 47
QA0 = 0
QBUF = 120
KA0 = 124
VA0 = 148
OA0 = 156
SRD_K, SRD_V, SRD_Q, SRD_O = "s[16:19]", "s[20:23]", "s[24:27]", "s[28:31]"
S_W, S_KOFF, S_VOFF, S_DMA, S_SLOT, S_NEW, S_DELTA, S_CNT, S_C, S_WOFF, S_T = (f"s{i}" for i in range(32, 43))


def f32(x):
    return "0x%08x" % struct.unpack("<I", struct.pack("<f", x))[0]


def Oreg(j, db):
    n = j * 12 + db
    return R("v", OV0 + 4 * n, 4) if n < NOV else R("a", OA0 + 4 * (n - NOV), 4)


def Qreg(j, s):
    return R("a", QA0 + 4 * (j * 5 + s), 4) if s < 5 else R("a", QBUF, 4)


def Kreg(s):
    return R("a", KA0 + 4 * s, 4)


def Preg(par, j):
    return P0 + 24 * par + 4 * j


class Gen:
    def __init__(self, ring=5, pol="nt", opol="", stamps=False, cinit="-4.0", abl="", provar=2, groups="222", estep=4, espace=10):
        self.groups, self.estep, self.espace = [int(c) for c in groups], estep, espace
        self.provar = provar
        self.abl = abl
        self.R = ring
        self.pol, self.opol, self.stamps, self.cinit = pol, opol, stamps, cinit
        self.VBASE = ring * TILE_L
        assert ring == 5
        self.QBASE = (2 * ring + 1) * TILE_L
        self.FLAG = self.QBASE + 24576
        self.lds = self.FLAG + 256
        self.nstamp = 0

    def stamp(self):
        if not self.stamps:
            return []
        r = 64 + 4 * self.nstamp
        self.nstamp += 1
        return [raw(f"s_memtime s[{r}:{r+1}]", "salu"), raw(f"s_memrealtime s[{r+2}:{r+3}]", "salu")]

    def kread(self, kb, s, slot=0):
        return ds_read("ds_read_b128", Kreg(s), V_KA, slot * TILE_L + (s >> 1) * TAU + (s & 1) * 64 + kb * 512)

    def vread(self, db, half, base, slot=0, file="a"):
        return ds_read("ds_read_b64_tr_b16", R(file, base + 2 * half, 2), V_VA,
                       slot * TILE_L + (db >> 2) * TAU + (db & 3) * 32 + half * 512)

    def qread(self, j):
        return ds_read("ds_read_b128", R("a", QBUF, 4), V_QA, j * 1024)

    def dma_pair(self, k, base_sgpr=S_DMA, koff=S_KOFF, voff=S_VOFF, slot_off=0):
        tau = k % 3
        isv = k >= 3
        imm = (self.VBASE if isv else 0) + slot_off + tau * TAU - tau * 128
        return (salu("s_add_u32", "m0", base_sgpr, imm),
                buf_dma(V_DMA, SRD_V if isv else SRD_K, voff if isv else koff, tau * 128, self.pol))

    def softmax_ops(self, n, ppar):
        kb, j = divmod(n % 12, 6)
        s = S0 + 4 * (n % 2)
        p = Preg(ppar, j) + 2 * kb
        e = [valu("v_exp_f32", f"v{s+i}", f"v{s+i}") for i in range(4)]
        a = [valu("v_add_f32", f"v{L0+j}", f"v{s+i}", f"v{L0+j}") for i in range(4)]
        c = [valu("v_cvt_pk_bf16_f32", f"v{p+i}", f"v{s+2*i}", f"v{s+2*i+1}") for i in range(2)]
        return e, a, c

    def qk(self, n, s):
        j = n % 6
        d = R("v", S0 + 4 * (n % 2), 4)
        return mfma(d, Kreg(s), Qreg(j, s), self.cinit if s == 0 else d)

    def pv(self, db, j, par, vbase, file="a"):
        return mfma(Oreg(j, db), R(file, vbase, 4), R("v", Preg(par, j), 4), Oreg(j, db))

    def period(self, par, fill=False):
        N = 144
        sc = [[] for _ in range(N + 12)]
        mem = [[] for _ in range(N + 12)]
        va = [[] for _ in range(N + 12)]
        heavy = lambda n: n % 6 == 5
        for n in range(-1, 12):
            if n == -1 and fill:
                continue
            e, a, c = self.softmax_ops(n, par if n == -1 else 1 - par)
            g = 12 * n
            if heavy(n):
                plan = [(10, e[0]), (11, e[1]), (12, e[2]), (13, e[3]), (14, a[0]), (15, a[1]), (16, c[0]), (16, a[2]),
                        (17, a[3]), (18, c[1])]
            elif heavy(n + 1):
                plan = [(9, e[0]), (10, e[1]), (11, e[2]), (12, e[3]), (13, a[0]), (14, a[1]), (15, c[0]), (16, a[2]),
                        (17, a[3]), (18, c[1])]
            else:
                plan = [(9, e[0]), (10, e[1]), (11, e[2]), (12, e[3]), (13, a[0]), (14, a[1]), (15, c[0]), (16, a[2]),
                        (17, a[3]), (19, c[1])]
            for o, ins in plan:
                if g + o >= 0:
                    va[g + o].append(ins)
        for n in range(12):
            g = 12 * n
            nv = (n + 1) % 12
            vb = VA0 + 4 * ((n + 1) % 2)
            tpos = (8, 9) if heavy(n) else ((2, 3) if heavy(n - 1) else (1, 2))
            if not fill or n == 11:
                for h in range(2):
                    mem[g + tpos[h]].append(self.vread(nv, h, vb))
            mem[g + (7 if heavy(n) else 5)].append(self.qread((n + 1) % 6))
            if heavy(n):
                for s in range(6):
                    mem[g + 1 + s].append(self.kread(1 if n == 5 else 0, s))
        if not fill:
            for k, n in enumerate((1, 2, 3, 4, 7, 8)):
                m, d = self.dma_pair(k)
                sc[12 * n + 5].append(m)
                mem[12 * n + 6].append(d)
        g = 12 * 9
        book = [salu("s_add_u32", S_DMA, S_SLOT, S_WOFF),
                salu("s_add_u32", S_NEW, S_SLOT, TILE_L),
                salu("s_cmp_eq_u32", S_NEW, self.R * TILE_L),
                salu("s_cselect_b32", S_NEW, 0, S_NEW),
                salu("s_sub_u32", S_DELTA, S_NEW, S_SLOT),
                salu("s_mov_b32", S_SLOT, S_NEW)]
        if not fill:
            book += [salu("s_add_u32", S_KOFF, S_KOFF, TILE_G), salu("s_add_u32", S_VOFF, S_VOFF, TILE_G)]
        for o, ins in zip((0, 1, 2, 3, 6, 7, 8, 9), book):
            sc[g + o].append(ins)
        g = 12 * 10
        va[g + 6] += [valu("v_add_u32", V_KA, S_DELTA, V_KA), valu("v_add_u32", V_VA, S_DELTA, V_VA)]
        sc[g + 7].append(wait(vm=6 * (self.R - 2), lgkm=1))
        sc[g + 8].append(barrier())
        mf = []
        for n in range(12):
            mf += [self.qk(n, s) for s in range(6)]
            mf += [None if fill else self.pv(n, j, par, VA0 + 4 * (n % 2)) for j in range(6)]
        if not fill and self.abl:
            def keep(x):
                t = x.text
                if "e" in self.abl and t.startswith("v_exp"): return False
                if "a" in self.abl and t.startswith("v_add_f32"): return False
                if "c" in self.abl and t.startswith("v_cvt"): return False
                if "k" in self.abl and x.kind == "lds_rd" and V_KA in x.rd: return False
                if "v" in self.abl and x.kind == "lds_rd" and V_VA in x.rd: return False
                if "q" in self.abl and x.kind == "lds_rd" and V_QA in x.rd: return False
                if "d" in self.abl and x.kind == "dma": return False
                if "b" in self.abl and x.kind == "barrier": return False
                return True
            mem = [[x for x in g_ if keep(x)] for g_ in mem]
            va = [[x for x in g_ if keep(x)] for g_ in va]
            sc = [[x for x in g_ if keep(x)] for g_ in sc]
            if "c" in self.abl:
                mf = [m if (i % 12) < 6 else self.pv(i // 12, i % 12 - 6, 0, VA0 + 4 * ((i // 12) % 2)) for i, m in enumerate(mf)]
        gaps = [sc[i] + mem[i] + va[i] for i in range(N)]
        tail = [x for i in range(N, N + 12) for x in va[i]]
        return mf, gaps, tail

    @staticmethod
    def flat(mf, gaps, lo, hi):
        out = []
        for i in range(lo, hi):
            if mf[i] is not None:
                out.append(mf[i])
            out += gaps[i]
        return out

    def addr_setup(self, lane, w):
        b = [valu("v_lshrrev_b32", "v6", 4, lane), valu("v_lshlrev_b32", "v6", 3, "v6"),
             valu("v_bfe_u32", "v7", lane, 3, 1), valu("v_add_u32", "v6", "v6", "v7"),
             valu("v_lshl_add_u32", "v6", w, 1, "v6"), valu("v_mul_u32_u24", "v6", 384, "v6"),
             valu("v_and_b32", "v7", 7, lane), valu("v_lshl_add_u32", V_DMA, "v7", 4, "v6")]

        def lds_row(dst, key):
            return [valu("v_bfe_u32", "v8", key, 1, 2), valu("v_mul_u32_u24", "v8", 1056, "v8"),
                    valu("v_lshrrev_b32", "v9", 3, key), valu("v_lshlrev_b32", "v9", 1, "v9"),
                    valu("v_and_b32", dst, 1, key), valu("v_add_u32", "v9", "v9", dst),
                    valu("v_lshl_add_u32", dst, "v9", 7, "v8")]
        b += [valu("v_and_b32", "v6", 15, lane), valu("v_lshrrev_b32", "v7", 4, lane)]
        b += lds_row(V_KA, "v6") + [valu("v_lshl_add_u32", V_KA, "v7", 4, V_KA)]
        b += [valu("v_lshrrev_b32", "v6", 2, lane)] + lds_row(V_VA, "v6")
        b += [valu("v_and_b32", "v6", 3, lane), valu("v_lshl_add_u32", V_VA, "v6", 3, V_VA),
              valu("v_add_u32", V_VA, self.VBASE, V_VA)]
        return b

    def slow_path(self):
        M = ["v16", "v17", "v18", "v19", T0, T1]
        S = S0
        SD = R("v", S, 4)
        QL = Preg(1, 0)
        lane, w, vq = "v4", "v5", V_QA

        def qreg(j, s):
            return Qreg(j, s) if s < 5 else R("v", QL + 4 * j, 4)
        setup = [wait(vm=0, lgkm=0), barrier(),
                 raw(f"v_mbcnt_lo_u32_b32 {lane}, -1, 0", "valu", [], [lane]),
                 raw(f"v_mbcnt_hi_u32_b32 {lane}, -1, {lane}", "valu", [lane], [lane]),
                 valu("v_mov_b32", w, S_W)]
        setup += self.addr_setup(lane, w)
        setup += [valu("v_mul_u32_u24", vq, 96, w), valu("v_and_b32", "v6", 15, lane), valu("v_add_u32", vq, vq, "v6"),
                  valu("v_mul_u32_u24", vq, 384, vq), valu("v_lshl_add_u32", vq, "v7", 4, vq)]
        for j in range(NQB):
            setup.append(salu("s_mov_b32", S_T, j * 16 * 384))
            setup += [buf_load(qreg(j, s), vq, SRD_Q, S_T, s * 64) for s in range(6)]
        setup += [wait(vm=0)]
        setup += [valu("v_mov_b32", m, "0xff800000") for m in M]
        setup += [salu("s_mov_b32", S_KOFF, 0)]

        def load(with_v):
            o = []
            for k in range(6 if with_v else 3):
                o += list(self.dma_pair(k, S_WOFF, S_KOFF, S_KOFF))
            return o + [wait(vm=0), barrier()]

        def chain(j):
            return [mfma(SD, Kreg(s), qreg(j, s), "0" if s == 0 else SD) for s in range(6)]

        def close(name):
            return [wait(lgkm=0), barrier(), salu("s_add_u32", S_KOFF, S_KOFF, TILE_G),
                    salu("s_cmp_lt_u32", S_KOFF, HEAD_KV), branch("s_cbranch_scc1", name)]
        maxl = load(False)
        for kb in range(2):
            maxl += [self.kread(kb, s) for s in range(6)]
            for j in range(NQB):
                maxl += chain(j) + [valu("v_max3_f32", M[j], M[j], f"v{S}", f"v{S+1}"),
                                    valu("v_max3_f32", M[j], M[j], f"v{S+2}", f"v{S+3}")]
        maxl += close("L_slow_max")
        mid = []
        for m in M:
            for op in ("v_permlane32_swap_b32", "v_permlane16_swap_b32"):
                mid += [valu("v_mov_b32", vq, m), valu(op, m, vq), valu("v_max_f32", m, m, vq)]
        mid += [valu("v_mul_f32", m, S_C, m) for m in M]
        mid += [valu("v_accvgpr_write_b32", f"a{r}", 0) for r in range(OA0, 256)]
        mid += [valu("v_mov_b32", f"v{r}", 0) for r in list(range(OV0, 256)) + list(range(L0, L0 + 6))]
        mid += [salu("s_mov_b32", S_KOFF, 0)]
        main = load(True)
        for kb in range(2):
            main += [self.kread(kb, s) for s in range(6)]
            for j in range(NQB):
                p = Preg(0, j) + 2 * kb
                main += chain(j)
                main += [valu("v_fma_f32", f"v{S+i}", f"v{S+i}", S_C, "-" + M[j]) for i in range(4)]
                main += [valu("v_exp_f32", f"v{S+i}", f"v{S+i}") for i in range(4)]
                main += [valu("v_add_f32", f"v{L0+j}", f"v{S+i}", f"v{L0+j}") for i in range(4)]
                main += [valu("v_cvt_pk_bf16_f32", f"v{p+i}", f"v{S+2*i}", f"v{S+2*i+1}") for i in range(2)]
        for db in range(12):
            vb = VA0 + 4 * (db % 2)
            main += [self.vread(db, h, vb) for h in range(2)]
            main += [self.pv(db, j, 0, vb) for j in range(NQB)]
        main += close("L_slow_main")
        return setup, maxl, mid, main, self.epilogue_plain()

    def prologue(self):
        b = []
        b += [salu("s_cmp_ge_u32", "s2", 256), branch("s_cbranch_scc1", "L_end"),
              raw("s_load_dwordx4 s[4:7], s[0:1], 0", "smem"), raw("s_load_dwordx4 s[8:11], s[0:1], 16", "smem")]
        if self.stamps:
            b += [raw("s_load_dwordx4 s[12:15], s[0:1], 32", "smem"),
                  raw("s_memrealtime s[56:57]"), raw("s_memtime s[58:59]")]
        lane, w = "v4", "v5"
        b += [valu("v_and_b32", lane, 63, "v0"), valu("v_lshrrev_b32", w, 6, "v0"),
              valu("v_readfirstlane_b32", S_W, w)]
        b += self.addr_setup(lane, w)
        g = "v7"
        b += [valu("v_mul_u32_u24", V_QA, 6144, w), valu("v_lshl_add_u32", V_QA, lane, 4, V_QA),
              valu("v_add_u32", V_QA, self.QBASE, V_QA)]
        for i_ in range(3):
            d = f"v{OV0+64+i_}"
            b += [valu("v_add_u32", d, 64 * i_, lane), valu("v_mul_u32_u24", "v6", 2731, d),
                  valu("v_lshrrev_b32", "v6", 16, "v6"), valu("v_and_b32", "v6", 6, "v6"),
                  valu("v_xor_b32", d, d, "v6"), valu("v_lshlrev_b32", d, 4, d)]
        b += [valu("v_and_b32", "v6", 15, lane), valu("v_and_b32", "v8", 6, lane), valu("v_xor_b32", "v8", "v8", g),
              valu("v_mul_u32_u24", "v6", 384, "v6"), valu("v_lshl_add_u32", f"v{OV0+67}", "v8", 4, "v6"),
              valu("v_xor_b32", f"v{OV0+68}", 64, f"v{OV0+67}")]
        b += [raw("s_waitcnt lgkmcnt(0)", "salu")]
        b += [salu("s_mul_i32", S_T, "s2", HEAD_KV),
              salu("s_add_u32", "s16", "s6", S_T), salu("s_addc_u32", "s17", "s7", 0),
              salu("s_mov_b32", "s18", HEAD_KV), salu("s_mov_b32", "s19", "0x20000"),
              salu("s_add_u32", "s20", "s8", S_T), salu("s_addc_u32", "s21", "s9", 0),
              salu("s_mov_b32", "s22", HEAD_KV), salu("s_mov_b32", "s23", "0x20000"),
              salu("s_mul_i32", S_T, "s2", HEAD_Q),
              salu("s_add_u32", "s24", "s4", S_T), salu("s_addc_u32", "s25", "s5", 0),
              salu("s_mov_b32", "s26", HEAD_Q), salu("s_mov_b32", "s27", "0x20000"),
              salu("s_add_u32", "s28", "s10", S_T), salu("s_addc_u32", "s29", "s11", 0),
              salu("s_mov_b32", "s30", HEAD_Q), salu("s_mov_b32", "s31", "0x20000"),
              salu("s_mul_i32", S_WOFF, S_W, 1056),
              salu("s_mov_b32", S_C, f32(math.log2(math.e) / math.sqrt(192.0))),
              salu("s_mov_b32", S_SLOT, 0), salu("s_mov_b32", S_CNT, 14)]

        def group(ktile, vtile):
            o = []
            for k in range(6):
                tile = vtile if k >= 3 else ktile
                if tile is None:
                    continue
                slot = (tile + 1) % self.R if k >= 3 else tile % self.R
                if k % 3 == 0:
                    o.append(salu("s_mov_b32", S_T, tile * TILE_G))
                o += list(self.dma_pair(k, S_WOFF, S_T, S_T, slot * TILE_L))
            return o
        S_SA, S_SB = "s43", "s44"
        RAW = OV0
        TMP = OV0 + 48
        Q5 = OV0 + 56
        VQ = [f"v{OV0+64+i_}" for i_ in range(3)]
        VR = [f"v{OV0+67+i_}" for i_ in range(2)]
        LAST = OV0 + 69
        KB = Preg(1, 0)
        b += [salu("s_lshr_b32", S_T, S_W, 1), salu("s_mul_i32", S_T, S_T, 3), salu("s_add_u32", S_T, S_T, S_W),
              salu("s_add_u32", S_T, S_T, 2), salu("s_mul_i32", S_SB, S_T, TILE_L),
              salu("s_add_u32", S_SA, S_SB, 2 * TILE_L), salu("s_mul_i32", S_T, S_W, 36864)]
        b += [valu("v_add_u32", VQ[i_], S_T, VQ[i_]) for i_ in range(3)]

        def ubase(u):
            return (S_SB if u in (2, 3) else S_SA), (u & 1) * 6144

        def qunit(u):
            sb, off = ubase(u)
            o = []
            for i_ in range(3):
                o += [salu("s_add_u32", "m0", sb, off + i_ * 1024)]
                o += [salu("s_mov_b32", S_T, u * 6144)] if i_ == 0 else [nop(0)]
                o += [buf_dma(VQ[i_], SRD_Q, S_T, h * 3072, self.pol) for h in range(2)]
            return o

        def qraw(u):
            sb, off = ubase(u)
            o = [valu("v_add_u32", T0, sb, VR[0]), valu("v_add_u32", T1, sb, VR[1])]
            for s_ in range(6):
                o.append(ds_read("ds_read_b128", R("v", RAW + 4 * ((u % 2) * 6 + s_), 4), (T0, T1)[s_ & 1],
                                 off + (s_ >> 1) * 128))
            return o

        def prescale(j):
            o = []
            for s_ in range(6):
                r0 = RAW + 4 * ((j % 2) * 6 + s_)
                for i_ in range(4):
                    o += [valu("v_lshlrev_b32", f"v{TMP+2*i_}", 16, f"v{r0+i_}"),
                          valu("v_and_b32", f"v{TMP+2*i_+1}", "0xffff0000", f"v{r0+i_}")]
                o += [valu("v_mul_f32", f"v{TMP+i_}", S_C, f"v{TMP+i_}") for i_ in range(8)]
                dst = r0 if s_ < 5 else Q5 + 4 * (j % 2)
                o += [valu("v_cvt_pk_bf16_f32", f"v{dst+i_}", f"v{TMP+2*i_}", f"v{TMP+2*i_+1}") for i_ in range(4)]
                if s_ < 5:
                    o += [valu("v_accvgpr_write_b32", f"a{QA0+4*(j*5+s_)+i_}", f"v{dst+i_}") for i_ in range(4)]
                else:
                    o.append(ds_write("ds_write_b128", V_QA, R("v", dst, 4), j * 1024))
            return o

        def chains(j):
            o = []
            for kb in range(2):
                d = R("v", S0 + 4 * kb, 4)
                for s_ in range(6):
                    a_ = Kreg(s_) if kb == 0 else R("v", KB + 4 * s_, 4)
                    q_ = Qreg(j, s_) if s_ < 5 else R("v", Q5 + 4 * (j % 2), 4)
                    o.append(mfma(d, a_, q_, self.cinit if s_ == 0 else d))
            return o

        def soft(j, kb):
            sreg = S0 + 4 * kb
            p = Preg(0, j) + 2 * kb
            e = [valu("v_exp_f32", f"v{sreg+i_}", f"v{sreg+i_}") for i_ in range(4)]
            a_ = [valu("v_add_f32", f"v{L0+j}", f"v{sreg+i_}", f"v{L0+j}") for i_ in range(4)]
            c = [valu("v_cvt_pk_bf16_f32", f"v{p+i_}", f"v{sreg+2*i_}", f"v{sreg+2*i_+1}") for i_ in range(2)]
            return e + a_ + c

        def weave(ms, ops, per=2):
            o = []
            ops = list(ops)
            for m in ms:
                o.append(m)
                o += ops[:per]
                ops = ops[per:]
            return o, ops

        plan = {0: (3, 4, 5), 1: (4, 5, 6), 2: (3, 5, 6), 3: (2, 4, 5), 4: (3, 3, 5), 5: (5, 6, 6)}[self.provar]
        queue = []

        def issue(name, ops):
            queue.append((name, sum(1 for x in ops if x.kind == "dma")))
            return ops

        def landed(name, **kw):
            k = [n for n, _ in queue].index(name)
            return wait(vm=sum(c for _, c in queue[k + 1:]), **kw)

        def extras(u):
            o = []
            if plan[0] == u:
                o += issue("KV0", group(1, 0))
            if plan[1] == u:
                o += issue("G4", group(2, 1))
            if plan[2] == u:
                o += issue("G3", group(3, 2))
            return o

        b += issue("K0", group(0, None))
        for u in range(4):
            b += issue(f"U{u}", qunit(u))
        for r in range(OA0, 256):
            b.append(valu("v_accvgpr_write_b32", f"a{r}", 0))
        for r in list(range(LAST, 256)) + list(range(L0, L0 + 6)):
            b.append(valu("v_mov_b32", f"v{r}", 0))
        b += [valu("v_mov_b32", "v14", self.FLAG), valu("v_mov_b32", "v15", 0), ds_write("ds_write_b32", "v14", "v15", 0)]
        b += [landed("U0")] + qraw(0) + [wait(lgkm=0)] + issue("U4", qunit(4)) + [barrier()]
        b += [self.kread(0, s_) for s_ in range(6)]
        b += [ds_read("ds_read_b128", R("v", KB + 4 * s_, 4), V_KA, (s_ >> 1) * TAU + (s_ & 1) * 64 + 512) for s_ in range(6)]
        b += prescale(0)
        for u in range(1, 6):
            b += [landed(f"U{u}")] + [] + qraw(u)
            if u == 1:
                b += [wait(lgkm=0)] + issue("U5", qunit(5))
            if u == 3:
                b += [wait(lgkm=0), barrier()]
            b += extras(u)
            ps = prescale(u)
            ch = chains(u - 1)
            w1, rest = weave(ch[6:], ps)
            b += ch[:6] + w1 + soft(u - 1, 0) + rest[:24] + soft(u - 1, 1) + rest[24:]
        zero = [valu("v_mov_b32", f"v{r}", 0) for r in list(range(RAW, Q5 + 4)) + list(range(Q5 + 8, LAST))]
        b += [valu("v_add_u32", V_KA, TILE_L, V_KA), valu("v_add_u32", V_VA, TILE_L, V_VA),
              salu("s_mov_b32", S_SLOT, TILE_L), salu("s_mov_b32", S_DMA, S_WOFF),
              salu("s_mov_b32", S_KOFF, self.R * TILE_G), salu("s_mov_b32", S_VOFF, (self.R - 1) * TILE_G)]
        b += [landed("KV0", lgkm=0), barrier()]
        ch = chains(5)
        for s_ in range(6):
            b += [ch[s_], self.kread(0, s_), zero.pop(0)]
        b += [ch[6], self.qread(0), zero.pop(0), ch[7], self.vread(0, 0, VA0), zero.pop(0), ch[8], self.vread(0, 1, VA0), zero.pop(0)]
        w1, rest = weave(ch[9:], zero)
        b += w1 + soft(5, 0) + extras(6) + group(4, 3) + rest
        b += [valu("v_mov_b32", f"v{r}", 0) for r in range(Q5 + 4, Q5 + 8)]
        b += soft(5, 1)[:2]
        return b

    def group_tail(self, js, bufs, first, carry=(), extra=()):
        n = len(js)
        LAT = 5
        mf, cstart, gstart = [], [], []
        v = 0
        for c in range(4 * n):
            ph, k = divmod(c, 2 * n)
            jj = js[c % n]
            d = R("v", S0 + 4 * (c % 2), 4)
            cstart.append(len(mf))
            mf += [mfma(d, Kreg(s), Qreg(jj, s), self.cinit if s == 0 else d) for s in range(6)]
            upto = 12 * ph + (k + 1) * 12 // (2 * n)
            if ph == 1 and k < 2 * n - 1:
                upto -= (4 + n - 1) // n * (k + 1) // (2 * n - 1)
            if c == 4 * n - 1:
                upto = 36
            while v < upto:
                gstart.append(len(mf))
                f_, b_ = bufs[v % len(bufs)]
                mf += [self.pv(v % 12, x, (1, 0, 1)[v // 12], b_, f_) for x in js]
                v += 1
        sm = [Op(x, 0, cstart[1] - 1) for x in carry]
        for c in range(4 * n):
            ph, kb, jj = c // (2 * n), (c // n) % 2, js[c % n]
            sreg = S0 + 4 * (c % 2)
            p = Preg(ph, jj) + 2 * kb
            hi = gstart[12 * (ph + 1)] + js.index(jj) - 2
            if c + 2 < 4 * n:
                hi = min(hi, cstart[c + 2] - 1)
            e = [valu("v_exp_f32", f"v{sreg+i}", f"v{sreg+i}") for i in range(4)]
            a = [valu("v_add_f32", f"v{L0+jj}", f"v{sreg+i}", f"v{L0+jj}") for i in range(4)]
            cv = [valu("v_cvt_pk_bf16_f32", f"v{p+i}", f"v{sreg+2*i}", f"v{sreg+2*i+1}") for i in range(2)]
            lo = cstart[c] + 5 + 3
            for k, x in enumerate(e + [cv[0], a[0], cv[1], a[1], a[2], a[3]]):
                last = c + 2 < 4 * n
                h = hi - (9 - k) // 2 if (last or k < 7) else 10 ** 9
                sm.append(Op(x, lo, max(h, lo)))
        sync_gap = cstart[n] + 2 if first else -1
        sync = [Op(wait(vm=0), sync_gap - 1, sync_gap - 1), Op(barrier(), sync_gap, sync_gap)] if first else []
        kst = []
        for st_ in range(1, 4):
            for s in range(6):
                lo = max(cstart[st_ * n - 1] + s, sync_gap + 1 if st_ == 2 else 0)
                kst.append(Op(self.kread(st_ % 2, s, st_ // 2), lo, max(cstart[st_ * n] + s - LAT, lo)))
        qst = [Op(self.qread(js[c % n]), cstart[c - 1] + 5, cstart[c] + 5 - LAT) for c in range(1, 4 * n)]
        vst = []
        pre = []
        for v in range(36):
            f_, b_ = bufs[v % len(bufs)]
            rd = [self.vread(v % 12, h, b_, v // 12, f_) for h in range(2)]
            if v == 0 and first:
                continue
            if v < len(bufs) and not first:
                pre += rd
                continue
            lo = gstart[v - len(bufs)] + n - 1 if v >= len(bufs) else 0
            if v >= 12:
                lo = max(lo, sync_gap + 1)
            vst += [Op(x, lo, max(gstart[v] - LAT, lo)) for x in rd]
        if not first:
            pre = [self.kread(0, s) for s in range(6)] + [self.qread(js[0])] + pre
        return pre, sched(mf, [sm, kst, qst, vst, sync, list(extra)])

    def row_sums(self, js, t0):
        b = []
        for op in ("v_permlane32_swap_b32", "v_permlane16_swap_b32"):
            b += [valu("v_mov_b32", f"v{t0+k}", f"v{L0+j}") for k, j in enumerate(js)]
            b += [valu(op, f"v{L0+j}", f"v{t0+k}") for k, j in enumerate(js)]
            b += [valu("v_add_f32", f"v{L0+j}", f"v{L0+j}", f"v{t0+k}") for k, j in enumerate(js)]
        return b

    def range_check(self, js, first, last):
        b = []
        if first:
            b += [salu("s_mov_b32", S_NEW, f32(2.0 ** 12)), salu("s_mov_b32", S_DELTA, f32(2.0 ** -20)),
                  salu("s_mov_b64", "s[44:45]", 0)]
        for j in js:
            b += [valu("v_cmp_nge_f32", "s[46:47]", S_NEW, f"v{L0+j}"), valu("v_cmp_nle_f32", "s[48:49]", S_DELTA, f"v{L0+j}"),
                  salu("s_or_b64", "s[44:45]", "s[44:45]", "s[46:47]"), salu("s_or_b64", "s[44:45]", "s[44:45]", "s[48:49]")]
        if last:
            b += [branch("s_cbranch_scc0", "L_inrange"),
                  valu("v_mov_b32", T0, self.FLAG), valu("v_mov_b32", T1, 1), ds_write("ds_write_b32", T0, T1, 0),
                  label("L_inrange")]
        return b

    PITCH = 400
    EA = P0

    def epi_addr(self):
        vw, vr, vg, lane, t = f"v{P0}", [f"v{P0+1+i}" for i in range(3)], f"v{P0+4}", f"v{P0+5}", f"v{P0+6}"
        b = [raw(f"v_mbcnt_lo_u32_b32 {lane}, -1, 0", "valu", [], [lane]),
             raw(f"v_mbcnt_hi_u32_b32 {lane}, -1, {lane}", "valu", [lane], [lane]),
             salu("s_lshr_b32", S_T, S_W, 1), salu("s_mul_i32", S_T, S_T, 6 * TILE_L),
             salu("s_and_b32", S_SLOT, S_W, 1), salu("s_mul_i32", S_SLOT, S_SLOT, 32 * self.PITCH),
             salu("s_add_u32", S_T, S_T, S_SLOT), salu("s_add_u32", S_T, S_T, 2 * TILE_L),
             valu("v_and_b32", vw, 15, lane), valu("v_mul_u32_u24", vw, self.PITCH, vw),
             valu("v_lshrrev_b32", t, 4, lane), valu("v_lshl_add_u32", vw, t, 3, vw), valu("v_add_u32", vw, S_T, vw)]
        for i in range(3):
            b += [valu("v_add_u32", vr[i], 64 * i, lane), valu("v_mul_u32_u24", t, 2731, vr[i]),
                  valu("v_lshrrev_b32", t, 16, t), valu("v_add_lshl_u32", vr[i], vr[i], t, 4),
                  valu("v_add_u32", vr[i], S_T, vr[i])]
        b += [salu("s_mul_i32", S_T, S_W, 36864), valu("v_lshlrev_b32", vg, 4, lane), valu("v_add_u32", vg, S_T, vg)]
        return b

    def epi_stores(self, j):
        o = []
        for i in range(6):
            pre = [salu("s_mov_b32", S_T, j * 6144 + i * 1024)] if i % 4 == 0 else []
            o.append(pre + [buf_store(Oreg(j, i), f"v{P0+4}", SRD_O, S_T, (i % 4) * 1024, self.opol)])
        return o

    def epi_block(self, j, pend, first=3, step=1):
        PITCH = self.PITCH
        vw, vr = f"v{P0}", [f"v{P0+1+i}" for i in range(3)]
        b = []
        for db in range(12):
            src = expand(Oreg(j, db))
            if src[0][0] == "a":
                t = OV0 + 24 + 4 * (db % 6)
                b += [valu("v_accvgpr_read_b32", f"v{t+i}", src[i]) for i in range(4)]
                src = [f"v{t+i}" for i in range(4)]
            b += [valu("v_mul_f32", src[i], src[i], f"v{L0+j}") for i in range(4)]
            b += [valu("v_cvt_pk_bf16_f32", src[i], src[2 * i], src[2 * i + 1]) for i in range(2)]
            b += [ds_write("ds_write_b64", vw, R("v", int(src[0][1:]), 2), (j % 2) * 16 * PITCH + db * 32)]
            if db >= first and (db - first) % step == 0 and pend:
                b += pend.pop(0)
        b += [ds_read("ds_read_b128", Oreg(j, i), vr[i % 3], (2 * (j % 2) + i // 3) * 8 * PITCH) for i in range(6)]
        return b

    def epi_all(self, js, pend):
        b = []
        for j in js:
            b += self.epi_block(j, pend)
            b += [x for p in pend for x in p]
            pend = self.epi_stores(j)
        return b + [x for p in pend for x in p]

    def rcp(self, js):
        return [valu("v_rcp_f32", f"v{L0+j}", f"v{L0+j}") for j in js]

    def epilogue_plain(self):
        js = list(range(NQB))
        return self.row_sums(js, S0) + self.rcp(js) + self.epi_addr() + self.epi_all(js, [])

    def tail(self, carry):
        groups, k = [], 0
        for n in self.groups:
            groups.append(list(range(k, k + n)))
            k += n
        assert k == NQB and groups[0][-1] < 4 and len(groups[0]) >= 2
        bufs0 = [("a", VA0), ("a", VA0 + 4), ("v", Preg(0, 4)), ("v", Preg(0, 5))]
        bufs1 = [("a", VA0), ("a", VA0 + 4), ("a", 0), ("a", 4)]
        _, b = self.group_tail(groups[0], bufs0, True, carry)
        left = []
        for gi, js in enumerate(groups):
            last = gi == len(groups) - 1
            b += self.stamp() if gi in (0, len(groups) - 1) else []
            b += self.row_sums(js, S0) + self.range_check(js, gi == 0, last) + self.rcp(js)
            if gi == 0:
                b += self.epi_addr()
            if last:
                b += self.epi_all(js, left)
                break
            nxt = groups[gi + 1]
            for x, j in enumerate(js):
                if x == len(js) - 1:
                    pos = len(b)
                b += self.epi_block(j, left, 2, self.estep)
                left += self.epi_stores(j)
            nm = 60 * len(nxt)
            take = min(len(left), max(0, (nm - 4) // self.espace))
            extra = [Op(x, 4 + self.espace * i, 4 + self.espace * i) for i, p in enumerate(left[:take]) for x in p]
            left = left[take:]
            pre, t1 = self.group_tail(nxt, bufs1, False, (), extra)
            b[pos:pos] = pre
            b += t1
        b += [wait(lgkm=0), barrier(), valu("v_mov_b32", T1, self.FLAG), ds_read("ds_read_b32", T1, T1, 0),
              valu("v_readfirstlane_b32", S_T, T1), salu("s_cmp_lg_u32", S_T, 0), branch("s_cbranch_scc1", "L_slow")]
        return b

    def stamp_out(self):
        if not self.stamps:
            return ""
        n = 4 + 2 * self.nstamp
        s = "  s_waitcnt vmcnt(0)\n  s_barrier\n  s_memrealtime s[60:61]\n  s_memtime s[62:63]\n  s_waitcnt lgkmcnt(0)\n"
        s += f"  s_cmp_lg_u32 {S_W}, 0\n  s_cbranch_scc1 L_end\n  s_mov_b64 exec, 1\n"
        if self.stamps == "dbg":
            s += "  v_mov_b32 v1, 0\n  v_mov_b32 v2, s60\n  global_atomic_umax v1, v2, s[12:13]\n"
            s += "  s_not_b32 s3, s56\n  v_mov_b32 v3, s3\n  global_atomic_umax v1, v3, s[12:13] offset:4\n"
            s += "  v_mov_b32 v4, s56\n  global_atomic_umax v1, v4, s[12:13] offset:8\n"
            s += "  s_cmp_lg_u32 s2, 100\n  s_cbranch_scc1 L_end\n"
            vals = [(66 + 4 * i, 56) for i in range(self.nstamp)] + [(60, 56)] + [(64 + 4 * i, 58) for i in range(self.nstamp)] + [(62, 58)]
            for i, (x, y) in enumerate(vals):
                s += f"  s_sub_u32 s3, s{x}, s{y}\n  v_mov_b32 v2, s3\n  global_store_dword v1, v2, s[12:13] offset:{16+4*i}\n"
            return s
        s += f"  s_mul_i32 s3, s2, {8*n}\n  v_mov_b32 v1, s3\n"
        for i in range(n):
            r = 56 + 2 * i
            s += f"  v_mov_b32 v2, s{r}\n  v_mov_b32 v3, s{r+1}\n  global_store_dwordx2 v1, v[2:3], s[14:15] offset:{8*i}\n  s_nop 1\n"
        return s

    def build(self, verbose=False):
        ROT = 8
        pro = self.prologue()
        mfE, gE, tailE = self.period(0)
        mfO, gO, _ = self.period(1)
        gE[12 * 11 + 7].append(salu("s_cmp_eq_u32", S_CNT, 0))
        exit_tail = gE[143] + tailE
        gE[143] = [branch("s_cbranch_scc1", "L_drain")] + gE[143]
        gO[12 * 11 + 7].append(salu("s_sub_u32", S_CNT, S_CNT, 1))
        fill = self.stamp()
        head = self.flat(mfE, gE, 0, ROT)
        body = self.flat(mfE, gE, ROT, 144) + self.flat(mfO, gO, 0, 144) + self.flat(mfE, gE, 0, ROT)
        body.append(branch("s_branch", "L_top"))

        log = []
        pro, st = fix(pro + fill, State())
        head1, st1 = fix(head, st, hoist=True)
        body1, st2 = fix(body, st1, hoist=True, log=log)
        body2, st3 = fix(body1, st2, hoist=True, log=log)
        errs, _ = verify(pro + head1 + body2 + body2 + body2)
        assert not errs, errs[:10]
        kx = next(i for i, x in enumerate(body2) if x.kind == "branch")
        _, stx = verify(pro + head1 + body2 + body2[:kx + 1])
        post = self.stamp() + self.tail(exit_tail)
        post, _ = fix(post, stx, hoist=True)
        errs, _ = verify(pro + head1 + body2[:kx + 1] + post)
        assert not errs, errs[:10]
        if verbose:
            tot, over = estimate(body2)
            print("loop estimate cycles (288 mfma, ideal 4608):", tot)
            for o in over:
                print("  over:", o)
            print("  inserted:", [x for x in log if x[0] == "nop"])
            print("  waits:", len([x for x in log if x[0] == "wait"]), "instrs:", len(body2))
            tot, over = estimate(post)
            print("tail estimate:", tot, "mfma:", sum(x.kind == "mfma" for x in post), "instrs:", len(post))
            print("  over:", [(o[0], o[1]) for o in over])
        text = emit(pro + head1) + ".p2align 6\nL_top:\n" + emit(body2) + "L_drain:\n" + emit(post)
        text += self.stamp_out() + "L_end:\n  s_endpgm\n"
        setup, maxl, mid, main, epi = self.slow_path()
        st = State()
        blocks = []
        for blk, loop in ((setup, False), (maxl, True), (mid, False), (main, True), (epi, False)):
            blk, st = fix(blk, st)
            if loop:
                blk, st = fix(blk, st)
            blocks.append(blk)
        setup, maxl, mid, main, epi = blocks
        errs, _ = verify(post + setup + maxl + maxl + mid + main + main + epi)
        assert not errs, errs[:10]
        text += "L_slow:\n" + emit(setup) + "L_slow_max:\n" + emit(maxl) + emit(mid) + "L_slow_main:\n" + emit(main)
        text += emit(epi) + "  s_endpgm\n"
        return wrap(text, 256, 256, self.lds, 512, 256)


if __name__ == "__main__":
    ap = argparse.ArgumentParser()
    ap.add_argument("-o", default="k.s")
    ap.add_argument("--stamps", default="")
    ap.add_argument("--ring", type=int, default=5)
    ap.add_argument("--pol", default="nt")
    ap.add_argument("--opol", default="nt")
    ap.add_argument("--abl", default="")
    ap.add_argument("--groups", default="222")
    ap.add_argument("--estep", type=int, default=4)
    ap.add_argument("--espace", type=int, default=10)
    ap.add_argument("--provar", type=int, default=2)
    ap.add_argument("-v", action="store_true")
    a = ap.parse_args()
    g = Gen(ring=a.ring, pol=a.pol, opol=a.opol, stamps=a.stamps, abl=a.abl, provar=a.provar, groups=a.groups, estep=a.estep, espace=a.espace)
    open(a.o, "w").write(g.build(a.v))
```

```python
import argparse
import math
import struct
from fw import *
from asmlib import wrap

NQB = 6
TILE_G = 12288
TAU = 4192
TILE_L = 3 * TAU
HEAD_Q = 147456
HEAD_KV = 393216

V_KA, V_VA, V_DMA, V_QA = "v0", "v1", "v2", "v3"
L0 = 4
T0, T1 = "v10", "v11"
S0 = 12
P0 = 20
OV0, NOV = 68, 47
QA0 = 0
QBUF = 120
KA0 = 124
VA0 = 148
OA0 = 156
SRD_K, SRD_V, SRD_Q, SRD_O = "s[16:19]", "s[20:23]", "s[24:27]", "s[28:31]"
S_W, S_KOFF, S_VOFF, S_DMA, S_SLOT, S_NEW, S_DELTA, S_CNT, S_C, S_WOFF, S_T = (f"s{i}" for i in range(32, 43))


def f32(x):
    return "0x%08x" % struct.unpack("<I", struct.pack("<f", x))[0]


def Oreg(j, db):
    n = j * 12 + db
    return R("v", OV0 + 4 * n, 4) if n < NOV else R("a", OA0 + 4 * (n - NOV), 4)


def Qreg(j, s):
    return R("a", QA0 + 4 * (j * 5 + s), 4) if s < 5 else R("a", QBUF, 4)


def Kreg(s):
    return R("a", KA0 + 4 * s, 4)


def Preg(par, j):
    return P0 + 24 * par + 4 * j


class Gen:
    def __init__(self, ring=5, pol="nt", opol="", stamps=False, cinit="-4.0", abl="", provar=2, groups="42", estep=4, espace=7, pref=1):
        self.pref = pref
        self.groups, self.estep, self.espace = [int(c) for c in groups], estep, espace
        self.provar = provar
        self.abl = abl
        self.R = ring
        self.pol, self.opol, self.stamps, self.cinit = pol, opol, stamps, cinit
        self.VBASE = ring * TILE_L
        assert ring == 5
        self.QBASE = (2 * ring + 1) * TILE_L
        self.FLAG = self.QBASE + 24576
        self.lds = self.FLAG + 256
        self.nstamp = 0

    def stamp(self):
        if not self.stamps:
            return []
        r = 64 + 4 * self.nstamp
        self.nstamp += 1
        return [raw(f"s_memtime s[{r}:{r+1}]", "salu"), raw(f"s_memrealtime s[{r+2}:{r+3}]", "salu")]

    def kread(self, kb, s, slot=0):
        return ds_read("ds_read_b128", Kreg(s), V_KA, slot * TILE_L + (s >> 1) * TAU + (s & 1) * 64 + kb * 512)

    def vread(self, db, half, base, slot=0, file="a"):
        return ds_read("ds_read_b64_tr_b16", R(file, base + 2 * half, 2), V_VA,
                       slot * TILE_L + (db >> 2) * TAU + (db & 3) * 32 + half * 512)

    def qread(self, j):
        return ds_read("ds_read_b128", R("a", QBUF, 4), V_QA, j * 1024)

    def dma_pair(self, k, base_sgpr=S_DMA, koff=S_KOFF, voff=S_VOFF, slot_off=0):
        tau = k % 3
        isv = k >= 3
        imm = (self.VBASE if isv else 0) + slot_off + tau * TAU - tau * 128
        return (salu("s_add_u32", "m0", base_sgpr, imm),
                buf_dma(V_DMA, SRD_V if isv else SRD_K, voff if isv else koff, tau * 128, self.pol))

    def softmax_ops(self, n, ppar):
        kb, j = divmod(n % 12, 6)
        s = S0 + 4 * (n % 2)
        p = Preg(ppar, j) + 2 * kb
        e = [valu("v_exp_f32", f"v{s+i}", f"v{s+i}") for i in range(4)]
        a = [valu("v_add_f32", f"v{L0+j}", f"v{s+i}", f"v{L0+j}") for i in range(4)]
        c = [valu("v_cvt_pk_bf16_f32", f"v{p+i}", f"v{s+2*i}", f"v{s+2*i+1}") for i in range(2)]
        return e, a, c

    def qk(self, n, s):
        j = n % 6
        d = R("v", S0 + 4 * (n % 2), 4)
        return mfma(d, Kreg(s), Qreg(j, s), self.cinit if s == 0 else d)

    def pv(self, db, j, par, vbase, file="a"):
        return mfma(Oreg(j, db), R(file, vbase, 4), R("v", Preg(par, j), 4), Oreg(j, db))

    def period(self, par, fill=False):
        N = 144
        sc = [[] for _ in range(N + 12)]
        mem = [[] for _ in range(N + 12)]
        va = [[] for _ in range(N + 12)]
        heavy = lambda n: n % 6 == 5
        for n in range(-1, 12):
            if n == -1 and fill:
                continue
            e, a, c = self.softmax_ops(n, par if n == -1 else 1 - par)
            g = 12 * n
            if heavy(n):
                plan = [(10, e[0]), (11, e[1]), (12, e[2]), (13, e[3]), (14, a[0]), (15, a[1]), (16, c[0]), (16, a[2]),
                        (17, a[3]), (18, c[1])]
            elif heavy(n + 1):
                plan = [(9, e[0]), (10, e[1]), (11, e[2]), (12, e[3]), (13, a[0]), (14, a[1]), (15, c[0]), (16, a[2]),
                        (17, a[3]), (18, c[1])]
            else:
                plan = [(9, e[0]), (10, e[1]), (11, e[2]), (12, e[3]), (13, a[0]), (14, a[1]), (15, c[0]), (16, a[2]),
                        (17, a[3]), (19, c[1])]
            for o, ins in plan:
                if g + o >= 0:
                    va[g + o].append(ins)
        for n in range(12):
            g = 12 * n
            nv = (n + 1) % 12
            vb = VA0 + 4 * ((n + 1) % 2)
            tpos = (8, 9) if heavy(n) else ((2, 3) if heavy(n - 1) else (1, 2))
            if not fill or n == 11:
                for h in range(2):
                    mem[g + tpos[h]].append(self.vread(nv, h, vb))
            mem[g + (7 if heavy(n) else 5)].append(self.qread((n + 1) % 6))
            if heavy(n):
                for s in range(6):
                    mem[g + 1 + s].append(self.kread(1 if n == 5 else 0, s))
        if not fill:
            for k, n in enumerate((1, 2, 3, 4, 7, 8)):
                m, d = self.dma_pair(k)
                sc[12 * n + 5].append(m)
                mem[12 * n + 6].append(d)
        g = 12 * 9
        book = [salu("s_add_u32", S_DMA, S_SLOT, S_WOFF),
                salu("s_add_u32", S_NEW, S_SLOT, TILE_L),
                salu("s_cmp_eq_u32", S_NEW, self.R * TILE_L),
                salu("s_cselect_b32", S_NEW, 0, S_NEW),
                salu("s_sub_u32", S_DELTA, S_NEW, S_SLOT),
                salu("s_mov_b32", S_SLOT, S_NEW)]
        if not fill:
            book += [salu("s_add_u32", S_KOFF, S_KOFF, TILE_G), salu("s_add_u32", S_VOFF, S_VOFF, TILE_G)]
        for o, ins in zip((0, 1, 2, 3, 6, 7, 8, 9), book):
            sc[g + o].append(ins)
        g = 12 * 10
        va[g + 6] += [valu("v_add_u32", V_KA, S_DELTA, V_KA), valu("v_add_u32", V_VA, S_DELTA, V_VA)]
        sc[g + 7].append(wait(vm=6 * (self.R - 2), lgkm=1))
        sc[g + 8].append(barrier())
        mf = []
        for n in range(12):
            mf += [self.qk(n, s) for s in range(6)]
            mf += [None if fill else self.pv(n, j, par, VA0 + 4 * (n % 2)) for j in range(6)]
        if not fill and self.abl:
            def keep(x):
                t = x.text
                if "e" in self.abl and t.startswith("v_exp"): return False
                if "a" in self.abl and t.startswith("v_add_f32"): return False
                if "c" in self.abl and t.startswith("v_cvt"): return False
                if "k" in self.abl and x.kind == "lds_rd" and V_KA in x.rd: return False
                if "v" in self.abl and x.kind == "lds_rd" and V_VA in x.rd: return False
                if "q" in self.abl and x.kind == "lds_rd" and V_QA in x.rd: return False
                if "d" in self.abl and x.kind == "dma": return False
                if "b" in self.abl and x.kind == "barrier": return False
                return True
            mem = [[x for x in g_ if keep(x)] for g_ in mem]
            va = [[x for x in g_ if keep(x)] for g_ in va]
            sc = [[x for x in g_ if keep(x)] for g_ in sc]
            if "c" in self.abl:
                mf = [m if (i % 12) < 6 else self.pv(i // 12, i % 12 - 6, 0, VA0 + 4 * ((i // 12) % 2)) for i, m in enumerate(mf)]
        gaps = [sc[i] + mem[i] + va[i] for i in range(N)]
        tail = [x for i in range(N, N + 12) for x in va[i]]
        return mf, gaps, tail

    @staticmethod
    def flat(mf, gaps, lo, hi):
        out = []
        for i in range(lo, hi):
            if mf[i] is not None:
                out.append(mf[i])
            out += gaps[i]
        return out

    def addr_setup(self, lane, w):
        b = [valu("v_lshrrev_b32", "v6", 4, lane), valu("v_lshlrev_b32", "v6", 3, "v6"),
             valu("v_bfe_u32", "v7", lane, 3, 1), valu("v_add_u32", "v6", "v6", "v7"),
             valu("v_lshl_add_u32", "v6", w, 1, "v6"), valu("v_mul_u32_u24", "v6", 384, "v6"),
             valu("v_and_b32", "v7", 7, lane), valu("v_lshl_add_u32", V_DMA, "v7", 4, "v6")]

        def lds_row(dst, key):
            return [valu("v_bfe_u32", "v8", key, 1, 2), valu("v_mul_u32_u24", "v8", 1056, "v8"),
                    valu("v_lshrrev_b32", "v9", 3, key), valu("v_lshlrev_b32", "v9", 1, "v9"),
                    valu("v_and_b32", dst, 1, key), valu("v_add_u32", "v9", "v9", dst),
                    valu("v_lshl_add_u32", dst, "v9", 7, "v8")]
        b += [valu("v_and_b32", "v6", 15, lane), valu("v_lshrrev_b32", "v7", 4, lane)]
        b += lds_row(V_KA, "v6") + [valu("v_lshl_add_u32", V_KA, "v7", 4, V_KA)]
        b += [valu("v_lshrrev_b32", "v6", 2, lane)] + lds_row(V_VA, "v6")
        b += [valu("v_and_b32", "v6", 3, lane), valu("v_lshl_add_u32", V_VA, "v6", 3, V_VA),
              valu("v_add_u32", V_VA, self.VBASE, V_VA)]
        return b

    def slow_path(self):
        M = ["v16", "v17", "v18", "v19", T0, T1]
        S = S0
        SD = R("v", S, 4)
        QL = Preg(1, 0)
        lane, w, vq = "v4", "v5", V_QA

        def qreg(j, s):
            return Qreg(j, s) if s < 5 else R("v", QL + 4 * j, 4)
        setup = [wait(vm=0, lgkm=0), barrier(),
                 raw(f"v_mbcnt_lo_u32_b32 {lane}, -1, 0", "valu", [], [lane]),
                 raw(f"v_mbcnt_hi_u32_b32 {lane}, -1, {lane}", "valu", [lane], [lane]),
                 valu("v_mov_b32", w, S_W)]
        setup += self.addr_setup(lane, w)
        setup += [valu("v_mul_u32_u24", vq, 96, w), valu("v_and_b32", "v6", 15, lane), valu("v_add_u32", vq, vq, "v6"),
                  valu("v_mul_u32_u24", vq, 384, vq), valu("v_lshl_add_u32", vq, "v7", 4, vq)]
        for j in range(NQB):
            setup.append(salu("s_mov_b32", S_T, j * 16 * 384))
            setup += [buf_load(qreg(j, s), vq, SRD_Q, S_T, s * 64) for s in range(6)]
        setup += [wait(vm=0)]
        setup += [valu("v_mov_b32", m, "0xff800000") for m in M]
        setup += [salu("s_mov_b32", S_KOFF, 0)]

        def load(with_v):
            o = []
            for k in range(6 if with_v else 3):
                o += list(self.dma_pair(k, S_WOFF, S_KOFF, S_KOFF))
            return o + [wait(vm=0), barrier()]

        def chain(j):
            return [mfma(SD, Kreg(s), qreg(j, s), "0" if s == 0 else SD) for s in range(6)]

        def close(name):
            return [wait(lgkm=0), barrier(), salu("s_add_u32", S_KOFF, S_KOFF, TILE_G),
                    salu("s_cmp_lt_u32", S_KOFF, HEAD_KV), branch("s_cbranch_scc1", name)]
        maxl = load(False)
        for kb in range(2):
            maxl += [self.kread(kb, s) for s in range(6)]
            for j in range(NQB):
                maxl += chain(j) + [valu("v_max3_f32", M[j], M[j], f"v{S}", f"v{S+1}"),
                                    valu("v_max3_f32", M[j], M[j], f"v{S+2}", f"v{S+3}")]
        maxl += close("L_slow_max")
        mid = []
        for m in M:
            for op in ("v_permlane32_swap_b32", "v_permlane16_swap_b32"):
                mid += [valu("v_mov_b32", vq, m), valu(op, m, vq), valu("v_max_f32", m, m, vq)]
        mid += [valu("v_mul_f32", m, S_C, m) for m in M]
        mid += [valu("v_accvgpr_write_b32", f"a{r}", 0) for r in range(OA0, 256)]
        mid += [valu("v_mov_b32", f"v{r}", 0) for r in list(range(OV0, 256)) + list(range(L0, L0 + 6))]
        mid += [salu("s_mov_b32", S_KOFF, 0)]
        main = load(True)
        for kb in range(2):
            main += [self.kread(kb, s) for s in range(6)]
            for j in range(NQB):
                p = Preg(0, j) + 2 * kb
                main += chain(j)
                main += [valu("v_fma_f32", f"v{S+i}", f"v{S+i}", S_C, "-" + M[j]) for i in range(4)]
                main += [valu("v_exp_f32", f"v{S+i}", f"v{S+i}") for i in range(4)]
                main += [valu("v_add_f32", f"v{L0+j}", f"v{S+i}", f"v{L0+j}") for i in range(4)]
                main += [valu("v_cvt_pk_bf16_f32", f"v{p+i}", f"v{S+2*i}", f"v{S+2*i+1}") for i in range(2)]
        for db in range(12):
            vb = VA0 + 4 * (db % 2)
            main += [self.vread(db, h, vb) for h in range(2)]
            main += [self.pv(db, j, 0, vb) for j in range(NQB)]
        main += close("L_slow_main")
        return setup, maxl, mid, main, self.epilogue_plain()

    def prologue(self):
        b = []
        b += [salu("s_cmp_ge_u32", "s2", 256), branch("s_cbranch_scc1", "L_end"),
              raw("s_load_dwordx4 s[4:7], s[0:1], 0", "smem"), raw("s_load_dwordx4 s[8:11], s[0:1], 16", "smem")]
        if self.stamps:
            b += [raw("s_load_dwordx4 s[12:15], s[0:1], 32", "smem"),
                  raw("s_memrealtime s[56:57]"), raw("s_memtime s[58:59]")]
        lane, w = "v4", "v5"
        b += [valu("v_and_b32", lane, 63, "v0"), valu("v_lshrrev_b32", w, 6, "v0"),
              valu("v_readfirstlane_b32", S_W, w)]
        if self.pref:
            b += [raw("s_getpc_b64 s[50:51]", "salu", [], ["s50", "s51"]), label("L_pc"),
                  salu("s_lshr_b32", S_T, "s2", 3), salu("s_lshl_b32", S_T, S_T, 2), salu("s_add_u32", S_T, S_T, S_W),
                  salu("s_min_u32", S_T, S_T, "(L_end-L_pc)/1024"), salu("s_lshl_b32", S_T, S_T, 10),
                  valu("v_lshl_add_u32", "v6", lane, 4, S_T),
                  I(f"global_load_dwordx4 v[{OV0}:{OV0+3}], v6, s[50:51]", "vm_ld", ["v6", "s50", "s51"], regs("v", OV0, 4))]
        b += self.addr_setup(lane, w)
        g = "v7"
        b += [valu("v_mul_u32_u24", V_QA, 6144, w), valu("v_lshl_add_u32", V_QA, lane, 4, V_QA),
              valu("v_add_u32", V_QA, self.QBASE, V_QA)]
        for i_ in range(3):
            d = f"v{OV0+64+i_}"
            b += [valu("v_add_u32", d, 64 * i_, lane), valu("v_mul_u32_u24", "v6", 2731, d),
                  valu("v_lshrrev_b32", "v6", 16, "v6"), valu("v_and_b32", "v6", 6, "v6"),
                  valu("v_xor_b32", d, d, "v6"), valu("v_lshlrev_b32", d, 4, d)]
        b += [valu("v_and_b32", "v6", 15, lane), valu("v_and_b32", "v8", 6, lane), valu("v_xor_b32", "v8", "v8", g),
              valu("v_mul_u32_u24", "v6", 384, "v6"), valu("v_lshl_add_u32", f"v{OV0+67}", "v8", 4, "v6"),
              valu("v_xor_b32", f"v{OV0+68}", 64, f"v{OV0+67}")]
        b += [raw("s_waitcnt lgkmcnt(0)", "salu")]
        b += [salu("s_mul_i32", S_T, "s2", HEAD_KV),
              salu("s_add_u32", "s16", "s6", S_T), salu("s_addc_u32", "s17", "s7", 0),
              salu("s_mov_b32", "s18", HEAD_KV), salu("s_mov_b32", "s19", "0x20000"),
              salu("s_add_u32", "s20", "s8", S_T), salu("s_addc_u32", "s21", "s9", 0),
              salu("s_mov_b32", "s22", HEAD_KV), salu("s_mov_b32", "s23", "0x20000"),
              salu("s_mul_i32", S_T, "s2", HEAD_Q),
              salu("s_add_u32", "s24", "s4", S_T), salu("s_addc_u32", "s25", "s5", 0),
              salu("s_mov_b32", "s26", HEAD_Q), salu("s_mov_b32", "s27", "0x20000"),
              salu("s_add_u32", "s28", "s10", S_T), salu("s_addc_u32", "s29", "s11", 0),
              salu("s_mov_b32", "s30", HEAD_Q), salu("s_mov_b32", "s31", "0x20000"),
              salu("s_mul_i32", S_WOFF, S_W, 1056),
              salu("s_mov_b32", S_C, f32(math.log2(math.e) / math.sqrt(192.0))),
              salu("s_mov_b32", S_SLOT, 0), salu("s_mov_b32", S_CNT, 14)]

        def group(ktile, vtile):
            o = []
            for k in range(6):
                tile = vtile if k >= 3 else ktile
                if tile is None:
                    continue
                slot = (tile + 1) % self.R if k >= 3 else tile % self.R
                if k % 3 == 0:
                    o.append(salu("s_mov_b32", S_T, tile * TILE_G))
                o += list(self.dma_pair(k, S_WOFF, S_T, S_T, slot * TILE_L))
            return o
        S_SA, S_SB = "s43", "s44"
        RAW = OV0
        TMP = OV0 + 48
        Q5 = OV0 + 56
        VQ = [f"v{OV0+64+i_}" for i_ in range(3)]
        VR = [f"v{OV0+67+i_}" for i_ in range(2)]
        LAST = OV0 + 69
        KB = Preg(1, 0)
        b += [salu("s_lshr_b32", S_T, S_W, 1), salu("s_mul_i32", S_T, S_T, 3), salu("s_add_u32", S_T, S_T, S_W),
              salu("s_add_u32", S_T, S_T, 2), salu("s_mul_i32", S_SB, S_T, TILE_L),
              salu("s_add_u32", S_SA, S_SB, 2 * TILE_L), salu("s_mul_i32", S_T, S_W, 36864)]
        b += [valu("v_add_u32", VQ[i_], S_T, VQ[i_]) for i_ in range(3)]

        def ubase(u):
            return (S_SB if u in (2, 3) else S_SA), (u & 1) * 6144

        def qunit(u):
            sb, off = ubase(u)
            o = []
            for i_ in range(3):
                o += [salu("s_add_u32", "m0", sb, off + i_ * 1024)]
                o += [salu("s_mov_b32", S_T, u * 6144)] if i_ == 0 else [nop(0)]
                o += [buf_dma(VQ[i_], SRD_Q, S_T, h * 3072, self.pol) for h in range(2)]
            return o

        def qraw(u):
            sb, off = ubase(u)
            o = [valu("v_add_u32", T0, sb, VR[0]), valu("v_add_u32", T1, sb, VR[1])]
            for s_ in range(6):
                o.append(ds_read("ds_read_b128", R("v", RAW + 4 * ((u % 2) * 6 + s_), 4), (T0, T1)[s_ & 1],
                                 off + (s_ >> 1) * 128))
            return o

        def prescale(j):
            o = []
            for s_ in range(6):
                r0 = RAW + 4 * ((j % 2) * 6 + s_)
                for i_ in range(4):
                    o += [valu("v_lshlrev_b32", f"v{TMP+2*i_}", 16, f"v{r0+i_}"),
                          valu("v_and_b32", f"v{TMP+2*i_+1}", "0xffff0000", f"v{r0+i_}")]
                o += [valu("v_mul_f32", f"v{TMP+i_}", S_C, f"v{TMP+i_}") for i_ in range(8)]
                dst = r0 if s_ < 5 else Q5 + 4 * (j % 2)
                o += [valu("v_cvt_pk_bf16_f32", f"v{dst+i_}", f"v{TMP+2*i_}", f"v{TMP+2*i_+1}") for i_ in range(4)]
                if s_ < 5:
                    o += [valu("v_accvgpr_write_b32", f"a{QA0+4*(j*5+s_)+i_}", f"v{dst+i_}") for i_ in range(4)]
                else:
                    o.append(ds_write("ds_write_b128", V_QA, R("v", dst, 4), j * 1024))
            return o

        def chains(j):
            o = []
            for kb in range(2):
                d = R("v", S0 + 4 * kb, 4)
                for s_ in range(6):
                    a_ = Kreg(s_) if kb == 0 else R("v", KB + 4 * s_, 4)
                    q_ = Qreg(j, s_) if s_ < 5 else R("v", Q5 + 4 * (j % 2), 4)
                    o.append(mfma(d, a_, q_, self.cinit if s_ == 0 else d))
            return o

        def soft(j, kb):
            sreg = S0 + 4 * kb
            p = Preg(0, j) + 2 * kb
            e = [valu("v_exp_f32", f"v{sreg+i_}", f"v{sreg+i_}") for i_ in range(4)]
            a_ = [valu("v_add_f32", f"v{L0+j}", f"v{sreg+i_}", f"v{L0+j}") for i_ in range(4)]
            c = [valu("v_cvt_pk_bf16_f32", f"v{p+i_}", f"v{sreg+2*i_}", f"v{sreg+2*i_+1}") for i_ in range(2)]
            return e + a_ + c

        def weave(ms, ops, per=2):
            o = []
            ops = list(ops)
            for m in ms:
                o.append(m)
                o += ops[:per]
                ops = ops[per:]
            return o, ops

        plan = {0: (3, 4, 5), 1: (4, 5, 6), 2: (3, 5, 6), 3: (2, 4, 5), 4: (3, 3, 5), 5: (5, 6, 6)}[self.provar]
        queue = []

        def issue(name, ops):
            queue.append((name, sum(1 for x in ops if x.kind == "dma")))
            return ops

        def landed(name, **kw):
            k = [n for n, _ in queue].index(name)
            return wait(vm=sum(c for _, c in queue[k + 1:]), **kw)

        def extras(u):
            o = []
            if plan[0] == u:
                o += issue("KV0", group(1, 0))
            if plan[1] == u:
                o += issue("G4", group(2, 1))
            if plan[2] == u:
                o += issue("G3", group(3, 2))
            return o

        b += issue("K0", group(0, None))
        for u in range(4):
            b += issue(f"U{u}", qunit(u))
        for r in range(OA0, 256):
            b.append(valu("v_accvgpr_write_b32", f"a{r}", 0))
        for r in list(range(LAST, 256)) + list(range(L0, L0 + 6)):
            b.append(valu("v_mov_b32", f"v{r}", 0))
        b += [valu("v_mov_b32", "v14", self.FLAG), valu("v_mov_b32", "v15", 0), ds_write("ds_write_b32", "v14", "v15", 0)]
        b += [landed("U0")] + qraw(0) + [wait(lgkm=0)] + issue("U4", qunit(4)) + [barrier()]
        b += [self.kread(0, s_) for s_ in range(6)]
        b += [ds_read("ds_read_b128", R("v", KB + 4 * s_, 4), V_KA, (s_ >> 1) * TAU + (s_ & 1) * 64 + 512) for s_ in range(6)]
        b += prescale(0)
        for u in range(1, 6):
            b += [landed(f"U{u}")] + [] + qraw(u)
            if u == 1:
                b += [wait(lgkm=0)] + issue("U5", qunit(5))
            if u == 3:
                b += [wait(lgkm=0), barrier()]
            b += extras(u)
            ps = prescale(u)
            ch = chains(u - 1)
            w1, rest = weave(ch[6:], ps)
            b += ch[:6] + w1 + soft(u - 1, 0) + rest[:24] + soft(u - 1, 1) + rest[24:]
        zero = [valu("v_mov_b32", f"v{r}", 0) for r in list(range(RAW, Q5 + 4)) + list(range(Q5 + 8, LAST))]
        b += [valu("v_add_u32", V_KA, TILE_L, V_KA), valu("v_add_u32", V_VA, TILE_L, V_VA),
              salu("s_mov_b32", S_SLOT, TILE_L), salu("s_mov_b32", S_DMA, S_WOFF),
              salu("s_mov_b32", S_KOFF, self.R * TILE_G), salu("s_mov_b32", S_VOFF, (self.R - 1) * TILE_G)]
        b += [landed("KV0", lgkm=0), barrier()]
        ch = chains(5)
        for s_ in range(6):
            b += [ch[s_], self.kread(0, s_), zero.pop(0)]
        b += [ch[6], self.qread(0), zero.pop(0), ch[7], self.vread(0, 0, VA0), zero.pop(0), ch[8], self.vread(0, 1, VA0), zero.pop(0)]
        w1, rest = weave(ch[9:], zero)
        b += w1 + soft(5, 0) + extras(6) + group(4, 3) + rest
        b += [valu("v_mov_b32", f"v{r}", 0) for r in range(Q5 + 4, Q5 + 8)]
        b += soft(5, 1)[:2]
        return b

    def group_tail(self, js, bufs, first, carry=(), extra=()):
        n = len(js)
        LAT = 5
        mf, cstart, gstart = [], [], []
        v = 0
        for c in range(4 * n):
            ph, k = divmod(c, 2 * n)
            jj = js[c % n]
            d = R("v", S0 + 4 * (c % 2), 4)
            cstart.append(len(mf))
            mf += [mfma(d, Kreg(s), Qreg(jj, s), self.cinit if s == 0 else d) for s in range(6)]
            upto = 12 * ph + (k + 1) * 12 // (2 * n)
            if ph == 1 and k < 2 * n - 1:
                upto -= (4 + n - 1) // n * (k + 1) // (2 * n - 1)
            if c == 4 * n - 1:
                upto = 36
            while v < upto:
                gstart.append(len(mf))
                f_, b_ = bufs[v % len(bufs)]
                mf += [self.pv(v % 12, x, (1, 0, 1)[v // 12], b_, f_) for x in js]
                v += 1
        sm = [Op(x, 0, cstart[1] - 1) for x in carry]
        for c in range(4 * n):
            ph, kb, jj = c // (2 * n), (c // n) % 2, js[c % n]
            sreg = S0 + 4 * (c % 2)
            p = Preg(ph, jj) + 2 * kb
            hi = gstart[12 * (ph + 1)] + js.index(jj) - 2
            if c + 2 < 4 * n:
                hi = min(hi, cstart[c + 2] - 1)
            e = [valu("v_exp_f32", f"v{sreg+i}", f"v{sreg+i}") for i in range(4)]
            a = [valu("v_add_f32", f"v{L0+jj}", f"v{sreg+i}", f"v{L0+jj}") for i in range(4)]
            cv = [valu("v_cvt_pk_bf16_f32", f"v{p+i}", f"v{sreg+2*i}", f"v{sreg+2*i+1}") for i in range(2)]
            lo = cstart[c] + 5 + 3
            for k, x in enumerate(e + [cv[0], a[0], cv[1], a[1], a[2], a[3]]):
                last = c + 2 < 4 * n
                h = hi - (9 - k) // 2 if (last or k < 7) else 10 ** 9
                sm.append(Op(x, lo, max(h, lo)))
        sync_gap = cstart[n] + 2 if first else -1
        sync = [Op(wait(vm=0), sync_gap - 1, sync_gap - 1), Op(barrier(), sync_gap, sync_gap)] if first else []
        kst = []
        for st_ in range(1, 4):
            for s in range(6):
                lo = max(cstart[st_ * n - 1] + s, sync_gap + 1 if st_ == 2 else 0)
                kst.append(Op(self.kread(st_ % 2, s, st_ // 2), lo, max(cstart[st_ * n] + s - LAT, lo)))
        qst = [Op(self.qread(js[c % n]), cstart[c - 1] + 5, cstart[c] + 5 - LAT) for c in range(1, 4 * n)]
        vst = []
        pre = []
        for v in range(36):
            f_, b_ = bufs[v % len(bufs)]
            rd = [self.vread(v % 12, h, b_, v // 12, f_) for h in range(2)]
            if v == 0 and first:
                continue
            if v < len(bufs) and not first:
                pre += rd
                continue
            lo = gstart[v - len(bufs)] + n - 1 if v >= len(bufs) else 0
            if v >= 12:
                lo = max(lo, sync_gap + 1)
            vst += [Op(x, lo, max(gstart[v] - LAT, lo)) for x in rd]
        if not first:
            pre = [self.kread(0, s) for s in range(6)] + [self.qread(js[0])] + pre
        return pre, sched(mf, [sm, kst, qst, vst, sync, list(extra)])

    def row_sums(self, js, t0):
        b = []
        for op in ("v_permlane32_swap_b32", "v_permlane16_swap_b32"):
            b += [valu("v_mov_b32", f"v{t0+k}", f"v{L0+j}") for k, j in enumerate(js)]
            b += [valu(op, f"v{L0+j}", f"v{t0+k}") for k, j in enumerate(js)]
            b += [valu("v_add_f32", f"v{L0+j}", f"v{L0+j}", f"v{t0+k}") for k, j in enumerate(js)]
        return b

    def range_check(self, js, first, last):
        b = []
        if first:
            b += [salu("s_mov_b32", S_NEW, f32(2.0 ** 12)), salu("s_mov_b32", S_DELTA, f32(2.0 ** -20)),
                  salu("s_mov_b64", "s[44:45]", 0)]
        for j in js:
            b += [valu("v_cmp_nge_f32", "s[46:47]", S_NEW, f"v{L0+j}"), valu("v_cmp_nle_f32", "s[48:49]", S_DELTA, f"v{L0+j}"),
                  salu("s_or_b64", "s[44:45]", "s[44:45]", "s[46:47]"), salu("s_or_b64", "s[44:45]", "s[44:45]", "s[48:49]")]
        if last:
            b += [branch("s_cbranch_scc0", "L_inrange"),
                  valu("v_mov_b32", T0, self.FLAG), valu("v_mov_b32", T1, 1), ds_write("ds_write_b32", T0, T1, 0),
                  label("L_inrange")]
        return b

    PITCH = 400
    EA = P0

    def epi_addr(self):
        vw, vr, vg, lane, t = f"v{P0}", [f"v{P0+1+i}" for i in range(3)], f"v{P0+4}", f"v{P0+5}", f"v{P0+6}"
        b = [raw(f"v_mbcnt_lo_u32_b32 {lane}, -1, 0", "valu", [], [lane]),
             raw(f"v_mbcnt_hi_u32_b32 {lane}, -1, {lane}", "valu", [lane], [lane]),
             salu("s_lshr_b32", S_T, S_W, 1), salu("s_mul_i32", S_T, S_T, 6 * TILE_L),
             salu("s_and_b32", S_SLOT, S_W, 1), salu("s_mul_i32", S_SLOT, S_SLOT, 32 * self.PITCH),
             salu("s_add_u32", S_T, S_T, S_SLOT), salu("s_add_u32", S_T, S_T, 2 * TILE_L),
             valu("v_and_b32", vw, 15, lane), valu("v_mul_u32_u24", vw, self.PITCH, vw),
             valu("v_lshrrev_b32", t, 4, lane), valu("v_lshl_add_u32", vw, t, 3, vw), valu("v_add_u32", vw, S_T, vw)]
        for i in range(3):
            b += [valu("v_add_u32", vr[i], 64 * i, lane), valu("v_mul_u32_u24", t, 2731, vr[i]),
                  valu("v_lshrrev_b32", t, 16, t), valu("v_add_lshl_u32", vr[i], vr[i], t, 4),
                  valu("v_add_u32", vr[i], S_T, vr[i])]
        b += [salu("s_mul_i32", S_T, S_W, 36864), valu("v_lshlrev_b32", vg, 4, lane), valu("v_add_u32", vg, S_T, vg)]
        return b

    def epi_stores(self, j):
        o = []
        for i in range(6):
            pre = [salu("s_mov_b32", S_T, j * 6144 + i * 1024)] if i % 4 == 0 else []
            o.append(pre + [buf_store(Oreg(j, i), f"v{P0+4}", SRD_O, S_T, (i % 4) * 1024, self.opol)])
        return o

    def epi_block(self, j, pend, first=3, step=1):
        PITCH = self.PITCH
        vw, vr = f"v{P0}", [f"v{P0+1+i}" for i in range(3)]
        b = []
        for db in range(12):
            src = expand(Oreg(j, db))
            if src[0][0] == "a":
                t = OV0 + 24 + 4 * (db % 6)
                b += [valu("v_accvgpr_read_b32", f"v{t+i}", src[i]) for i in range(4)]
                src = [f"v{t+i}" for i in range(4)]
            b += [valu("v_mul_f32", src[i], src[i], f"v{L0+j}") for i in range(4)]
            b += [valu("v_cvt_pk_bf16_f32", src[i], src[2 * i], src[2 * i + 1]) for i in range(2)]
            b += [ds_write("ds_write_b64", vw, R("v", int(src[0][1:]), 2), (j % 2) * 16 * PITCH + db * 32)]
            if db >= first and (db - first) % step == 0 and pend:
                b += pend.pop(0)
        b += [ds_read("ds_read_b128", Oreg(j, i), vr[i % 3], (2 * (j % 2) + i // 3) * 8 * PITCH) for i in range(6)]
        return b

    def epi_all(self, js, pend):
        b = []
        for j in js:
            b += self.epi_block(j, pend)
            b += [x for p in pend for x in p]
            pend = self.epi_stores(j)
        return b + [x for p in pend for x in p]

    def rcp(self, js):
        return [valu("v_rcp_f32", f"v{L0+j}", f"v{L0+j}") for j in js]

    def epilogue_plain(self):
        js = list(range(NQB))
        return self.row_sums(js, S0) + self.rcp(js) + self.epi_addr() + self.epi_all(js, [])

    def tail(self, carry):
        groups, k = [], 0
        for n in self.groups:
            groups.append(list(range(k, k + n)))
            k += n
        assert k == NQB and groups[0][-1] < 4 and len(groups[0]) >= 2
        bufs0 = [("a", VA0), ("a", VA0 + 4), ("v", Preg(0, 4)), ("v", Preg(0, 5))]
        bufs1 = [("a", VA0), ("a", VA0 + 4), ("a", 0), ("a", 4)]
        _, b = self.group_tail(groups[0], bufs0, True, carry)
        left = []
        for gi, js in enumerate(groups):
            last = gi == len(groups) - 1
            b += self.stamp() if gi in (0, len(groups) - 1) else []
            b += self.row_sums(js, S0) + self.range_check(js, gi == 0, last) + self.rcp(js)
            if gi == 0:
                b += self.epi_addr()
            if last:
                b += self.epi_all(js, left)
                break
            nxt = groups[gi + 1]
            for x, j in enumerate(js):
                if x == len(js) - 1:
                    pos = len(b)
                b += self.epi_block(j, left, 2, self.estep)
                left += self.epi_stores(j)
            nm = 60 * len(nxt)
            take = min(len(left), max(0, (nm - 4) // self.espace))
            extra = [Op(x, 4 + self.espace * i, 4 + self.espace * i) for i, p in enumerate(left[:take]) for x in p]
            left = left[take:]
            pre, t1 = self.group_tail(nxt, bufs1, False, (), extra)
            b[pos:pos] = pre
            b += t1
        b += [wait(lgkm=0), barrier(), valu("v_mov_b32", T1, self.FLAG), ds_read("ds_read_b32", T1, T1, 0),
              valu("v_readfirstlane_b32", S_T, T1), salu("s_cmp_lg_u32", S_T, 0), branch("s_cbranch_scc1", "L_slow")]
        return b

    def stamp_out(self):
        if not self.stamps:
            return ""
        n = 4 + 2 * self.nstamp
        s = "  s_waitcnt vmcnt(0)\n  s_barrier\n  s_memrealtime s[60:61]\n  s_memtime s[62:63]\n  s_waitcnt lgkmcnt(0)\n"
        s += f"  s_cmp_lg_u32 {S_W}, 0\n  s_cbranch_scc1 L_end\n  s_mov_b64 exec, 1\n"
        if self.stamps == "dbg":
            s += "  v_mov_b32 v1, 0\n  v_mov_b32 v2, s60\n  global_atomic_umax v1, v2, s[12:13]\n"
            s += "  s_not_b32 s3, s56\n  v_mov_b32 v3, s3\n  global_atomic_umax v1, v3, s[12:13] offset:4\n"
            s += "  v_mov_b32 v4, s56\n  global_atomic_umax v1, v4, s[12:13] offset:8\n"
            s += "  s_cmp_lg_u32 s2, 100\n  s_cbranch_scc1 L_end\n"
            vals = [(66 + 4 * i, 56) for i in range(self.nstamp)] + [(60, 56)] + [(64 + 4 * i, 58) for i in range(self.nstamp)] + [(62, 58)]
            for i, (x, y) in enumerate(vals):
                s += f"  s_sub_u32 s3, s{x}, s{y}\n  v_mov_b32 v2, s3\n  global_store_dword v1, v2, s[12:13] offset:{16+4*i}\n"
            return s
        s += f"  s_mul_i32 s3, s2, {8*n}\n  v_mov_b32 v1, s3\n"
        for i in range(n):
            r = 56 + 2 * i
            s += f"  v_mov_b32 v2, s{r}\n  v_mov_b32 v3, s{r+1}\n  global_store_dwordx2 v1, v[2:3], s[14:15] offset:{8*i}\n  s_nop 1\n"
        return s

    def build(self, verbose=False):
        ROT = 8
        pro = self.prologue()
        mfE, gE, tailE = self.period(0)
        mfO, gO, _ = self.period(1)
        gE[12 * 11 + 7].append(salu("s_cmp_eq_u32", S_CNT, 0))
        exit_tail = gE[143] + tailE
        gE[143] = [branch("s_cbranch_scc1", "L_drain")] + gE[143]
        gO[12 * 11 + 7].append(salu("s_sub_u32", S_CNT, S_CNT, 1))
        fill = self.stamp()
        head = self.flat(mfE, gE, 0, ROT)
        body = self.flat(mfE, gE, ROT, 144) + self.flat(mfO, gO, 0, 144) + self.flat(mfE, gE, 0, ROT)
        body.append(branch("s_branch", "L_top"))

        log = []
        pro, st = fix(pro + fill, State())
        head1, st1 = fix(head, st, hoist=True)
        body1, st2 = fix(body, st1, hoist=True, log=log)
        body2, st3 = fix(body1, st2, hoist=True, log=log)
        errs, _ = verify(pro + head1 + body2 + body2 + body2)
        assert not errs, errs[:10]
        kx = next(i for i, x in enumerate(body2) if x.kind == "branch")
        _, stx = verify(pro + head1 + body2 + body2[:kx + 1])
        post = self.stamp() + self.tail(exit_tail)
        post, _ = fix(post, stx, hoist=True)
        errs, _ = verify(pro + head1 + body2[:kx + 1] + post)
        assert not errs, errs[:10]
        if verbose:
            tot, over = estimate(body2)
            print("loop estimate cycles (288 mfma, ideal 4608):", tot)
            for o in over:
                print("  over:", o)
            print("  inserted:", [x for x in log if x[0] == "nop"])
            print("  waits:", len([x for x in log if x[0] == "wait"]), "instrs:", len(body2))
            tot, over = estimate(post)
            print("tail estimate:", tot, "mfma:", sum(x.kind == "mfma" for x in post), "instrs:", len(post))
            print("  over:", [(o[0], o[1]) for o in over])
        text = emit(pro + head1) + ".p2align 6\nL_top:\n" + emit(body2) + "L_drain:\n" + emit(post)
        text += self.stamp_out() + "L_end:\n  s_endpgm\n"
        setup, maxl, mid, main, epi = self.slow_path()
        st = State()
        blocks = []
        for blk, loop in ((setup, False), (maxl, True), (mid, False), (main, True), (epi, False)):
            blk, st = fix(blk, st)
            if loop:
                blk, st = fix(blk, st)
            blocks.append(blk)
        setup, maxl, mid, main, epi = blocks
        errs, _ = verify(post + setup + maxl + maxl + mid + main + main + epi)
        assert not errs, errs[:10]
        text += "L_slow:\n" + emit(setup) + "L_slow_max:\n" + emit(maxl) + emit(mid) + "L_slow_main:\n" + emit(main)
        text += emit(epi) + "  s_endpgm\n"
        return wrap(text, 256, 256, self.lds, 512, 256)


if __name__ == "__main__":
    ap = argparse.ArgumentParser()
    ap.add_argument("-o", default="k.s")
    ap.add_argument("--stamps", default="")
    ap.add_argument("--ring", type=int, default=5)
    ap.add_argument("--pol", default="nt")
    ap.add_argument("--opol", default="nt")
    ap.add_argument("--abl", default="")
    ap.add_argument("--pref", type=int, default=1)
    ap.add_argument("--groups", default="42")
    ap.add_argument("--estep", type=int, default=4)
    ap.add_argument("--espace", type=int, default=7)
    ap.add_argument("--provar", type=int, default=2)
    ap.add_argument("-v", action="store_true")
    a = ap.parse_args()
    g = Gen(ring=a.ring, pol=a.pol, opol=a.opol, stamps=a.stamps, abl=a.abl, provar=a.provar, groups=a.groups, estep=a.estep, espace=a.espace, pref=a.pref)
    open(a.o, "w").write(g.build(a.v))
```

```python
import argparse
import math
import struct
from fw import *
from asmlib import wrap

NQB = 6
TILE_G = 12288
TAU = 4192
TILE_L = 3 * TAU
HEAD_Q = 147456
HEAD_KV = 393216

V_KA, V_VA, V_DMA, V_QA = "v0", "v1", "v2", "v3"
L0 = 4
T0, T1 = "v10", "v11"
S0 = 12
P0 = 20
OV0, NOV = 68, 47
QA0 = 0
QBUF = 120
KA0 = 124
VA0 = 148
OA0 = 156
SRD_K, SRD_V, SRD_Q, SRD_O = "s[16:19]", "s[20:23]", "s[24:27]", "s[28:31]"
S_W, S_KOFF, S_VOFF, S_DMA, S_SLOT, S_NEW, S_DELTA, S_CNT, S_C, S_WOFF, S_T = (f"s{i}" for i in range(32, 43))


def f32(x):
    return "0x%08x" % struct.unpack("<I", struct.pack("<f", x))[0]


def Oreg(j, db):
    n = j * 12 + db
    return R("v", OV0 + 4 * n, 4) if n < NOV else R("a", OA0 + 4 * (n - NOV), 4)


def Qreg(j, s):
    return R("a", QA0 + 4 * (j * 5 + s), 4) if s < 5 else R("a", QBUF, 4)


def Kreg(s):
    return R("a", KA0 + 4 * s, 4)


def Preg(par, j):
    return P0 + 24 * par + 4 * j


class Gen:
    def __init__(self, ring=5, pol="nt", opol="", stamps=False, cinit="-4.0", abl="", provar=2, groups="42", estep=4, espace=7, pref=1, remap=1, touch=0):
        self.remap, self.touch = remap, touch
        self.pref = pref
        self.groups, self.estep, self.espace = [int(c) for c in groups], estep, espace
        self.provar = provar
        self.abl = abl
        self.R = ring
        self.pol, self.opol, self.stamps, self.cinit = pol, opol, stamps, cinit
        self.VBASE = ring * TILE_L
        assert ring == 5
        self.QBASE = (2 * ring + 1) * TILE_L
        self.FLAG = self.QBASE + 24576
        self.lds = self.FLAG + 256
        self.nstamp = 0

    def stamp(self):
        if not self.stamps:
            return []
        r = 64 + 4 * self.nstamp
        self.nstamp += 1
        return [raw(f"s_memtime s[{r}:{r+1}]", "salu"), raw(f"s_memrealtime s[{r+2}:{r+3}]", "salu")]

    def kread(self, kb, s, slot=0):
        return ds_read("ds_read_b128", Kreg(s), V_KA, slot * TILE_L + (s >> 1) * TAU + (s & 1) * 64 + kb * 512)

    def vread(self, db, half, base, slot=0, file="a"):
        return ds_read("ds_read_b64_tr_b16", R(file, base + 2 * half, 2), V_VA,
                       slot * TILE_L + (db >> 2) * TAU + (db & 3) * 32 + half * 512)

    def qread(self, j):
        return ds_read("ds_read_b128", R("a", QBUF, 4), V_QA, j * 1024)

    def dma_pair(self, k, base_sgpr=S_DMA, koff=S_KOFF, voff=S_VOFF, slot_off=0):
        tau = k % 3
        isv = k >= 3
        imm = (self.VBASE if isv else 0) + slot_off + tau * TAU - tau * 128
        return (salu("s_add_u32", "m0", base_sgpr, imm),
                buf_dma(V_DMA, SRD_V if isv else SRD_K, voff if isv else koff, tau * 128, self.pol))

    def softmax_ops(self, n, ppar):
        kb, j = divmod(n % 12, 6)
        s = S0 + 4 * (n % 2)
        p = Preg(ppar, j) + 2 * kb
        e = [valu("v_exp_f32", f"v{s+i}", f"v{s+i}") for i in range(4)]
        a = [valu("v_add_f32", f"v{L0+j}", f"v{s+i}", f"v{L0+j}") for i in range(4)]
        c = [valu("v_cvt_pk_bf16_f32", f"v{p+i}", f"v{s+2*i}", f"v{s+2*i+1}") for i in range(2)]
        return e, a, c

    def qk(self, n, s):
        j = n % 6
        d = R("v", S0 + 4 * (n % 2), 4)
        return mfma(d, Kreg(s), Qreg(j, s), self.cinit if s == 0 else d)

    def pv(self, db, j, par, vbase, file="a"):
        return mfma(Oreg(j, db), R(file, vbase, 4), R("v", Preg(par, j), 4), Oreg(j, db))

    def period(self, par, fill=False):
        N = 144
        sc = [[] for _ in range(N + 12)]
        mem = [[] for _ in range(N + 12)]
        va = [[] for _ in range(N + 12)]
        heavy = lambda n: n % 6 == 5
        for n in range(-1, 12):
            if n == -1 and fill:
                continue
            e, a, c = self.softmax_ops(n, par if n == -1 else 1 - par)
            g = 12 * n
            if heavy(n):
                plan = [(10, e[0]), (11, e[1]), (12, e[2]), (13, e[3]), (14, a[0]), (15, a[1]), (16, c[0]), (16, a[2]),
                        (17, a[3]), (18, c[1])]
            elif heavy(n + 1):
                plan = [(9, e[0]), (10, e[1]), (11, e[2]), (12, e[3]), (13, a[0]), (14, a[1]), (15, c[0]), (16, a[2]),
                        (17, a[3]), (18, c[1])]
            else:
                plan = [(9, e[0]), (10, e[1]), (11, e[2]), (12, e[3]), (13, a[0]), (14, a[1]), (15, c[0]), (16, a[2]),
                        (17, a[3]), (19, c[1])]
            for o, ins in plan:
                if g + o >= 0:
                    va[g + o].append(ins)
        for n in range(12):
            g = 12 * n
            nv = (n + 1) % 12
            vb = VA0 + 4 * ((n + 1) % 2)
            tpos = (8, 9) if heavy(n) else ((2, 3) if heavy(n - 1) else (1, 2))
            if not fill or n == 11:
                for h in range(2):
                    mem[g + tpos[h]].append(self.vread(nv, h, vb))
            mem[g + (7 if heavy(n) else 5)].append(self.qread((n + 1) % 6))
            if heavy(n):
                for s in range(6):
                    mem[g + 1 + s].append(self.kread(1 if n == 5 else 0, s))
        if not fill:
            for k, n in enumerate((1, 2, 3, 4, 7, 8)):
                m, d = self.dma_pair(k)
                sc[12 * n + 5].append(m)
                mem[12 * n + 6].append(d)
        g = 12 * 9
        book = [salu("s_add_u32", S_DMA, S_SLOT, S_WOFF),
                salu("s_add_u32", S_NEW, S_SLOT, TILE_L),
                salu("s_cmp_eq_u32", S_NEW, self.R * TILE_L),
                salu("s_cselect_b32", S_NEW, 0, S_NEW),
                salu("s_sub_u32", S_DELTA, S_NEW, S_SLOT),
                salu("s_mov_b32", S_SLOT, S_NEW)]
        if not fill:
            book += [salu("s_add_u32", S_KOFF, S_KOFF, TILE_G), salu("s_add_u32", S_VOFF, S_VOFF, TILE_G)]
        for o, ins in zip((0, 1, 2, 3, 6, 7, 8, 9), book):
            sc[g + o].append(ins)
        g = 12 * 10
        va[g + 6] += [valu("v_add_u32", V_KA, S_DELTA, V_KA), valu("v_add_u32", V_VA, S_DELTA, V_VA)]
        sc[g + 7].append(wait(vm=6 * (self.R - 2), lgkm=1))
        sc[g + 8].append(barrier())
        mf = []
        for n in range(12):
            mf += [self.qk(n, s) for s in range(6)]
            mf += [None if fill else self.pv(n, j, par, VA0 + 4 * (n % 2)) for j in range(6)]
        if not fill and self.abl:
            def keep(x):
                t = x.text
                if "e" in self.abl and t.startswith("v_exp"): return False
                if "a" in self.abl and t.startswith("v_add_f32"): return False
                if "c" in self.abl and t.startswith("v_cvt"): return False
                if "k" in self.abl and x.kind == "lds_rd" and V_KA in x.rd: return False
                if "v" in self.abl and x.kind == "lds_rd" and V_VA in x.rd: return False
                if "q" in self.abl and x.kind == "lds_rd" and V_QA in x.rd: return False
                if "d" in self.abl and x.kind == "dma": return False
                if "b" in self.abl and x.kind == "barrier": return False
                return True
            mem = [[x for x in g_ if keep(x)] for g_ in mem]
            va = [[x for x in g_ if keep(x)] for g_ in va]
            sc = [[x for x in g_ if keep(x)] for g_ in sc]
            if "c" in self.abl:
                mf = [m if (i % 12) < 6 else self.pv(i // 12, i % 12 - 6, 0, VA0 + 4 * ((i // 12) % 2)) for i, m in enumerate(mf)]
        gaps = [sc[i] + mem[i] + va[i] for i in range(N)]
        tail = [x for i in range(N, N + 12) for x in va[i]]
        return mf, gaps, tail

    @staticmethod
    def flat(mf, gaps, lo, hi):
        out = []
        for i in range(lo, hi):
            if mf[i] is not None:
                out.append(mf[i])
            out += gaps[i]
        return out

    def addr_setup(self, lane, w):
        b = [valu("v_lshrrev_b32", "v6", 4, lane), valu("v_lshlrev_b32", "v6", 3, "v6"),
             valu("v_bfe_u32", "v7", lane, 3, 1), valu("v_add_u32", "v6", "v6", "v7"),
             valu("v_lshl_add_u32", "v6", w, 1, "v6"), valu("v_mul_u32_u24", "v6", 384, "v6"),
             valu("v_and_b32", "v7", 7, lane), valu("v_lshl_add_u32", V_DMA, "v7", 4, "v6")]

        def lds_row(dst, key):
            return [valu("v_bfe_u32", "v8", key, 1, 2), valu("v_mul_u32_u24", "v8", 1056, "v8"),
                    valu("v_lshrrev_b32", "v9", 3, key), valu("v_lshlrev_b32", "v9", 1, "v9"),
                    valu("v_and_b32", dst, 1, key), valu("v_add_u32", "v9", "v9", dst),
                    valu("v_lshl_add_u32", dst, "v9", 7, "v8")]
        b += [valu("v_and_b32", "v6", 15, lane), valu("v_lshrrev_b32", "v7", 4, lane)]
        b += lds_row(V_KA, "v6") + [valu("v_lshl_add_u32", V_KA, "v7", 4, V_KA)]
        b += [valu("v_lshrrev_b32", "v6", 2, lane)] + lds_row(V_VA, "v6")
        b += [valu("v_and_b32", "v6", 3, lane), valu("v_lshl_add_u32", V_VA, "v6", 3, V_VA),
              valu("v_add_u32", V_VA, self.VBASE, V_VA)]
        return b

    def slow_path(self):
        M = ["v16", "v17", "v18", "v19", T0, T1]
        S = S0
        SD = R("v", S, 4)
        QL = Preg(1, 0)
        lane, w, vq = "v4", "v5", V_QA

        def qreg(j, s):
            return Qreg(j, s) if s < 5 else R("v", QL + 4 * j, 4)
        setup = [wait(vm=0, lgkm=0), barrier(),
                 raw(f"v_mbcnt_lo_u32_b32 {lane}, -1, 0", "valu", [], [lane]),
                 raw(f"v_mbcnt_hi_u32_b32 {lane}, -1, {lane}", "valu", [lane], [lane]),
                 valu("v_mov_b32", w, S_W)]
        setup += self.addr_setup(lane, w)
        setup += [valu("v_mul_u32_u24", vq, 96, w), valu("v_and_b32", "v6", 15, lane), valu("v_add_u32", vq, vq, "v6"),
                  valu("v_mul_u32_u24", vq, 384, vq), valu("v_lshl_add_u32", vq, "v7", 4, vq)]
        for j in range(NQB):
            setup.append(salu("s_mov_b32", S_T, j * 16 * 384))
            setup += [buf_load(qreg(j, s), vq, SRD_Q, S_T, s * 64) for s in range(6)]
        setup += [wait(vm=0)]
        setup += [valu("v_mov_b32", m, "0xff800000") for m in M]
        setup += [salu("s_mov_b32", S_KOFF, 0)]

        def load(with_v):
            o = []
            for k in range(6 if with_v else 3):
                o += list(self.dma_pair(k, S_WOFF, S_KOFF, S_KOFF))
            return o + [wait(vm=0), barrier()]

        def chain(j):
            return [mfma(SD, Kreg(s), qreg(j, s), "0" if s == 0 else SD) for s in range(6)]

        def close(name):
            return [wait(lgkm=0), barrier(), salu("s_add_u32", S_KOFF, S_KOFF, TILE_G),
                    salu("s_cmp_lt_u32", S_KOFF, HEAD_KV), branch("s_cbranch_scc1", name)]
        maxl = load(False)
        for kb in range(2):
            maxl += [self.kread(kb, s) for s in range(6)]
            for j in range(NQB):
                maxl += chain(j) + [valu("v_max3_f32", M[j], M[j], f"v{S}", f"v{S+1}"),
                                    valu("v_max3_f32", M[j], M[j], f"v{S+2}", f"v{S+3}")]
        maxl += close("L_slow_max")
        mid = []
        for m in M:
            for op in ("v_permlane32_swap_b32", "v_permlane16_swap_b32"):
                mid += [valu("v_mov_b32", vq, m), valu(op, m, vq), valu("v_max_f32", m, m, vq)]
        mid += [valu("v_mul_f32", m, S_C, m) for m in M]
        mid += [valu("v_accvgpr_write_b32", f"a{r}", 0) for r in range(OA0, 256)]
        mid += [valu("v_mov_b32", f"v{r}", 0) for r in list(range(OV0, 256)) + list(range(L0, L0 + 6))]
        mid += [salu("s_mov_b32", S_KOFF, 0)]
        main = load(True)
        for kb in range(2):
            main += [self.kread(kb, s) for s in range(6)]
            for j in range(NQB):
                p = Preg(0, j) + 2 * kb
                main += chain(j)
                main += [valu("v_fma_f32", f"v{S+i}", f"v{S+i}", S_C, "-" + M[j]) for i in range(4)]
                main += [valu("v_exp_f32", f"v{S+i}", f"v{S+i}") for i in range(4)]
                main += [valu("v_add_f32", f"v{L0+j}", f"v{S+i}", f"v{L0+j}") for i in range(4)]
                main += [valu("v_cvt_pk_bf16_f32", f"v{p+i}", f"v{S+2*i}", f"v{S+2*i+1}") for i in range(2)]
        for db in range(12):
            vb = VA0 + 4 * (db % 2)
            main += [self.vread(db, h, vb) for h in range(2)]
            main += [self.pv(db, j, 0, vb) for j in range(NQB)]
        main += close("L_slow_main")
        return setup, maxl, mid, main, self.epilogue_plain()

    def prologue(self):
        b = []
        b += [salu("s_cmp_ge_u32", "s2", 256), branch("s_cbranch_scc1", "L_end"),
              raw("s_load_dwordx4 s[4:7], s[0:1], 0", "smem"), raw("s_load_dwordx4 s[8:11], s[0:1], 16", "smem")]
        if self.stamps:
            b += [raw("s_load_dwordx4 s[12:15], s[0:1], 32", "smem"),
                  raw("s_memrealtime s[56:57]"), raw("s_memtime s[58:59]")]
        lane, w = "v4", "v5"
        b += [valu("v_and_b32", lane, 63, "v0"), valu("v_lshrrev_b32", w, 6, "v0"),
              valu("v_readfirstlane_b32", S_W, w)]
        if self.pref:
            b += [raw("s_getpc_b64 s[50:51]", "salu", [], ["s50", "s51"]), label("L_pc"),
                  salu("s_lshr_b32", S_T, "s2", 3), salu("s_lshl_b32", S_T, S_T, 2), salu("s_add_u32", S_T, S_T, S_W),
                  salu("s_min_u32", S_T, S_T, "(L_end-L_pc)/1024"), salu("s_lshl_b32", S_T, S_T, 10),
                  valu("v_lshl_add_u32", "v6", lane, 4, S_T),
                  I(f"global_load_dwordx4 v[{OV0}:{OV0+3}], v6, s[50:51]", "vm_ld", ["v6", "s50", "s51"], regs("v", OV0, 4))]
        b += self.addr_setup(lane, w)
        g = "v7"
        b += [valu("v_mul_u32_u24", V_QA, 6144, w), valu("v_lshl_add_u32", V_QA, lane, 4, V_QA),
              valu("v_add_u32", V_QA, self.QBASE, V_QA)]
        for i_ in range(3):
            d = f"v{OV0+64+i_}"
            b += [valu("v_add_u32", d, 64 * i_, lane), valu("v_mul_u32_u24", "v6", 2731, d),
                  valu("v_lshrrev_b32", "v6", 16, "v6"), valu("v_and_b32", "v6", 6, "v6"),
                  valu("v_xor_b32", d, d, "v6"), valu("v_lshlrev_b32", d, 4, d)]
        b += [valu("v_and_b32", "v6", 15, lane), valu("v_and_b32", "v8", 6, lane), valu("v_xor_b32", "v8", "v8", g),
              valu("v_mul_u32_u24", "v6", 384, "v6"), valu("v_lshl_add_u32", f"v{OV0+67}", "v8", 4, "v6"),
              valu("v_xor_b32", f"v{OV0+68}", 64, f"v{OV0+67}")]
        head = "s2"
        if self.remap:
            head = "s3"
            b += [salu("s_and_b32", head, "s2", 7), salu("s_lshl_b32", head, head, 5),
                  salu("s_lshr_b32", S_T, "s2", 3), salu("s_add_u32", head, head, S_T)]
        b += [raw("s_waitcnt lgkmcnt(0)", "salu")]
        b += [salu("s_mul_i32", S_T, head, HEAD_KV),
              salu("s_add_u32", "s16", "s6", S_T), salu("s_addc_u32", "s17", "s7", 0),
              salu("s_mov_b32", "s18", HEAD_KV), salu("s_mov_b32", "s19", "0x20000"),
              salu("s_add_u32", "s20", "s8", S_T), salu("s_addc_u32", "s21", "s9", 0),
              salu("s_mov_b32", "s22", HEAD_KV), salu("s_mov_b32", "s23", "0x20000"),
              salu("s_mul_i32", S_T, head, HEAD_Q),
              salu("s_add_u32", "s24", "s4", S_T), salu("s_addc_u32", "s25", "s5", 0),
              salu("s_mov_b32", "s26", HEAD_Q), salu("s_mov_b32", "s27", "0x20000"),
              salu("s_add_u32", "s28", "s10", S_T), salu("s_addc_u32", "s29", "s11", 0),
              salu("s_mov_b32", "s30", HEAD_Q), salu("s_mov_b32", "s31", "0x20000"),
              salu("s_mul_i32", S_WOFF, S_W, 1056),
              salu("s_mov_b32", S_C, f32(math.log2(math.e) / math.sqrt(192.0))),
              salu("s_mov_b32", S_SLOT, 0), salu("s_mov_b32", S_CNT, 14)]

        def group(ktile, vtile):
            o = []
            for k in range(6):
                tile = vtile if k >= 3 else ktile
                if tile is None:
                    continue
                slot = (tile + 1) % self.R if k >= 3 else tile % self.R
                if k % 3 == 0:
                    o.append(salu("s_mov_b32", S_T, tile * TILE_G))
                o += list(self.dma_pair(k, S_WOFF, S_T, S_T, slot * TILE_L))
            return o
        S_SA, S_SB = "s43", "s44"
        RAW = OV0
        TMP = OV0 + 48
        Q5 = OV0 + 56
        VQ = [f"v{OV0+64+i_}" for i_ in range(3)]
        VR = [f"v{OV0+67+i_}" for i_ in range(2)]
        LAST = OV0 + 69
        KB = Preg(1, 0)
        b += [salu("s_lshr_b32", S_T, S_W, 1), salu("s_mul_i32", S_T, S_T, 3), salu("s_add_u32", S_T, S_T, S_W),
              salu("s_add_u32", S_T, S_T, 2), salu("s_mul_i32", S_SB, S_T, TILE_L),
              salu("s_add_u32", S_SA, S_SB, 2 * TILE_L), salu("s_mul_i32", S_T, S_W, 36864)]
        b += [valu("v_add_u32", VQ[i_], S_T, VQ[i_]) for i_ in range(3)]

        def ubase(u):
            return (S_SB if u in (2, 3) else S_SA), (u & 1) * 6144

        def qunit(u):
            sb, off = ubase(u)
            o = []
            for i_ in range(3):
                o += [salu("s_add_u32", "m0", sb, off + i_ * 1024)]
                o += [salu("s_mov_b32", S_T, u * 6144)] if i_ == 0 else [nop(0)]
                o += [buf_dma(VQ[i_], SRD_Q, S_T, h * 3072, self.pol) for h in range(2)]
            return o

        def qraw(u):
            sb, off = ubase(u)
            o = [valu("v_add_u32", T0, sb, VR[0]), valu("v_add_u32", T1, sb, VR[1])]
            for s_ in range(6):
                o.append(ds_read("ds_read_b128", R("v", RAW + 4 * ((u % 2) * 6 + s_), 4), (T0, T1)[s_ & 1],
                                 off + (s_ >> 1) * 128))
            return o

        def prescale(j):
            o = []
            for s_ in range(6):
                r0 = RAW + 4 * ((j % 2) * 6 + s_)
                for i_ in range(4):
                    o += [valu("v_lshlrev_b32", f"v{TMP+2*i_}", 16, f"v{r0+i_}"),
                          valu("v_and_b32", f"v{TMP+2*i_+1}", "0xffff0000", f"v{r0+i_}")]
                o += [valu("v_mul_f32", f"v{TMP+i_}", S_C, f"v{TMP+i_}") for i_ in range(8)]
                dst = r0 if s_ < 5 else Q5 + 4 * (j % 2)
                o += [valu("v_cvt_pk_bf16_f32", f"v{dst+i_}", f"v{TMP+2*i_}", f"v{TMP+2*i_+1}") for i_ in range(4)]
                if s_ < 5:
                    o += [valu("v_accvgpr_write_b32", f"a{QA0+4*(j*5+s_)+i_}", f"v{dst+i_}") for i_ in range(4)]
                else:
                    o.append(ds_write("ds_write_b128", V_QA, R("v", dst, 4), j * 1024))
            return o

        def chains(j):
            o = []
            for kb in range(2):
                d = R("v", S0 + 4 * kb, 4)
                for s_ in range(6):
                    a_ = Kreg(s_) if kb == 0 else R("v", KB + 4 * s_, 4)
                    q_ = Qreg(j, s_) if s_ < 5 else R("v", Q5 + 4 * (j % 2), 4)
                    o.append(mfma(d, a_, q_, self.cinit if s_ == 0 else d))
            return o

        def soft(j, kb):
            sreg = S0 + 4 * kb
            p = Preg(0, j) + 2 * kb
            e = [valu("v_exp_f32", f"v{sreg+i_}", f"v{sreg+i_}") for i_ in range(4)]
            a_ = [valu("v_add_f32", f"v{L0+j}", f"v{sreg+i_}", f"v{L0+j}") for i_ in range(4)]
            c = [valu("v_cvt_pk_bf16_f32", f"v{p+i_}", f"v{sreg+2*i_}", f"v{sreg+2*i_+1}") for i_ in range(2)]
            return e + a_ + c

        def weave(ms, ops, per=2):
            o = []
            ops = list(ops)
            for m in ms:
                o.append(m)
                o += ops[:per]
                ops = ops[per:]
            return o, ops

        plan = {0: (3, 4, 5), 1: (4, 5, 6), 2: (3, 5, 6), 3: (2, 4, 5), 4: (3, 3, 5), 5: (5, 6, 6)}[self.provar]
        queue = []

        def issue(name, ops):
            queue.append((name, sum(1 for x in ops if x.kind == "dma")))
            return ops

        def landed(name, **kw):
            k = [n for n, _ in queue].index(name)
            return wait(vm=sum(c for _, c in queue[k + 1:]), **kw)

        def extras(u):
            o = []
            if plan[0] == u:
                o += issue("KV0", group(1, 0))
            if plan[1] == u:
                o += issue("G4", group(2, 1))
            if plan[2] == u:
                o += issue("G3", group(3, 2))
            return o

        b += issue("K0", group(0, None))
        if self.touch:
            b += [I(f"buffer_load_dword v{OV0+4}, {VQ[0]}, {SRD_O}, 0 offen", "vm_ld", [VQ[0]] + expand(SRD_O), [f"v{OV0+4}"])]
        for u in range(4):
            b += issue(f"U{u}", qunit(u))
        for r in range(OA0, 256):
            b.append(valu("v_accvgpr_write_b32", f"a{r}", 0))
        for r in list(range(LAST, 256)) + list(range(L0, L0 + 6)):
            b.append(valu("v_mov_b32", f"v{r}", 0))
        b += [valu("v_mov_b32", "v14", self.FLAG), valu("v_mov_b32", "v15", 0), ds_write("ds_write_b32", "v14", "v15", 0)]
        b += [landed("U0")] + qraw(0) + [wait(lgkm=0)] + issue("U4", qunit(4)) + [barrier()]
        b += [self.kread(0, s_) for s_ in range(6)]
        b += [ds_read("ds_read_b128", R("v", KB + 4 * s_, 4), V_KA, (s_ >> 1) * TAU + (s_ & 1) * 64 + 512) for s_ in range(6)]
        b += prescale(0)
        for u in range(1, 6):
            b += [landed(f"U{u}")] + [] + qraw(u)
            if u == 1:
                b += [wait(lgkm=0)] + issue("U5", qunit(5))
            if u == 3:
                b += [wait(lgkm=0), barrier()]
            b += extras(u)
            ps = prescale(u)
            ch = chains(u - 1)
            w1, rest = weave(ch[6:], ps)
            b += ch[:6] + w1 + soft(u - 1, 0) + rest[:24] + soft(u - 1, 1) + rest[24:]
        zero = [valu("v_mov_b32", f"v{r}", 0) for r in list(range(RAW, Q5 + 4)) + list(range(Q5 + 8, LAST))]
        b += [valu("v_add_u32", V_KA, TILE_L, V_KA), valu("v_add_u32", V_VA, TILE_L, V_VA),
              salu("s_mov_b32", S_SLOT, TILE_L), salu("s_mov_b32", S_DMA, S_WOFF),
              salu("s_mov_b32", S_KOFF, self.R * TILE_G), salu("s_mov_b32", S_VOFF, (self.R - 1) * TILE_G)]
        b += [landed("KV0", lgkm=0), barrier()]
        ch = chains(5)
        for s_ in range(6):
            b += [ch[s_], self.kread(0, s_), zero.pop(0)]
        b += [ch[6], self.qread(0), zero.pop(0), ch[7], self.vread(0, 0, VA0), zero.pop(0), ch[8], self.vread(0, 1, VA0), zero.pop(0)]
        w1, rest = weave(ch[9:], zero)
        b += w1 + soft(5, 0) + extras(6) + group(4, 3) + rest
        b += [valu("v_mov_b32", f"v{r}", 0) for r in range(Q5 + 4, Q5 + 8)]
        b += soft(5, 1)[:2]
        return b

    def group_tail(self, js, bufs, first, carry=(), extra=()):
        n = len(js)
        LAT = 5
        mf, cstart, gstart = [], [], []
        v = 0
        for c in range(4 * n):
            ph, k = divmod(c, 2 * n)
            jj = js[c % n]
            d = R("v", S0 + 4 * (c % 2), 4)
            cstart.append(len(mf))
            mf += [mfma(d, Kreg(s), Qreg(jj, s), self.cinit if s == 0 else d) for s in range(6)]
            upto = 12 * ph + (k + 1) * 12 // (2 * n)
            if ph == 1 and k < 2 * n - 1:
                upto -= (4 + n - 1) // n * (k + 1) // (2 * n - 1)
            if c == 4 * n - 1:
                upto = 36
            while v < upto:
                gstart.append(len(mf))
                f_, b_ = bufs[v % len(bufs)]
                mf += [self.pv(v % 12, x, (1, 0, 1)[v // 12], b_, f_) for x in js]
                v += 1
        sm = [Op(x, 0, cstart[1] - 1) for x in carry]
        for c in range(4 * n):
            ph, kb, jj = c // (2 * n), (c // n) % 2, js[c % n]
            sreg = S0 + 4 * (c % 2)
            p = Preg(ph, jj) + 2 * kb
            hi = gstart[12 * (ph + 1)] + js.index(jj) - 2
            if c + 2 < 4 * n:
                hi = min(hi, cstart[c + 2] - 1)
            e = [valu("v_exp_f32", f"v{sreg+i}", f"v{sreg+i}") for i in range(4)]
            a = [valu("v_add_f32", f"v{L0+jj}", f"v{sreg+i}", f"v{L0+jj}") for i in range(4)]
            cv = [valu("v_cvt_pk_bf16_f32", f"v{p+i}", f"v{sreg+2*i}", f"v{sreg+2*i+1}") for i in range(2)]
            lo = cstart[c] + 5 + 3
            for k, x in enumerate(e + [cv[0], a[0], cv[1], a[1], a[2], a[3]]):
                last = c + 2 < 4 * n
                h = hi - (9 - k) // 2 if (last or k < 7) else 10 ** 9
                sm.append(Op(x, lo, max(h, lo)))
        sync_gap = cstart[n] + 2 if first else -1
        sync = [Op(wait(vm=0), sync_gap - 1, sync_gap - 1), Op(barrier(), sync_gap, sync_gap)] if first else []
        kst = []
        for st_ in range(1, 4):
            for s in range(6):
                lo = max(cstart[st_ * n - 1] + s, sync_gap + 1 if st_ == 2 else 0)
                kst.append(Op(self.kread(st_ % 2, s, st_ // 2), lo, max(cstart[st_ * n] + s - LAT, lo)))
        qst = [Op(self.qread(js[c % n]), cstart[c - 1] + 5, cstart[c] + 5 - LAT) for c in range(1, 4 * n)]
        vst = []
        pre = []
        for v in range(36):
            f_, b_ = bufs[v % len(bufs)]
            rd = [self.vread(v % 12, h, b_, v // 12, f_) for h in range(2)]
            if v == 0 and first:
                continue
            if v < len(bufs) and not first:
                pre += rd
                continue
            lo = gstart[v - len(bufs)] + n - 1 if v >= len(bufs) else 0
            if v >= 12:
                lo = max(lo, sync_gap + 1)
            vst += [Op(x, lo, max(gstart[v] - LAT, lo)) for x in rd]
        if not first:
            pre = [self.kread(0, s) for s in range(6)] + [self.qread(js[0])] + pre
        return pre, sched(mf, [sm, kst, qst, vst, sync, list(extra)])

    def row_sums(self, js, t0):
        b = []
        for op in ("v_permlane32_swap_b32", "v_permlane16_swap_b32"):
            b += [valu("v_mov_b32", f"v{t0+k}", f"v{L0+j}") for k, j in enumerate(js)]
            b += [valu(op, f"v{L0+j}", f"v{t0+k}") for k, j in enumerate(js)]
            b += [valu("v_add_f32", f"v{L0+j}", f"v{L0+j}", f"v{t0+k}") for k, j in enumerate(js)]
        return b

    def range_check(self, js, first, last):
        b = []
        if first:
            b += [salu("s_mov_b32", S_NEW, f32(2.0 ** 12)), salu("s_mov_b32", S_DELTA, f32(2.0 ** -20)),
                  salu("s_mov_b64", "s[44:45]", 0)]
        for j in js:
            b += [valu("v_cmp_nge_f32", "s[46:47]", S_NEW, f"v{L0+j}"), valu("v_cmp_nle_f32", "s[48:49]", S_DELTA, f"v{L0+j}"),
                  salu("s_or_b64", "s[44:45]", "s[44:45]", "s[46:47]"), salu("s_or_b64", "s[44:45]", "s[44:45]", "s[48:49]")]
        if last:
            b += [branch("s_cbranch_scc0", "L_inrange"),
                  valu("v_mov_b32", T0, self.FLAG), valu("v_mov_b32", T1, 1), ds_write("ds_write_b32", T0, T1, 0),
                  label("L_inrange")]
        return b

    PITCH = 400
    EA = P0

    def epi_addr(self):
        vw, vr, vg, lane, t = f"v{P0}", [f"v{P0+1+i}" for i in range(3)], f"v{P0+4}", f"v{P0+5}", f"v{P0+6}"
        b = [raw(f"v_mbcnt_lo_u32_b32 {lane}, -1, 0", "valu", [], [lane]),
             raw(f"v_mbcnt_hi_u32_b32 {lane}, -1, {lane}", "valu", [lane], [lane]),
             salu("s_lshr_b32", S_T, S_W, 1), salu("s_mul_i32", S_T, S_T, 6 * TILE_L),
             salu("s_and_b32", S_SLOT, S_W, 1), salu("s_mul_i32", S_SLOT, S_SLOT, 32 * self.PITCH),
             salu("s_add_u32", S_T, S_T, S_SLOT), salu("s_add_u32", S_T, S_T, 2 * TILE_L),
             valu("v_and_b32", vw, 15, lane), valu("v_mul_u32_u24", vw, self.PITCH, vw),
             valu("v_lshrrev_b32", t, 4, lane), valu("v_lshl_add_u32", vw, t, 3, vw), valu("v_add_u32", vw, S_T, vw)]
        for i in range(3):
            b += [valu("v_add_u32", vr[i], 64 * i, lane), valu("v_mul_u32_u24", t, 2731, vr[i]),
                  valu("v_lshrrev_b32", t, 16, t), valu("v_add_lshl_u32", vr[i], vr[i], t, 4),
                  valu("v_add_u32", vr[i], S_T, vr[i])]
        b += [salu("s_mul_i32", S_T, S_W, 36864), valu("v_lshlrev_b32", vg, 4, lane), valu("v_add_u32", vg, S_T, vg)]
        return b

    def epi_stores(self, j):
        o = []
        for i in range(6):
            pre = [salu("s_mov_b32", S_T, j * 6144 + i * 1024)] if i % 4 == 0 else []
            o.append(pre + [buf_store(Oreg(j, i), f"v{P0+4}", SRD_O, S_T, (i % 4) * 1024, self.opol)])
        return o

    def epi_block(self, j, pend, first=3, step=1):
        PITCH = self.PITCH
        vw, vr = f"v{P0}", [f"v{P0+1+i}" for i in range(3)]
        b = []
        for db in range(12):
            src = expand(Oreg(j, db))
            if src[0][0] == "a":
                t = OV0 + 24 + 4 * (db % 6)
                b += [valu("v_accvgpr_read_b32", f"v{t+i}", src[i]) for i in range(4)]
                src = [f"v{t+i}" for i in range(4)]
            b += [valu("v_mul_f32", src[i], src[i], f"v{L0+j}") for i in range(4)]
            b += [valu("v_cvt_pk_bf16_f32", src[i], src[2 * i], src[2 * i + 1]) for i in range(2)]
            b += [ds_write("ds_write_b64", vw, R("v", int(src[0][1:]), 2), (j % 2) * 16 * PITCH + db * 32)]
            if db >= first and (db - first) % step == 0 and pend:
                b += pend.pop(0)
        b += [ds_read("ds_read_b128", Oreg(j, i), vr[i % 3], (2 * (j % 2) + i // 3) * 8 * PITCH) for i in range(6)]
        return b

    def epi_all(self, js, pend):
        b = []
        for j in js:
            b += self.epi_block(j, pend)
            b += [x for p in pend for x in p]
            pend = self.epi_stores(j)
        return b + [x for p in pend for x in p]

    def rcp(self, js):
        return [valu("v_rcp_f32", f"v{L0+j}", f"v{L0+j}") for j in js]

    def epilogue_plain(self):
        js = list(range(NQB))
        return self.row_sums(js, S0) + self.rcp(js) + self.epi_addr() + self.epi_all(js, [])

    def tail(self, carry):
        groups, k = [], 0
        for n in self.groups:
            groups.append(list(range(k, k + n)))
            k += n
        assert k == NQB and groups[0][-1] < 4 and len(groups[0]) >= 2
        bufs0 = [("a", VA0), ("a", VA0 + 4), ("v", Preg(0, 4)), ("v", Preg(0, 5))]
        bufs1 = [("a", VA0), ("a", VA0 + 4), ("a", 0), ("a", 4)]
        _, b = self.group_tail(groups[0], bufs0, True, carry)
        left = []
        for gi, js in enumerate(groups):
            last = gi == len(groups) - 1
            b += self.stamp() if gi in (0, len(groups) - 1) else []
            b += self.row_sums(js, S0) + self.range_check(js, gi == 0, last) + self.rcp(js)
            if gi == 0:
                b += self.epi_addr()
            if last:
                b += self.epi_all(js, left)
                break
            nxt = groups[gi + 1]
            for x, j in enumerate(js):
                if x == len(js) - 1:
                    pos = len(b)
                b += self.epi_block(j, left, 2, self.estep)
                left += self.epi_stores(j)
            nm = 60 * len(nxt)
            take = min(len(left), max(0, (nm - 4) // self.espace))
            extra = [Op(x, 4 + self.espace * i, 4 + self.espace * i) for i, p in enumerate(left[:take]) for x in p]
            left = left[take:]
            pre, t1 = self.group_tail(nxt, bufs1, False, (), extra)
            b[pos:pos] = pre
            b += t1
        b += [wait(lgkm=0), barrier(), valu("v_mov_b32", T1, self.FLAG), ds_read("ds_read_b32", T1, T1, 0),
              valu("v_readfirstlane_b32", S_T, T1), salu("s_cmp_lg_u32", S_T, 0), branch("s_cbranch_scc1", "L_slow")]
        return b

    def stamp_out(self):
        if not self.stamps:
            return ""
        n = 4 + 2 * self.nstamp
        s = "  s_waitcnt vmcnt(0)\n  s_barrier\n  s_memrealtime s[60:61]\n  s_memtime s[62:63]\n  s_waitcnt lgkmcnt(0)\n"
        s += f"  s_cmp_lg_u32 {S_W}, 0\n  s_cbranch_scc1 L_end\n  s_mov_b64 exec, 1\n"
        if self.stamps == "dbg":
            s += "  v_mov_b32 v1, 0\n  v_mov_b32 v2, s60\n  global_atomic_umax v1, v2, s[12:13]\n"
            s += "  s_not_b32 s3, s56\n  v_mov_b32 v3, s3\n  global_atomic_umax v1, v3, s[12:13] offset:4\n"
            s += "  v_mov_b32 v4, s56\n  global_atomic_umax v1, v4, s[12:13] offset:8\n"
            s += "  s_cmp_lg_u32 s2, 100\n  s_cbranch_scc1 L_end\n"
            vals = [(66 + 4 * i, 56) for i in range(self.nstamp)] + [(60, 56)] + [(64 + 4 * i, 58) for i in range(self.nstamp)] + [(62, 58)]
            for i, (x, y) in enumerate(vals):
                s += f"  s_sub_u32 s3, s{x}, s{y}\n  v_mov_b32 v2, s3\n  global_store_dword v1, v2, s[12:13] offset:{16+4*i}\n"
            return s
        s += f"  s_mul_i32 s3, s2, {8*n}\n  v_mov_b32 v1, s3\n"
        for i in range(n):
            r = 56 + 2 * i
            s += f"  v_mov_b32 v2, s{r}\n  v_mov_b32 v3, s{r+1}\n  global_store_dwordx2 v1, v[2:3], s[14:15] offset:{8*i}\n  s_nop 1\n"
        return s

    def build(self, verbose=False):
        ROT = 8
        pro = self.prologue()
        mfE, gE, tailE = self.period(0)
        mfO, gO, _ = self.period(1)
        gE[12 * 11 + 7].append(salu("s_cmp_eq_u32", S_CNT, 0))
        exit_tail = gE[143] + tailE
        gE[143] = [branch("s_cbranch_scc1", "L_drain")] + gE[143]
        gO[12 * 11 + 7].append(salu("s_sub_u32", S_CNT, S_CNT, 1))
        fill = self.stamp()
        head = self.flat(mfE, gE, 0, ROT)
        body = self.flat(mfE, gE, ROT, 144) + self.flat(mfO, gO, 0, 144) + self.flat(mfE, gE, 0, ROT)
        body.append(branch("s_branch", "L_top"))

        log = []
        pro, st = fix(pro + fill, State())
        head1, st1 = fix(head, st, hoist=True)
        body1, st2 = fix(body, st1, hoist=True, log=log)
        body2, st3 = fix(body1, st2, hoist=True, log=log)
        errs, _ = verify(pro + head1 + body2 + body2 + body2)
        assert not errs, errs[:10]
        kx = next(i for i, x in enumerate(body2) if x.kind == "branch")
        _, stx = verify(pro + head1 + body2 + body2[:kx + 1])
        post = self.stamp() + self.tail(exit_tail)
        post, _ = fix(post, stx, hoist=True)
        errs, _ = verify(pro + head1 + body2[:kx + 1] + post)
        assert not errs, errs[:10]
        if verbose:
            tot, over = estimate(body2)
            print("loop estimate cycles (288 mfma, ideal 4608):", tot)
            for o in over:
                print("  over:", o)
            print("  inserted:", [x for x in log if x[0] == "nop"])
            print("  waits:", len([x for x in log if x[0] == "wait"]), "instrs:", len(body2))
            tot, over = estimate(post)
            print("tail estimate:", tot, "mfma:", sum(x.kind == "mfma" for x in post), "instrs:", len(post))
            print("  over:", [(o[0], o[1]) for o in over])
        text = emit(pro + head1) + ".p2align 6\nL_top:\n" + emit(body2) + "L_drain:\n" + emit(post)
        text += self.stamp_out() + "L_end:\n  s_endpgm\n"
        setup, maxl, mid, main, epi = self.slow_path()
        st = State()
        blocks = []
        for blk, loop in ((setup, False), (maxl, True), (mid, False), (main, True), (epi, False)):
            blk, st = fix(blk, st)
            if loop:
                blk, st = fix(blk, st)
            blocks.append(blk)
        setup, maxl, mid, main, epi = blocks
        errs, _ = verify(post + setup + maxl + maxl + mid + main + main + epi)
        assert not errs, errs[:10]
        text += "L_slow:\n" + emit(setup) + "L_slow_max:\n" + emit(maxl) + emit(mid) + "L_slow_main:\n" + emit(main)
        text += emit(epi) + "  s_endpgm\n"
        return wrap(text, 256, 256, self.lds, 512, 256)


if __name__ == "__main__":
    ap = argparse.ArgumentParser()
    ap.add_argument("-o", default="k.s")
    ap.add_argument("--stamps", default="")
    ap.add_argument("--ring", type=int, default=5)
    ap.add_argument("--pol", default="nt")
    ap.add_argument("--opol", default="nt")
    ap.add_argument("--abl", default="")
    ap.add_argument("--pref", type=int, default=1)
    ap.add_argument("--remap", type=int, default=1)
    ap.add_argument("--touch", type=int, default=0)
    ap.add_argument("--groups", default="42")
    ap.add_argument("--estep", type=int, default=4)
    ap.add_argument("--espace", type=int, default=7)
    ap.add_argument("--provar", type=int, default=2)
    ap.add_argument("-v", action="store_true")
    a = ap.parse_args()
    g = Gen(ring=a.ring, pol=a.pol, opol=a.opol, stamps=a.stamps, abl=a.abl, provar=a.provar, groups=a.groups, estep=a.estep, espace=a.espace, pref=a.pref, remap=a.remap, touch=a.touch)
    open(a.o, "w").write(g.build(a.v))
```

```python
import argparse
import math
import struct
from fw import *
from asmlib import wrap

NQB = 6
TILE_G = 12288
TAU = 4192
TILE_L = 3 * TAU
HEAD_Q = 147456
HEAD_KV = 393216

V_KA, V_VA, V_DMA, V_QA = "v0", "v1", "v2", "v3"
L0 = 4
T0, T1 = "v10", "v11"
S0 = 12
P0 = 20
OV0, NOV = 68, 47
QA0 = 0
QBUF = 120
KA0 = 124
VA0 = 148
OA0 = 156
SRD_K, SRD_V, SRD_Q, SRD_O = "s[16:19]", "s[20:23]", "s[24:27]", "s[28:31]"
S_W, S_KOFF, S_VOFF, S_DMA, S_SLOT, S_NEW, S_DELTA, S_CNT, S_C, S_WOFF, S_T = (f"s{i}" for i in range(32, 43))


def f32(x):
    return "0x%08x" % struct.unpack("<I", struct.pack("<f", x))[0]


def Oreg(j, db):
    n = j * 12 + db
    return R("v", OV0 + 4 * n, 4) if n < NOV else R("a", OA0 + 4 * (n - NOV), 4)


def Qreg(j, s):
    return R("a", QA0 + 4 * (j * 5 + s), 4) if s < 5 else R("a", QBUF, 4)


def Kreg(s):
    return R("a", KA0 + 4 * s, 4)


def Preg(par, j):
    return P0 + 24 * par + 4 * j


class Gen:
    def __init__(self, ring=5, pol="nt", opol="", stamps=False, cinit="-4.0", abl="", provar=2, groups="42", estep=4, espace=7, pref=1, remap=1, touch=0, qpol="nt"):
        self.qpol = qpol
        self.remap, self.touch = remap, touch
        self.pref = pref
        self.groups, self.estep, self.espace = [int(c) for c in groups], estep, espace
        self.provar = provar
        self.abl = abl
        self.R = ring
        self.pol, self.opol, self.stamps, self.cinit = pol, opol, stamps, cinit
        self.VBASE = ring * TILE_L
        assert ring == 5
        self.QBASE = (2 * ring + 1) * TILE_L
        self.FLAG = self.QBASE + 24576
        self.lds = self.FLAG + 256
        self.nstamp = 0

    def stamp(self):
        if not self.stamps:
            return []
        r = 64 + 4 * self.nstamp
        self.nstamp += 1
        return [raw(f"s_memtime s[{r}:{r+1}]", "salu"), raw(f"s_memrealtime s[{r+2}:{r+3}]", "salu")]

    def kread(self, kb, s, slot=0):
        return ds_read("ds_read_b128", Kreg(s), V_KA, slot * TILE_L + (s >> 1) * TAU + (s & 1) * 64 + kb * 512)

    def vread(self, db, half, base, slot=0, file="a"):
        return ds_read("ds_read_b64_tr_b16", R(file, base + 2 * half, 2), V_VA,
                       slot * TILE_L + (db >> 2) * TAU + (db & 3) * 32 + half * 512)

    def qread(self, j):
        return ds_read("ds_read_b128", R("a", QBUF, 4), V_QA, j * 1024)

    def dma_pair(self, k, base_sgpr=S_DMA, koff=S_KOFF, voff=S_VOFF, slot_off=0):
        tau = k % 3
        isv = k >= 3
        imm = (self.VBASE if isv else 0) + slot_off + tau * TAU - tau * 128
        return (salu("s_add_u32", "m0", base_sgpr, imm),
                buf_dma(V_DMA, SRD_V if isv else SRD_K, voff if isv else koff, tau * 128, self.pol))

    def softmax_ops(self, n, ppar):
        kb, j = divmod(n % 12, 6)
        s = S0 + 4 * (n % 2)
        p = Preg(ppar, j) + 2 * kb
        e = [valu("v_exp_f32", f"v{s+i}", f"v{s+i}") for i in range(4)]
        a = [valu("v_add_f32", f"v{L0+j}", f"v{s+i}", f"v{L0+j}") for i in range(4)]
        c = [valu("v_cvt_pk_bf16_f32", f"v{p+i}", f"v{s+2*i}", f"v{s+2*i+1}") for i in range(2)]
        return e, a, c

    def qk(self, n, s):
        j = n % 6
        d = R("v", S0 + 4 * (n % 2), 4)
        return mfma(d, Kreg(s), Qreg(j, s), self.cinit if s == 0 else d)

    def pv(self, db, j, par, vbase, file="a"):
        return mfma(Oreg(j, db), R(file, vbase, 4), R("v", Preg(par, j), 4), Oreg(j, db))

    def period(self, par, fill=False):
        N = 144
        sc = [[] for _ in range(N + 12)]
        mem = [[] for _ in range(N + 12)]
        va = [[] for _ in range(N + 12)]
        heavy = lambda n: n % 6 == 5
        for n in range(-1, 12):
            if n == -1 and fill:
                continue
            e, a, c = self.softmax_ops(n, par if n == -1 else 1 - par)
            g = 12 * n
            if heavy(n):
                plan = [(10, e[0]), (11, e[1]), (12, e[2]), (13, e[3]), (14, a[0]), (15, a[1]), (16, c[0]), (16, a[2]),
                        (17, a[3]), (18, c[1])]
            elif heavy(n + 1):
                plan = [(9, e[0]), (10, e[1]), (11, e[2]), (12, e[3]), (13, a[0]), (14, a[1]), (15, c[0]), (16, a[2]),
                        (17, a[3]), (18, c[1])]
            else:
                plan = [(9, e[0]), (10, e[1]), (11, e[2]), (12, e[3]), (13, a[0]), (14, a[1]), (15, c[0]), (16, a[2]),
                        (17, a[3]), (19, c[1])]
            for o, ins in plan:
                if g + o >= 0:
                    va[g + o].append(ins)
        for n in range(12):
            g = 12 * n
            nv = (n + 1) % 12
            vb = VA0 + 4 * ((n + 1) % 2)
            tpos = (8, 9) if heavy(n) else ((2, 3) if heavy(n - 1) else (1, 2))
            if not fill or n == 11:
                for h in range(2):
                    mem[g + tpos[h]].append(self.vread(nv, h, vb))
            mem[g + (7 if heavy(n) else 5)].append(self.qread((n + 1) % 6))
            if heavy(n):
                for s in range(6):
                    mem[g + 1 + s].append(self.kread(1 if n == 5 else 0, s))
        if not fill:
            for k, n in enumerate((1, 2, 3, 4, 7, 8)):
                m, d = self.dma_pair(k)
                sc[12 * n + 5].append(m)
                mem[12 * n + 6].append(d)
        g = 12 * 9
        book = [salu("s_add_u32", S_DMA, S_SLOT, S_WOFF),
                salu("s_add_u32", S_NEW, S_SLOT, TILE_L),
                salu("s_cmp_eq_u32", S_NEW, self.R * TILE_L),
                salu("s_cselect_b32", S_NEW, 0, S_NEW),
                salu("s_sub_u32", S_DELTA, S_NEW, S_SLOT),
                salu("s_mov_b32", S_SLOT, S_NEW)]
        if not fill:
            book += [salu("s_add_u32", S_KOFF, S_KOFF, TILE_G), salu("s_add_u32", S_VOFF, S_VOFF, TILE_G)]
        for o, ins in zip((0, 1, 2, 3, 6, 7, 8, 9), book):
            sc[g + o].append(ins)
        g = 12 * 10
        va[g + 6] += [valu("v_add_u32", V_KA, S_DELTA, V_KA), valu("v_add_u32", V_VA, S_DELTA, V_VA)]
        sc[g + 7].append(wait(vm=6 * (self.R - 2), lgkm=1))
        sc[g + 8].append(barrier())
        mf = []
        for n in range(12):
            mf += [self.qk(n, s) for s in range(6)]
            mf += [None if fill else self.pv(n, j, par, VA0 + 4 * (n % 2)) for j in range(6)]
        if not fill and self.abl:
            def keep(x):
                t = x.text
                if "e" in self.abl and t.startswith("v_exp"): return False
                if "a" in self.abl and t.startswith("v_add_f32"): return False
                if "c" in self.abl and t.startswith("v_cvt"): return False
                if "k" in self.abl and x.kind == "lds_rd" and V_KA in x.rd: return False
                if "v" in self.abl and x.kind == "lds_rd" and V_VA in x.rd: return False
                if "q" in self.abl and x.kind == "lds_rd" and V_QA in x.rd: return False
                if "d" in self.abl and x.kind == "dma": return False
                if "b" in self.abl and x.kind == "barrier": return False
                return True
            mem = [[x for x in g_ if keep(x)] for g_ in mem]
            va = [[x for x in g_ if keep(x)] for g_ in va]
            sc = [[x for x in g_ if keep(x)] for g_ in sc]
            if "c" in self.abl:
                mf = [m if (i % 12) < 6 else self.pv(i // 12, i % 12 - 6, 0, VA0 + 4 * ((i // 12) % 2)) for i, m in enumerate(mf)]
        gaps = [sc[i] + mem[i] + va[i] for i in range(N)]
        tail = [x for i in range(N, N + 12) for x in va[i]]
        return mf, gaps, tail

    @staticmethod
    def flat(mf, gaps, lo, hi):
        out = []
        for i in range(lo, hi):
            if mf[i] is not None:
                out.append(mf[i])
            out += gaps[i]
        return out

    def addr_setup(self, lane, w):
        b = [valu("v_lshrrev_b32", "v6", 4, lane), valu("v_lshlrev_b32", "v6", 3, "v6"),
             valu("v_bfe_u32", "v7", lane, 3, 1), valu("v_add_u32", "v6", "v6", "v7"),
             valu("v_lshl_add_u32", "v6", w, 1, "v6"), valu("v_mul_u32_u24", "v6", 384, "v6"),
             valu("v_and_b32", "v7", 7, lane), valu("v_lshl_add_u32", V_DMA, "v7", 4, "v6")]

        def lds_row(dst, key):
            return [valu("v_bfe_u32", "v8", key, 1, 2), valu("v_mul_u32_u24", "v8", 1056, "v8"),
                    valu("v_lshrrev_b32", "v9", 3, key), valu("v_lshlrev_b32", "v9", 1, "v9"),
                    valu("v_and_b32", dst, 1, key), valu("v_add_u32", "v9", "v9", dst),
                    valu("v_lshl_add_u32", dst, "v9", 7, "v8")]
        b += [valu("v_and_b32", "v6", 15, lane), valu("v_lshrrev_b32", "v7", 4, lane)]
        b += lds_row(V_KA, "v6") + [valu("v_lshl_add_u32", V_KA, "v7", 4, V_KA)]
        b += [valu("v_lshrrev_b32", "v6", 2, lane)] + lds_row(V_VA, "v6")
        b += [valu("v_and_b32", "v6", 3, lane), valu("v_lshl_add_u32", V_VA, "v6", 3, V_VA),
              valu("v_add_u32", V_VA, self.VBASE, V_VA)]
        return b

    def slow_path(self):
        M = ["v16", "v17", "v18", "v19", T0, T1]
        S = S0
        SD = R("v", S, 4)
        QL = Preg(1, 0)
        lane, w, vq = "v4", "v5", V_QA

        def qreg(j, s):
            return Qreg(j, s) if s < 5 else R("v", QL + 4 * j, 4)
        setup = [wait(vm=0, lgkm=0), barrier(),
                 raw(f"v_mbcnt_lo_u32_b32 {lane}, -1, 0", "valu", [], [lane]),
                 raw(f"v_mbcnt_hi_u32_b32 {lane}, -1, {lane}", "valu", [lane], [lane]),
                 valu("v_mov_b32", w, S_W)]
        setup += self.addr_setup(lane, w)
        setup += [valu("v_mul_u32_u24", vq, 96, w), valu("v_and_b32", "v6", 15, lane), valu("v_add_u32", vq, vq, "v6"),
                  valu("v_mul_u32_u24", vq, 384, vq), valu("v_lshl_add_u32", vq, "v7", 4, vq)]
        for j in range(NQB):
            setup.append(salu("s_mov_b32", S_T, j * 16 * 384))
            setup += [buf_load(qreg(j, s), vq, SRD_Q, S_T, s * 64) for s in range(6)]
        setup += [wait(vm=0)]
        setup += [valu("v_mov_b32", m, "0xff800000") for m in M]
        setup += [salu("s_mov_b32", S_KOFF, 0)]

        def load(with_v):
            o = []
            for k in range(6 if with_v else 3):
                o += list(self.dma_pair(k, S_WOFF, S_KOFF, S_KOFF))
            return o + [wait(vm=0), barrier()]

        def chain(j):
            return [mfma(SD, Kreg(s), qreg(j, s), "0" if s == 0 else SD) for s in range(6)]

        def close(name):
            return [wait(lgkm=0), barrier(), salu("s_add_u32", S_KOFF, S_KOFF, TILE_G),
                    salu("s_cmp_lt_u32", S_KOFF, HEAD_KV), branch("s_cbranch_scc1", name)]
        maxl = load(False)
        for kb in range(2):
            maxl += [self.kread(kb, s) for s in range(6)]
            for j in range(NQB):
                maxl += chain(j) + [valu("v_max3_f32", M[j], M[j], f"v{S}", f"v{S+1}"),
                                    valu("v_max3_f32", M[j], M[j], f"v{S+2}", f"v{S+3}")]
        maxl += close("L_slow_max")
        mid = []
        for m in M:
            for op in ("v_permlane32_swap_b32", "v_permlane16_swap_b32"):
                mid += [valu("v_mov_b32", vq, m), valu(op, m, vq), valu("v_max_f32", m, m, vq)]
        mid += [valu("v_mul_f32", m, S_C, m) for m in M]
        mid += [valu("v_accvgpr_write_b32", f"a{r}", 0) for r in range(OA0, 256)]
        mid += [valu("v_mov_b32", f"v{r}", 0) for r in list(range(OV0, 256)) + list(range(L0, L0 + 6))]
        mid += [salu("s_mov_b32", S_KOFF, 0)]
        main = load(True)
        for kb in range(2):
            main += [self.kread(kb, s) for s in range(6)]
            for j in range(NQB):
                p = Preg(0, j) + 2 * kb
                main += chain(j)
                main += [valu("v_fma_f32", f"v{S+i}", f"v{S+i}", S_C, "-" + M[j]) for i in range(4)]
                main += [valu("v_exp_f32", f"v{S+i}", f"v{S+i}") for i in range(4)]
                main += [valu("v_add_f32", f"v{L0+j}", f"v{S+i}", f"v{L0+j}") for i in range(4)]
                main += [valu("v_cvt_pk_bf16_f32", f"v{p+i}", f"v{S+2*i}", f"v{S+2*i+1}") for i in range(2)]
        for db in range(12):
            vb = VA0 + 4 * (db % 2)
            main += [self.vread(db, h, vb) for h in range(2)]
            main += [self.pv(db, j, 0, vb) for j in range(NQB)]
        main += close("L_slow_main")
        return setup, maxl, mid, main, self.epilogue_plain()

    def prologue(self):
        b = []
        b += [salu("s_cmp_ge_u32", "s2", 256), branch("s_cbranch_scc1", "L_end"),
              raw("s_load_dwordx4 s[4:7], s[0:1], 0", "smem"), raw("s_load_dwordx4 s[8:11], s[0:1], 16", "smem")]
        if self.stamps:
            b += [raw("s_load_dwordx4 s[12:15], s[0:1], 32", "smem"),
                  raw("s_memrealtime s[56:57]"), raw("s_memtime s[58:59]")]
        lane, w = "v4", "v5"
        b += [valu("v_and_b32", lane, 63, "v0"), valu("v_lshrrev_b32", w, 6, "v0"),
              valu("v_readfirstlane_b32", S_W, w)]
        if self.pref:
            b += [raw("s_getpc_b64 s[50:51]", "salu", [], ["s50", "s51"]), label("L_pc"),
                  salu("s_lshr_b32", S_T, "s2", 3), salu("s_lshl_b32", S_T, S_T, 2), salu("s_add_u32", S_T, S_T, S_W),
                  salu("s_min_u32", S_T, S_T, "(L_end-L_pc)/1024"), salu("s_lshl_b32", S_T, S_T, 10),
                  valu("v_lshl_add_u32", "v6", lane, 4, S_T),
                  I(f"global_load_dwordx4 v[{OV0}:{OV0+3}], v6, s[50:51]", "vm_ld", ["v6", "s50", "s51"], regs("v", OV0, 4))]
        b += self.addr_setup(lane, w)
        g = "v7"
        b += [valu("v_mul_u32_u24", V_QA, 6144, w), valu("v_lshl_add_u32", V_QA, lane, 4, V_QA),
              valu("v_add_u32", V_QA, self.QBASE, V_QA)]
        for i_ in range(3):
            d = f"v{OV0+64+i_}"
            b += [valu("v_add_u32", d, 64 * i_, lane), valu("v_mul_u32_u24", "v6", 2731, d),
                  valu("v_lshrrev_b32", "v6", 16, "v6"), valu("v_and_b32", "v6", 6, "v6"),
                  valu("v_xor_b32", d, d, "v6"), valu("v_lshlrev_b32", d, 4, d)]
        b += [valu("v_and_b32", "v6", 15, lane), valu("v_and_b32", "v8", 6, lane), valu("v_xor_b32", "v8", "v8", g),
              valu("v_mul_u32_u24", "v6", 384, "v6"), valu("v_lshl_add_u32", f"v{OV0+67}", "v8", 4, "v6"),
              valu("v_xor_b32", f"v{OV0+68}", 64, f"v{OV0+67}")]
        head = "s2"
        if self.remap:
            head = "s3"
            b += [salu("s_and_b32", head, "s2", 7), salu("s_lshl_b32", head, head, 5),
                  salu("s_lshr_b32", S_T, "s2", 3), salu("s_add_u32", head, head, S_T)]
        b += [raw("s_waitcnt lgkmcnt(0)", "salu")]
        if self.touch:
            b += self.stamp()
        b += [salu("s_mul_i32", S_T, head, HEAD_KV),
              salu("s_add_u32", "s16", "s6", S_T), salu("s_addc_u32", "s17", "s7", 0),
              salu("s_mov_b32", "s18", HEAD_KV), salu("s_mov_b32", "s19", "0x20000"),
              salu("s_add_u32", "s20", "s8", S_T), salu("s_addc_u32", "s21", "s9", 0),
              salu("s_mov_b32", "s22", HEAD_KV), salu("s_mov_b32", "s23", "0x20000"),
              salu("s_mul_i32", S_T, head, HEAD_Q),
              salu("s_add_u32", "s24", "s4", S_T), salu("s_addc_u32", "s25", "s5", 0),
              salu("s_mov_b32", "s26", HEAD_Q), salu("s_mov_b32", "s27", "0x20000"),
              salu("s_add_u32", "s28", "s10", S_T), salu("s_addc_u32", "s29", "s11", 0),
              salu("s_mov_b32", "s30", HEAD_Q), salu("s_mov_b32", "s31", "0x20000"),
              salu("s_mul_i32", S_WOFF, S_W, 1056),
              salu("s_mov_b32", S_C, f32(math.log2(math.e) / math.sqrt(192.0))),
              salu("s_mov_b32", S_SLOT, 0), salu("s_mov_b32", S_CNT, 14)]

        def group(ktile, vtile):
            o = []
            for k in range(6):
                tile = vtile if k >= 3 else ktile
                if tile is None:
                    continue
                slot = (tile + 1) % self.R if k >= 3 else tile % self.R
                if k % 3 == 0:
                    o.append(salu("s_mov_b32", S_T, tile * TILE_G))
                o += list(self.dma_pair(k, S_WOFF, S_T, S_T, slot * TILE_L))
            return o
        S_SA, S_SB = "s43", "s44"
        RAW = OV0
        TMP = OV0 + 48
        Q5 = OV0 + 56
        VQ = [f"v{OV0+64+i_}" for i_ in range(3)]
        VR = [f"v{OV0+67+i_}" for i_ in range(2)]
        LAST = OV0 + 69
        KB = Preg(1, 0)
        b += [salu("s_lshr_b32", S_T, S_W, 1), salu("s_mul_i32", S_T, S_T, 3), salu("s_add_u32", S_T, S_T, S_W),
              salu("s_add_u32", S_T, S_T, 2), salu("s_mul_i32", S_SB, S_T, TILE_L),
              salu("s_add_u32", S_SA, S_SB, 2 * TILE_L), salu("s_mul_i32", S_T, S_W, 36864)]
        b += [valu("v_add_u32", VQ[i_], S_T, VQ[i_]) for i_ in range(3)]

        def ubase(u):
            return (S_SB if u in (2, 3) else S_SA), (u & 1) * 6144

        def qunit(u):
            sb, off = ubase(u)
            o = []
            for i_ in range(3):
                o += [salu("s_add_u32", "m0", sb, off + i_ * 1024)]
                o += [salu("s_mov_b32", S_T, u * 6144)] if i_ == 0 else [nop(0)]
                o += [buf_dma(VQ[i_], SRD_Q, S_T, h * 3072, self.qpol) for h in range(2)]
            return o

        def qraw(u):
            sb, off = ubase(u)
            o = [valu("v_add_u32", T0, sb, VR[0]), valu("v_add_u32", T1, sb, VR[1])]
            for s_ in range(6):
                o.append(ds_read("ds_read_b128", R("v", RAW + 4 * ((u % 2) * 6 + s_), 4), (T0, T1)[s_ & 1],
                                 off + (s_ >> 1) * 128))
            return o

        def prescale(j):
            o = []
            for s_ in range(6):
                r0 = RAW + 4 * ((j % 2) * 6 + s_)
                for i_ in range(4):
                    o += [valu("v_lshlrev_b32", f"v{TMP+2*i_}", 16, f"v{r0+i_}"),
                          valu("v_and_b32", f"v{TMP+2*i_+1}", "0xffff0000", f"v{r0+i_}")]
                o += [valu("v_mul_f32", f"v{TMP+i_}", S_C, f"v{TMP+i_}") for i_ in range(8)]
                dst = r0 if s_ < 5 else Q5 + 4 * (j % 2)
                o += [valu("v_cvt_pk_bf16_f32", f"v{dst+i_}", f"v{TMP+2*i_}", f"v{TMP+2*i_+1}") for i_ in range(4)]
                if s_ < 5:
                    o += [valu("v_accvgpr_write_b32", f"a{QA0+4*(j*5+s_)+i_}", f"v{dst+i_}") for i_ in range(4)]
                else:
                    o.append(ds_write("ds_write_b128", V_QA, R("v", dst, 4), j * 1024))
            return o

        def chains(j):
            o = []
            for kb in range(2):
                d = R("v", S0 + 4 * kb, 4)
                for s_ in range(6):
                    a_ = Kreg(s_) if kb == 0 else R("v", KB + 4 * s_, 4)
                    q_ = Qreg(j, s_) if s_ < 5 else R("v", Q5 + 4 * (j % 2), 4)
                    o.append(mfma(d, a_, q_, self.cinit if s_ == 0 else d))
            return o

        def soft(j, kb):
            sreg = S0 + 4 * kb
            p = Preg(0, j) + 2 * kb
            e = [valu("v_exp_f32", f"v{sreg+i_}", f"v{sreg+i_}") for i_ in range(4)]
            a_ = [valu("v_add_f32", f"v{L0+j}", f"v{sreg+i_}", f"v{L0+j}") for i_ in range(4)]
            c = [valu("v_cvt_pk_bf16_f32", f"v{p+i_}", f"v{sreg+2*i_}", f"v{sreg+2*i_+1}") for i_ in range(2)]
            return e + a_ + c

        def weave(ms, ops, per=2):
            o = []
            ops = list(ops)
            for m in ms:
                o.append(m)
                o += ops[:per]
                ops = ops[per:]
            return o, ops

        plan = {0: (3, 4, 5), 1: (4, 5, 6), 2: (3, 5, 6), 3: (2, 4, 5), 4: (3, 3, 5), 5: (5, 6, 6)}[self.provar]
        queue = []

        def issue(name, ops):
            queue.append((name, sum(1 for x in ops if x.kind == "dma")))
            return ops

        def landed(name, **kw):
            k = [n for n, _ in queue].index(name)
            return wait(vm=sum(c for _, c in queue[k + 1:]), **kw)

        def extras(u):
            o = []
            if plan[0] == u:
                o += issue("KV0", group(1, 0))
            if plan[1] == u:
                o += issue("G4", group(2, 1))
            if plan[2] == u:
                o += issue("G3", group(3, 2))
            return o

        b += issue("K0", group(0, None))
        for u in range(4):
            b += issue(f"U{u}", qunit(u))
        if self.touch:
            b += self.stamp() + [landed("K0")] + self.stamp() + [landed("U0")] + self.stamp()
        for r in range(OA0, 256):
            b.append(valu("v_accvgpr_write_b32", f"a{r}", 0))
        for r in list(range(LAST, 256)) + list(range(L0, L0 + 6)):
            b.append(valu("v_mov_b32", f"v{r}", 0))
        b += [valu("v_mov_b32", "v14", self.FLAG), valu("v_mov_b32", "v15", 0), ds_write("ds_write_b32", "v14", "v15", 0)]
        b += [landed("U0")] + qraw(0) + [wait(lgkm=0)] + issue("U4", qunit(4)) + [barrier()]
        b += [self.kread(0, s_) for s_ in range(6)]
        b += [ds_read("ds_read_b128", R("v", KB + 4 * s_, 4), V_KA, (s_ >> 1) * TAU + (s_ & 1) * 64 + 512) for s_ in range(6)]
        b += prescale(0)
        for u in range(1, 6):
            b += [landed(f"U{u}")] + [] + qraw(u)
            if u == 1:
                b += [wait(lgkm=0)] + issue("U5", qunit(5))
            if u == 3:
                b += [wait(lgkm=0), barrier()]
            b += extras(u)
            ps = prescale(u)
            ch = chains(u - 1)
            w1, rest = weave(ch[6:], ps)
            b += ch[:6] + w1 + soft(u - 1, 0) + rest[:24] + soft(u - 1, 1) + rest[24:]
        zero = [valu("v_mov_b32", f"v{r}", 0) for r in list(range(RAW, Q5 + 4)) + list(range(Q5 + 8, LAST))]
        b += [valu("v_add_u32", V_KA, TILE_L, V_KA), valu("v_add_u32", V_VA, TILE_L, V_VA),
              salu("s_mov_b32", S_SLOT, TILE_L), salu("s_mov_b32", S_DMA, S_WOFF),
              salu("s_mov_b32", S_KOFF, self.R * TILE_G), salu("s_mov_b32", S_VOFF, (self.R - 1) * TILE_G)]
        b += [landed("KV0", lgkm=0), barrier()]
        ch = chains(5)
        for s_ in range(6):
            b += [ch[s_], self.kread(0, s_), zero.pop(0)]
        b += [ch[6], self.qread(0), zero.pop(0), ch[7], self.vread(0, 0, VA0), zero.pop(0), ch[8], self.vread(0, 1, VA0), zero.pop(0)]
        w1, rest = weave(ch[9:], zero)
        b += w1 + soft(5, 0) + extras(6) + group(4, 3) + rest
        b += [valu("v_mov_b32", f"v{r}", 0) for r in range(Q5 + 4, Q5 + 8)]
        b += soft(5, 1)[:2]
        return b

    def group_tail(self, js, bufs, first, carry=(), extra=()):
        n = len(js)
        LAT = 5
        mf, cstart, gstart = [], [], []
        v = 0
        for c in range(4 * n):
            ph, k = divmod(c, 2 * n)
            jj = js[c % n]
            d = R("v", S0 + 4 * (c % 2), 4)
            cstart.append(len(mf))
            mf += [mfma(d, Kreg(s), Qreg(jj, s), self.cinit if s == 0 else d) for s in range(6)]
            upto = 12 * ph + (k + 1) * 12 // (2 * n)
            if ph == 1 and k < 2 * n - 1:
                upto -= (4 + n - 1) // n * (k + 1) // (2 * n - 1)
            if c == 4 * n - 1:
                upto = 36
            while v < upto:
                gstart.append(len(mf))
                f_, b_ = bufs[v % len(bufs)]
                mf += [self.pv(v % 12, x, (1, 0, 1)[v // 12], b_, f_) for x in js]
                v += 1
        sm = [Op(x, 0, cstart[1] - 1) for x in carry]
        for c in range(4 * n):
            ph, kb, jj = c // (2 * n), (c // n) % 2, js[c % n]
            sreg = S0 + 4 * (c % 2)
            p = Preg(ph, jj) + 2 * kb
            hi = gstart[12 * (ph + 1)] + js.index(jj) - 2
            if c + 2 < 4 * n:
                hi = min(hi, cstart[c + 2] - 1)
            e = [valu("v_exp_f32", f"v{sreg+i}", f"v{sreg+i}") for i in range(4)]
            a = [valu("v_add_f32", f"v{L0+jj}", f"v{sreg+i}", f"v{L0+jj}") for i in range(4)]
            cv = [valu("v_cvt_pk_bf16_f32", f"v{p+i}", f"v{sreg+2*i}", f"v{sreg+2*i+1}") for i in range(2)]
            lo = cstart[c] + 5 + 3
            for k, x in enumerate(e + [cv[0], a[0], cv[1], a[1], a[2], a[3]]):
                last = c + 2 < 4 * n
                h = hi - (9 - k) // 2 if (last or k < 7) else 10 ** 9
                sm.append(Op(x, lo, max(h, lo)))
        sync_gap = cstart[n] + 2 if first else -1
        sync = [Op(wait(vm=0), sync_gap - 1, sync_gap - 1), Op(barrier(), sync_gap, sync_gap)] if first else []
        kst = []
        for st_ in range(1, 4):
            for s in range(6):
                lo = max(cstart[st_ * n - 1] + s, sync_gap + 1 if st_ == 2 else 0)
                kst.append(Op(self.kread(st_ % 2, s, st_ // 2), lo, max(cstart[st_ * n] + s - LAT, lo)))
        qst = [Op(self.qread(js[c % n]), cstart[c - 1] + 5, cstart[c] + 5 - LAT) for c in range(1, 4 * n)]
        vst = []
        pre = []
        for v in range(36):
            f_, b_ = bufs[v % len(bufs)]
            rd = [self.vread(v % 12, h, b_, v // 12, f_) for h in range(2)]
            if v == 0 and first:
                continue
            if v < len(bufs) and not first:
                pre += rd
                continue
            lo = gstart[v - len(bufs)] + n - 1 if v >= len(bufs) else 0
            if v >= 12:
                lo = max(lo, sync_gap + 1)
            vst += [Op(x, lo, max(gstart[v] - LAT, lo)) for x in rd]
        if not first:
            pre = [self.kread(0, s) for s in range(6)] + [self.qread(js[0])] + pre
        return pre, sched(mf, [sm, kst, qst, vst, sync, list(extra)])

    def row_sums(self, js, t0):
        b = []
        for op in ("v_permlane32_swap_b32", "v_permlane16_swap_b32"):
            b += [valu("v_mov_b32", f"v{t0+k}", f"v{L0+j}") for k, j in enumerate(js)]
            b += [valu(op, f"v{L0+j}", f"v{t0+k}") for k, j in enumerate(js)]
            b += [valu("v_add_f32", f"v{L0+j}", f"v{L0+j}", f"v{t0+k}") for k, j in enumerate(js)]
        return b

    def range_check(self, js, first, last):
        b = []
        if first:
            b += [salu("s_mov_b32", S_NEW, f32(2.0 ** 12)), salu("s_mov_b32", S_DELTA, f32(2.0 ** -20)),
                  salu("s_mov_b64", "s[44:45]", 0)]
        for j in js:
            b += [valu("v_cmp_nge_f32", "s[46:47]", S_NEW, f"v{L0+j}"), valu("v_cmp_nle_f32", "s[48:49]", S_DELTA, f"v{L0+j}"),
                  salu("s_or_b64", "s[44:45]", "s[44:45]", "s[46:47]"), salu("s_or_b64", "s[44:45]", "s[44:45]", "s[48:49]")]
        if last:
            b += [branch("s_cbranch_scc0", "L_inrange"),
                  valu("v_mov_b32", T0, self.FLAG), valu("v_mov_b32", T1, 1), ds_write("ds_write_b32", T0, T1, 0),
                  label("L_inrange")]
        return b

    PITCH = 400
    EA = P0

    def epi_addr(self):
        vw, vr, vg, lane, t = f"v{P0}", [f"v{P0+1+i}" for i in range(3)], f"v{P0+4}", f"v{P0+5}", f"v{P0+6}"
        b = [raw(f"v_mbcnt_lo_u32_b32 {lane}, -1, 0", "valu", [], [lane]),
             raw(f"v_mbcnt_hi_u32_b32 {lane}, -1, {lane}", "valu", [lane], [lane]),
             salu("s_lshr_b32", S_T, S_W, 1), salu("s_mul_i32", S_T, S_T, 6 * TILE_L),
             salu("s_and_b32", S_SLOT, S_W, 1), salu("s_mul_i32", S_SLOT, S_SLOT, 32 * self.PITCH),
             salu("s_add_u32", S_T, S_T, S_SLOT), salu("s_add_u32", S_T, S_T, 2 * TILE_L),
             valu("v_and_b32", vw, 15, lane), valu("v_mul_u32_u24", vw, self.PITCH, vw),
             valu("v_lshrrev_b32", t, 4, lane), valu("v_lshl_add_u32", vw, t, 3, vw), valu("v_add_u32", vw, S_T, vw)]
        for i in range(3):
            b += [valu("v_add_u32", vr[i], 64 * i, lane), valu("v_mul_u32_u24", t, 2731, vr[i]),
                  valu("v_lshrrev_b32", t, 16, t), valu("v_add_lshl_u32", vr[i], vr[i], t, 4),
                  valu("v_add_u32", vr[i], S_T, vr[i])]
        b += [salu("s_mul_i32", S_T, S_W, 36864), valu("v_lshlrev_b32", vg, 4, lane), valu("v_add_u32", vg, S_T, vg)]
        return b

    def epi_stores(self, j):
        o = []
        for i in range(6):
            pre = [salu("s_mov_b32", S_T, j * 6144 + i * 1024)] if i % 4 == 0 else []
            o.append(pre + [buf_store(Oreg(j, i), f"v{P0+4}", SRD_O, S_T, (i % 4) * 1024, self.opol)])
        return o

    def epi_block(self, j, pend, first=3, step=1):
        PITCH = self.PITCH
        vw, vr = f"v{P0}", [f"v{P0+1+i}" for i in range(3)]
        b = []
        for db in range(12):
            src = expand(Oreg(j, db))
            if src[0][0] == "a":
                t = OV0 + 24 + 4 * (db % 6)
                b += [valu("v_accvgpr_read_b32", f"v{t+i}", src[i]) for i in range(4)]
                src = [f"v{t+i}" for i in range(4)]
            b += [valu("v_mul_f32", src[i], src[i], f"v{L0+j}") for i in range(4)]
            b += [valu("v_cvt_pk_bf16_f32", src[i], src[2 * i], src[2 * i + 1]) for i in range(2)]
            b += [ds_write("ds_write_b64", vw, R("v", int(src[0][1:]), 2), (j % 2) * 16 * PITCH + db * 32)]
            if db >= first and (db - first) % step == 0 and pend:
                b += pend.pop(0)
        b += [ds_read("ds_read_b128", Oreg(j, i), vr[i % 3], (2 * (j % 2) + i // 3) * 8 * PITCH) for i in range(6)]
        return b

    def epi_all(self, js, pend):
        b = []
        for j in js:
            b += self.epi_block(j, pend)
            b += [x for p in pend for x in p]
            pend = self.epi_stores(j)
        return b + [x for p in pend for x in p]

    def rcp(self, js):
        return [valu("v_rcp_f32", f"v{L0+j}", f"v{L0+j}") for j in js]

    def epilogue_plain(self):
        js = list(range(NQB))
        return self.row_sums(js, S0) + self.rcp(js) + self.epi_addr() + self.epi_all(js, [])

    def tail(self, carry):
        groups, k = [], 0
        for n in self.groups:
            groups.append(list(range(k, k + n)))
            k += n
        assert k == NQB and groups[0][-1] < 4 and len(groups[0]) >= 2
        bufs0 = [("a", VA0), ("a", VA0 + 4), ("v", Preg(0, 4)), ("v", Preg(0, 5))]
        bufs1 = [("a", VA0), ("a", VA0 + 4), ("a", 0), ("a", 4)]
        _, b = self.group_tail(groups[0], bufs0, True, carry)
        left = []
        for gi, js in enumerate(groups):
            last = gi == len(groups) - 1
            b += self.stamp() if gi in (0, len(groups) - 1) else []
            b += self.row_sums(js, S0) + self.range_check(js, gi == 0, last) + self.rcp(js)
            if gi == 0:
                b += self.epi_addr()
            if last:
                b += self.epi_all(js, left)
                break
            nxt = groups[gi + 1]
            for x, j in enumerate(js):
                if x == len(js) - 1:
                    pos = len(b)
                b += self.epi_block(j, left, 2, self.estep)
                left += self.epi_stores(j)
            nm = 60 * len(nxt)
            take = min(len(left), max(0, (nm - 4) // self.espace))
            extra = [Op(x, 4 + self.espace * i, 4 + self.espace * i) for i, p in enumerate(left[:take]) for x in p]
            left = left[take:]
            pre, t1 = self.group_tail(nxt, bufs1, False, (), extra)
            b[pos:pos] = pre
            b += t1
        b += [wait(lgkm=0), barrier(), valu("v_mov_b32", T1, self.FLAG), ds_read("ds_read_b32", T1, T1, 0),
              valu("v_readfirstlane_b32", S_T, T1), salu("s_cmp_lg_u32", S_T, 0), branch("s_cbranch_scc1", "L_slow")]
        return b

    def stamp_out(self):
        if not self.stamps:
            return ""
        n = 4 + 2 * self.nstamp
        s = "  s_waitcnt vmcnt(0)\n  s_barrier\n  s_memrealtime s[60:61]\n  s_memtime s[62:63]\n  s_waitcnt lgkmcnt(0)\n"
        s += f"  s_cmp_lg_u32 {S_W}, 0\n  s_cbranch_scc1 L_end\n  s_mov_b64 exec, 1\n"
        if self.stamps == "dbg":
            s += "  v_mov_b32 v1, 0\n  v_mov_b32 v2, s60\n  global_atomic_umax v1, v2, s[12:13]\n"
            s += "  s_not_b32 s3, s56\n  v_mov_b32 v3, s3\n  global_atomic_umax v1, v3, s[12:13] offset:4\n"
            s += "  v_mov_b32 v4, s56\n  global_atomic_umax v1, v4, s[12:13] offset:8\n"
            s += "  s_cmp_lg_u32 s2, 100\n  s_cbranch_scc1 L_end\n"
            vals = [(66 + 4 * i, 56) for i in range(self.nstamp)] + [(60, 56)] + [(64 + 4 * i, 58) for i in range(self.nstamp)] + [(62, 58)]
            for i, (x, y) in enumerate(vals):
                s += f"  s_sub_u32 s3, s{x}, s{y}\n  v_mov_b32 v2, s3\n  global_store_dword v1, v2, s[12:13] offset:{16+4*i}\n"
            return s
        s += f"  s_mul_i32 s3, s2, {8*n}\n  v_mov_b32 v1, s3\n"
        for i in range(n):
            r = 56 + 2 * i
            s += f"  v_mov_b32 v2, s{r}\n  v_mov_b32 v3, s{r+1}\n  global_store_dwordx2 v1, v[2:3], s[14:15] offset:{8*i}\n  s_nop 1\n"
        return s

    def build(self, verbose=False):
        ROT = 8
        pro = self.prologue()
        mfE, gE, tailE = self.period(0)
        mfO, gO, _ = self.period(1)
        gE[12 * 11 + 7].append(salu("s_cmp_eq_u32", S_CNT, 0))
        exit_tail = gE[143] + tailE
        gE[143] = [branch("s_cbranch_scc1", "L_drain")] + gE[143]
        gO[12 * 11 + 7].append(salu("s_sub_u32", S_CNT, S_CNT, 1))
        fill = self.stamp()
        head = self.flat(mfE, gE, 0, ROT)
        body = self.flat(mfE, gE, ROT, 144) + self.flat(mfO, gO, 0, 144) + self.flat(mfE, gE, 0, ROT)
        body.append(branch("s_branch", "L_top"))

        log = []
        pro, st = fix(pro + fill, State())
        head1, st1 = fix(head, st, hoist=True)
        body1, st2 = fix(body, st1, hoist=True, log=log)
        body2, st3 = fix(body1, st2, hoist=True, log=log)
        errs, _ = verify(pro + head1 + body2 + body2 + body2)
        assert not errs, errs[:10]
        kx = next(i for i, x in enumerate(body2) if x.kind == "branch")
        _, stx = verify(pro + head1 + body2 + body2[:kx + 1])
        post = self.stamp() + self.tail(exit_tail)
        post, _ = fix(post, stx, hoist=True)
        errs, _ = verify(pro + head1 + body2[:kx + 1] + post)
        assert not errs, errs[:10]
        if verbose:
            tot, over = estimate(body2)
            print("loop estimate cycles (288 mfma, ideal 4608):", tot)
            for o in over:
                print("  over:", o)
            print("  inserted:", [x for x in log if x[0] == "nop"])
            print("  waits:", len([x for x in log if x[0] == "wait"]), "instrs:", len(body2))
            tot, over = estimate(post)
            print("tail estimate:", tot, "mfma:", sum(x.kind == "mfma" for x in post), "instrs:", len(post))
            print("  over:", [(o[0], o[1]) for o in over])
        text = emit(pro + head1) + ".p2align 6\nL_top:\n" + emit(body2) + "L_drain:\n" + emit(post)
        text += self.stamp_out() + "L_end:\n  s_endpgm\n"
        setup, maxl, mid, main, epi = self.slow_path()
        st = State()
        blocks = []
        for blk, loop in ((setup, False), (maxl, True), (mid, False), (main, True), (epi, False)):
            blk, st = fix(blk, st)
            if loop:
                blk, st = fix(blk, st)
            blocks.append(blk)
        setup, maxl, mid, main, epi = blocks
        errs, _ = verify(post + setup + maxl + maxl + mid + main + main + epi)
        assert not errs, errs[:10]
        text += "L_slow:\n" + emit(setup) + "L_slow_max:\n" + emit(maxl) + emit(mid) + "L_slow_main:\n" + emit(main)
        text += emit(epi) + "  s_endpgm\n"
        return wrap(text, 256, 256, self.lds, 512, 256)


if __name__ == "__main__":
    ap = argparse.ArgumentParser()
    ap.add_argument("-o", default="k.s")
    ap.add_argument("--stamps", default="")
    ap.add_argument("--ring", type=int, default=5)
    ap.add_argument("--pol", default="nt")
    ap.add_argument("--opol", default="nt")
    ap.add_argument("--abl", default="")
    ap.add_argument("--pref", type=int, default=1)
    ap.add_argument("--qpol", default="nt")
    ap.add_argument("--remap", type=int, default=1)
    ap.add_argument("--touch", type=int, default=0)
    ap.add_argument("--groups", default="42")
    ap.add_argument("--estep", type=int, default=4)
    ap.add_argument("--espace", type=int, default=7)
    ap.add_argument("--provar", type=int, default=2)
    ap.add_argument("-v", action="store_true")
    a = ap.parse_args()
    g = Gen(ring=a.ring, pol=a.pol, opol=a.opol, stamps=a.stamps, abl=a.abl, provar=a.provar, groups=a.groups, estep=a.estep, espace=a.espace, pref=a.pref, remap=a.remap, touch=a.touch, qpol=a.qpol)
    open(a.o, "w").write(g.build(a.v))
```

```python
import argparse
import math
import struct
from fw import *
from asmlib import wrap

NQB = 6
TILE_G = 12288
TAU = 4192
TILE_L = 3 * TAU
HEAD_Q = 147456
HEAD_KV = 393216

V_KA, V_VA, V_DMA, V_QA = "v0", "v1", "v2", "v3"
L0 = 4
T0, T1 = "v10", "v11"
S0 = 12
P0 = 20
OV0, NOV = 68, 47
QA0 = 0
QBUF = 120
KA0 = 124
VA0 = 148
OA0 = 156
SRD_K, SRD_V, SRD_Q, SRD_O = "s[16:19]", "s[20:23]", "s[24:27]", "s[28:31]"
S_W, S_KOFF, S_VOFF, S_DMA, S_SLOT, S_NEW, S_DELTA, S_CNT, S_C, S_WOFF, S_T = (f"s{i}" for i in range(32, 43))
S_DLIM = "s54"


def f32(x):
    return "0x%08x" % struct.unpack("<I", struct.pack("<f", x))[0]


def Oreg(j, db):
    n = j * 12 + db
    return R("v", OV0 + 4 * n, 4) if n < NOV else R("a", OA0 + 4 * (n - NOV), 4)


def Qreg(j, s):
    return R("a", QA0 + 4 * (j * 5 + s), 4) if s < 5 else R("a", QBUF, 4)


def Kreg(s):
    return R("a", KA0 + 4 * s, 4)


def Preg(par, j):
    return P0 + 24 * par + 4 * j


class Gen:
    def __init__(self, ring=5, pol="nt", opol="", stamps=False, cinit="-4.0", abl="", provar="456", groups="42", estep=4, espace=7, pref=1, remap=1, touch=0, qpol="nt", dist=3, dpos="s"):
        self.dpos = dpos
        self.D = dist
        self.qpol = qpol
        self.remap, self.touch = remap, touch
        self.pref = pref
        self.groups, self.estep, self.espace = [int(c) for c in groups], estep, espace
        self.provar = provar
        self.abl = abl
        self.R = ring
        self.pol, self.opol, self.stamps, self.cinit = pol, opol, stamps, cinit
        self.VBASE = ring * TILE_L
        assert ring == 5
        self.QBASE = (2 * ring + 1) * TILE_L
        self.FLAG = self.QBASE + 24576
        self.lds = self.FLAG + 256
        self.nstamp = 0

    def stamp(self):
        if not self.stamps:
            return []
        r = 64 + 4 * self.nstamp
        self.nstamp += 1
        return [raw(f"s_memtime s[{r}:{r+1}]", "salu"), raw(f"s_memrealtime s[{r+2}:{r+3}]", "salu")]

    def kread(self, kb, s, slot=0):
        return ds_read("ds_read_b128", Kreg(s), V_KA, slot * TILE_L + (s >> 1) * TAU + (s & 1) * 64 + kb * 512)

    def vread(self, db, half, base, slot=0, file="a"):
        return ds_read("ds_read_b64_tr_b16", R(file, base + 2 * half, 2), V_VA,
                       slot * TILE_L + (db >> 2) * TAU + (db & 3) * 32 + half * 512)

    def qread(self, j):
        return ds_read("ds_read_b128", R("a", QBUF, 4), V_QA, j * 1024)

    def dma_pair(self, k, base_sgpr=S_DMA, koff=S_KOFF, voff=S_VOFF, slot_off=0):
        tau = k % 3
        isv = k >= 3
        imm = (self.VBASE if isv else 0) + slot_off + tau * TAU - tau * 128
        return (salu("s_add_u32", "m0", base_sgpr, imm),
                buf_dma(V_DMA, SRD_V if isv else SRD_K, voff if isv else koff, tau * 128, self.pol))

    def softmax_ops(self, n, ppar):
        kb, j = divmod(n % 12, 6)
        s = S0 + 4 * (n % 2)
        p = Preg(ppar, j) + 2 * kb
        e = [valu("v_exp_f32", f"v{s+i}", f"v{s+i}") for i in range(4)]
        a = [valu("v_add_f32", f"v{L0+j}", f"v{s+i}", f"v{L0+j}") for i in range(4)]
        c = [valu("v_cvt_pk_bf16_f32", f"v{p+i}", f"v{s+2*i}", f"v{s+2*i+1}") for i in range(2)]
        return e, a, c

    def qk(self, n, s):
        j = n % 6
        d = R("v", S0 + 4 * (n % 2), 4)
        return mfma(d, Kreg(s), Qreg(j, s), self.cinit if s == 0 else d)

    def pv(self, db, j, par, vbase, file="a"):
        return mfma(Oreg(j, db), R(file, vbase, 4), R("v", Preg(par, j), 4), Oreg(j, db))

    def period(self, par, fill=False):
        N = 144
        sc = [[] for _ in range(N + 12)]
        mem = [[] for _ in range(N + 12)]
        va = [[] for _ in range(N + 12)]
        heavy = lambda n: n % 6 == 5
        for n in range(-1, 12):
            if n == -1 and fill:
                continue
            e, a, c = self.softmax_ops(n, par if n == -1 else 1 - par)
            g = 12 * n
            if heavy(n):
                plan = [(10, e[0]), (11, e[1]), (12, e[2]), (13, e[3]), (14, a[0]), (15, a[1]), (16, c[0]), (16, a[2]),
                        (17, a[3]), (18, c[1])]
            elif heavy(n + 1):
                plan = [(9, e[0]), (10, e[1]), (11, e[2]), (12, e[3]), (13, a[0]), (14, a[1]), (15, c[0]), (16, a[2]),
                        (17, a[3]), (18, c[1])]
            else:
                plan = [(9, e[0]), (10, e[1]), (11, e[2]), (12, e[3]), (13, a[0]), (14, a[1]), (15, c[0]), (16, a[2]),
                        (17, a[3]), (19, c[1])]
            for o, ins in plan:
                if g + o >= 0:
                    va[g + o].append(ins)
        for n in range(12):
            g = 12 * n
            nv = (n + 1) % 12
            vb = VA0 + 4 * ((n + 1) % 2)
            tpos = (8, 9) if heavy(n) else ((2, 3) if heavy(n - 1) else (1, 2))
            if not fill or n == 11:
                for h in range(2):
                    mem[g + tpos[h]].append(self.vread(nv, h, vb))
            mem[g + (7 if heavy(n) else 5)].append(self.qread((n + 1) % 6))
            if heavy(n):
                for s in range(6):
                    mem[g + 1 + s].append(self.kread(1 if n == 5 else 0, s))
        if not fill:
            pos = {"s": [(1, 6), (2, 6), (3, 6), (4, 6), (7, 6), (8, 6)],
                   "e": [(0, 8), (1, 6), (1, 8), (2, 6), (2, 8), (3, 6)],
                   "m": [(0, 8), (1, 6), (2, 6), (3, 6), (4, 6), (6, 8)],
                   "l": [(4, 6), (6, 8), (7, 6), (7, 8), (8, 6), (8, 8)]}[self.dpos]
            for k, (n, o) in enumerate(pos):
                m, d = self.dma_pair(k)
                sc[12 * n + o - 1].append(m)
                mem[12 * n + o].append(d)
        g = 12 * 9
        book = [salu("s_add_u32", S_DMA, S_DMA, TILE_L),
                salu("s_cmp_eq_u32", S_DMA, S_DLIM),
                salu("s_cselect_b32", S_DMA, S_WOFF, S_DMA),
                salu("s_add_u32", S_NEW, S_SLOT, TILE_L),
                salu("s_cmp_eq_u32", S_NEW, self.R * TILE_L),
                salu("s_cselect_b32", S_NEW, 0, S_NEW),
                salu("s_sub_u32", S_DELTA, S_NEW, S_SLOT),
                salu("s_mov_b32", S_SLOT, S_NEW),
                salu("s_add_u32", S_KOFF, S_KOFF, TILE_G), salu("s_add_u32", S_VOFF, S_VOFF, TILE_G)]
        for o, ins in zip((0, 1, 2, 3, 6, 7, 8, 9, 10, 11), book):
            sc[g + o].append(ins)
        g = 12 * 10
        va[g + 6] += [valu("v_add_u32", V_KA, S_DELTA, V_KA), valu("v_add_u32", V_VA, S_DELTA, V_VA)]
        sc[g + 7].append(wait(vm=6 * (self.D - 2), lgkm=1))
        sc[g + 8].append(barrier())
        mf = []
        for n in range(12):
            mf += [self.qk(n, s) for s in range(6)]
            mf += [None if fill else self.pv(n, j, par, VA0 + 4 * (n % 2)) for j in range(6)]
        if not fill and self.abl:
            def keep(x):
                t = x.text
                if "e" in self.abl and t.startswith("v_exp"): return False
                if "a" in self.abl and t.startswith("v_add_f32"): return False
                if "c" in self.abl and t.startswith("v_cvt"): return False
                if "k" in self.abl and x.kind == "lds_rd" and V_KA in x.rd: return False
                if "v" in self.abl and x.kind == "lds_rd" and V_VA in x.rd: return False
                if "q" in self.abl and x.kind == "lds_rd" and V_QA in x.rd: return False
                if "d" in self.abl and x.kind == "dma": return False
                if "b" in self.abl and x.kind == "barrier": return False
                return True
            mem = [[x for x in g_ if keep(x)] for g_ in mem]
            va = [[x for x in g_ if keep(x)] for g_ in va]
            sc = [[x for x in g_ if keep(x)] for g_ in sc]
            if "c" in self.abl:
                mf = [m if (i % 12) < 6 else self.pv(i // 12, i % 12 - 6, 0, VA0 + 4 * ((i // 12) % 2)) for i, m in enumerate(mf)]
        gaps = [sc[i] + mem[i] + va[i] for i in range(N)]
        tail = [x for i in range(N, N + 12) for x in va[i]]
        return mf, gaps, tail

    @staticmethod
    def flat(mf, gaps, lo, hi):
        out = []
        for i in range(lo, hi):
            if mf[i] is not None:
                out.append(mf[i])
            out += gaps[i]
        return out

    def addr_setup(self, lane, w):
        b = [valu("v_lshrrev_b32", "v6", 4, lane), valu("v_lshlrev_b32", "v6", 3, "v6"),
             valu("v_bfe_u32", "v7", lane, 3, 1), valu("v_add_u32", "v6", "v6", "v7"),
             valu("v_lshl_add_u32", "v6", w, 1, "v6"), valu("v_mul_u32_u24", "v6", 384, "v6"),
             valu("v_and_b32", "v7", 7, lane), valu("v_lshl_add_u32", V_DMA, "v7", 4, "v6")]

        def lds_row(dst, key):
            return [valu("v_bfe_u32", "v8", key, 1, 2), valu("v_mul_u32_u24", "v8", 1056, "v8"),
                    valu("v_lshrrev_b32", "v9", 3, key), valu("v_lshlrev_b32", "v9", 1, "v9"),
                    valu("v_and_b32", dst, 1, key), valu("v_add_u32", "v9", "v9", dst),
                    valu("v_lshl_add_u32", dst, "v9", 7, "v8")]
        b += [valu("v_and_b32", "v6", 15, lane), valu("v_lshrrev_b32", "v7", 4, lane)]
        b += lds_row(V_KA, "v6") + [valu("v_lshl_add_u32", V_KA, "v7", 4, V_KA)]
        b += [valu("v_lshrrev_b32", "v6", 2, lane)] + lds_row(V_VA, "v6")
        b += [valu("v_and_b32", "v6", 3, lane), valu("v_lshl_add_u32", V_VA, "v6", 3, V_VA),
              valu("v_add_u32", V_VA, self.VBASE, V_VA)]
        return b

    def slow_path(self):
        M = ["v16", "v17", "v18", "v19", T0, T1]
        S = S0
        SD = R("v", S, 4)
        QL = Preg(1, 0)
        lane, w, vq = "v4", "v5", V_QA

        def qreg(j, s):
            return Qreg(j, s) if s < 5 else R("v", QL + 4 * j, 4)
        setup = [wait(vm=0, lgkm=0), barrier(),
                 raw(f"v_mbcnt_lo_u32_b32 {lane}, -1, 0", "valu", [], [lane]),
                 raw(f"v_mbcnt_hi_u32_b32 {lane}, -1, {lane}", "valu", [lane], [lane]),
                 valu("v_mov_b32", w, S_W)]
        setup += self.addr_setup(lane, w)
        setup += [valu("v_mul_u32_u24", vq, 96, w), valu("v_and_b32", "v6", 15, lane), valu("v_add_u32", vq, vq, "v6"),
                  valu("v_mul_u32_u24", vq, 384, vq), valu("v_lshl_add_u32", vq, "v7", 4, vq)]
        for j in range(NQB):
            setup.append(salu("s_mov_b32", S_T, j * 16 * 384))
            setup += [buf_load(qreg(j, s), vq, SRD_Q, S_T, s * 64) for s in range(6)]
        setup += [wait(vm=0)]
        setup += [valu("v_mov_b32", m, "0xff800000") for m in M]
        setup += [salu("s_mov_b32", S_KOFF, 0)]

        def load(with_v):
            o = []
            for k in range(6 if with_v else 3):
                o += list(self.dma_pair(k, S_WOFF, S_KOFF, S_KOFF))
            return o + [wait(vm=0), barrier()]

        def chain(j):
            return [mfma(SD, Kreg(s), qreg(j, s), "0" if s == 0 else SD) for s in range(6)]

        def close(name):
            return [wait(lgkm=0), barrier(), salu("s_add_u32", S_KOFF, S_KOFF, TILE_G),
                    salu("s_cmp_lt_u32", S_KOFF, HEAD_KV), branch("s_cbranch_scc1", name)]
        maxl = load(False)
        for kb in range(2):
            maxl += [self.kread(kb, s) for s in range(6)]
            for j in range(NQB):
                maxl += chain(j) + [valu("v_max3_f32", M[j], M[j], f"v{S}", f"v{S+1}"),
                                    valu("v_max3_f32", M[j], M[j], f"v{S+2}", f"v{S+3}")]
        maxl += close("L_slow_max")
        mid = []
        for m in M:
            for op in ("v_permlane32_swap_b32", "v_permlane16_swap_b32"):
                mid += [valu("v_mov_b32", vq, m), valu(op, m, vq), valu("v_max_f32", m, m, vq)]
        mid += [valu("v_mul_f32", m, S_C, m) for m in M]
        mid += [valu("v_accvgpr_write_b32", f"a{r}", 0) for r in range(OA0, 256)]
        mid += [valu("v_mov_b32", f"v{r}", 0) for r in list(range(OV0, 256)) + list(range(L0, L0 + 6))]
        mid += [salu("s_mov_b32", S_KOFF, 0)]
        main = load(True)
        for kb in range(2):
            main += [self.kread(kb, s) for s in range(6)]
            for j in range(NQB):
                p = Preg(0, j) + 2 * kb
                main += chain(j)
                main += [valu("v_fma_f32", f"v{S+i}", f"v{S+i}", S_C, "-" + M[j]) for i in range(4)]
                main += [valu("v_exp_f32", f"v{S+i}", f"v{S+i}") for i in range(4)]
                main += [valu("v_add_f32", f"v{L0+j}", f"v{S+i}", f"v{L0+j}") for i in range(4)]
                main += [valu("v_cvt_pk_bf16_f32", f"v{p+i}", f"v{S+2*i}", f"v{S+2*i+1}") for i in range(2)]
        for db in range(12):
            vb = VA0 + 4 * (db % 2)
            main += [self.vread(db, h, vb) for h in range(2)]
            main += [self.pv(db, j, 0, vb) for j in range(NQB)]
        main += close("L_slow_main")
        return setup, maxl, mid, main, self.epilogue_plain()

    def prologue(self):
        b = []
        b += [salu("s_cmp_ge_u32", "s2", 256), branch("s_cbranch_scc1", "L_end"),
              raw("s_load_dwordx4 s[4:7], s[0:1], 0", "smem"), raw("s_load_dwordx4 s[8:11], s[0:1], 16", "smem")]
        if self.stamps:
            b += [raw("s_load_dwordx4 s[12:15], s[0:1], 32", "smem"),
                  raw("s_memrealtime s[56:57]"), raw("s_memtime s[58:59]")]
        lane, w = "v4", "v5"
        b += [valu("v_and_b32", lane, 63, "v0"), valu("v_lshrrev_b32", w, 6, "v0"),
              valu("v_readfirstlane_b32", S_W, w)]
        if self.pref:
            b += [raw("s_getpc_b64 s[50:51]", "salu", [], ["s50", "s51"]), label("L_pc"),
                  salu("s_lshr_b32", S_T, "s2", 3), salu("s_lshl_b32", S_T, S_T, 2), salu("s_add_u32", S_T, S_T, S_W),
                  salu("s_min_u32", S_T, S_T, "(L_end-L_pc)/1024"), salu("s_lshl_b32", S_T, S_T, 10),
                  valu("v_lshl_add_u32", "v6", lane, 4, S_T),
                  I(f"global_load_dwordx4 v[{OV0}:{OV0+3}], v6, s[50:51]", "vm_ld", ["v6", "s50", "s51"], regs("v", OV0, 4))]
        b += self.addr_setup(lane, w)
        g = "v7"
        b += [valu("v_mul_u32_u24", V_QA, 6144, w), valu("v_lshl_add_u32", V_QA, lane, 4, V_QA),
              valu("v_add_u32", V_QA, self.QBASE, V_QA)]
        for i_ in range(3):
            d = f"v{OV0+64+i_}"
            b += [valu("v_add_u32", d, 64 * i_, lane), valu("v_mul_u32_u24", "v6", 2731, d),
                  valu("v_lshrrev_b32", "v6", 16, "v6"), valu("v_and_b32", "v6", 6, "v6"),
                  valu("v_xor_b32", d, d, "v6"), valu("v_lshlrev_b32", d, 4, d)]
        b += [valu("v_and_b32", "v6", 15, lane), valu("v_and_b32", "v8", 6, lane), valu("v_xor_b32", "v8", "v8", g),
              valu("v_mul_u32_u24", "v6", 384, "v6"), valu("v_lshl_add_u32", f"v{OV0+67}", "v8", 4, "v6"),
              valu("v_xor_b32", f"v{OV0+68}", 64, f"v{OV0+67}")]
        head = "s2"
        if self.remap:
            head = "s3"
            b += [salu("s_and_b32", head, "s2", 7), salu("s_lshl_b32", head, head, 5),
                  salu("s_lshr_b32", S_T, "s2", 3), salu("s_add_u32", head, head, S_T)]
        b += [raw("s_waitcnt lgkmcnt(0)", "salu")]
        if self.touch:
            b += self.stamp()
        b += [salu("s_mul_i32", S_T, head, HEAD_KV),
              salu("s_add_u32", "s16", "s6", S_T), salu("s_addc_u32", "s17", "s7", 0),
              salu("s_mov_b32", "s18", HEAD_KV), salu("s_mov_b32", "s19", "0x20000"),
              salu("s_add_u32", "s20", "s8", S_T), salu("s_addc_u32", "s21", "s9", 0),
              salu("s_mov_b32", "s22", HEAD_KV), salu("s_mov_b32", "s23", "0x20000"),
              salu("s_mul_i32", S_T, head, HEAD_Q),
              salu("s_add_u32", "s24", "s4", S_T), salu("s_addc_u32", "s25", "s5", 0),
              salu("s_mov_b32", "s26", HEAD_Q), salu("s_mov_b32", "s27", "0x20000"),
              salu("s_add_u32", "s28", "s10", S_T), salu("s_addc_u32", "s29", "s11", 0),
              salu("s_mov_b32", "s30", HEAD_Q), salu("s_mov_b32", "s31", "0x20000"),
              salu("s_mul_i32", S_WOFF, S_W, 1056),
              salu("s_mov_b32", S_C, f32(math.log2(math.e) / math.sqrt(192.0))),
              salu("s_mov_b32", S_SLOT, 0), salu("s_mov_b32", S_CNT, 14)]

        def group(ktile, vtile):
            o = []
            for k in range(6):
                tile = vtile if k >= 3 else ktile
                if tile is None:
                    continue
                slot = (tile + 1) % self.R if k >= 3 else tile % self.R
                if k % 3 == 0:
                    o.append(salu("s_mov_b32", S_T, tile * TILE_G))
                o += list(self.dma_pair(k, S_WOFF, S_T, S_T, slot * TILE_L))
            return o
        S_SA, S_SB = "s43", "s44"
        RAW = OV0
        TMP = OV0 + 48
        Q5 = OV0 + 56
        VQ = [f"v{OV0+64+i_}" for i_ in range(3)]
        VR = [f"v{OV0+67+i_}" for i_ in range(2)]
        LAST = OV0 + 69
        KB = Preg(1, 0)
        b += [salu("s_lshr_b32", S_T, S_W, 1), salu("s_mul_i32", S_T, S_T, 3), salu("s_add_u32", S_T, S_T, S_W),
              salu("s_add_u32", S_T, S_T, 2), salu("s_mul_i32", S_SB, S_T, TILE_L),
              salu("s_add_u32", S_SA, S_SB, 2 * TILE_L), salu("s_mul_i32", S_T, S_W, 36864)]
        b += [valu("v_add_u32", VQ[i_], S_T, VQ[i_]) for i_ in range(3)]

        def ubase(u):
            return (S_SB if u in (2, 3) else S_SA), (u & 1) * 6144

        def qunit(u):
            sb, off = ubase(u)
            o = []
            for i_ in range(3):
                o += [salu("s_add_u32", "m0", sb, off + i_ * 1024)]
                o += [salu("s_mov_b32", S_T, u * 6144)] if i_ == 0 else [nop(0)]
                o += [buf_dma(VQ[i_], SRD_Q, S_T, h * 3072, self.qpol) for h in range(2)]
            return o

        def qraw(u):
            sb, off = ubase(u)
            o = [valu("v_add_u32", T0, sb, VR[0]), valu("v_add_u32", T1, sb, VR[1])]
            for s_ in range(6):
                o.append(ds_read("ds_read_b128", R("v", RAW + 4 * ((u % 2) * 6 + s_), 4), (T0, T1)[s_ & 1],
                                 off + (s_ >> 1) * 128))
            return o

        def prescale(j):
            o = []
            for s_ in range(6):
                r0 = RAW + 4 * ((j % 2) * 6 + s_)
                for i_ in range(4):
                    o += [valu("v_lshlrev_b32", f"v{TMP+2*i_}", 16, f"v{r0+i_}"),
                          valu("v_and_b32", f"v{TMP+2*i_+1}", "0xffff0000", f"v{r0+i_}")]
                o += [valu("v_mul_f32", f"v{TMP+i_}", S_C, f"v{TMP+i_}") for i_ in range(8)]
                dst = r0 if s_ < 5 else Q5 + 4 * (j % 2)
                o += [valu("v_cvt_pk_bf16_f32", f"v{dst+i_}", f"v{TMP+2*i_}", f"v{TMP+2*i_+1}") for i_ in range(4)]
                if s_ < 5:
                    o += [valu("v_accvgpr_write_b32", f"a{QA0+4*(j*5+s_)+i_}", f"v{dst+i_}") for i_ in range(4)]
                else:
                    o.append(ds_write("ds_write_b128", V_QA, R("v", dst, 4), j * 1024))
            return o

        def chains(j):
            o = []
            for kb in range(2):
                d = R("v", S0 + 4 * kb, 4)
                for s_ in range(6):
                    a_ = Kreg(s_) if kb == 0 else R("v", KB + 4 * s_, 4)
                    q_ = Qreg(j, s_) if s_ < 5 else R("v", Q5 + 4 * (j % 2), 4)
                    o.append(mfma(d, a_, q_, self.cinit if s_ == 0 else d))
            return o

        def soft(j, kb):
            sreg = S0 + 4 * kb
            p = Preg(0, j) + 2 * kb
            e = [valu("v_exp_f32", f"v{sreg+i_}", f"v{sreg+i_}") for i_ in range(4)]
            a_ = [valu("v_add_f32", f"v{L0+j}", f"v{sreg+i_}", f"v{L0+j}") for i_ in range(4)]
            c = [valu("v_cvt_pk_bf16_f32", f"v{p+i_}", f"v{sreg+2*i_}", f"v{sreg+2*i_+1}") for i_ in range(2)]
            return e + a_ + c

        def weave(ms, ops, per=2):
            o = []
            ops = list(ops)
            for m in ms:
                o.append(m)
                o += ops[:per]
                ops = ops[per:]
            return o, ops

        plan = [int(c) for c in self.provar]
        queue = []

        def issue(name, ops):
            queue.append((name, sum(1 for x in ops if x.kind == "dma")))
            return ops

        def landed(name, **kw):
            k = [n for n, _ in queue].index(name)
            return wait(vm=sum(c for _, c in queue[k + 1:]), **kw)

        def extras(u):
            o = []
            if plan[0] == u:
                o += issue("KV0", group(1, 0))
            if plan[1] == u:
                o += issue("G4", group(2, 1))
            if plan[2] == u and self.D >= 4:
                o += issue("G3", group(3, 2))
            return o

        b += issue("K0", group(0, None))
        for u in range(4):
            b += issue(f"U{u}", qunit(u))
        if self.touch:
            b += self.stamp() + [landed("K0")] + self.stamp() + [landed("U0")] + self.stamp()
        for r in range(OA0, 256):
            b.append(valu("v_accvgpr_write_b32", f"a{r}", 0))
        for r in list(range(LAST, 256)) + list(range(L0, L0 + 6)):
            b.append(valu("v_mov_b32", f"v{r}", 0))
        b += [valu("v_mov_b32", "v14", self.FLAG), valu("v_mov_b32", "v15", 0), ds_write("ds_write_b32", "v14", "v15", 0)]
        b += [landed("U0")] + qraw(0) + [wait(lgkm=0)] + issue("U4", qunit(4)) + [barrier()]
        b += [self.kread(0, s_) for s_ in range(6)]
        b += [ds_read("ds_read_b128", R("v", KB + 4 * s_, 4), V_KA, (s_ >> 1) * TAU + (s_ & 1) * 64 + 512) for s_ in range(6)]
        b += prescale(0)
        for u in range(1, 6):
            b += [landed(f"U{u}")] + [] + qraw(u)
            if u == 1:
                b += [wait(lgkm=0)] + issue("U5", qunit(5))
            if u == 3:
                b += [wait(lgkm=0), barrier()]
            b += extras(u)
            ps = prescale(u)
            ch = chains(u - 1)
            w1, rest = weave(ch[6:], ps)
            b += ch[:6] + w1 + soft(u - 1, 0) + rest[:24] + soft(u - 1, 1) + rest[24:]
        zero = [valu("v_mov_b32", f"v{r}", 0) for r in list(range(RAW, Q5 + 4)) + list(range(Q5 + 8, LAST))]
        b += [valu("v_add_u32", V_KA, TILE_L, V_KA), valu("v_add_u32", V_VA, TILE_L, V_VA),
              salu("s_mov_b32", S_SLOT, TILE_L), salu("s_add_u32", S_DMA, S_WOFF, (self.D % 5) * TILE_L),
              salu("s_add_u32", S_DLIM, S_WOFF, self.R * TILE_L),
              salu("s_mov_b32", S_KOFF, self.D * TILE_G), salu("s_mov_b32", S_VOFF, (self.D - 1) * TILE_G)]
        b += [landed("KV0", lgkm=0), barrier()]
        ch = chains(5)
        for s_ in range(6):
            b += [ch[s_], self.kread(0, s_), zero.pop(0)]
        b += [ch[6], self.qread(0), zero.pop(0), ch[7], self.vread(0, 0, VA0), zero.pop(0), ch[8], self.vread(0, 1, VA0), zero.pop(0)]
        w1, rest = weave(ch[9:], zero)
        b += w1 + soft(5, 0) + extras(6) + (group(4, 3) if self.D == 5 else []) + rest
        b += [valu("v_mov_b32", f"v{r}", 0) for r in range(Q5 + 4, Q5 + 8)]
        b += soft(5, 1)[:2]
        return b

    def group_tail(self, js, bufs, first, carry=(), extra=(), fin=()):
        n = len(js)
        LAT = 5
        mf, cstart, gstart = [], [], []
        v = 0
        for c in range(4 * n):
            ph, k = divmod(c, 2 * n)
            jj = js[c % n]
            d = R("v", S0 + 4 * (c % 2), 4)
            cstart.append(len(mf))
            mf += [mfma(d, Kreg(s), Qreg(jj, s), self.cinit if s == 0 else d) for s in range(6)]
            upto = 12 * ph + (k + 1) * 12 // (2 * n)
            if ph == 1 and k < 2 * n - 1:
                upto -= (4 + n - 1) // n * (k + 1) // (2 * n - 1)
            if c == 4 * n - 1:
                upto = 36
            while v < upto:
                gstart.append(len(mf))
                f_, b_ = bufs[v % len(bufs)]
                mf += [self.pv(v % 12, x, (1, 0, 1)[v // 12], b_, f_) for x in js]
                v += 1
        sm = [Op(x, 0, cstart[1] - 1) for x in carry]
        for c in range(4 * n):
            ph, kb, jj = c // (2 * n), (c // n) % 2, js[c % n]
            sreg = S0 + 4 * (c % 2)
            p = Preg(ph, jj) + 2 * kb
            hi = gstart[12 * (ph + 1)] + js.index(jj) - 2
            if c + 2 < 4 * n:
                hi = min(hi, cstart[c + 2] - 1)
            e = [valu("v_exp_f32", f"v{sreg+i}", f"v{sreg+i}") for i in range(4)]
            a = [valu("v_add_f32", f"v{L0+jj}", f"v{sreg+i}", f"v{L0+jj}") for i in range(4)]
            cv = [valu("v_cvt_pk_bf16_f32", f"v{p+i}", f"v{sreg+2*i}", f"v{sreg+2*i+1}") for i in range(2)]
            lo = cstart[c] + 5 + 3
            for k, x in enumerate(e + [cv[0], a[0], cv[1], a[1], a[2], a[3]]):
                last = c + 2 < 4 * n
                h = hi - (9 - k) // 2 if (last or k < 7) else 10 ** 9
                sm.append(Op(x, lo, max(h, lo)))
        sm += [Op(x, gstart[24] + n) for x in fin]
        sync_gap = cstart[n] + 2 if first else -1
        sync, sync2 = [], sync_gap
        if first and self.D == 3:
            for k in range(3, 6):
                m_, d_ = self.dma_pair(k)
                sync += [Op(m_, 2 * k - 5, 2 * k - 5), Op(d_, 2 * k - 4, 2 * k - 4)]
            sync2 = gstart[24 - len(bufs)] - 2
            sync += [Op(wait(vm=3), sync_gap - 1, sync_gap - 1), Op(barrier(), sync_gap, sync_gap),
                     Op(wait(vm=0), sync2 - 1, sync2 - 1), Op(barrier(), sync2, sync2)]
        elif first:
            sync = [Op(wait(vm=0), sync_gap - 1, sync_gap - 1), Op(barrier(), sync_gap, sync_gap)]
        kst = []
        for st_ in range(1, 4):
            for s in range(6):
                lo = max(cstart[st_ * n - 1] + s, sync_gap + 1 if st_ == 2 else 0)
                kst.append(Op(self.kread(st_ % 2, s, st_ // 2), lo, max(cstart[st_ * n] + s - LAT, lo)))
        qst = [Op(self.qread(js[c % n]), cstart[c - 1] + 5, cstart[c] + 5 - LAT) for c in range(1, 4 * n)]
        vst = []
        pre = []
        for v in range(36):
            f_, b_ = bufs[v % len(bufs)]
            rd = [self.vread(v % 12, h, b_, v // 12, f_) for h in range(2)]
            if v == 0 and first:
                continue
            if v < len(bufs) and not first:
                pre += rd
                continue
            lo = gstart[v - len(bufs)] + n - 1 if v >= len(bufs) else 0
            if v >= 12:
                lo = max(lo, (sync2 if v >= 24 else sync_gap) + 1)
            vst += [Op(x, lo, max(gstart[v] - LAT, lo)) for x in rd]
        if not first:
            pre = [self.kread(0, s) for s in range(6)] + [self.qread(js[0])] + pre
        return pre, sched(mf, [sm, kst, qst, vst, sync, list(extra)])

    def row_sums(self, js, t0):
        b = []
        for op in ("v_permlane32_swap_b32", "v_permlane16_swap_b32"):
            b += [valu("v_mov_b32", f"v{t0+k}", f"v{L0+j}") for k, j in enumerate(js)]
            b += [valu(op, f"v{L0+j}", f"v{t0+k}") for k, j in enumerate(js)]
            b += [valu("v_add_f32", f"v{L0+j}", f"v{L0+j}", f"v{t0+k}") for k, j in enumerate(js)]
        return b

    def range_check(self, js, first):
        b = []
        if first:
            b += [salu("s_mov_b32", S_NEW, f32(2.0 ** 12)), salu("s_mov_b32", S_DELTA, f32(2.0 ** -20)),
                  salu("s_mov_b64", "s[44:45]", 0)]
        for j in js:
            b += [valu("v_cmp_nge_f32", "s[46:47]", S_NEW, f"v{L0+j}"), valu("v_cmp_nle_f32", "s[48:49]", S_DELTA, f"v{L0+j}")]
            b += [salu("s_or_b64", "s[44:45]", "s[44:45]", "s[46:47]"), salu("s_or_b64", "s[44:45]", "s[44:45]", "s[48:49]")]
        return b

    EW = [f"v{P0+i}" for i in range(4)]
    ER = [f"v{P0+4+i}" for i in range(3)]
    EG = f"v{P0+7}"

    def epi_addr(self):
        lane, t, u = T0, T1, V_DMA
        b = [raw(f"v_mbcnt_lo_u32_b32 {lane}, -1, 0", "valu", [], [lane]),
             raw(f"v_mbcnt_hi_u32_b32 {lane}, -1, {lane}", "valu", [lane], [lane]),
             salu("s_lshr_b32", S_T, S_W, 1), salu("s_mul_i32", S_T, S_T, 6 * TILE_L),
             salu("s_and_b32", S_SLOT, S_W, 1), salu("s_mul_i32", S_SLOT, S_SLOT, 12288),
             salu("s_add_u32", S_T, S_T, S_SLOT), salu("s_add_u32", S_T, S_T, (2 * TILE_L + 127) // 128 * 128),
             salu("s_and_b32", S_T, S_T, "0xffffff80"),
             valu("v_and_b32", t, 15, lane), valu("v_mul_u32_u24", u, 384, t), valu("v_add_u32", u, S_T, u),
             valu("v_bfe_u32", t, lane, 4, 1), valu("v_lshl_add_u32", u, t, 3, u),
             valu("v_lshrrev_b32", t, 5, lane), valu("v_xor_b32", t, t, lane), valu("v_and_b32", t, 7, t),
             valu("v_lshl_add_u32", self.EW[0], t, 4, u)]
        b += [valu("v_xor_b32", self.EW[i], 32 * i, self.EW[0]) for i in range(1, 4)]
        for i in range(3):
            r = self.ER[i]
            b += [valu("v_add_u32", r, 64 * i, lane), valu("v_mul_u32_u24", t, 2731, r),
                  valu("v_lshrrev_b32", t, 16, t), valu("v_xor_b32", r, r, t), valu("v_lshl_add_u32", r, r, 4, S_T)]
        b += [salu("s_mul_i32", S_T, S_W, 36864), valu("v_lshl_add_u32", self.EG, lane, 4, S_T)]
        return b

    def epi_stores(self, j):
        o = []
        for i in range(6):
            pre = [salu("s_mov_b32", S_T, j * 6144 + i * 1024)] if i % 4 == 0 else []
            o.append(pre + [buf_store(Oreg(j, i), self.EG, SRD_O, S_T, (i % 4) * 1024, self.opol)])
        return o

    def epi_block(self, j, pend, first=3, step=1):
        b = []
        for db in range(12):
            src = expand(Oreg(j, db))
            if src[0][0] == "a":
                t = OV0 + 24 + 4 * (db % 6)
                b += [valu("v_accvgpr_read_b32", f"v{t+i}", src[i]) for i in range(4)]
                src = [f"v{t+i}" for i in range(4)]
            b += [valu("v_mul_f32", src[i], src[i], f"v{L0+j}") for i in range(4)]
            b += [valu("v_cvt_pk_bf16_f32", src[i], src[2 * i], src[2 * i + 1]) for i in range(2)]
            b += [ds_write("ds_write_b64", self.EW[db & 3], R("v", int(src[0][1:]), 2), (j % 2) * 6144 + (db >> 2) * 128)]
            if db >= first and (db - first) % step == 0 and pend:
                b += pend.pop(0)
        b += [ds_read("ds_read_b128", Oreg(j, i), self.ER[i % 3], (j % 2) * 6144 + (i // 3) * 3072) for i in range(6)]
        return b

    def epi_all(self, js, pend):
        b = []
        for j in js:
            b += self.epi_block(j, pend)
            b += [x for p in pend for x in p]
            pend = self.epi_stores(j)
        return b + [x for p in pend for x in p]

    def rcp(self, js):
        return [valu("v_rcp_f32", f"v{L0+j}", f"v{L0+j}") for j in js]

    def epilogue_plain(self):
        js = list(range(NQB))
        return self.row_sums(js, S0) + self.rcp(js) + self.epi_addr() + self.epi_all(js, [])

    def tail(self, carry):
        groups, k = [], 0
        for n in self.groups:
            groups.append(list(range(k, k + n)))
            k += n
        assert k == NQB and groups[0][-1] < 4 and len(groups[0]) >= 2
        bufs0 = [("a", VA0), ("a", VA0 + 4), ("v", Preg(0, 4)), ("v", Preg(0, 5))]
        bufs1 = [("a", VA0), ("a", VA0 + 4), ("a", 0), ("a", 4)]
        def fin(gi):
            js = groups[gi]
            o = self.row_sums(js, S0) + self.range_check(js, gi == 0) + self.rcp(js)
            return o + (self.epi_addr() if gi == 0 else [])
        _, b = self.group_tail(groups[0], bufs0, True, carry, (), fin(0))
        left = []
        for gi, js in enumerate(groups):
            last = gi == len(groups) - 1
            b += self.stamp() if gi in (0, len(groups) - 1) else []
            if last:
                b += self.epi_all(js, left)
                break
            nxt = groups[gi + 1]
            for x, j in enumerate(js):
                if x == len(js) - 1:
                    pos = len(b)
                b += self.epi_block(j, left, 2, self.estep)
                left += self.epi_stores(j)
            nm = 60 * len(nxt)
            take = min(len(left), max(0, (nm - 4) // self.espace))
            extra = [Op(x, 4 + self.espace * i, 4 + self.espace * i) for i, p in enumerate(left[:take]) for x in p]
            left = left[take:]
            pre, t1 = self.group_tail(nxt, bufs1, False, (), extra, fin(gi + 1))
            b[pos:pos] = pre
            b += t1
        b += [salu("s_cmp_eq_u64", "s[44:45]", 0), branch("s_cbranch_scc1", "L_inrange"),
              valu("v_mov_b32", T0, self.FLAG), valu("v_mov_b32", T1, 1), ds_write("ds_write_b32", T0, T1, 0),
              label("L_inrange")]
        b += [wait(lgkm=0), barrier(), valu("v_mov_b32", T1, self.FLAG), ds_read("ds_read_b32", T1, T1, 0),
              valu("v_readfirstlane_b32", S_T, T1), salu("s_cmp_lg_u32", S_T, 0), branch("s_cbranch_scc1", "L_slow")]
        return b

    def stamp_out(self):
        if not self.stamps:
            return ""
        n = 4 + 2 * self.nstamp
        s = "  s_waitcnt vmcnt(0)\n  s_barrier\n  s_memrealtime s[60:61]\n  s_memtime s[62:63]\n  s_waitcnt lgkmcnt(0)\n"
        s += f"  s_cmp_lg_u32 {S_W}, 0\n  s_cbranch_scc1 L_end\n  s_mov_b64 exec, 1\n"
        if self.stamps == "prof":
            s += f"  s_mov_b64 exec, 0xffffffff\n  v_mbcnt_lo_u32_b32 v1, -1, 0\n  v_lshlrev_b32 v1, 2, v1\n  v_add_u32 v2, {self.FLAG + 8}, v1\n  ds_read_b32 v2, v2\n"
            s += f"  s_lshl_b32 s3, s2, 7\n  v_add_u32 v1, s3, v1\n  v_add_u32 v1, 0x100000, v1\n  s_waitcnt lgkmcnt(0)\n  global_store_dword v1, v2, s[14:15]\n  s_mov_b64 exec, 1\n"
        if self.stamps == "dbg":
            s += "  v_mov_b32 v1, 0\n  v_mov_b32 v2, s60\n  global_atomic_umax v1, v2, s[12:13]\n"
            s += "  s_not_b32 s3, s56\n  v_mov_b32 v3, s3\n  global_atomic_umax v1, v3, s[12:13] offset:4\n"
            s += "  v_mov_b32 v4, s56\n  global_atomic_umax v1, v4, s[12:13] offset:8\n"
            s += "  s_cmp_lg_u32 s2, 100\n  s_cbranch_scc1 L_end\n"
            vals = [(66 + 4 * i, 56) for i in range(self.nstamp)] + [(60, 56)] + [(64 + 4 * i, 58) for i in range(self.nstamp)] + [(62, 58)]
            for i, (x, y) in enumerate(vals):
                s += f"  s_sub_u32 s3, s{x}, s{y}\n  v_mov_b32 v2, s3\n  global_store_dword v1, v2, s[12:13] offset:{16+4*i}\n"
            return s
        s += f"  s_mul_i32 s3, s2, {8*n}\n  v_mov_b32 v1, s3\n"
        for i in range(n):
            r = 56 + 2 * i
            s += f"  v_mov_b32 v2, s{r}\n  v_mov_b32 v3, s{r+1}\n  global_store_dwordx2 v1, v[2:3], s[14:15] offset:{8*i}\n  s_nop 1\n"
        return s

    def build(self, verbose=False):
        ROT = 8
        pro = self.prologue()
        mfE, gE, tailE = self.period(0)
        mfO, gO, _ = self.period(1)
        if self.stamps == "prof":
            for gg in (gE, gO):
                gg[12 * 2 + 7] += [valu("v_mov_b32", T0, "s52"), valu("v_add_u32", T1, 4, T1)]
                gg[12 * 2 + 8] += [raw("s_memrealtime s[52:53]"), ds_write("ds_write_b32", T1, T0, 0)]
            pro += [valu("v_mov_b32", T1, self.FLAG + 4), raw("s_memrealtime s[52:53]")]
        gE[12 * 11 + 7].append(salu("s_cmp_eq_u32", S_CNT, 0))
        exit_tail = gE[143] + tailE
        gE[143] = [branch("s_cbranch_scc1", "L_drain")] + gE[143]
        gO[12 * 11 + 7].append(salu("s_sub_u32", S_CNT, S_CNT, 1))
        fill = self.stamp()
        head = self.flat(mfE, gE, 0, ROT)
        body = self.flat(mfE, gE, ROT, 144) + self.flat(mfO, gO, 0, 144) + self.flat(mfE, gE, 0, ROT)
        body.append(branch("s_branch", "L_top"))

        log = []
        pro, st = fix(pro + fill, State())
        head1, st1 = fix(head, st, hoist=True)
        body1, st2 = fix(body, st1, hoist=True, log=log)
        body2, st3 = fix(body1, st2, hoist=True, log=log)
        errs, _ = verify(pro + head1 + body2 + body2 + body2)
        assert not errs, errs[:10]
        kx = next(i for i, x in enumerate(body2) if x.kind == "branch")
        _, stx = verify(pro + head1 + body2 + body2[:kx + 1])
        post = self.stamp() + self.tail(exit_tail)
        post, _ = fix(post, stx, hoist=True)
        errs, _ = verify(pro + head1 + body2[:kx + 1] + post)
        assert not errs, errs[:10]
        if verbose:
            tot, over = estimate(body2)
            print("loop estimate cycles (288 mfma, ideal 4608):", tot)
            for o in over:
                print("  over:", o)
            print("  inserted:", [x for x in log if x[0] == "nop"])
            print("  waits:", len([x for x in log if x[0] == "wait"]), "instrs:", len(body2))
            tot, over = estimate(post)
            print("tail estimate:", tot, "mfma:", sum(x.kind == "mfma" for x in post), "instrs:", len(post))
            print("  over:", [(o[0], o[1]) for o in over])
        text = emit(pro + head1) + ".p2align 6\nL_top:\n" + emit(body2) + "L_drain:\n" + emit(post)
        text += self.stamp_out() + "L_end:\n  s_endpgm\n"
        setup, maxl, mid, main, epi = self.slow_path()
        st = State()
        blocks = []
        for blk, loop in ((setup, False), (maxl, True), (mid, False), (main, True), (epi, False)):
            blk, st = fix(blk, st)
            if loop:
                blk, st = fix(blk, st)
            blocks.append(blk)
        setup, maxl, mid, main, epi = blocks
        errs, _ = verify(post + setup + maxl + maxl + mid + main + main + epi)
        assert not errs, errs[:10]
        text += "L_slow:\n" + emit(setup) + "L_slow_max:\n" + emit(maxl) + emit(mid) + "L_slow_main:\n" + emit(main)
        text += emit(epi) + "  s_endpgm\n"
        return wrap(text, 256, 256, self.lds, 512, 256)


if __name__ == "__main__":
    ap = argparse.ArgumentParser()
    ap.add_argument("-o", default="k.s")
    ap.add_argument("--stamps", default="")
    ap.add_argument("--ring", type=int, default=5)
    ap.add_argument("--pol", default="nt")
    ap.add_argument("--opol", default="nt")
    ap.add_argument("--abl", default="")
    ap.add_argument("--pref", type=int, default=1)
    ap.add_argument("--qpol", default="nt")
    ap.add_argument("--dist", type=int, default=3)
    ap.add_argument("--dpos", default="s")
    ap.add_argument("--remap", type=int, default=1)
    ap.add_argument("--touch", type=int, default=0)
    ap.add_argument("--groups", default="42")
    ap.add_argument("--estep", type=int, default=4)
    ap.add_argument("--espace", type=int, default=7)
    ap.add_argument("--provar", default="456")
    ap.add_argument("-v", action="store_true")
    a = ap.parse_args()
    g = Gen(ring=a.ring, pol=a.pol, opol=a.opol, stamps=a.stamps, abl=a.abl, provar=a.provar, groups=a.groups, estep=a.estep, espace=a.espace, pref=a.pref, remap=a.remap, touch=a.touch, qpol=a.qpol, dist=a.dist, dpos=a.dpos)
    open(a.o, "w").write(g.build(a.v))
```

```python
import re


def R(p, i, n=1):
    return f"{p}{i}" if n == 1 else f"{p}[{i}:{i+n-1}]"


def regs(p, i, n=1):
    return [f"{p}{k}" for k in range(i, i + n)]


def expand(op):
    op = op.strip()
    op = op.lstrip("-")
    if op.startswith("|") and op.endswith("|"):
        op = op[1:-1]
    m = re.fullmatch(r"([vas])\[(\d+):(\d+)\]", op)
    if m:
        return regs(m.group(1), int(m.group(2)), int(m.group(3)) - int(m.group(2)) + 1)
    m = re.fullmatch(r"([vas])(\d+)", op)
    if m:
        return [op]
    if op in ("vcc", "m0", "exec"):
        return [op]
    return []


TRANS = ("v_exp_f32", "v_rcp_f32", "v_log_f32", "v_rsq_f32", "v_sqrt_f32")


class I:
    def __init__(self, text, kind, rd=(), wr=(), tag=None, srcc=()):
        self.text, self.kind = text, kind
        self.rd, self.wr = set(rd), set(wr)
        self.srcc = set(srcc)
        self.tag = tag

    def __repr__(self):
        return self.text

    @property
    def is_valu(self):
        return self.kind in ("valu", "trans", "perm")

    @property
    def is_scalar(self):
        return self.kind in ("salu", "wait", "barrier", "nop", "branch", "smem")

    @property
    def states(self):
        if self.kind == "label":
            return 0
        if self.kind == "nop":
            return int(self.text.split()[1]) + 1
        return 1


def valu(op, dst, *src):
    kind = "trans" if op in TRANS else "valu"
    rd = [r for s in src for r in expand(str(s))]
    wr = expand(dst)
    if op.startswith("v_fmac") or op.startswith("v_permlane"):
        rd += wr
    if op.startswith("v_permlane"):
        kind = "perm"
        wr = wr + expand(src[0])
    if op.startswith("v_cndmask") and len(src) == 2:
        rd.append("vcc")
    return I(f"{op} {dst}, " + ", ".join(str(s) for s in src), kind, rd, wr)


def salu(op, dst, *src):
    rd = [r for s in src for r in expand(str(s))]
    if op.startswith("s_cmp"):
        return I(f"{op} {dst}, {src[0]}", "salu", rd + expand(str(dst)), ["scc"])
    wr = expand(dst)
    if op.startswith("s_cselect") or op in ("s_addc_u32", "s_subb_u32"):
        rd.append("scc")
    if not (op.startswith("s_mov") or op.startswith("s_cselect") or op.startswith("s_mul")):
        wr = wr + ["scc"]
    if "saveexec" in op:
        wr = wr + ["exec"]
    return I(f"{op} {dst}, " + ", ".join(str(s) for s in src), "salu", rd, wr)


def mfma(d, a, b, c):
    return I(f"v_mfma_f32_16x16x32_bf16 {d}, {a}, {b}, {c}", "mfma",
             expand(a) + expand(b) + expand(c), expand(d), srcc=expand(c))


def ds_read(op, dst, addr, off, tag=None):
    assert 0 <= off < 65536, off
    return I(f"{op} {dst}, {addr} offset:{off}", "lds_rd", [addr], expand(dst), tag)


def ds_write(op, addr, src, off):
    assert 0 <= off < 65536, off
    return I(f"{op} {addr}, {src} offset:{off}", "lds_wr", [addr] + expand(src), [])


def buf_load(dst, voff, srd, soff, off, pol="", op="buffer_load_dwordx4", tag=None):
    assert 0 <= off < 4096
    return I(f"{op} {dst}, {voff}, {srd}, {soff} offen offset:{off} {pol}".rstrip(), "vm_ld",
             [voff] + expand(srd) + expand(str(soff)), expand(dst), tag)


def buf_dma(voff, srd, soff, off, pol="", tag=None):
    assert 0 <= off < 4096
    return I(f"buffer_load_dwordx4 {voff}, {srd}, {soff} offen offset:{off} {pol} lds".replace("  ", " "), "dma",
             [voff, "m0"] + expand(srd) + expand(str(soff)), [], tag)


def buf_store(src, voff, srd, soff, off, pol="", op="buffer_store_dwordx4"):
    assert 0 <= off < 4096
    return I(f"{op} {src}, {voff}, {srd}, {soff} offen offset:{off} {pol}".rstrip(), "vm_st",
             [voff] + expand(src) + expand(srd) + expand(str(soff)), [], tag=("data", tuple(expand(src))))


def wait(vm=None, lgkm=None):
    parts = []
    if vm is not None:
        assert 0 <= vm < 64
        parts.append(f"vmcnt({vm})")
    if lgkm is not None:
        assert 0 <= lgkm < 16
        parts.append(f"lgkmcnt({lgkm})")
    i = I("s_waitcnt " + " ".join(parts), "wait")
    i.vm, i.lgkm = vm, lgkm
    return i


def nop(n=0):
    return I(f"s_nop {n}", "nop")


def barrier():
    return I("s_barrier", "barrier")


def label(name):
    return I(f"{name}:", "label")


def branch(op, target):
    rd = ["scc"] if "scc" in op else (["vcc"] if "vcc" in op else [])
    return I(f"{op} {target}", "branch", rd)


def raw(text, kind="salu", rd=(), wr=()):
    return I(text, kind, rd, wr)


def need_states(p, c):
    n = 0
    if p.is_valu:
        vw = {r for r in p.wr if r[0] in "va" and r != "vcc"}
        sw = {r for r in p.wr if r[0] == "s" or r == "vcc"}
        if c.kind == "mfma" and vw & c.rd:
            n = max(n, 2)
        if c.kind == "perm" and vw & c.rd:
            n = max(n, 2)
        if c.text.startswith(("v_readfirstlane", "v_readlane")) and vw & c.rd:
            n = max(n, 1)
        if p.kind == "trans" and c.is_valu and c.kind != "trans" and vw & c.rd:
            n = max(n, 1)
        if c.is_valu and sw & c.rd:
            n = max(n, 2)
        if c.kind in ("vm_ld", "vm_st", "dma") and sw & c.rd:
            n = max(n, 5)
        if c.kind in ("salu", "branch") and sw & c.rd:
            n = max(n, 2)
        if "_dpp" in c.text and vw & c.rd:
            n = max(n, 2)
        if "exec" in p.wr and c.kind == "mfma":
            n = max(n, 4)
    if p.kind == "mfma":
        if c.kind == "mfma":
            if p.wr & (c.rd - c.srcc):
                n = max(n, 8)
            if p.wr & c.srcc and p.wr != c.srcc:
                n = max(n, 6)
            if p.wr & c.wr and p.wr != c.srcc and not (p.wr & c.srcc):
                n = max(n, 0)
        elif c.is_valu or c.kind in ("lds_rd", "lds_wr", "vm_ld", "vm_st", "dma"):
            if p.wr & (c.rd | c.wr):
                n = max(n, 8)
            if c.is_valu and p.srcc & c.wr:
                n = max(n, 3)
    if p.kind == "salu" and "m0" in p.wr and c.kind == "dma":
        n = max(n, 1)
    if p.kind == "vm_st" and (c.is_valu or c.kind in ("lds_rd", "vm_ld", "mfma")):
        if set(p.tag[1]) & c.wr:
            n = max(n, 2)
    return n


class State:
    def __init__(self):
        self.lgkm = []
        self.vm = []
        self.recent = []

    def copy(self):
        s = State()
        s.lgkm, s.vm, s.recent = list(self.lgkm), list(self.vm), list(self.recent)
        return s

    def step(self, ins):
        if ins.kind == "wait":
            if ins.lgkm is not None:
                self.lgkm = self.lgkm[len(self.lgkm) - ins.lgkm:] if ins.lgkm < len(self.lgkm) else self.lgkm
            if ins.vm is not None:
                self.vm = self.vm[len(self.vm) - ins.vm:] if ins.vm < len(self.vm) else self.vm
        elif ins.kind in ("lds_rd", "lds_wr"):
            self.lgkm.append(ins)
        elif ins.kind in ("vm_ld", "vm_st", "dma"):
            self.vm.append(ins)
        if ins.kind != "label":
            self.recent.append(ins)
            self.recent = self.recent[-24:]

    def pending_need(self, ins):
        touch = ins.rd | ins.wr
        nl = nv = None
        for k, p in enumerate(self.lgkm):
            if p.wr & touch:
                nl = len(self.lgkm) - 1 - k
        for k, p in enumerate(self.vm):
            if p.wr & touch:
                nv = len(self.vm) - 1 - k
        return nl, nv

    def missing_states(self, ins):
        d = 0
        miss = 0
        for p in reversed(self.recent):
            n = need_states(p, ins)
            if n > d:
                miss = max(miss, n - d)
            d += p.states
            if d >= 12:
                break
        return miss


def fix(block, state, hoist=False, log=None):
    out = []
    st = state.copy()
    hist = []
    for ins in block:
        nl, nv = st.pending_need(ins)
        if nl is not None or nv is not None:
            pos = len(out)
            if hoist:
                stops = ("label", "barrier")
                cands = []
                k = len(out) - 1
                while k >= 0 and len(cands) < 4 and out[k].kind not in stops:
                    if out[k].kind == "mfma":
                        cands.append(k)
                    k -= 1
                best = None
                for k in cands:
                    later = out[k + 1:]
                    if any((x.wr & (ins.rd | ins.wr)) for x in later if x.kind in ("lds_rd", "vm_ld")):
                        break
                    s2 = hist[k + 1] if k + 1 < len(hist) else st
                    l2, v2 = s2.pending_need(ins)
                    e = k + 1
                    while e < len(out) and out[e].kind != "mfma":
                        e += 1
                    g = out[k + 1:e]
                    free = gap_cost([nop(0)] + g) == gap_cost(g)
                    if best is None or free:
                        best = (k + 1, l2, v2)
                    if free:
                        break
                if best is not None:
                    pos, nl, nv = best
            w = wait(vm=min(nv, 63) if nv is not None else None, lgkm=min(nl, 15) if nl is not None else None)
            tail = out[pos:]
            if pos < len(out):
                st = hist[pos].copy()
            out = out[:pos]
            hist = hist[:pos]
            for x in [w] + tail:
                hist.append(st.copy())
                st.step(x)
                out.append(x)
            if log is not None:
                log.append(("wait", w.text, ins.text))
        miss = st.missing_states(ins)
        if miss:
            nn = nop(miss - 1)
            hist.append(st.copy())
            st.step(nn)
            out.append(nn)
            if log is not None:
                log.append(("nop", nn.text, ins.text))
        hist.append(st.copy())
        st.step(ins)
        out.append(ins)
    return out, st


def verify(trace, state=None):
    st = state.copy() if state else State()
    errs = []
    for ins in trace:
        nl, nv = st.pending_need(ins)
        if nl is not None or nv is not None:
            errs.append(f"pending load touched by: {ins.text}")
        if st.missing_states(ins):
            errs.append(f"hazard before: {ins.text}")
        st.step(ins)
    return errs, st


MEMK = ("lds_rd", "lds_wr", "vm_ld", "vm_st", "dma")


def gap_cost(ops):
    t = 1
    prev = None
    for o in ops:
        if o.kind == "label":
            continue
        if o.is_scalar:
            t += o.states
        else:
            t = max(t, 2)
            if o.kind in ("lds_rd", "lds_wr", "vm_ld", "vm_st", "dma") and prev is not None and prev.is_valu:
                t += 2
            if o.kind in MEMK and prev is not None and prev.kind in MEMK:
                t += 1
            t += 2 if o.kind in ("trans", "perm") else 1
            if o.kind in ("lds_wr", "vm_st"):
                t += 3
        prev = o
    return max(t, 4) * 4


def estimate(block):
    total = 0
    over = []
    cur = None
    n = 0
    for ins in block:
        if ins.kind == "mfma":
            if cur is not None:
                c = gap_cost(cur)
                total += c
                if c > 16:
                    over.append((n - 1, c, [x.text for x in cur]))
            cur = []
            n += 1
        elif cur is not None:
            cur.append(ins)
    if cur is not None:
        c = gap_cost(cur)
        total += c
        if c > 16:
            over.append((n - 1, c, [x.text for x in cur]))
    return total, over


def emit(block):
    return "".join((x.text if x.kind == "label" else "  " + x.text) + "\n" for x in block)


class Op:
    def __init__(self, ins, lo=0, hi=10 ** 9):
        self.ins, self.lo, self.hi = ins, lo, hi


def sched(mf, streams, pre=(), rate=None):
    streams = [list(s) for s in streams]
    for s in streams:
        hi = 10 ** 9
        for o in reversed(s):
            hi = o.hi = min(o.hi, hi)
    rate = rate or {}
    out = list(pre)
    ismem = lambda i: i.kind in ("lds_rd", "lds_wr", "vm_ld", "vm_st", "dma")

    def order(g):
        return [x for x in g if x.is_scalar] + [x for x in g if ismem(x)] + [x for x in g if not x.is_scalar and not ismem(x)]
    for g, m in enumerate(mf):
        gap = []
        taken = {k: 0 for k in range(len(streams))}
        while True:
            ready = [(s[0].hi, k) for k, s in enumerate(streams) if s and s[0].lo <= g]
            ready.sort()
            done = True
            for hi, k in ready:
                ins = streams[k][0].ins
                same = [x for x in gap if (x.wr & (ins.rd | ins.wr)) or (x.rd & ins.wr)]
                trial = order(gap + [ins])
                if any(trial.index(x) > trial.index(ins) for x in same):
                    trial = order(gap) + [ins]
                force = hi <= g or taken[k] < rate.get(k, 0)
                if gap_cost(trial) <= 16 or force:
                    if any(x.kind == "trans" and x.wr & ins.rd for x in gap) and not hi <= g:
                        continue
                    gap = trial
                    streams[k].pop(0)
                    taken[k] += 1
                    done = False
                    break
            if done:
                break
        out += [m] + gap
    rest = sorted(((o.hi, k, i, o.ins) for k, s in enumerate(streams) for i, o in enumerate(s)), key=lambda t: (t[1], t[2]))
    return out + [r[3] for r in rest]
```

```python
import argparse
import math
import struct
from fw import *
from asmlib import wrap

NQB = 6
TILE_G = 12288
TAU = 4192
TILE_L = 3 * TAU
HEAD_Q = 147456
HEAD_KV = 393216

V_KA, V_VA, V_DMA, V_QA = "v0", "v1", "v2", "v3"
L0 = 4
T0, T1 = "v10", "v11"
S0 = 12
P0 = 20
OV0, NOV = 68, 47
QA0 = 0
QBUF = 120
KA0 = 124
VA0 = 148
OA0 = 156
SRD_K, SRD_V, SRD_Q, SRD_O = "s[16:19]", "s[20:23]", "s[24:27]", "s[28:31]"
S_W, S_KOFF, S_VOFF, S_DMA, S_SLOT, S_NEW, S_DELTA, S_CNT, S_C, S_WOFF, S_T = (f"s{i}" for i in range(32, 43))
S_DLIM = "s54"


def f32(x):
    return "0x%08x" % struct.unpack("<I", struct.pack("<f", x))[0]


SPREAD = False


def Oreg(j, db):
    if not SPREAD:
        n = j * 12 + db
        return R("v", OV0 + 4 * n, 4) if n < NOV else R("a", OA0 + 4 * (n - NOV), 4)
    return Oreg2(j, db)


def Oreg2(j, db):
    if db >= 8:
        return R("a", OA0 + 4 * (j * 4 + db - 8), 4)
    n = j * 8 + db
    return R("v", OV0 + 4 * n, 4) if n < NOV else R("a", OA0 + 4 * 24, 4)


def Qreg(j, s):
    return R("a", QA0 + 4 * (j * 5 + s), 4) if s < 5 else R("a", QBUF, 4)


def Kreg(s):
    return R("a", KA0 + 4 * s, 4)


def Preg(par, j):
    return P0 + 24 * par + 4 * j


class Gen:
    def __init__(self, ring=5, pol="nt", opol="", stamps=False, cinit="-4.0", abl="", provar="356", groups="42", estep=2, espace=9, pref=1, remap=1, touch=0, qpol="nt", dist=3, dpos="s", pk=1, lat=7):
        self.lat = lat
        self.pk = pk
        self.dpos = dpos
        self.D = dist
        self.qpol = qpol
        self.remap, self.touch = remap, touch
        self.pref = pref
        self.groups, self.estep, self.espace = [int(c) for c in groups], estep, espace
        self.provar = provar
        self.abl = abl
        self.R = ring
        self.pol, self.opol, self.stamps, self.cinit = pol, opol, stamps, cinit
        self.VBASE = ring * TILE_L
        assert ring == 5
        self.QBASE = (2 * ring + 1) * TILE_L
        self.FLAG = self.QBASE + 24576
        self.lds = self.FLAG + 256
        self.nstamp = 0

    def stamp(self):
        if not self.stamps:
            return []
        r = 64 + 4 * self.nstamp
        self.nstamp += 1
        return [raw(f"s_memtime s[{r}:{r+1}]", "salu"), raw(f"s_memrealtime s[{r+2}:{r+3}]", "salu")]

    def kread(self, kb, s, slot=0):
        return ds_read("ds_read_b128", Kreg(s), V_KA, slot * TILE_L + (s >> 1) * TAU + (s & 1) * 64 + kb * 512)

    def vread(self, db, half, base, slot=0, file="a"):
        return ds_read("ds_read_b64_tr_b16", R(file, base + 2 * half, 2), V_VA,
                       slot * TILE_L + (db >> 2) * TAU + (db & 3) * 32 + half * 512)

    def qread(self, j):
        return ds_read("ds_read_b128", R("a", QBUF, 4), V_QA, j * 1024)

    def dma_pair(self, k, base_sgpr=S_DMA, koff=S_KOFF, voff=S_VOFF, slot_off=0):
        tau = k % 3
        isv = k >= 3
        imm = (self.VBASE if isv else 0) + slot_off + tau * TAU - tau * 128
        return (salu("s_add_u32", "m0", base_sgpr, imm),
                buf_dma(V_DMA, SRD_V if isv else SRD_K, voff if isv else koff, tau * 128, self.pol))

    def softmax_ops(self, n, ppar):
        kb, j = divmod(n % 12, 6)
        s = S0 + 4 * (n % 2)
        p = Preg(ppar, j) + 2 * kb
        e = [valu("v_exp_f32", f"v{s+i}", f"v{s+i}") for i in range(4)]
        a = [valu("v_add_f32", f"v{L0+j}", f"v{s+i}", f"v{L0+j}") for i in range(4)]
        c = [valu("v_cvt_pk_bf16_f32", f"v{p+i}", f"v{s+2*i}", f"v{s+2*i+1}") for i in range(2)]
        return e, a, c

    def qk(self, n, s):
        j = n % 6
        d = R("v", S0 + 4 * (n % 2), 4)
        return mfma(d, Kreg(s), Qreg(j, s), self.cinit if s == 0 else d)

    def pv(self, db, j, par, vbase, file="a"):
        return mfma(Oreg(j, db), R(file, vbase, 4), R("v", Preg(par, j), 4), Oreg(j, db))

    def period(self, par, fill=False):
        N = 144
        sc = [[] for _ in range(N + 12)]
        mem = [[] for _ in range(N + 12)]
        va = [[] for _ in range(N + 12)]
        heavy = lambda n: n % 6 == 5
        for n in range(-1, 12):
            if n == -1 and fill:
                continue
            e, a, c = self.softmax_ops(n, par if n == -1 else 1 - par)
            g = 12 * n
            if heavy(n):
                plan = [(10, e[0]), (11, e[1]), (12, e[2]), (13, e[3]), (14, a[0]), (15, a[1]), (16, c[0]), (16, a[2]),
                        (17, a[3]), (18, c[1])]
            elif heavy(n + 1):
                plan = [(9, e[0]), (10, e[1]), (11, e[2]), (12, e[3]), (13, a[0]), (14, a[1]), (15, c[0]), (16, a[2]),
                        (17, a[3]), (18, c[1])]
            else:
                plan = [(9, e[0]), (10, e[1]), (11, e[2]), (12, e[3]), (13, a[0]), (14, a[1]), (15, c[0]), (16, a[2]),
                        (17, a[3]), (19, c[1])]
            for o, ins in plan:
                if g + o >= 0:
                    va[g + o].append(ins)
        for n in range(12):
            g = 12 * n
            nv = (n + 1) % 12
            vb = VA0 + 4 * ((n + 1) % 2)
            tpos = (8, 9) if heavy(n) else ((2, 3) if heavy(n - 1) else (1, 2))
            if not fill or n == 11:
                for h in range(2):
                    mem[g + tpos[h]].append(self.vread(nv, h, vb))
            mem[g + (7 if heavy(n) else 5)].append(self.qread((n + 1) % 6))
            if heavy(n):
                for s in range(6):
                    mem[g + 1 + s].append(self.kread(1 if n == 5 else 0, s))
        if not fill:
            pos = {"s": [(1, 6), (2, 6), (3, 6), (4, 6), (7, 6), (8, 6)],
                   "e": [(0, 8), (1, 6), (1, 8), (2, 6), (2, 8), (3, 6)],
                   "m": [(0, 8), (1, 6), (2, 6), (3, 6), (4, 6), (6, 8)],
                   "l": [(4, 6), (6, 8), (7, 6), (7, 8), (8, 6), (8, 8)]}[self.dpos]
            for k, (n, o) in enumerate(pos):
                m, d = self.dma_pair(k)
                sc[12 * n + o - 1].append(m)
                mem[12 * n + o].append(d)
        g = 12 * 9
        book = [salu("s_add_u32", S_DMA, S_DMA, TILE_L),
                salu("s_cmp_eq_u32", S_DMA, S_DLIM),
                salu("s_cselect_b32", S_DMA, S_WOFF, S_DMA),
                salu("s_add_u32", S_NEW, S_SLOT, TILE_L),
                salu("s_cmp_eq_u32", S_NEW, self.R * TILE_L),
                salu("s_cselect_b32", S_NEW, 0, S_NEW),
                salu("s_sub_u32", S_DELTA, S_NEW, S_SLOT),
                salu("s_mov_b32", S_SLOT, S_NEW),
                salu("s_add_u32", S_KOFF, S_KOFF, TILE_G), salu("s_add_u32", S_VOFF, S_VOFF, TILE_G)]
        for o, ins in zip((0, 1, 2, 3, 6, 7, 8, 9, 10, 11), book):
            sc[g + o].append(ins)
        g = 12 * 10
        va[g + 6] += [valu("v_add_u32", V_KA, S_DELTA, V_KA), valu("v_add_u32", V_VA, S_DELTA, V_VA)]
        sc[g + 7].append(wait(vm=6 * (self.D - 2), lgkm=1))
        sc[g + 8].append(barrier())
        mf = []
        for n in range(12):
            mf += [self.qk(n, s) for s in range(6)]
            mf += [None if fill else self.pv(n, j, par, VA0 + 4 * (n % 2)) for j in range(6)]
        if not fill and self.abl:
            def keep(x):
                t = x.text
                if "e" in self.abl and t.startswith("v_exp"): return False
                if "a" in self.abl and t.startswith("v_add_f32"): return False
                if "c" in self.abl and t.startswith("v_cvt"): return False
                if "k" in self.abl and x.kind == "lds_rd" and V_KA in x.rd: return False
                if "v" in self.abl and x.kind == "lds_rd" and V_VA in x.rd: return False
                if "q" in self.abl and x.kind == "lds_rd" and V_QA in x.rd: return False
                if "d" in self.abl and x.kind == "dma": return False
                if "b" in self.abl and x.kind == "barrier": return False
                return True
            mem = [[x for x in g_ if keep(x)] for g_ in mem]
            va = [[x for x in g_ if keep(x)] for g_ in va]
            sc = [[x for x in g_ if keep(x)] for g_ in sc]
            if "c" in self.abl:
                mf = [m if (i % 12) < 6 else self.pv(i // 12, i % 12 - 6, 0, VA0 + 4 * ((i // 12) % 2)) for i, m in enumerate(mf)]
        gaps = [sc[i] + mem[i] + va[i] for i in range(N)]
        tail = [x for i in range(N, N + 12) for x in va[i]]
        return mf, gaps, tail

    @staticmethod
    def flat(mf, gaps, lo, hi):
        out = []
        for i in range(lo, hi):
            if mf[i] is not None:
                out.append(mf[i])
            out += gaps[i]
        return out

    def addr_setup(self, lane, w):
        b = [valu("v_lshrrev_b32", "v6", 4, lane), valu("v_lshlrev_b32", "v6", 3, "v6"),
             valu("v_bfe_u32", "v7", lane, 3, 1), valu("v_add_u32", "v6", "v6", "v7"),
             valu("v_lshl_add_u32", "v6", w, 1, "v6"), valu("v_mul_u32_u24", "v6", 384, "v6"),
             valu("v_and_b32", "v7", 7, lane), valu("v_lshl_add_u32", V_DMA, "v7", 4, "v6")]

        def lds_row(dst, key):
            return [valu("v_bfe_u32", "v8", key, 1, 2), valu("v_mul_u32_u24", "v8", 1056, "v8"),
                    valu("v_lshrrev_b32", "v9", 3, key), valu("v_lshlrev_b32", "v9", 1, "v9"),
                    valu("v_and_b32", dst, 1, key), valu("v_add_u32", "v9", "v9", dst),
                    valu("v_lshl_add_u32", dst, "v9", 7, "v8")]
        b += [valu("v_and_b32", "v6", 15, lane), valu("v_lshrrev_b32", "v7", 4, lane)]
        b += lds_row(V_KA, "v6") + [valu("v_lshl_add_u32", V_KA, "v7", 4, V_KA)]
        b += [valu("v_lshrrev_b32", "v6", 2, lane)] + lds_row(V_VA, "v6")
        b += [valu("v_and_b32", "v6", 3, lane), valu("v_lshl_add_u32", V_VA, "v6", 3, V_VA),
              valu("v_add_u32", V_VA, self.VBASE, V_VA)]
        return b

    def slow_path(self):
        M = ["v16", "v17", "v18", "v19", T0, T1]
        S = S0
        SD = R("v", S, 4)
        QL = Preg(1, 0)
        lane, w, vq = "v4", "v5", V_QA

        def qreg(j, s):
            return Qreg(j, s) if s < 5 else R("v", QL + 4 * j, 4)
        setup = [wait(vm=0, lgkm=0), barrier(),
                 raw(f"v_mbcnt_lo_u32_b32 {lane}, -1, 0", "valu", [], [lane]),
                 raw(f"v_mbcnt_hi_u32_b32 {lane}, -1, {lane}", "valu", [lane], [lane]),
                 valu("v_mov_b32", w, S_W)]
        setup += self.addr_setup(lane, w)
        setup += [valu("v_mul_u32_u24", vq, 96, w), valu("v_and_b32", "v6", 15, lane), valu("v_add_u32", vq, vq, "v6"),
                  valu("v_mul_u32_u24", vq, 384, vq), valu("v_lshl_add_u32", vq, "v7", 4, vq)]
        for j in range(NQB):
            setup.append(salu("s_mov_b32", S_T, j * 16 * 384))
            setup += [buf_load(qreg(j, s), vq, SRD_Q, S_T, s * 64) for s in range(6)]
        setup += [wait(vm=0)]
        setup += [valu("v_mov_b32", m, "0xff800000") for m in M]
        setup += [salu("s_mov_b32", S_KOFF, 0)]

        def load(with_v):
            o = []
            for k in range(6 if with_v else 3):
                o += list(self.dma_pair(k, S_WOFF, S_KOFF, S_KOFF))
            return o + [wait(vm=0), barrier()]

        def chain(j):
            return [mfma(SD, Kreg(s), qreg(j, s), "0" if s == 0 else SD) for s in range(6)]

        def close(name):
            return [wait(lgkm=0), barrier(), salu("s_add_u32", S_KOFF, S_KOFF, TILE_G),
                    salu("s_cmp_lt_u32", S_KOFF, HEAD_KV), branch("s_cbranch_scc1", name)]
        maxl = load(False)
        for kb in range(2):
            maxl += [self.kread(kb, s) for s in range(6)]
            for j in range(NQB):
                maxl += chain(j) + [valu("v_max3_f32", M[j], M[j], f"v{S}", f"v{S+1}"),
                                    valu("v_max3_f32", M[j], M[j], f"v{S+2}", f"v{S+3}")]
        maxl += close("L_slow_max")
        mid = []
        for m in M:
            for op in ("v_permlane32_swap_b32", "v_permlane16_swap_b32"):
                mid += [valu("v_mov_b32", vq, m), valu(op, m, vq), valu("v_max_f32", m, m, vq)]
        mid += [valu("v_mul_f32", m, S_C, m) for m in M]
        mid += [valu("v_accvgpr_write_b32", f"a{r}", 0) for r in range(OA0, 256)]
        mid += [valu("v_mov_b32", f"v{r}", 0) for r in list(range(OV0, 256)) + list(range(L0, L0 + 6))]
        mid += [salu("s_mov_b32", S_KOFF, 0)]
        main = load(True)
        for kb in range(2):
            main += [self.kread(kb, s) for s in range(6)]
            for j in range(NQB):
                p = Preg(0, j) + 2 * kb
                main += chain(j)
                main += [valu("v_fma_f32", f"v{S+i}", f"v{S+i}", S_C, "-" + M[j]) for i in range(4)]
                main += [valu("v_exp_f32", f"v{S+i}", f"v{S+i}") for i in range(4)]
                main += [valu("v_add_f32", f"v{L0+j}", f"v{S+i}", f"v{L0+j}") for i in range(4)]
                main += [valu("v_cvt_pk_bf16_f32", f"v{p+i}", f"v{S+2*i}", f"v{S+2*i+1}") for i in range(2)]
        for db in range(12):
            vb = VA0 + 4 * (db % 2)
            main += [self.vread(db, h, vb) for h in range(2)]
            main += [self.pv(db, j, 0, vb) for j in range(NQB)]
        main += close("L_slow_main")
        return setup, maxl, mid, main, self.epilogue_plain()

    def prologue(self):
        b = []
        b += [salu("s_cmp_ge_u32", "s2", 256), branch("s_cbranch_scc1", "L_end"),
              raw("s_load_dwordx4 s[4:7], s[0:1], 0", "smem"), raw("s_load_dwordx4 s[8:11], s[0:1], 16", "smem")]
        if self.stamps:
            b += [raw("s_load_dwordx4 s[12:15], s[0:1], 32", "smem"),
                  raw("s_memrealtime s[56:57]"), raw("s_memtime s[58:59]")]
        lane, w = "v4", "v5"
        b += [valu("v_and_b32", lane, 63, "v0"), valu("v_lshrrev_b32", w, 6, "v0"),
              valu("v_readfirstlane_b32", S_W, w)]
        if self.pref:
            b += [raw("s_getpc_b64 s[50:51]", "salu", [], ["s50", "s51"]), label("L_pc"),
                  salu("s_lshr_b32", S_T, "s2", 3), salu("s_lshl_b32", S_T, S_T, 2), salu("s_add_u32", S_T, S_T, S_W),
                  salu("s_min_u32", S_T, S_T, "(L_end-L_pc)/1024"), salu("s_lshl_b32", S_T, S_T, 10),
                  valu("v_lshl_add_u32", "v6", lane, 4, S_T),
                  I(f"global_load_dwordx4 v[{OV0}:{OV0+3}], v6, s[50:51]", "vm_ld", ["v6", "s50", "s51"], regs("v", OV0, 4))]
        b += self.addr_setup(lane, w)
        g = "v7"
        b += [valu("v_mul_u32_u24", V_QA, 6144, w), valu("v_lshl_add_u32", V_QA, lane, 4, V_QA),
              valu("v_add_u32", V_QA, self.QBASE, V_QA)]
        for i_ in range(3):
            d = f"v{OV0+64+i_}"
            b += [valu("v_add_u32", d, 64 * i_, lane), valu("v_mul_u32_u24", "v6", 2731, d),
                  valu("v_lshrrev_b32", "v6", 16, "v6"), valu("v_and_b32", "v6", 6, "v6"),
                  valu("v_xor_b32", d, d, "v6"), valu("v_lshlrev_b32", d, 4, d)]
        b += [valu("v_and_b32", "v6", 15, lane), valu("v_and_b32", "v8", 6, lane), valu("v_xor_b32", "v8", "v8", g),
              valu("v_mul_u32_u24", "v6", 384, "v6"), valu("v_lshl_add_u32", f"v{OV0+67}", "v8", 4, "v6"),
              valu("v_xor_b32", f"v{OV0+68}", 64, f"v{OV0+67}")]
        head = "s2"
        if self.remap:
            head = "s3"
            b += [salu("s_and_b32", head, "s2", 7), salu("s_lshl_b32", head, head, 5),
                  salu("s_lshr_b32", S_T, "s2", 3), salu("s_add_u32", head, head, S_T)]
        S_SA, S_SB = "s43", "s44"
        VQ = [f"v{OV0+64+i_}" for i_ in range(3)]
        b += [salu("s_mul_i32", S_KOFF, head, HEAD_KV), salu("s_mul_i32", S_VOFF, head, HEAD_Q),
              salu("s_mov_b32", "s18", HEAD_KV), salu("s_mov_b32", "s19", "0x20000"),
              salu("s_mov_b32", "s26", HEAD_Q), salu("s_mov_b32", "s27", "0x20000"),
              salu("s_mul_i32", S_WOFF, S_W, 1056),
              salu("s_lshr_b32", S_T, S_W, 1), salu("s_mul_i32", S_T, S_T, 3), salu("s_add_u32", S_T, S_T, S_W),
              salu("s_add_u32", S_T, S_T, 2), salu("s_mul_i32", S_SB, S_T, TILE_L),
              salu("s_add_u32", S_SA, S_SB, 2 * TILE_L), salu("s_mul_i32", S_T, S_W, 36864)]
        b += [valu("v_add_u32", VQ[i_], S_T, VQ[i_]) for i_ in range(3)]
        b += [raw("s_waitcnt lgkmcnt(0)", "salu")]
        if self.touch:
            b += self.stamp()
        b += [salu("s_add_u32", "s16", "s6", S_KOFF), salu("s_addc_u32", "s17", "s7", 0),
              salu("s_add_u32", "s24", "s4", S_VOFF), salu("s_addc_u32", "s25", "s5", 0)]
        late = [salu("s_add_u32", "s20", "s8", S_KOFF), salu("s_addc_u32", "s21", "s9", 0),
                salu("s_mov_b32", "s22", HEAD_KV), salu("s_mov_b32", "s23", "0x20000"),
                salu("s_add_u32", "s28", "s10", S_VOFF), salu("s_addc_u32", "s29", "s11", 0),
                salu("s_mov_b32", "s30", HEAD_Q), salu("s_mov_b32", "s31", "0x20000"),
                salu("s_mov_b32", S_C, f32(math.log2(math.e) / math.sqrt(192.0))),
                salu("s_mov_b32", S_CNT, 14)]

        def group(ktile, vtile):
            o = []
            for k in range(6):
                tile = vtile if k >= 3 else ktile
                if tile is None:
                    continue
                slot = (tile + 1) % self.R if k >= 3 else tile % self.R
                if k % 3 == 0:
                    o.append(salu("s_mov_b32", S_T, tile * TILE_G))
                o += list(self.dma_pair(k, S_WOFF, S_T, S_T, slot * TILE_L))
            return o
        RAW = OV0
        TMP = OV0 + 48
        Q5 = OV0 + 56
        VR = [f"v{OV0+67+i_}" for i_ in range(2)]
        LAST = OV0 + 69
        KB = Preg(1, 0)

        def ubase(u):
            return (S_SB if u in (2, 3) else S_SA), (u & 1) * 6144

        def qunit(u):
            sb, off = ubase(u)
            o = []
            for i_ in range(3):
                o += [salu("s_add_u32", "m0", sb, off + i_ * 1024)]
                o += [salu("s_mov_b32", S_T, u * 6144)] if i_ == 0 else [nop(0)]
                o += [buf_dma(VQ[i_], SRD_Q, S_T, h * 3072, self.qpol) for h in range(2)]
            return o

        def qraw(u):
            sb, off = ubase(u)
            o = [valu("v_add_u32", T0, sb, VR[0]), valu("v_add_u32", T1, sb, VR[1])]
            for s_ in range(6):
                o.append(ds_read("ds_read_b128", R("v", RAW + 4 * ((u % 2) * 6 + s_), 4), (T0, T1)[s_ & 1],
                                 off + (s_ >> 1) * 128))
            return o

        def prescale(j):
            o = []
            for s_ in range(6):
                r0 = RAW + 4 * ((j % 2) * 6 + s_)
                for i_ in range(4):
                    o += [valu("v_lshlrev_b32", f"v{TMP+2*i_}", 16, f"v{r0+i_}"),
                          valu("v_and_b32", f"v{TMP+2*i_+1}", "0xffff0000", f"v{r0+i_}")]
                o += [valu("v_mul_f32", f"v{TMP+i_}", S_C, f"v{TMP+i_}") for i_ in range(8)]
                dst = r0 if s_ < 5 else Q5 + 4 * (j % 2)
                o += [valu("v_cvt_pk_bf16_f32", f"v{dst+i_}", f"v{TMP+2*i_}", f"v{TMP+2*i_+1}") for i_ in range(4)]
                if s_ < 5:
                    o += [valu("v_accvgpr_write_b32", f"a{QA0+4*(j*5+s_)+i_}", f"v{dst+i_}") for i_ in range(4)]
                else:
                    o.append(ds_write("ds_write_b128", V_QA, R("v", dst, 4), j * 1024))
            return o

        def chains(j):
            o = []
            for kb in range(2):
                d = R("v", S0 + 4 * kb, 4)
                for s_ in range(6):
                    a_ = Kreg(s_) if kb == 0 else R("v", KB + 4 * s_, 4)
                    q_ = Qreg(j, s_) if s_ < 5 else R("v", Q5 + 4 * (j % 2), 4)
                    o.append(mfma(d, a_, q_, self.cinit if s_ == 0 else d))
            return o

        def soft(j, kb):
            sreg = S0 + 4 * kb
            p = Preg(0, j) + 2 * kb
            e = [valu("v_exp_f32", f"v{sreg+i_}", f"v{sreg+i_}") for i_ in range(4)]
            a_ = [valu("v_add_f32", f"v{L0+j}", f"v{sreg+i_}", f"v{L0+j}") for i_ in range(4)]
            c = [valu("v_cvt_pk_bf16_f32", f"v{p+i_}", f"v{sreg+2*i_}", f"v{sreg+2*i_+1}") for i_ in range(2)]
            return e + a_ + c

        def weave(ms, ops, per=2):
            o = []
            ops = list(ops)
            for m in ms:
                o.append(m)
                o += ops[:per]
                ops = ops[per:]
            return o, ops

        plan = [int(c) for c in self.provar]
        queue = []

        def issue(name, ops):
            queue.append((name, sum(1 for x in ops if x.kind == "dma")))
            return ops

        def landed(name, **kw):
            k = [n for n, _ in queue].index(name)
            return wait(vm=sum(c for _, c in queue[k + 1:]), **kw)

        def extras(u):
            o = []
            if plan[0] == u:
                o += issue("KV0", group(1, 0))
            if plan[1] == u:
                o += issue("G4", group(2, 1))
            if plan[2] == u and self.D >= 4:
                o += issue("G3", group(3, 2))
            return o

        b += issue("K0", group(0, None))
        for u in range(4):
            b += issue(f"U{u}", qunit(u))
        b += late
        if self.touch:
            b += self.stamp() + [landed("K0")] + self.stamp() + [landed("U0")] + self.stamp()
        for r in range(OA0, 256):
            b.append(valu("v_accvgpr_write_b32", f"a{r}", 0))
        for r in list(range(LAST, 256)) + list(range(L0, L0 + 6)):
            b.append(valu("v_mov_b32", f"v{r}", 0))
        b += [valu("v_mov_b32", "v14", self.FLAG), valu("v_mov_b32", "v15", 0), ds_write("ds_write_b32", "v14", "v15", 0)]
        b += [landed("U0")] + qraw(0) + [wait(lgkm=0)] + issue("U4", qunit(4)) + [barrier()]
        b += [self.kread(0, s_) for s_ in range(6)]
        b += [ds_read("ds_read_b128", R("v", KB + 4 * s_, 4), V_KA, (s_ >> 1) * TAU + (s_ & 1) * 64 + 512) for s_ in range(6)]
        b += prescale(0)
        for u in range(1, 6):
            b += [landed(f"U{u}")] + [] + qraw(u)
            if u == 1:
                b += [wait(lgkm=0)] + issue("U5", qunit(5))
            if u == 3:
                b += [wait(lgkm=0), barrier()]
            b += extras(u)
            ps = prescale(u)
            ch = chains(u - 1)
            w1, rest = weave(ch[6:], ps)
            b += ch[:6] + w1 + soft(u - 1, 0) + rest[:24] + soft(u - 1, 1) + rest[24:]
        zero = [valu("v_mov_b32", f"v{r}", 0) for r in list(range(RAW, Q5 + 4)) + list(range(Q5 + 8, LAST))]
        b += [valu("v_add_u32", V_KA, TILE_L, V_KA), valu("v_add_u32", V_VA, TILE_L, V_VA),
              salu("s_mov_b32", S_SLOT, TILE_L), salu("s_add_u32", S_DMA, S_WOFF, (self.D % 5) * TILE_L),
              salu("s_add_u32", S_DLIM, S_WOFF, self.R * TILE_L),
              salu("s_mov_b32", S_KOFF, self.D * TILE_G), salu("s_mov_b32", S_VOFF, (self.D - 1) * TILE_G)]
        b += [landed("KV0", lgkm=0), barrier()]
        ch = chains(5)
        for s_ in range(6):
            b += [ch[s_], self.kread(0, s_), zero.pop(0)]
        b += [ch[6], self.qread(0), zero.pop(0), ch[7], self.vread(0, 0, VA0), zero.pop(0), ch[8], self.vread(0, 1, VA0), zero.pop(0)]
        w1, rest = weave(ch[9:], zero)
        b += w1 + soft(5, 0) + extras(6) + (group(4, 3) if self.D == 5 else []) + rest
        b += [valu("v_mov_b32", f"v{r}", 0) for r in range(Q5 + 4, Q5 + 8)]
        b += soft(5, 1)[:2]
        return b

    def group_tail(self, js, bufs, first, carry=(), extra=(), fin=()):
        n = len(js)
        LAT = self.lat
        mf, cstart, gstart = [], [], []
        v = 0
        for c in range(4 * n):
            ph, k = divmod(c, 2 * n)
            jj = js[c % n]
            d = R("v", S0 + 4 * (c % 2), 4)
            cstart.append(len(mf))
            mf += [mfma(d, Kreg(s), Qreg(jj, s), self.cinit if s == 0 else d) for s in range(6)]
            upto = 12 * ph + (k + 1) * 12 // (2 * n)
            if ph == 1 and k < 2 * n - 1:
                upto -= (4 + n - 1) // n * (k + 1) // (2 * n - 1)
            if c == 4 * n - 1:
                upto = 36
            while v < upto:
                gstart.append(len(mf))
                f_, b_ = bufs[v % len(bufs)]
                mf += [self.pv(v % 12, x, (1, 0, 1)[v // 12], b_, f_) for x in js]
                v += 1
        sm = [Op(x, 0, cstart[1] - 1) for x in carry]
        for c in range(4 * n):
            ph, kb, jj = c // (2 * n), (c // n) % 2, js[c % n]
            sreg = S0 + 4 * (c % 2)
            p = Preg(ph, jj) + 2 * kb
            hi = gstart[12 * (ph + 1)] + js.index(jj) - 2
            if c + 2 < 4 * n:
                hi = min(hi, cstart[c + 2] - 1)
            e = [valu("v_exp_f32", f"v{sreg+i}", f"v{sreg+i}") for i in range(4)]
            a = [valu("v_add_f32", f"v{L0+jj}", f"v{sreg+i}", f"v{L0+jj}") for i in range(4)]
            cv = [valu("v_cvt_pk_bf16_f32", f"v{p+i}", f"v{sreg+2*i}", f"v{sreg+2*i+1}") for i in range(2)]
            lo = cstart[c] + 5 + 3
            for k, x in enumerate(e + [cv[0], a[0], cv[1], a[1], a[2], a[3]]):
                last = c + 2 < 4 * n
                h = hi - (9 - k) // 2 if (last or k < 7) else 10 ** 9
                sm.append(Op(x, lo, max(h, lo)))
        sm += [Op(x, gstart[24] + n) for x in fin]
        sync_gap = cstart[n] + 2 if first else -1
        sync, sync2 = [], sync_gap
        if first and self.D == 3:
            for k in range(3, 6):
                m_, d_ = self.dma_pair(k)
                sync += [Op(m_, 2 * k - 5, 2 * k - 5), Op(d_, 2 * k - 4, 2 * k - 4)]
            sync2 = gstart[24 - len(bufs)] - 2
            sync += [Op(wait(vm=3), sync_gap - 1, sync_gap - 1), Op(barrier(), sync_gap, sync_gap),
                     Op(wait(vm=0), sync2 - 1, sync2 - 1), Op(barrier(), sync2, sync2)]
        elif first:
            sync = [Op(wait(vm=0), sync_gap - 1, sync_gap - 1), Op(barrier(), sync_gap, sync_gap)]
        kst = []
        for st_ in range(1, 4):
            for s in range(6):
                lo = max(cstart[st_ * n - 1] + s, sync_gap + 1 if st_ == 2 else 0)
                kst.append(Op(self.kread(st_ % 2, s, st_ // 2), lo, max(cstart[st_ * n] + s - LAT, lo)))
        qst = [Op(self.qread(js[c % n]), cstart[c - 1] + 5, cstart[c] + 5 - LAT) for c in range(1, 4 * n)]
        vst = []
        pre = []
        for v in range(36):
            f_, b_ = bufs[v % len(bufs)]
            rd = [self.vread(v % 12, h, b_, v // 12, f_) for h in range(2)]
            if v == 0 and first:
                continue
            if v < len(bufs) and not first:
                pre += rd
                continue
            lo = gstart[v - len(bufs)] + n - 1 if v >= len(bufs) else 0
            if v >= 12:
                lo = max(lo, (sync2 if v >= 24 else sync_gap) + 1)
            vst += [Op(x, lo, max(gstart[v] - LAT, lo)) for x in rd]
        if not first:
            pre = [self.kread(0, s) for s in range(6)] + [self.qread(js[0])] + pre
        return pre, sched(mf, [sm, kst, qst, vst, sync, list(extra)])

    def row_sums(self, js, t0):
        b = []
        for op in ("v_permlane32_swap_b32", "v_permlane16_swap_b32"):
            b += [valu("v_mov_b32", f"v{t0+k}", f"v{L0+j}") for k, j in enumerate(js)]
            b += [valu(op, f"v{L0+j}", f"v{t0+k}") for k, j in enumerate(js)]
            b += [valu("v_add_f32", f"v{L0+j}", f"v{L0+j}", f"v{t0+k}") for k, j in enumerate(js)]
        return b

    def range_check(self, js, first):
        b = []
        if first:
            b += [salu("s_mov_b32", S_NEW, f32(2.0 ** 12)), salu("s_mov_b32", S_DELTA, f32(2.0 ** -20)),
                  salu("s_mov_b64", "s[44:45]", 0)]
        for j in js:
            b += [valu("v_cmp_nge_f32", "s[46:47]", S_NEW, f"v{L0+j}"), valu("v_cmp_nle_f32", "s[48:49]", S_DELTA, f"v{L0+j}")]
            b += [salu("s_or_b64", "s[44:45]", "s[44:45]", "s[46:47]"), salu("s_or_b64", "s[44:45]", "s[44:45]", "s[48:49]")]
        return b

    EW = [f"v{P0+i}" for i in range(4)]
    ER = [f"v{P0+4+i}" for i in range(3)]
    EG = f"v{P0+7}"

    def epi_addr(self):
        lane, t, u = T0, T1, V_DMA
        b = [raw(f"v_mbcnt_lo_u32_b32 {lane}, -1, 0", "valu", [], [lane]),
             raw(f"v_mbcnt_hi_u32_b32 {lane}, -1, {lane}", "valu", [lane], [lane]),
             salu("s_lshr_b32", S_T, S_W, 1), salu("s_mul_i32", S_T, S_T, 6 * TILE_L),
             salu("s_and_b32", S_SLOT, S_W, 1), salu("s_mul_i32", S_SLOT, S_SLOT, 12288),
             salu("s_add_u32", S_T, S_T, S_SLOT), salu("s_add_u32", S_T, S_T, (2 * TILE_L + 127) // 128 * 128),
             salu("s_and_b32", S_T, S_T, "0xffffff80"),
             valu("v_and_b32", t, 15, lane), valu("v_mul_u32_u24", u, 384, t), valu("v_add_u32", u, S_T, u),
             valu("v_bfe_u32", t, lane, 4, 1), valu("v_lshl_add_u32", u, t, 3, u),
             valu("v_lshrrev_b32", t, 5, lane), valu("v_xor_b32", t, t, lane), valu("v_and_b32", t, 7, t),
             valu("v_lshl_add_u32", self.EW[0], t, 4, u)]
        b += [valu("v_xor_b32", self.EW[i], 32 * i, self.EW[0]) for i in range(1, 4)]
        for i in range(3):
            r = self.ER[i]
            b += [valu("v_add_u32", r, 64 * i, lane), valu("v_mul_u32_u24", t, 2731, r),
                  valu("v_lshrrev_b32", t, 16, t), valu("v_xor_b32", r, r, t), valu("v_lshl_add_u32", r, r, 4, S_T)]
        b += [salu("s_mul_i32", S_T, S_W, 36864), valu("v_lshl_add_u32", self.EG, lane, 4, S_T)]
        return b

    def epi_stores(self, j):
        o = []
        for i in range(6):
            pre = [salu("s_mov_b32", S_T, j * 6144 + i * 1024)] if i % 4 == 0 else []
            o.append(pre + [buf_store(Oreg(j, i), self.EG, SRD_O, S_T, (i % 4) * 1024, self.opol)])
        return o

    def epi_block(self, j, pend, first=3, step=1):
        b = []
        for db in range(12):
            src = expand(Oreg(j, db))
            if src[0][0] == "a":
                t = S0 + 4 * (db % 2)
                b += [valu("v_accvgpr_read_b32", f"v{t+i}", src[i]) for i in range(4)]
                src = [f"v{t+i}" for i in range(4)]
            if self.pk:
                r0, lp = int(src[0][1:]), (L0 + j) & ~1
                sel = "op_sel:[0,1] op_sel_hi:[1,1]" if (L0 + j) & 1 else "op_sel_hi:[1,0]"
                b += [I(f"v_pk_mul_f32 {R('v', r0+2*i, 2)}, {R('v', r0+2*i, 2)}, {R('v', lp, 2)} {sel}", "valu",
                        regs("v", r0 + 2 * i, 2) + regs("v", lp, 2), regs("v", r0 + 2 * i, 2)) for i in range(2)]
            else:
                b += [valu("v_mul_f32", src[i], src[i], f"v{L0+j}") for i in range(4)]
            b += [valu("v_cvt_pk_bf16_f32", src[i], src[2 * i], src[2 * i + 1]) for i in range(2)]
            b += [ds_write("ds_write_b64", self.EW[db & 3], R("v", int(src[0][1:]), 2), (j % 2) * 6144 + (db >> 2) * 128)]
            if db >= first and (db - first) % step == 0 and pend:
                b += pend.pop(0)
        b += [ds_read("ds_read_b128", Oreg(j, i), self.ER[i % 3], (j % 2) * 6144 + (i // 3) * 3072) for i in range(6)]
        return b

    def epi_all(self, js, pend):
        b = []
        for j in js:
            b += self.epi_block(j, pend)
            b += [x for p in pend for x in p]
            pend = self.epi_stores(j)
        return b + [x for p in pend for x in p]

    def rcp(self, js):
        return [valu("v_rcp_f32", f"v{L0+j}", f"v{L0+j}") for j in js]

    def epilogue_plain(self):
        js = list(range(NQB))
        return self.row_sums(js, S0) + self.rcp(js) + self.epi_addr() + self.epi_all(js, [])

    def tail(self, carry):
        groups, k = [], 0
        for n in self.groups:
            groups.append(list(range(k, k + n)))
            k += n
        assert k == NQB and groups[0][-1] < 4 and len(groups[0]) >= 2
        bufs0 = [("a", VA0), ("a", VA0 + 4), ("v", Preg(0, 4)), ("v", Preg(0, 5))]
        bufs1 = [("a", VA0), ("a", VA0 + 4), ("a", 0), ("a", 4)]
        def fin(gi):
            js = groups[gi]
            o = self.row_sums(js, S0) + self.range_check(js, gi == 0) + self.rcp(js)
            return o + (self.epi_addr() if gi == 0 else [])
        _, b = self.group_tail(groups[0], bufs0, True, carry, (), fin(0))
        left = []
        for gi, js in enumerate(groups):
            last = gi == len(groups) - 1
            b += self.stamp() if gi in (0, len(groups) - 1) else []
            if last:
                b += self.epi_all(js, left)
                break
            nxt = groups[gi + 1]
            for x, j in enumerate(js):
                if x == len(js) - 1:
                    pos = len(b)
                b += self.epi_block(j, left, 2, self.estep)
                left += self.epi_stores(j)
            nm = 60 * len(nxt)
            take = min(len(left), max(0, (nm - 4) // self.espace))
            extra = [Op(x, 4 + self.espace * i, 4 + self.espace * i) for i, p in enumerate(left[:take]) for x in p]
            left = left[take:]
            pre, t1 = self.group_tail(nxt, bufs1, False, (), extra, fin(gi + 1))
            b[pos:pos] = pre
            b += t1
        b += [salu("s_cmp_eq_u64", "s[44:45]", 0), branch("s_cbranch_scc1", "L_inrange"),
              valu("v_mov_b32", T0, self.FLAG), valu("v_mov_b32", T1, 1), ds_write("ds_write_b32", T0, T1, 0),
              label("L_inrange")]
        b += [wait(lgkm=0), barrier(), valu("v_mov_b32", T1, self.FLAG), ds_read("ds_read_b32", T1, T1, 0),
              valu("v_readfirstlane_b32", S_T, T1), salu("s_cmp_lg_u32", S_T, 0), branch("s_cbranch_scc1", "L_slow")]
        return b

    def stamp_out(self):
        if not self.stamps:
            return ""
        n = 4 + 2 * self.nstamp
        s = "  s_waitcnt vmcnt(0)\n  s_barrier\n  s_memrealtime s[60:61]\n  s_memtime s[62:63]\n  s_waitcnt lgkmcnt(0)\n"
        s += f"  s_cmp_lg_u32 {S_W}, 0\n  s_cbranch_scc1 L_end\n  s_mov_b64 exec, 1\n"
        if self.stamps == "prof":
            s += f"  s_mov_b64 exec, 0xffffffff\n  v_mbcnt_lo_u32_b32 v1, -1, 0\n  v_lshlrev_b32 v1, 2, v1\n  v_add_u32 v2, {self.FLAG + 8}, v1\n  ds_read_b32 v2, v2\n"
            s += f"  s_lshl_b32 s3, s2, 7\n  v_add_u32 v1, s3, v1\n  v_add_u32 v1, 0x100000, v1\n  s_waitcnt lgkmcnt(0)\n  global_store_dword v1, v2, s[14:15]\n  s_mov_b64 exec, 1\n"
        if self.stamps == "dbg":
            s += "  v_mov_b32 v1, 0\n  v_mov_b32 v2, s60\n  global_atomic_umax v1, v2, s[12:13]\n"
            s += "  s_not_b32 s3, s56\n  v_mov_b32 v3, s3\n  global_atomic_umax v1, v3, s[12:13] offset:4\n"
            s += "  v_mov_b32 v4, s56\n  global_atomic_umax v1, v4, s[12:13] offset:8\n"
            s += "  s_cmp_lg_u32 s2, 100\n  s_cbranch_scc1 L_end\n"
            vals = [(66 + 4 * i, 56) for i in range(self.nstamp)] + [(60, 56)] + [(64 + 4 * i, 58) for i in range(self.nstamp)] + [(62, 58)]
            for i, (x, y) in enumerate(vals):
                s += f"  s_sub_u32 s3, s{x}, s{y}\n  v_mov_b32 v2, s3\n  global_store_dword v1, v2, s[12:13] offset:{16+4*i}\n"
            return s
        s += f"  s_mul_i32 s3, s2, {8*n}\n  v_mov_b32 v1, s3\n"
        for i in range(n):
            r = 56 + 2 * i
            s += f"  v_mov_b32 v2, s{r}\n  v_mov_b32 v3, s{r+1}\n  global_store_dwordx2 v1, v[2:3], s[14:15] offset:{8*i}\n  s_nop 1\n"
        return s

    def build(self, verbose=False):
        ROT = 8
        pro = self.prologue()
        mfE, gE, tailE = self.period(0)
        mfO, gO, _ = self.period(1)
        if self.stamps == "prof":
            for gg in (gE, gO):
                gg[12 * 2 + 7] += [valu("v_mov_b32", T0, "s52"), valu("v_add_u32", T1, 4, T1)]
                gg[12 * 2 + 8] += [raw("s_memrealtime s[52:53]"), ds_write("ds_write_b32", T1, T0, 0)]
            pro += [valu("v_mov_b32", T1, self.FLAG + 4), raw("s_memrealtime s[52:53]")]
        gE[12 * 11 + 7].append(salu("s_cmp_eq_u32", S_CNT, 0))
        exit_tail = gE[143] + tailE
        gE[143] = [branch("s_cbranch_scc1", "L_drain")] + gE[143]
        gO[12 * 11 + 7].append(salu("s_sub_u32", S_CNT, S_CNT, 1))
        fill = self.stamp()
        head = self.flat(mfE, gE, 0, ROT)
        body = self.flat(mfE, gE, ROT, 144) + self.flat(mfO, gO, 0, 144) + self.flat(mfE, gE, 0, ROT)
        body.append(branch("s_branch", "L_top"))

        log = []
        pro, st = fix(pro + fill, State())
        head1, st1 = fix(head, st, hoist=True)
        body1, st2 = fix(body, st1, hoist=True, log=log)
        body2, st3 = fix(body1, st2, hoist=True, log=log)
        errs, _ = verify(pro + head1 + body2 + body2 + body2)
        assert not errs, errs[:10]
        kx = next(i for i, x in enumerate(body2) if x.kind == "branch")
        _, stx = verify(pro + head1 + body2 + body2[:kx + 1])
        post = self.stamp() + self.tail(exit_tail)
        post, _ = fix(post, stx, hoist=True)
        errs, _ = verify(pro + head1 + body2[:kx + 1] + post)
        assert not errs, errs[:10]
        if verbose:
            tot, over = estimate(body2)
            print("loop estimate cycles (288 mfma, ideal 4608):", tot)
            for o in over:
                print("  over:", o)
            print("  inserted:", [x for x in log if x[0] == "nop"])
            print("  waits:", len([x for x in log if x[0] == "wait"]), "instrs:", len(body2))
            tot, over = estimate(post)
            print("tail estimate:", tot, "mfma:", sum(x.kind == "mfma" for x in post), "instrs:", len(post))
            print("  over:", [(o[0], o[1]) for o in over])
        text = emit(pro + head1) + ".p2align 6\nL_top:\n" + emit(body2) + "L_drain:\n" + emit(post)
        text += self.stamp_out() + "L_end:\n  s_endpgm\n"
        setup, maxl, mid, main, epi = self.slow_path()
        st = State()
        blocks = []
        for blk, loop in ((setup, False), (maxl, True), (mid, False), (main, True), (epi, False)):
            blk, st = fix(blk, st)
            if loop:
                blk, st = fix(blk, st)
            blocks.append(blk)
        setup, maxl, mid, main, epi = blocks
        errs, _ = verify(post + setup + maxl + maxl + mid + main + main + epi)
        assert not errs, errs[:10]
        text += "L_slow:\n" + emit(setup) + "L_slow_max:\n" + emit(maxl) + emit(mid) + "L_slow_main:\n" + emit(main)
        text += emit(epi) + "  s_endpgm\n"
        return wrap(text, 256, 256, self.lds, 512, 256)


if __name__ == "__main__":
    ap = argparse.ArgumentParser()
    ap.add_argument("-o", default="k.s")
    ap.add_argument("--stamps", default="")
    ap.add_argument("--ring", type=int, default=5)
    ap.add_argument("--pol", default="nt")
    ap.add_argument("--opol", default="nt")
    ap.add_argument("--abl", default="")
    ap.add_argument("--pref", type=int, default=1)
    ap.add_argument("--qpol", default="nt")
    ap.add_argument("--dist", type=int, default=3)
    ap.add_argument("--dpos", default="s")
    ap.add_argument("--pk", type=int, default=1)
    ap.add_argument("--lat", type=int, default=7)
    ap.add_argument("--spread", type=int, default=0)
    ap.add_argument("--remap", type=int, default=1)
    ap.add_argument("--touch", type=int, default=0)
    ap.add_argument("--groups", default="42")
    ap.add_argument("--estep", type=int, default=2)
    ap.add_argument("--espace", type=int, default=9)
    ap.add_argument("--provar", default="356")
    ap.add_argument("-v", action="store_true")
    a = ap.parse_args()
    SPREAD = bool(a.spread)
    g = Gen(ring=a.ring, pol=a.pol, opol=a.opol, stamps=a.stamps, abl=a.abl, provar=a.provar, groups=a.groups, estep=a.estep, espace=a.espace, pref=a.pref, remap=a.remap, touch=a.touch, qpol=a.qpol, dist=a.dist, dpos=a.dpos, pk=a.pk, lat=a.lat)
    open(a.o, "w").write(g.build(a.v))
```

```python
import re


def R(p, i, n=1):
    return f"{p}{i}" if n == 1 else f"{p}[{i}:{i+n-1}]"


def regs(p, i, n=1):
    return [f"{p}{k}" for k in range(i, i + n)]


def expand(op):
    op = op.strip()
    op = op.lstrip("-")
    if op.startswith("|") and op.endswith("|"):
        op = op[1:-1]
    m = re.fullmatch(r"([vas])\[(\d+):(\d+)\]", op)
    if m:
        return regs(m.group(1), int(m.group(2)), int(m.group(3)) - int(m.group(2)) + 1)
    m = re.fullmatch(r"([vas])(\d+)", op)
    if m:
        return [op]
    if op in ("vcc", "m0", "exec"):
        return [op]
    return []


TRANS = ("v_exp_f32", "v_rcp_f32", "v_log_f32", "v_rsq_f32", "v_sqrt_f32")


class I:
    def __init__(self, text, kind, rd=(), wr=(), tag=None, srcc=()):
        self.text, self.kind = text, kind
        self.rd, self.wr = set(rd), set(wr)
        self.srcc = set(srcc)
        self.tag = tag
        self.extra = 0

    def __repr__(self):
        return self.text

    @property
    def is_valu(self):
        return self.kind in ("valu", "trans", "perm")

    @property
    def is_scalar(self):
        return self.kind in ("salu", "wait", "barrier", "nop", "branch", "smem")

    @property
    def states(self):
        if self.kind == "label":
            return 0
        if self.kind == "nop":
            return int(self.text.split()[1]) + 1
        return 1


def valu(op, dst, *src):
    kind = "trans" if op in TRANS else "valu"
    rd = [r for s in src for r in expand(str(s))]
    wr = expand(dst)
    if op.startswith("v_fmac") or op.startswith("v_permlane"):
        rd += wr
    if op.startswith("v_permlane"):
        kind = "perm"
        wr = wr + expand(src[0])
    if op.startswith("v_cndmask") and len(src) == 2:
        rd.append("vcc")
    return I(f"{op} {dst}, " + ", ".join(str(s) for s in src), kind, rd, wr)


def salu(op, dst, *src):
    rd = [r for s in src for r in expand(str(s))]
    if op.startswith("s_cmp"):
        return I(f"{op} {dst}, {src[0]}", "salu", rd + expand(str(dst)), ["scc"])
    wr = expand(dst)
    if op.startswith("s_cselect") or op in ("s_addc_u32", "s_subb_u32"):
        rd.append("scc")
    if not (op.startswith("s_mov") or op.startswith("s_cselect") or op.startswith("s_mul")):
        wr = wr + ["scc"]
    if "saveexec" in op:
        wr = wr + ["exec"]
    return I(f"{op} {dst}, " + ", ".join(str(s) for s in src), "salu", rd, wr)


def mfma(d, a, b, c):
    return I(f"v_mfma_f32_16x16x32_bf16 {d}, {a}, {b}, {c}", "mfma",
             expand(a) + expand(b) + expand(c), expand(d), srcc=expand(c))


def mfma32(d, a, b, c):
    i = I(f"v_mfma_f32_32x32x16_bf16 {d}, {a}, {b}, {c}", "mfma",
          expand(a) + expand(b) + expand(c), expand(d), srcc=expand(c))
    i.extra = 4
    return i


def ds_read(op, dst, addr, off, tag=None):
    assert 0 <= off < 65536, off
    return I(f"{op} {dst}, {addr} offset:{off}", "lds_rd", [addr], expand(dst), tag)


def ds_write(op, addr, src, off):
    assert 0 <= off < 65536, off
    return I(f"{op} {addr}, {src} offset:{off}", "lds_wr", [addr] + expand(src), [])


def buf_load(dst, voff, srd, soff, off, pol="", op="buffer_load_dwordx4", tag=None):
    assert 0 <= off < 4096
    return I(f"{op} {dst}, {voff}, {srd}, {soff} offen offset:{off} {pol}".rstrip(), "vm_ld",
             [voff] + expand(srd) + expand(str(soff)), expand(dst), tag)


def buf_dma(voff, srd, soff, off, pol="", tag=None):
    assert 0 <= off < 4096
    return I(f"buffer_load_dwordx4 {voff}, {srd}, {soff} offen offset:{off} {pol} lds".replace("  ", " "), "dma",
             [voff, "m0"] + expand(srd) + expand(str(soff)), [], tag)


def buf_store(src, voff, srd, soff, off, pol="", op="buffer_store_dwordx4"):
    assert 0 <= off < 4096
    return I(f"{op} {src}, {voff}, {srd}, {soff} offen offset:{off} {pol}".rstrip(), "vm_st",
             [voff] + expand(src) + expand(srd) + expand(str(soff)), [], tag=("data", tuple(expand(src))))


def wait(vm=None, lgkm=None):
    parts = []
    if vm is not None:
        assert 0 <= vm < 64
        parts.append(f"vmcnt({vm})")
    if lgkm is not None:
        assert 0 <= lgkm < 16
        parts.append(f"lgkmcnt({lgkm})")
    i = I("s_waitcnt " + " ".join(parts), "wait")
    i.vm, i.lgkm = vm, lgkm
    return i


def nop(n=0):
    return I(f"s_nop {n}", "nop")


def barrier():
    return I("s_barrier", "barrier")


def label(name):
    return I(f"{name}:", "label")


def branch(op, target):
    rd = ["scc"] if "scc" in op else (["vcc"] if "vcc" in op else [])
    return I(f"{op} {target}", "branch", rd)


def raw(text, kind="salu", rd=(), wr=()):
    return I(text, kind, rd, wr)


def need_states(p, c):
    n = 0
    if p.is_valu:
        vw = {r for r in p.wr if r[0] in "va" and r != "vcc"}
        sw = {r for r in p.wr if r[0] == "s" or r == "vcc"}
        if c.kind == "mfma" and vw & c.rd:
            n = max(n, 2)
        if c.kind == "perm" and vw & c.rd:
            n = max(n, 2)
        if c.text.startswith(("v_readfirstlane", "v_readlane")) and vw & c.rd:
            n = max(n, 1)
        if p.kind == "trans" and c.is_valu and c.kind != "trans" and vw & c.rd:
            n = max(n, 1)
        if c.is_valu and sw & c.rd:
            n = max(n, 2)
        if c.kind in ("vm_ld", "vm_st", "dma") and sw & c.rd:
            n = max(n, 5)
        if c.kind in ("salu", "branch") and sw & c.rd:
            n = max(n, 2)
        if "_dpp" in c.text and vw & c.rd:
            n = max(n, 2)
        if "exec" in p.wr and c.kind == "mfma":
            n = max(n, 4)
    if p.text.startswith("v_dot2") and not c.text.startswith("v_dot2") and p.wr & (c.rd | c.wr):
        n = max(n, 3)
    if p.kind == "mfma":
        if c.kind == "mfma":
            if p.wr & (c.rd - c.srcc):
                n = max(n, 8 + p.extra)
            if p.wr & c.srcc and p.wr != c.srcc:
                n = max(n, 6 + p.extra)
            if p.wr & c.wr and p.wr != c.srcc and not (p.wr & c.srcc):
                n = max(n, 0)
        elif c.is_valu or c.kind in ("lds_rd", "lds_wr", "vm_ld", "vm_st", "dma"):
            if p.wr & (c.rd | c.wr):
                n = max(n, 8 + p.extra)
            if c.is_valu and p.srcc & c.wr:
                n = max(n, 3 + p.extra)
    if p.kind == "salu" and "m0" in p.wr and c.kind == "dma":
        n = max(n, 1)
    if p.kind == "vm_st" and (c.is_valu or c.kind in ("lds_rd", "vm_ld", "mfma")):
        if set(p.tag[1]) & c.wr:
            n = max(n, 2)
    return n


class State:
    def __init__(self):
        self.lgkm = []
        self.vm = []
        self.recent = []

    def copy(self):
        s = State()
        s.lgkm, s.vm, s.recent = list(self.lgkm), list(self.vm), list(self.recent)
        return s

    def step(self, ins):
        if ins.kind == "wait":
            if ins.lgkm is not None:
                self.lgkm = self.lgkm[len(self.lgkm) - ins.lgkm:] if ins.lgkm < len(self.lgkm) else self.lgkm
            if ins.vm is not None:
                self.vm = self.vm[len(self.vm) - ins.vm:] if ins.vm < len(self.vm) else self.vm
        elif ins.kind in ("lds_rd", "lds_wr"):
            self.lgkm.append(ins)
        elif ins.kind in ("vm_ld", "vm_st", "dma"):
            self.vm.append(ins)
        if ins.kind != "label":
            self.recent.append(ins)
            self.recent = self.recent[-24:]

    def pending_need(self, ins):
        touch = ins.rd | ins.wr
        nl = nv = None
        for k, p in enumerate(self.lgkm):
            if p.wr & touch:
                nl = len(self.lgkm) - 1 - k
        for k, p in enumerate(self.vm):
            if p.wr & touch:
                nv = len(self.vm) - 1 - k
        return nl, nv

    def missing_states(self, ins):
        d = 0
        miss = 0
        for p in reversed(self.recent):
            n = need_states(p, ins)
            if n > d:
                miss = max(miss, n - d)
            d += p.states
            if d >= 14:
                break
        return miss


def fix(block, state, hoist=False, log=None):
    out = []
    st = state.copy()
    hist = []
    for ins in block:
        nl, nv = st.pending_need(ins)
        if nl is not None or nv is not None:
            pos = len(out)
            if hoist:
                stops = ("label", "barrier")
                cands = []
                k = len(out) - 1
                while k >= 0 and len(cands) < 4 and out[k].kind not in stops:
                    if out[k].kind == "mfma":
                        cands.append(k)
                    k -= 1
                best = None
                for k in cands:
                    later = out[k + 1:]
                    if any((x.wr & (ins.rd | ins.wr)) for x in later if x.kind in ("lds_rd", "vm_ld")):
                        break
                    s2 = hist[k + 1] if k + 1 < len(hist) else st
                    l2, v2 = s2.pending_need(ins)
                    e = k + 1
                    while e < len(out) and out[e].kind != "mfma":
                        e += 1
                    g = out[k + 1:e]
                    free = gap_cost([nop(0)] + g) == gap_cost(g)
                    if best is None or free:
                        best = (k + 1, l2, v2)
                    if free:
                        break
                if best is not None:
                    pos, nl, nv = best
            w = wait(vm=min(nv, 63) if nv is not None else None, lgkm=min(nl, 15) if nl is not None else None)
            tail = out[pos:]
            if pos < len(out):
                st = hist[pos].copy()
            out = out[:pos]
            hist = hist[:pos]
            for x in [w] + tail:
                hist.append(st.copy())
                st.step(x)
                out.append(x)
            if log is not None:
                log.append(("wait", w.text, ins.text))
        miss = st.missing_states(ins)
        if miss:
            nn = nop(miss - 1)
            hist.append(st.copy())
            st.step(nn)
            out.append(nn)
            if log is not None:
                log.append(("nop", nn.text, ins.text))
        hist.append(st.copy())
        st.step(ins)
        out.append(ins)
    return out, st


def verify(trace, state=None):
    st = state.copy() if state else State()
    errs = []
    for ins in trace:
        nl, nv = st.pending_need(ins)
        if nl is not None or nv is not None:
            errs.append(f"pending load touched by: {ins.text}")
        if st.missing_states(ins):
            errs.append(f"hazard before: {ins.text}")
        st.step(ins)
    return errs, st


MEMK = ("lds_rd", "lds_wr", "vm_ld", "vm_st", "dma")


def gap_cost(ops):
    t = 1
    prev = None
    for o in ops:
        if o.kind == "label":
            continue
        if o.is_scalar:
            t += o.states
        else:
            t = max(t, 2)
            if o.kind in ("lds_rd", "lds_wr", "vm_ld", "vm_st", "dma") and prev is not None and prev.is_valu:
                t += 2
            if o.kind in MEMK and prev is not None and prev.kind in MEMK:
                t += 1
            t += 2 if o.kind in ("trans", "perm") else 1
            if o.kind in ("lds_wr", "vm_st"):
                t += 3
        prev = o
    return max(t, 4) * 4


def estimate(block):
    total = 0
    over = []
    cur = None
    n = 0
    for ins in block:
        if ins.kind == "mfma":
            if cur is not None:
                c = gap_cost(cur)
                total += c
                if c > 16:
                    over.append((n - 1, c, [x.text for x in cur]))
            cur = []
            n += 1
        elif cur is not None:
            cur.append(ins)
    if cur is not None:
        c = gap_cost(cur)
        total += c
        if c > 16:
            over.append((n - 1, c, [x.text for x in cur]))
    return total, over


def emit(block):
    return "".join((x.text if x.kind == "label" else "  " + x.text) + "\n" for x in block)


class Op:
    def __init__(self, ins, lo=0, hi=10 ** 9):
        self.ins, self.lo, self.hi = ins, lo, hi


def sched(mf, streams, pre=(), rate=None):
    streams = [list(s) for s in streams]
    for s in streams:
        hi = 10 ** 9
        for o in reversed(s):
            hi = o.hi = min(o.hi, hi)
    rate = rate or {}
    out = list(pre)
    def cls(x):
        return 0 if x.is_scalar else (1 if x.kind in MEMK else 2)

    def insert(gap, ins):
        pos = next((k for k, x in enumerate(gap) if cls(x) > cls(ins)), len(gap))
        for k, x in enumerate(gap):
            dep = (x.wr & (ins.rd | ins.wr)) or (x.rd & ins.wr)
            dep = dep or (x.kind in ("wait", "barrier") or ins.kind in ("wait", "barrier") or
                          (x.kind in MEMK and ins.kind in MEMK))
            if dep:
                pos = max(pos, k + 1)
        return gap[:pos] + [ins] + gap[pos:]
    for g, m in enumerate(mf):
        gap = []
        taken = {k: 0 for k in range(len(streams))}
        while True:
            ready = [(s[0].hi, k) for k, s in enumerate(streams) if s and s[0].lo <= g]
            ready.sort()
            done = True
            for hi, k in ready:
                ins = streams[k][0].ins
                trial = insert(gap, ins)
                force = hi <= g or taken[k] < rate.get(k, 0)
                if gap_cost(trial) <= 16 or force:
                    if any(x.kind == "trans" and x.wr & ins.rd for x in gap) and not hi <= g:
                        continue
                    gap = trial
                    streams[k].pop(0)
                    taken[k] += 1
                    done = False
                    break
            if done:
                break
        out += [m] + gap
    rest = sorted(((o.hi, k, i, o.ins) for k, s in enumerate(streams) for i, o in enumerate(s)), key=lambda t: (t[1], t[2]))
    return out + [r[3] for r in rest]
```

```python
import argparse
import math
import struct
from fw import *
from asmlib import wrap

NQB = 6
TILE_G = 12288
TAU = 4192
TILE_L = 3 * TAU
HEAD_Q = 147456
HEAD_KV = 393216

V_KA, V_VA, V_DMA, V_QA = "v0", "v1", "v2", "v3"
L0 = 4
T0, T1 = "v10", "v11"
S0 = 12
P0 = 20
OV0, NOV = 68, 47
QA0 = 0
QBUF = 120
KA0 = 124
VA0 = 148
OA0 = 156
SRD_K, SRD_V, SRD_Q, SRD_O = "s[16:19]", "s[20:23]", "s[24:27]", "s[28:31]"
S_W, S_KOFF, S_VOFF, S_DMA, S_SLOT, S_NEW, S_DELTA, S_CNT, S_C, S_WOFF, S_T = (f"s{i}" for i in range(32, 43))
S_DLIM = "s54"


def f32(x):
    return "0x%08x" % struct.unpack("<I", struct.pack("<f", x))[0]


SPREAD = False


def Oreg(j, db):
    if not SPREAD:
        n = j * 12 + db
        return R("v", OV0 + 4 * n, 4) if n < NOV else R("a", OA0 + 4 * (n - NOV), 4)
    return Oreg2(j, db)


def Oreg2(j, db):
    if db >= 8:
        return R("a", OA0 + 4 * (j * 4 + db - 8), 4)
    n = j * 8 + db
    return R("v", OV0 + 4 * n, 4) if n < NOV else R("a", OA0 + 4 * 24, 4)


def Qreg(j, s):
    return R("a", QA0 + 4 * (j * 5 + s), 4) if s < 5 else R("a", QBUF, 4)


def Kreg(s):
    return R("a", KA0 + 4 * s, 4)


def Preg(par, j):
    return P0 + 24 * par + 4 * j


class Gen:
    def __init__(self, ring=5, pol="nt", opol="", stamps=False, cinit="-4.0", abl="", provar="356", groups="42", estep=2, espace=9, pref=1, remap=1, touch=0, qpol="nt", dist=3, dpos="s", pk=1, lat=7, jitter="", ahead=3):
        self.ahead = ahead
        self.jitter = jitter
        self.lat = lat
        self.pk = pk
        self.dpos = dpos
        self.D = dist
        self.qpol = qpol
        self.remap, self.touch = remap, touch
        self.pref = pref
        self.groups, self.estep, self.espace = [int(c) for c in groups], estep, espace
        self.provar = provar
        self.abl = abl
        self.R = ring
        self.pol, self.opol, self.stamps, self.cinit = pol, opol, stamps, cinit
        self.VBASE = ring * TILE_L
        assert ring == 5
        self.QBASE = (2 * ring + 1) * TILE_L
        self.FLAG = self.QBASE + 24576
        self.lds = self.FLAG + 256
        self.nstamp = 0

    def stamp(self):
        if not self.stamps:
            return []
        r = 64 + 4 * self.nstamp
        self.nstamp += 1
        return [raw(f"s_memtime s[{r}:{r+1}]", "salu"), raw(f"s_memrealtime s[{r+2}:{r+3}]", "salu")]

    def kread(self, kb, s, slot=0):
        return ds_read("ds_read_b128", Kreg(s), V_KA, slot * TILE_L + (s >> 1) * TAU + (s & 1) * 64 + kb * 512)

    def vread(self, db, half, base, slot=0, file="a"):
        return ds_read("ds_read_b64_tr_b16", R(file, base + 2 * half, 2), V_VA,
                       slot * TILE_L + (db >> 2) * TAU + (db & 3) * 32 + half * 512)

    def qread(self, j):
        return ds_read("ds_read_b128", R("a", QBUF, 4), V_QA, j * 1024)

    def dma_pair(self, k, base_sgpr=S_DMA, koff=S_KOFF, voff=S_VOFF, slot_off=0):
        tau = k % 3
        isv = k >= 3
        imm = (self.VBASE if isv else 0) + slot_off + tau * TAU - tau * 128
        return (salu("s_add_u32", "m0", base_sgpr, imm),
                buf_dma(V_DMA, SRD_V if isv else SRD_K, voff if isv else koff, tau * 128, self.pol))

    def softmax_ops(self, n, ppar):
        kb, j = divmod(n % 12, 6)
        s = S0 + 4 * (n % 2)
        p = Preg(ppar, j) + 2 * kb
        e = [valu("v_exp_f32", f"v{s+i}", f"v{s+i}") for i in range(4)]
        a = [valu("v_add_f32", f"v{L0+j}", f"v{s+i}", f"v{L0+j}") for i in range(4)]
        c = [valu("v_cvt_pk_bf16_f32", f"v{p+i}", f"v{s+2*i}", f"v{s+2*i+1}") for i in range(2)]
        return e, a, c

    def qk(self, n, s):
        j = n % 6
        d = R("v", S0 + 4 * (n % 2), 4)
        return mfma(d, Kreg(s), Qreg(j, s), self.cinit if s == 0 else d)

    def pv(self, db, j, par, vbase, file="a"):
        return mfma(Oreg(j, db), R(file, vbase, 4), R("v", Preg(par, j), 4), Oreg(j, db))

    def period(self, par, fill=False):
        N = 144
        sc = [[] for _ in range(N + 12)]
        mem = [[] for _ in range(N + 12)]
        va = [[] for _ in range(N + 12)]
        heavy = lambda n: n % 6 == 5
        for n in range(-1, 12):
            if n == -1 and fill:
                continue
            e, a, c = self.softmax_ops(n, par if n == -1 else 1 - par)
            g = 12 * n
            if heavy(n):
                plan = [(10, e[0]), (11, e[1]), (12, e[2]), (13, e[3]), (14, a[0]), (15, a[1]), (16, c[0]), (16, a[2]),
                        (17, a[3]), (18, c[1])]
            elif heavy(n + 1):
                plan = [(9, e[0]), (10, e[1]), (11, e[2]), (12, e[3]), (13, a[0]), (14, a[1]), (15, c[0]), (16, a[2]),
                        (17, a[3]), (18, c[1])]
            else:
                plan = [(9, e[0]), (10, e[1]), (11, e[2]), (12, e[3]), (13, a[0]), (14, a[1]), (15, c[0]), (16, a[2]),
                        (17, a[3]), (19, c[1])]
            for o, ins in plan:
                if g + o >= 0:
                    va[g + o].append(ins)
        for n in range(12):
            g = 12 * n
            nv = (n + 1) % 12
            vb = VA0 + 4 * ((n + 1) % 2)
            tpos = (8, 9) if heavy(n) else ((2, 3) if heavy(n - 1) else (1, 2))
            if not fill or n == 11:
                for h in range(2):
                    mem[g + tpos[h]].append(self.vread(nv, h, vb))
            mem[g + (7 if heavy(n) else 5)].append(self.qread((n + 1) % 6))
            if heavy(n):
                for s in range(6):
                    mem[g + 1 + s].append(self.kread(1 if n == 5 else 0, s))
        if not fill:
            pos = {"s": [(1, 6), (2, 6), (3, 6), (4, 6), (7, 6), (8, 6)],
                   "e": [(0, 8), (1, 6), (1, 8), (2, 6), (2, 8), (3, 6)],
                   "m": [(0, 8), (1, 6), (2, 6), (3, 6), (4, 6), (6, 8)],
                   "l": [(4, 6), (6, 8), (7, 6), (7, 8), (8, 6), (8, 8)]}[self.dpos]
            for k, (n, o) in enumerate(pos):
                m, d = self.dma_pair(k)
                sc[12 * n + o - 1].append(m)
                mem[12 * n + o].append(d)
        g = 12 * 9
        book = [salu("s_add_u32", S_DMA, S_DMA, TILE_L),
                salu("s_cmp_eq_u32", S_DMA, S_DLIM),
                salu("s_cselect_b32", S_DMA, S_WOFF, S_DMA),
                salu("s_add_u32", S_NEW, S_SLOT, TILE_L),
                salu("s_cmp_eq_u32", S_NEW, self.R * TILE_L),
                salu("s_cselect_b32", S_NEW, 0, S_NEW),
                salu("s_sub_u32", S_DELTA, S_NEW, S_SLOT),
                salu("s_mov_b32", S_SLOT, S_NEW),
                salu("s_add_u32", S_KOFF, S_KOFF, TILE_G), salu("s_add_u32", S_VOFF, S_VOFF, TILE_G)]
        for o, ins in zip((0, 1, 2, 3, 6, 7, 8, 9, 10, 11), book):
            sc[g + o].append(ins)
        g = 12 * 10
        va[g + 6] += [valu("v_add_u32", V_KA, S_DELTA, V_KA), valu("v_add_u32", V_VA, S_DELTA, V_VA)]
        sc[g + 7].append(wait(vm=6 * (self.D - 2), lgkm=1))
        sc[g + 8].append(barrier())
        mf = []
        for n in range(12):
            mf += [self.qk(n, s) for s in range(6)]
            mf += [None if fill else self.pv(n, j, par, VA0 + 4 * (n % 2)) for j in range(6)]
        if not fill and self.abl:
            def keep(x):
                t = x.text
                if "e" in self.abl and t.startswith("v_exp"): return False
                if "a" in self.abl and t.startswith("v_add_f32"): return False
                if "c" in self.abl and t.startswith("v_cvt"): return False
                if "k" in self.abl and x.kind == "lds_rd" and V_KA in x.rd: return False
                if "v" in self.abl and x.kind == "lds_rd" and V_VA in x.rd: return False
                if "q" in self.abl and x.kind == "lds_rd" and V_QA in x.rd: return False
                if "d" in self.abl and x.kind == "dma": return False
                if "b" in self.abl and x.kind == "barrier": return False
                return True
            mem = [[x for x in g_ if keep(x)] for g_ in mem]
            va = [[x for x in g_ if keep(x)] for g_ in va]
            sc = [[x for x in g_ if keep(x)] for g_ in sc]
            if "c" in self.abl:
                mf = [m if (i % 12) < 6 else self.pv(i // 12, i % 12 - 6, 0, VA0 + 4 * ((i // 12) % 2)) for i, m in enumerate(mf)]
        gaps = [sc[i] + mem[i] + va[i] for i in range(N)]
        tail = [x for i in range(N, N + 12) for x in va[i]]
        return mf, gaps, tail

    @staticmethod
    def flat(mf, gaps, lo, hi):
        out = []
        for i in range(lo, hi):
            if mf[i] is not None:
                out.append(mf[i])
            out += gaps[i]
        return out

    def addr_setup(self, lane, w):
        b = [valu("v_lshrrev_b32", "v6", 4, lane), valu("v_lshlrev_b32", "v6", 3, "v6"),
             valu("v_bfe_u32", "v7", lane, 3, 1), valu("v_add_u32", "v6", "v6", "v7"),
             valu("v_lshl_add_u32", "v6", w, 1, "v6"), valu("v_mul_u32_u24", "v6", 384, "v6"),
             valu("v_and_b32", "v7", 7, lane), valu("v_lshl_add_u32", V_DMA, "v7", 4, "v6")]

        def lds_row(dst, key):
            return [valu("v_bfe_u32", "v8", key, 1, 2), valu("v_mul_u32_u24", "v8", 1056, "v8"),
                    valu("v_lshrrev_b32", "v9", 3, key), valu("v_lshlrev_b32", "v9", 1, "v9"),
                    valu("v_and_b32", dst, 1, key), valu("v_add_u32", "v9", "v9", dst),
                    valu("v_lshl_add_u32", dst, "v9", 7, "v8")]
        b += [valu("v_and_b32", "v6", 15, lane), valu("v_lshrrev_b32", "v7", 4, lane)]
        b += lds_row(V_KA, "v6") + [valu("v_lshl_add_u32", V_KA, "v7", 4, V_KA)]
        b += [valu("v_lshrrev_b32", "v6", 2, lane)] + lds_row(V_VA, "v6")
        b += [valu("v_and_b32", "v6", 3, lane), valu("v_lshl_add_u32", V_VA, "v6", 3, V_VA),
              valu("v_add_u32", V_VA, self.VBASE, V_VA)]
        return b

    def slow_path(self):
        M = ["v16", "v17", "v18", "v19", T0, T1]
        S = S0
        SD = R("v", S, 4)
        QL = Preg(1, 0)
        lane, w, vq = "v4", "v5", V_QA

        def qreg(j, s):
            return Qreg(j, s) if s < 5 else R("v", QL + 4 * j, 4)
        setup = [wait(vm=0, lgkm=0), barrier(),
                 raw(f"v_mbcnt_lo_u32_b32 {lane}, -1, 0", "valu", [], [lane]),
                 raw(f"v_mbcnt_hi_u32_b32 {lane}, -1, {lane}", "valu", [lane], [lane]),
                 valu("v_mov_b32", w, S_W)]
        setup += self.addr_setup(lane, w)
        setup += [valu("v_mul_u32_u24", vq, 96, w), valu("v_and_b32", "v6", 15, lane), valu("v_add_u32", vq, vq, "v6"),
                  valu("v_mul_u32_u24", vq, 384, vq), valu("v_lshl_add_u32", vq, "v7", 4, vq)]
        for j in range(NQB):
            setup.append(salu("s_mov_b32", S_T, j * 16 * 384))
            setup += [buf_load(qreg(j, s), vq, SRD_Q, S_T, s * 64) for s in range(6)]
        setup += [wait(vm=0)]
        setup += [valu("v_mov_b32", m, "0xff800000") for m in M]
        setup += [salu("s_mov_b32", S_KOFF, 0)]

        def load(with_v):
            o = []
            for k in range(6 if with_v else 3):
                o += list(self.dma_pair(k, S_WOFF, S_KOFF, S_KOFF))
            return o + [wait(vm=0), barrier()]

        def chain(j):
            return [mfma(SD, Kreg(s), qreg(j, s), "0" if s == 0 else SD) for s in range(6)]

        def close(name):
            return [wait(lgkm=0), barrier(), salu("s_add_u32", S_KOFF, S_KOFF, TILE_G),
                    salu("s_cmp_lt_u32", S_KOFF, HEAD_KV), branch("s_cbranch_scc1", name)]
        maxl = load(False)
        for kb in range(2):
            maxl += [self.kread(kb, s) for s in range(6)]
            for j in range(NQB):
                maxl += chain(j) + [valu("v_max3_f32", M[j], M[j], f"v{S}", f"v{S+1}"),
                                    valu("v_max3_f32", M[j], M[j], f"v{S+2}", f"v{S+3}")]
        maxl += close("L_slow_max")
        mid = []
        for m in M:
            for op in ("v_permlane32_swap_b32", "v_permlane16_swap_b32"):
                mid += [valu("v_mov_b32", vq, m), valu(op, m, vq), valu("v_max_f32", m, m, vq)]
        mid += [valu("v_mul_f32", m, S_C, m) for m in M]
        mid += [valu("v_accvgpr_write_b32", f"a{r}", 0) for r in range(OA0, 256)]
        mid += [valu("v_mov_b32", f"v{r}", 0) for r in list(range(OV0, 256)) + list(range(L0, L0 + 6))]
        mid += [salu("s_mov_b32", S_KOFF, 0)]
        main = load(True)
        for kb in range(2):
            main += [self.kread(kb, s) for s in range(6)]
            for j in range(NQB):
                p = Preg(0, j) + 2 * kb
                main += chain(j)
                main += [valu("v_fma_f32", f"v{S+i}", f"v{S+i}", S_C, "-" + M[j]) for i in range(4)]
                main += [valu("v_exp_f32", f"v{S+i}", f"v{S+i}") for i in range(4)]
                main += [valu("v_add_f32", f"v{L0+j}", f"v{S+i}", f"v{L0+j}") for i in range(4)]
                main += [valu("v_cvt_pk_bf16_f32", f"v{p+i}", f"v{S+2*i}", f"v{S+2*i+1}") for i in range(2)]
        for db in range(12):
            vb = VA0 + 4 * (db % 2)
            main += [self.vread(db, h, vb) for h in range(2)]
            main += [self.pv(db, j, 0, vb) for j in range(NQB)]
        main += close("L_slow_main")
        return setup, maxl, mid, main, self.epilogue_plain()

    def prologue(self):
        b = []
        b += [salu("s_cmp_ge_u32", "s2", 256), branch("s_cbranch_scc1", "L_end"),
              raw("s_load_dwordx4 s[4:7], s[0:1], 0", "smem"), raw("s_load_dwordx4 s[8:11], s[0:1], 16", "smem")]
        if self.stamps:
            b += [raw("s_load_dwordx4 s[12:15], s[0:1], 32", "smem"),
                  raw("s_memrealtime s[56:57]"), raw("s_memtime s[58:59]")]
        lane, w = "v4", "v5"
        b += [valu("v_and_b32", lane, 63, "v0"), valu("v_lshrrev_b32", w, 6, "v0"),
              valu("v_readfirstlane_b32", S_W, w)]
        if self.pref:
            b += [raw("s_getpc_b64 s[50:51]", "salu", [], ["s50", "s51"]), label("L_pc"),
                  salu("s_lshr_b32", S_T, "s2", 3), salu("s_lshl_b32", S_T, S_T, 2), salu("s_add_u32", S_T, S_T, S_W),
                  salu("s_min_u32", S_T, S_T, "(L_end-L_pc)/1024"), salu("s_lshl_b32", S_T, S_T, 10),
                  valu("v_lshl_add_u32", "v6", lane, 4, S_T),
                  I(f"global_load_dwordx4 v[{OV0}:{OV0+3}], v6, s[50:51]", "vm_ld", ["v6", "s50", "s51"], regs("v", OV0, 4))]
        b += self.addr_setup(lane, w)
        g = "v7"
        b += [valu("v_mul_u32_u24", V_QA, 6144, w), valu("v_lshl_add_u32", V_QA, lane, 4, V_QA),
              valu("v_add_u32", V_QA, self.QBASE, V_QA)]
        for i_ in range(3):
            d = f"v{OV0+80+i_}"
            b += [valu("v_add_u32", d, 64 * i_, lane), valu("v_mul_u32_u24", "v6", 2731, d),
                  valu("v_lshrrev_b32", "v6", 16, "v6"), valu("v_and_b32", "v6", 6, "v6"),
                  valu("v_xor_b32", d, d, "v6"), valu("v_lshlrev_b32", d, 4, d)]
        b += [valu("v_and_b32", "v6", 15, lane), valu("v_and_b32", "v8", 6, lane), valu("v_xor_b32", "v8", "v8", g),
              valu("v_mul_u32_u24", "v6", 384, "v6"), valu("v_lshl_add_u32", f"v{OV0+83}", "v8", 4, "v6"),
              valu("v_xor_b32", f"v{OV0+84}", 64, f"v{OV0+83}")]
        head = "s2"
        if self.remap:
            head = "s3"
            b += [salu("s_and_b32", head, "s2", 7), salu("s_lshl_b32", head, head, 5),
                  salu("s_lshr_b32", S_T, "s2", 3), salu("s_add_u32", head, head, S_T)]
        S_SA, S_SB = "s43", "s44"
        VQ = [f"v{OV0+80+i_}" for i_ in range(3)]
        b += [salu("s_mul_i32", S_KOFF, head, HEAD_KV), salu("s_mul_i32", S_VOFF, head, HEAD_Q),
              salu("s_mov_b32", "s18", HEAD_KV), salu("s_mov_b32", "s19", "0x20000"),
              salu("s_mov_b32", "s26", HEAD_Q), salu("s_mov_b32", "s27", "0x20000"),
              salu("s_mul_i32", S_WOFF, S_W, 1056),
              salu("s_lshr_b32", S_T, S_W, 1), salu("s_mul_i32", S_T, S_T, 3), salu("s_add_u32", S_T, S_T, S_W),
              salu("s_add_u32", S_T, S_T, 2), salu("s_mul_i32", S_SB, S_T, TILE_L),
              salu("s_add_u32", S_SA, S_SB, 2 * TILE_L), salu("s_mul_i32", S_T, S_W, 36864)]
        b += [valu("v_add_u32", VQ[i_], S_T, VQ[i_]) for i_ in range(3)]
        b += [raw("s_waitcnt lgkmcnt(0)", "salu")]
        b += [salu("s_add_u32", "s16", "s6", S_KOFF), salu("s_addc_u32", "s17", "s7", 0),
              salu("s_add_u32", "s24", "s4", S_VOFF), salu("s_addc_u32", "s25", "s5", 0)]
        late = [salu("s_add_u32", "s20", "s8", S_KOFF), salu("s_addc_u32", "s21", "s9", 0),
                salu("s_mov_b32", "s22", HEAD_KV), salu("s_mov_b32", "s23", "0x20000"),
                salu("s_add_u32", "s28", "s10", S_VOFF), salu("s_addc_u32", "s29", "s11", 0),
                salu("s_mov_b32", "s30", HEAD_Q), salu("s_mov_b32", "s31", "0x20000"),
                salu("s_mov_b32", S_C, f32(math.log2(math.e) / math.sqrt(192.0))),
                salu("s_mov_b32", S_CNT, 14)]

        def group(ktile, vtile):
            o = []
            for k in range(6):
                tile = vtile if k >= 3 else ktile
                if tile is None:
                    continue
                slot = (tile + 1) % self.R if k >= 3 else tile % self.R
                if k % 3 == 0:
                    o.append(salu("s_mov_b32", S_T, tile * TILE_G))
                o += list(self.dma_pair(k, S_WOFF, S_T, S_T, slot * TILE_L))
            return o
        RAW = OV0
        LO = OV0 + 48
        Q5 = OV0 + 72
        VR = [f"v{OV0+83+i_}" for i_ in range(2)]
        LAST = OV0 + 96
        ZERO = "a[252:255]"
        CV = T0
        KB = Preg(1, 0)

        def ubase(u):
            return (S_SB if u in (2, 3) else S_SA), (u & 1) * 6144

        def qunit(u):
            sb, off = ubase(u)
            o = []
            for i_ in range(3):
                o += [salu("s_add_u32", "m0", sb, off + i_ * 1024)]
                o += [salu("s_mov_b32", S_T, u * 6144)] if i_ == 0 else [nop(0)]
                o += [buf_dma(VQ[i_], SRD_Q, S_T, h * 3072, self.qpol) for h in range(2)]
            return o

        def qraw(u):
            sb, off = ubase(u)
            o = [valu("v_add_u32", T0, sb, VR[0]), valu("v_add_u32", T1, sb, VR[1])]
            for s_ in range(6):
                o.append(ds_read("ds_read_b128", R("v", RAW + 4 * ((u % 2) * 6 + s_), 4), (T0, T1)[s_ & 1],
                                 off + (s_ >> 1) * 128))
            return o

        def unpack(j):
            r0 = RAW + 24 * (j % 2)
            o = []
            for i_ in range(24):
                o += [valu("v_lshlrev_b32", f"v{LO+i_}", 16, f"v{r0+i_}"),
                      valu("v_and_b32", f"v{r0+i_}", "0xffff0000", f"v{r0+i_}")]
            return o

        def scale(j):
            o = []
            for base in (LO, RAW + 24 * (j % 2)):
                o += [I(f"v_pk_mul_f32 {R('v', base+2*i_, 2)}, {R('v', base+2*i_, 2)}, s[52:53]", "valu",
                        regs("v", base + 2 * i_, 2) + ["s52", "s53"], regs("v", base + 2 * i_, 2)) for i_ in range(12)]
            return o

        def pack(j):
            o = []
            for s_ in range(6):
                r0 = RAW + 24 * (j % 2) + 4 * s_
                dst = r0 if s_ < 5 else Q5 + 4 * (j % 2)
                o += [valu("v_cvt_pk_bf16_f32", f"v{dst+i_}", f"v{LO+4*s_+i_}", f"v{r0+i_}") for i_ in range(4)]
                if s_ < 5:
                    o += [valu("v_accvgpr_write_b32", f"a{QA0+4*(j*5+s_)+i_}", f"v{dst+i_}") for i_ in range(4)]
                else:
                    o.append(ds_write("ds_write_b128", V_QA, R("v", dst, 4), j * 1024))
            return o

        def clear(file, lo, hi):
            o = []
            while hi - lo >= 16:
                o.append(mfma32(R(file, lo, 16), ZERO, ZERO, "0"))
                lo += 16
            while lo < hi:
                o.append(mfma(R(file, lo, 4), ZERO, ZERO, "0"))
                lo += 4
            return o

        def chains(j):
            o = []
            for kb in range(2):
                d = R("v", S0 + 4 * kb, 4)
                for s_ in range(6):
                    a_ = Kreg(s_) if kb == 0 else R("v", KB + 4 * s_, 4)
                    q_ = Qreg(j, s_) if s_ < 5 else R("v", Q5 + 4 * (j % 2), 4)
                    o.append(mfma(d, a_, q_, self.cinit if s_ == 0 else d))
            return o

        def soft(j, kb):
            sreg = S0 + 4 * kb
            p = Preg(0, j) + 2 * kb
            e = [valu("v_exp_f32", f"v{sreg+i_}", f"v{sreg+i_}") for i_ in range(4)]
            a_ = [valu("v_add_f32", f"v{L0+j}", f"v{sreg+i_}", f"v{L0+j}") for i_ in range(4)]
            c = [valu("v_cvt_pk_bf16_f32", f"v{p+i_}", f"v{sreg+2*i_}", f"v{sreg+2*i_+1}") for i_ in range(2)]
            return e + a_ + c

        def weave(ms, ops, per=2):
            o = []
            ops = list(ops)
            for m in ms:
                o.append(m)
                o += ops[:per]
                ops = ops[per:]
            return o, ops

        plan = [int(c) for c in self.provar]
        queue = []

        def issue(name, ops):
            queue.append((name, sum(1 for x in ops if x.kind == "dma")))
            return ops

        def landed(name, **kw):
            k = [n for n, _ in queue].index(name)
            return wait(vm=sum(c for _, c in queue[k + 1:]), **kw)

        def extras(u):
            o = []
            if plan[0] == u:
                o += issue("KV0", group(1, 0))
            if plan[1] == u:
                o += issue("G4", group(2, 1))
            if plan[2] == u and self.D >= 4:
                o += issue("G3", group(3, 2))
            return o

        b += issue("K0", group(0, None)) + issue("U0", qunit(0)) + issue("U1", qunit(1))
        b += late + [salu("s_mov_b32", "s52", S_C), salu("s_mov_b32", "s53", S_C)]
        b += [valu("v_accvgpr_write_b32", f"a{r}", 0) for r in range(252, 256)]
        b += [valu("v_mov_b32", f"v{r}", 0) for r in range(L0, L0 + 6)]
        b += [valu("v_mov_b32", "v14", self.FLAG), valu("v_mov_b32", "v15", 0), ds_write("ds_write_b32", "v14", "v15", 0)]
        b += clear("a", OA0, 252) + clear("v", LAST, 256)
        A = self.ahead
        for u in range(2, A):
            b += issue(f"U{u}", qunit(u))
        b += [landed("U0")] + qraw(0) + [barrier()]
        b += [self.kread(0, s_) for s_ in range(6)]
        b += [ds_read("ds_read_b128", R("v", KB + 4 * s_, 4), V_KA, (s_ >> 1) * TAU + (s_ & 1) * 64 + 512) for s_ in range(6)]
        b += issue(f"U{A}", qunit(A))
        b += unpack(0) + scale(0) + pack(0)
        for u in range(1, 6):
            b += self.stamp() if self.touch == 2 and u in (1, 2, 4) else []
            b += [landed(f"U{u}")] + (self.stamp() if (self.touch == 1 and u >= 4) or (self.touch == 2 and u in (1, 2, 4)) else []) + qraw(u)
            if u == 3:
                b += [wait(lgkm=0), barrier()]
            ex = (issue(f"U{u+A}", qunit(u + A)) if u + A < 6 else []) + extras(u)
            sa, sb = soft(u - 1, 0), soft(u - 1, 1)
            b += sched(chains(u - 1), [[Op(x) for x in ex], [Op(x, 4) for x in unpack(u)]])
            b += sa[:4] + sb[:4] + scale(u) + sa[4:] + sb[4:]
            pk_ = pack(u)
            if u == 5:
                z = clear("v", RAW, RAW + 16) + clear("v", OV0 + 80, LAST)
                pk_ = pk_[:8] + z[:1] + pk_[8:16] + z[1:] + pk_[16:]
            b += pk_
        b += [valu("v_add_u32", V_KA, TILE_L, V_KA), valu("v_add_u32", V_VA, TILE_L, V_VA),
              salu("s_mov_b32", S_SLOT, TILE_L), salu("s_add_u32", S_DMA, S_WOFF, (self.D % 5) * TILE_L),
              salu("s_add_u32", S_DLIM, S_WOFF, self.R * TILE_L),
              salu("s_mov_b32", S_KOFF, self.D * TILE_G), salu("s_mov_b32", S_VOFF, (self.D - 1) * TILE_G)]
        st_ = self.stamp if self.touch == 1 else list
        b += st_() + [landed("KV0", lgkm=0)] + st_() + [barrier()]
        ch = chains(5)
        for s_ in range(6):
            b += [ch[s_], self.kread(0, s_)]
        b += [ch[6], self.qread(0), ch[7], self.vread(0, 0, VA0), ch[8], self.vread(0, 1, VA0)] + ch[9:]
        z = clear("v", RAW + 16, OV0 + 80)
        sa = soft(5, 0)
        rest = extras(6) + (group(4, 3) if self.D == 5 else [])
        b += [z[0]] + sa[:3] + [z[1]] + sa[3:7] + [z[2]] + sa[7:] + rest + [z[3]] + soft(5, 1)[:2]
        return b

    def group_tail(self, js, bufs, first, carry=(), extra=(), fin=()):
        n = len(js)
        LAT = self.lat
        mf, cstart, gstart = [], [], []
        v = 0
        for c in range(4 * n):
            ph, k = divmod(c, 2 * n)
            jj = js[c % n]
            d = R("v", S0 + 4 * (c % 2), 4)
            cstart.append(len(mf))
            mf += [mfma(d, Kreg(s), Qreg(jj, s), self.cinit if s == 0 else d) for s in range(6)]
            upto = 12 * ph + (k + 1) * 12 // (2 * n)
            if ph == 1 and k < 2 * n - 1:
                upto -= (4 + n - 1) // n * (k + 1) // (2 * n - 1)
            if c == 4 * n - 1:
                upto = 36
            while v < upto:
                gstart.append(len(mf))
                f_, b_ = bufs[v % len(bufs)]
                mf += [self.pv(v % 12, x, (1, 0, 1)[v // 12], b_, f_) for x in js]
                v += 1
        sm = [Op(x, 0, cstart[1] - 1) for x in carry]
        for c in range(4 * n):
            ph, kb, jj = c // (2 * n), (c // n) % 2, js[c % n]
            sreg = S0 + 4 * (c % 2)
            p = Preg(ph, jj) + 2 * kb
            hi = gstart[12 * (ph + 1)] + js.index(jj) - 2
            if c + 2 < 4 * n:
                hi = min(hi, cstart[c + 2] - 1)
            e = [valu("v_exp_f32", f"v{sreg+i}", f"v{sreg+i}") for i in range(4)]
            a = [valu("v_add_f32", f"v{L0+jj}", f"v{sreg+i}", f"v{L0+jj}") for i in range(4)]
            cv = [valu("v_cvt_pk_bf16_f32", f"v{p+i}", f"v{sreg+2*i}", f"v{sreg+2*i+1}") for i in range(2)]
            lo = cstart[c] + 5 + 3
            for k, x in enumerate(e + [cv[0], a[0], cv[1], a[1], a[2], a[3]]):
                last = c + 2 < 4 * n
                h = hi - (9 - k) // 2 if (last or k < 7) else 10 ** 9
                sm.append(Op(x, lo, max(h, lo)))
        sm += [Op(x, gstart[24] + n) for x in fin]
        sync_gap = cstart[n] + 2 if first else -1
        sync, sync2 = [], sync_gap
        if first and self.D == 3:
            for k in range(3, 6):
                m_, d_ = self.dma_pair(k)
                sync += [Op(m_, 2 * k - 5, 2 * k - 5), Op(d_, 2 * k - 4, 2 * k - 4)]
            sync2 = gstart[24 - len(bufs)] - 2
            sync += [Op(wait(vm=3), sync_gap - 1, sync_gap - 1), Op(barrier(), sync_gap, sync_gap),
                     Op(wait(vm=0), sync2 - 1, sync2 - 1), Op(barrier(), sync2, sync2)]
        elif first:
            sync = [Op(wait(vm=0), sync_gap - 1, sync_gap - 1), Op(barrier(), sync_gap, sync_gap)]
        kst = []
        for st_ in range(1, 4):
            for s in range(6):
                lo = max(cstart[st_ * n - 1] + s, sync_gap + 1 if st_ == 2 else 0)
                kst.append(Op(self.kread(st_ % 2, s, st_ // 2), lo, max(cstart[st_ * n] + s - LAT, lo)))
        qst = [Op(self.qread(js[c % n]), cstart[c - 1] + 5, cstart[c] + 5 - LAT) for c in range(1, 4 * n)]
        vst = []
        pre = []
        for v in range(36):
            f_, b_ = bufs[v % len(bufs)]
            rd = [self.vread(v % 12, h, b_, v // 12, f_) for h in range(2)]
            if v == 0 and first:
                continue
            if v < len(bufs) and not first:
                pre += rd
                continue
            lo = gstart[v - len(bufs)] + n - 1 if v >= len(bufs) else 0
            if v >= 12:
                lo = max(lo, (sync2 if v >= 24 else sync_gap) + 1)
            vst += [Op(x, lo, max(gstart[v] - LAT, lo)) for x in rd]
        if not first:
            pre = [self.kread(0, s) for s in range(6)] + [self.qread(js[0])] + pre
        return pre, sched(mf, [sm, kst, qst, vst, sync, list(extra)])

    def row_sums(self, js, t0):
        b = []
        for op in ("v_permlane32_swap_b32", "v_permlane16_swap_b32"):
            b += [valu("v_mov_b32", f"v{t0+k}", f"v{L0+j}") for k, j in enumerate(js)]
            b += [valu(op, f"v{L0+j}", f"v{t0+k}") for k, j in enumerate(js)]
            b += [valu("v_add_f32", f"v{L0+j}", f"v{L0+j}", f"v{t0+k}") for k, j in enumerate(js)]
        return b

    def range_check(self, js, first):
        b = []
        if first:
            b += [salu("s_mov_b32", S_NEW, f32(2.0 ** 12)), salu("s_mov_b32", S_DELTA, f32(2.0 ** -20)),
                  salu("s_mov_b64", "s[44:45]", 0)]
        for j in js:
            b += [valu("v_cmp_nge_f32", "s[46:47]", S_NEW, f"v{L0+j}"), valu("v_cmp_nle_f32", "s[48:49]", S_DELTA, f"v{L0+j}")]
            b += [salu("s_or_b64", "s[44:45]", "s[44:45]", "s[46:47]"), salu("s_or_b64", "s[44:45]", "s[44:45]", "s[48:49]")]
        return b

    EW = [f"v{P0+i}" for i in range(4)]
    ER = [f"v{P0+4+i}" for i in range(3)]
    EG = f"v{P0+7}"

    def epi_addr(self):
        lane, t, u = T0, T1, V_DMA
        b = [raw(f"v_mbcnt_lo_u32_b32 {lane}, -1, 0", "valu", [], [lane]),
             raw(f"v_mbcnt_hi_u32_b32 {lane}, -1, {lane}", "valu", [lane], [lane]),
             salu("s_lshr_b32", S_T, S_W, 1), salu("s_mul_i32", S_T, S_T, 6 * TILE_L),
             salu("s_and_b32", S_SLOT, S_W, 1), salu("s_mul_i32", S_SLOT, S_SLOT, 12288),
             salu("s_add_u32", S_T, S_T, S_SLOT), salu("s_add_u32", S_T, S_T, (2 * TILE_L + 127) // 128 * 128),
             salu("s_and_b32", S_T, S_T, "0xffffff80"),
             valu("v_and_b32", t, 15, lane), valu("v_mul_u32_u24", u, 384, t), valu("v_add_u32", u, S_T, u),
             valu("v_bfe_u32", t, lane, 4, 1), valu("v_lshl_add_u32", u, t, 3, u),
             valu("v_lshrrev_b32", t, 5, lane), valu("v_xor_b32", t, t, lane), valu("v_and_b32", t, 7, t),
             valu("v_lshl_add_u32", self.EW[0], t, 4, u)]
        b += [valu("v_xor_b32", self.EW[i], 32 * i, self.EW[0]) for i in range(1, 4)]
        for i in range(3):
            r = self.ER[i]
            b += [valu("v_add_u32", r, 64 * i, lane), valu("v_mul_u32_u24", t, 2731, r),
                  valu("v_lshrrev_b32", t, 16, t), valu("v_xor_b32", r, r, t), valu("v_lshl_add_u32", r, r, 4, S_T)]
        b += [salu("s_mul_i32", S_T, S_W, 36864), valu("v_lshl_add_u32", self.EG, lane, 4, S_T)]
        return b

    def epi_stores(self, j):
        o = []
        for i in range(6):
            pre = [salu("s_mov_b32", S_T, j * 6144 + i * 1024)] if i % 4 == 0 else []
            o.append(pre + [buf_store(Oreg(j, i), self.EG, SRD_O, S_T, (i % 4) * 1024, self.opol)])
        return o

    def epi_block(self, j, pend, first=3, step=1):
        b = []
        for db in range(12):
            src = expand(Oreg(j, db))
            if src[0][0] == "a":
                t = S0 + 4 * (db % 2)
                b += [valu("v_accvgpr_read_b32", f"v{t+i}", src[i]) for i in range(4)]
                src = [f"v{t+i}" for i in range(4)]
            if self.pk:
                r0, lp = int(src[0][1:]), (L0 + j) & ~1
                sel = "op_sel:[0,1] op_sel_hi:[1,1]" if (L0 + j) & 1 else "op_sel_hi:[1,0]"
                b += [I(f"v_pk_mul_f32 {R('v', r0+2*i, 2)}, {R('v', r0+2*i, 2)}, {R('v', lp, 2)} {sel}", "valu",
                        regs("v", r0 + 2 * i, 2) + regs("v", lp, 2), regs("v", r0 + 2 * i, 2)) for i in range(2)]
            else:
                b += [valu("v_mul_f32", src[i], src[i], f"v{L0+j}") for i in range(4)]
            b += [valu("v_cvt_pk_bf16_f32", src[i], src[2 * i], src[2 * i + 1]) for i in range(2)]
            b += [ds_write("ds_write_b64", self.EW[db & 3], R("v", int(src[0][1:]), 2), (j % 2) * 6144 + (db >> 2) * 128)]
            if db >= first and (db - first) % step == 0 and pend:
                b += pend.pop(0)
        b += [ds_read("ds_read_b128", Oreg(j, i), self.ER[i % 3], (j % 2) * 6144 + (i // 3) * 3072) for i in range(6)]
        return b

    def epi_all(self, js, pend):
        b = []
        for j in js:
            b += self.epi_block(j, pend)
            b += [x for p in pend for x in p]
            pend = self.epi_stores(j)
        return b + [x for p in pend for x in p]

    def rcp(self, js):
        return [valu("v_rcp_f32", f"v{L0+j}", f"v{L0+j}") for j in js]

    def epilogue_plain(self):
        js = list(range(NQB))
        return self.row_sums(js, S0) + self.rcp(js) + self.epi_addr() + self.epi_all(js, [])

    def tail(self, carry):
        groups, k = [], 0
        for n in self.groups:
            groups.append(list(range(k, k + n)))
            k += n
        assert k == NQB and groups[0][-1] < 4 and len(groups[0]) >= 2
        bufs0 = [("a", VA0), ("a", VA0 + 4), ("v", Preg(0, 4)), ("v", Preg(0, 5))]
        bufs1 = [("a", VA0), ("a", VA0 + 4), ("a", 0), ("a", 4)]
        def fin(gi):
            js = groups[gi]
            o = self.row_sums(js, S0) + self.range_check(js, gi == 0) + self.rcp(js)
            return o + (self.epi_addr() if gi == 0 else [])
        _, b = self.group_tail(groups[0], bufs0, True, carry, (), fin(0))
        left = []
        for gi, js in enumerate(groups):
            last = gi == len(groups) - 1
            b += self.stamp() if gi in (0, len(groups) - 1) and self.touch != 2 else []
            if last:
                b += self.epi_all(js, left)
                break
            nxt = groups[gi + 1]
            for x, j in enumerate(js):
                if x == len(js) - 1:
                    pos = len(b)
                b += self.epi_block(j, left, 2, self.estep)
                left += self.epi_stores(j)
            nm = 60 * len(nxt)
            take = min(len(left), max(0, (nm - 4) // self.espace))
            extra = [Op(x, 4 + self.espace * i, 4 + self.espace * i) for i, p in enumerate(left[:take]) for x in p]
            left = left[take:]
            pre, t1 = self.group_tail(nxt, bufs1, False, (), extra, fin(gi + 1))
            b[pos:pos] = pre
            b += t1
        b += [salu("s_cmp_eq_u64", "s[44:45]", 0), branch("s_cbranch_scc1", "L_inrange"),
              valu("v_mov_b32", T0, self.FLAG), valu("v_mov_b32", T1, 1), ds_write("ds_write_b32", T0, T1, 0),
              label("L_inrange")]
        b += [wait(lgkm=0), barrier(), valu("v_mov_b32", T1, self.FLAG), ds_read("ds_read_b32", T1, T1, 0),
              valu("v_readfirstlane_b32", S_T, T1), salu("s_cmp_lg_u32", S_T, 0), branch("s_cbranch_scc1", "L_slow")]
        return b

    def stamp_out(self):
        if not self.stamps:
            return ""
        n = 4 + 2 * self.nstamp
        s = "  s_waitcnt vmcnt(0)\n  s_barrier\n  s_memrealtime s[60:61]\n  s_memtime s[62:63]\n  s_waitcnt lgkmcnt(0)\n"
        s += f"  s_cmp_lg_u32 {S_W}, 0\n  s_cbranch_scc1 L_end\n  s_mov_b64 exec, 1\n"
        if self.stamps == "prof":
            s += f"  s_mov_b64 exec, 0xffffffff\n  v_mbcnt_lo_u32_b32 v1, -1, 0\n  v_lshlrev_b32 v1, 2, v1\n  v_add_u32 v2, {self.FLAG + 8}, v1\n  ds_read_b32 v2, v2\n"
            s += f"  s_lshl_b32 s3, s2, 7\n  v_add_u32 v1, s3, v1\n  v_add_u32 v1, 0x100000, v1\n  s_waitcnt lgkmcnt(0)\n  global_store_dword v1, v2, s[14:15]\n  s_mov_b64 exec, 1\n"
        if self.stamps == "dbg":
            s += "  v_mov_b32 v1, 0\n  v_mov_b32 v2, s60\n  global_atomic_umax v1, v2, s[12:13]\n"
            s += "  s_not_b32 s3, s56\n  v_mov_b32 v3, s3\n  global_atomic_umax v1, v3, s[12:13] offset:4\n"
            s += "  v_mov_b32 v4, s56\n  global_atomic_umax v1, v4, s[12:13] offset:8\n"
            s += "  s_cmp_lg_u32 s2, 100\n  s_cbranch_scc1 L_end\n"
            vals = [(66 + 4 * i, 56) for i in range(self.nstamp)] + [(60, 56)] + [(64 + 4 * i, 58) for i in range(self.nstamp)] + [(62, 58)]
            for i, (x, y) in enumerate(vals):
                s += f"  s_sub_u32 s3, s{x}, s{y}\n  v_mov_b32 v2, s3\n  global_store_dword v1, v2, s[12:13] offset:{16+4*i}\n"
            return s
        s += f"  s_mul_i32 s3, s2, {8*n}\n  v_mov_b32 v1, s3\n"
        for i in range(n):
            r = 56 + 2 * i
            s += f"  v_mov_b32 v2, s{r}\n  v_mov_b32 v3, s{r+1}\n  global_store_dwordx2 v1, v[2:3], s[14:15] offset:{8*i}\n  s_nop 1\n"
        return s

    def build(self, verbose=False):
        ROT = 8
        pro = self.prologue()
        mfE, gE, tailE = self.period(0)
        mfO, gO, _ = self.period(1)
        if self.stamps == "prof":
            for gg in (gE, gO):
                gg[12 * 2 + 7] += [valu("v_mov_b32", T0, "s52"), valu("v_add_u32", T1, 4, T1)]
                gg[12 * 2 + 8] += [raw("s_memrealtime s[52:53]"), ds_write("ds_write_b32", T1, T0, 0)]
            pro += [valu("v_mov_b32", T1, self.FLAG + 4), raw("s_memrealtime s[52:53]")]
        gE[12 * 11 + 7].append(salu("s_cmp_eq_u32", S_CNT, 0))
        exit_tail = gE[143] + tailE
        gE[143] = [branch("s_cbranch_scc1", "L_drain")] + gE[143]
        gO[12 * 11 + 7].append(salu("s_sub_u32", S_CNT, S_CNT, 1))
        fill = self.stamp()
        head = self.flat(mfE, gE, 0, ROT)
        body = self.flat(mfE, gE, ROT, 144) + self.flat(mfO, gO, 0, 144) + self.flat(mfE, gE, 0, ROT)
        body.append(branch("s_branch", "L_top"))

        log = []
        pro, st = fix(pro + fill, State())
        head1, st1 = fix(head, st, hoist=True)
        body1, st2 = fix(body, st1, hoist=True, log=log)
        body2, st3 = fix(body1, st2, hoist=True, log=log)
        errs, _ = verify(pro + head1 + body2 + body2 + body2)
        assert not errs, errs[:10]
        kx = next(i for i, x in enumerate(body2) if x.kind == "branch")
        _, stx = verify(pro + head1 + body2 + body2[:kx + 1])
        post = self.stamp() + self.tail(exit_tail)
        post, _ = fix(post, stx, hoist=True)
        errs, _ = verify(pro + head1 + body2[:kx + 1] + post)
        assert not errs, errs[:10]
        if verbose:
            tot, over = estimate(body2)
            print("loop estimate cycles (288 mfma, ideal 4608):", tot)
            for o in over:
                print("  over:", o)
            print("  inserted:", [x for x in log if x[0] == "nop"])
            print("  waits:", len([x for x in log if x[0] == "wait"]), "instrs:", len(body2))
            tot, over = estimate(post)
            print("tail estimate:", tot, "mfma:", sum(x.kind == "mfma" for x in post), "instrs:", len(post))
            print("  over:", [(o[0], o[1]) for o in over])
        self.njit = 0

        def jit(block):
            if not self.jitter:
                return block
            mask, where, amount = self.jitter.split(",")
            out = []
            for x in block:
                if x.kind != "barrier":
                    out.append(x)
                    continue
                self.njit += 1
                lab = f"L_jit{self.njit}"
                nap = [raw("s_cselect_b32 s99, 1, 0"), raw(f"s_lshl_b32 s98, 1, {S_W}"), raw(f"s_and_b32 s98, s98, {mask}"),
                       raw(f"s_cbranch_scc0 {lab}"), raw(f"s_sleep {amount}"), label(lab), raw("s_cmp_lg_u32 s99, 0")]
                out += nap + [x] if where == "b" else [x] + nap
            return out
        text = emit(jit(pro + head1)) + ".p2align 6\nL_top:\n" + emit(jit(body2)) + "L_drain:\n" + emit(jit(post))
        text += self.stamp_out() + "L_end:\n  s_endpgm\n"
        setup, maxl, mid, main, epi = self.slow_path()
        st = State()
        blocks = []
        for blk, loop in ((setup, False), (maxl, True), (mid, False), (main, True), (epi, False)):
            blk, st = fix(blk, st)
            if loop:
                blk, st = fix(blk, st)
            blocks.append(blk)
        setup, maxl, mid, main, epi = blocks
        errs, _ = verify(post + setup + maxl + maxl + mid + main + main + epi)
        assert not errs, errs[:10]
        text += "L_slow:\n" + emit(setup) + "L_slow_max:\n" + emit(maxl) + emit(mid) + "L_slow_main:\n" + emit(main)
        text += emit(epi) + "  s_endpgm\n"
        return wrap(text, 256, 256, self.lds, 512, 256)


if __name__ == "__main__":
    ap = argparse.ArgumentParser()
    ap.add_argument("-o", default="k.s")
    ap.add_argument("--stamps", default="")
    ap.add_argument("--ring", type=int, default=5)
    ap.add_argument("--pol", default="nt")
    ap.add_argument("--opol", default="nt")
    ap.add_argument("--abl", default="")
    ap.add_argument("--pref", type=int, default=1)
    ap.add_argument("--qpol", default="nt")
    ap.add_argument("--dist", type=int, default=3)
    ap.add_argument("--dpos", default="s")
    ap.add_argument("--pk", type=int, default=1)
    ap.add_argument("--lat", type=int, default=7)
    ap.add_argument("--jitter", default="")
    ap.add_argument("--ahead", type=int, default=3)
    ap.add_argument("--spread", type=int, default=0)
    ap.add_argument("--remap", type=int, default=1)
    ap.add_argument("--touch", type=int, default=0)
    ap.add_argument("--groups", default="42")
    ap.add_argument("--estep", type=int, default=2)
    ap.add_argument("--espace", type=int, default=9)
    ap.add_argument("--provar", default="356")
    ap.add_argument("-v", action="store_true")
    a = ap.parse_args()
    SPREAD = bool(a.spread)
    g = Gen(ring=a.ring, pol=a.pol, opol=a.opol, stamps=a.stamps, abl=a.abl, provar=a.provar, groups=a.groups, estep=a.estep, espace=a.espace, pref=a.pref, remap=a.remap, touch=a.touch, qpol=a.qpol, dist=a.dist, dpos=a.dpos, pk=a.pk, lat=a.lat, jitter=a.jitter, ahead=a.ahead)
    open(a.o, "w").write(g.build(a.v))
```

```python
import sys
from asmlib import wrap

def stamps_prologue():
    return """
  s_cmp_ge_u32 s2, 256
  s_cbranch_scc1 L_end
  s_load_dwordx4 s[4:7], s[0:1], 0
  s_load_dwordx4 s[8:11], s[0:1], 16
  s_load_dwordx4 s[12:15], s[0:1], 32
  s_memrealtime s[20:21]
  s_memtime s[22:23]
  s_waitcnt lgkmcnt(0)
"""

def stamps_epilogue(nst=4):
    s = """
  s_memrealtime s[24:25]
  s_memtime s[26:27]
  s_waitcnt lgkmcnt(0)
  v_cmp_eq_u32 vcc, 0, v0
  s_and_saveexec_b64 s[30:31], vcc
  s_cbranch_execz L_end
  s_mul_i32 s3, s2, %d
  v_mov_b32 v1, s3
""" % (nst * 8)
    for i in range(nst):
        s += f"  v_mov_b32 v2, s{20+2*i}\n  v_mov_b32 v3, s{21+2*i}\n  global_store_dwordx2 v1, v[2:3], s[14:15] offset:{8*i}\n  s_nop 1\n"
    s += "L_end:\n  s_endpgm\n"
    return s

def gen(shape, block, fill, nds, iters_total):
    nacc = 6
    b = stamps_prologue()
    b += """
  v_lshlrev_b32 v1, 4, v0
  s_mul_i32 s3, s2, 147456
  s_add_u32 s4, s4, s3
  s_addc_u32 s5, s5, 0
"""
    for i in range(12):
        b += f"  global_load_dwordx4 v[{16+4*i}:{19+4*i}], v1, s[4:5] offset:0\n  v_add_u32 v1, 8192, v1\n"
    b += "  s_waitcnt vmcnt(0)\n"
    b += "  v_lshlrev_b32 v2, 4, v0\n"
    for i in range(4):
        b += f"  ds_write_b128 v2, v[{16+4*i}:{19+4*i}] offset:{i*8192}\n"
    b += "  s_waitcnt lgkmcnt(0)\n  s_barrier\n"
    b += "  v_and_b32 v2, 63, v0\n  v_lshlrev_b32 v2, 4, v2\n"
    for i in range(96):
        b += f"  v_accvgpr_write_b32 a{i}, 0\n"
    for i in range(16):
        b += f"  v_mov_b32 v{64+i}, 0.5\n"
    per_iter = 24 if shape == 32 else 48
    iters = iters_total // 24
    b += f"  s_mov_b32 s16, {iters}\n  s_memrealtime s[20:21]\n  s_memtime s[22:23]\n  s_waitcnt lgkmcnt(0)\n.p2align 6\nL_loop:\n"
    nexp, nplain = fill
    fillers = []
    for i in range(max(nexp, nplain)):
        pass
    ops = []
    e = p = 0
    total = nexp + nplain
    for i in range(total):
        if e * total <= i * nexp and e < nexp:
            ops.append(f"  v_exp_f32 v{80 + e % 16}, v{64 + e % 16}\n"); e += 1
        elif p < nplain:
            if p % 3 == 0:
                ops.append(f"  v_fma_f32 v{96 + p % 16}, v{16 + p % 16}, v{64 + p % 16}, v{65}\n")
            elif p % 3 == 1:
                ops.append(f"  v_add_f32 v{112 + p % 8}, v{80 + p % 16}, v{112 + p % 8}\n")
            else:
                ops.append(f"  v_cvt_pk_bf16_f32 v{120 + p % 8}, v{80 + p % 16}, v{81 + p % 15}\n")
            p += 1
        else:
            ops.append(f"  v_exp_f32 v{80 + e % 16}, v{64 + e % 16}\n"); e += 1
    dsops = []
    for i in range(nds):
        r = 16 + 4 * (i % 6)
        dsops.append(f"  ds_read_b128 v[{r}:{r+3}], v2 offset:{(i * 1024) % 32768}\n")
    oi = di = 0
    for m in range(per_iter):
        a = 16 + 4 * ((m + 3) % 6)
        bb = 40 + 4 * (m % 6)
        if shape == 32:
            c = 16 * (m % nacc)
            b += f"  v_mfma_f32_32x32x16_bf16 a[{c}:{c+15}], v[{a}:{a+3}], v[{bb}:{bb+3}], a[{c}:{c+15}]\n"
        else:
            c = 4 * (m % 24)
            b += f"  v_mfma_f32_16x16x32_bf16 a[{c}:{c+3}], v[{a}:{a+3}], v[{bb}:{bb+3}], a[{c}:{c+3}]\n"
        while di < len(dsops) and di * per_iter < (m + 1) * len(dsops):
            b += dsops[di]; di += 1
        while oi < len(ops) and oi * per_iter < (m + 1) * len(ops):
            b += ops[oi]; oi += 1
    b += "  s_sub_u32 s16, s16, 1\n  s_cmp_lg_u32 s16, 0\n  s_cbranch_scc1 L_loop\n  s_waitcnt lgkmcnt(0)\n  s_nop 15\n"
    b += stamps_epilogue()
    return wrap(b, 256, block, 65536, 256 if block == 512 else 384, 128)

if __name__ == "__main__":
    cfgs = {
        "m32_bare": (32, 256, (0, 0), 0, 2304),
        "m16_bare": (16, 256, (0, 0), 0, 2304),
        "m32_valu": (32, 256, (16, 40), 0, 2304),
        "m32_valu_ds12": (32, 256, (16, 40), 12, 2304),
        "m32_valu_ds24": (32, 256, (16, 40), 24, 2304),
        "m16_valu_ds16": (16, 256, (16, 24), 16, 2304),
        "m32_w8_valu_ds24": (32, 512, (16, 40), 24, 1152),
        "m16_w8_valu_ds16": (16, 512, (16, 24), 16, 1152),
        "m16_w8_valu40_ds16": (16, 512, (16, 40), 16, 1152),
    }
    for k, c in cfgs.items():
        open(f"mb_{k}.s", "w").write(gen(*c))
    print(" ".join(f"work/mb_{k}.s" for k in cfgs))
```

```python
from asmlib import wrap
from gen_mb_mfma import stamps_prologue, stamps_epilogue

cnt = {}
def op(kind):
    i = cnt.get(kind, 0); cnt[kind] = i + 1
    if kind == "e": return f"  v_exp_f32 v{80 + i % 16}, v{64 + i % 16}\n"
    if kind == "a": return f"  v_add_f32 v{112 + i % 8}, v{96 + i % 16}, v{112 + i % 8}\n"
    if kind == "c": return f"  v_cvt_pk_bf16_f32 v{120 + i % 8}, v{64 + i % 16}, v{65 + i % 15}\n"
    if kind == "p": return f"  v_pk_add_f32 v[{112 + 2*(i % 4)}:{113 + 2*(i % 4)}], v[{96 + 2*(i % 8)}:{97 + 2*(i % 8)}], v[{112 + 2*(i % 4)}:{113 + 2*(i % 4)}]\n"
    if kind == "o": return f"  v_dot2c_f32_bf16 v{112 + i % 8}, v{96 + i % 16}, v{64}\n"
    if kind == "d": r = 128 + 4 * (i % 6); return f"  ds_read_b128 v[{r}:{r+3}], v2 offset:{(i * 1024) % 32768}\n"
    if kind == "t": r = 160 + 2 * (i % 12); return f"  ds_read_b64_tr_b16 v[{r}:{r+1}], v3 offset:{(i * 512) % 32768}\n"
    if kind == "w": return "  s_waitcnt lgkmcnt(8)\n"
    if kind == "s": return f"  s_add_u32 s40, s41, {i+100}\n"
    if kind == "n": return "  s_nop 0\n"
    if kind == "m": return f"  s_mov_b32 m0, {32768 + (i % 16) * 1024}\n"
    if kind == "D": return f"  buffer_load_dwordx4 v4, s[44:47], s48 offen lds\n"
    if kind == "V": return "  s_waitcnt vmcnt(12)\n"
    if kind == "B": return "  s_barrier\n"
    if kind == "O": return f"  v_dot2c_f32_bf16 v112, s41, v{96 + i % 16}\n"
    if kind == "y": return f"  v_dot2_f32_bf16 v112, v{96 + i % 16}, s41, v112\n"
    if kind == "r": return f"  v_accvgpr_read_b32 v{112 + i % 8}, a{100 + i % 16}\n"
    if kind == "x": return f"  v_permlane32_swap_b32 v{112 + i % 4}, v{116 + i % 4}\n"
    if kind == "W": return f"  ds_write_b128 v2, v[128:131] offset:{49152 + (i % 8) * 1024}\n"
    if kind == "S": return f"  buffer_store_dwordx4 v[128:131], v4, s[52:55], s48 offen\n"
    if kind == "u": return f"  v_mul_f32 v{112 + i % 8}, s41, v{96 + i % 16}\n"
    raise ValueError(kind)

def gen(pattern, shape=16, block=256, iters=40):
    cnt.clear()
    b = stamps_prologue()
    b += """
  v_and_b32 v2, 63, v0
  v_lshlrev_b32 v3, 3, v2
  v_lshlrev_b32 v2, 4, v2
  v_lshlrev_b32 v4, 4, v0
  s_mul_i32 s3, s2, 393216
  s_add_u32 s44, s6, s3
  s_addc_u32 s45, s7, 0
  s_mov_b32 s46, 393216
  s_mov_b32 s47, 0x20000
  s_mov_b32 s48, 0
  s_mul_i32 s3, s2, 1048576
  s_add_u32 s3, s3, 65536
  s_add_u32 s52, s14, s3
  s_addc_u32 s53, s15, 0
  s_mov_b32 s54, 1000000
  s_mov_b32 s55, 0x20000
  s_mov_b32 s41, 0
  s_mov_b32 m0, 32768
"""
    for i in range(16, 192):
        b += f"  v_mov_b32 v{i}, 0\n"
    for i in range(128):
        b += f"  v_accvgpr_write_b32 a{i}, 0\n"
    b += f"  s_mov_b32 s16, {iters}\n  s_barrier\n  s_memrealtime s[20:21]\n  s_memtime s[22:23]\n  s_waitcnt lgkmcnt(0)\n.p2align 6\nL_loop:\n"
    gaps = pattern.split("|")
    n = 48
    for m in range(n):
        a = 16 + 4 * ((m // 3) % 6); bb = 40 + 4 * (m % 6)
        if shape == 16:
            c = 4 * (m % 24)
            b += f"  v_mfma_f32_16x16x32_bf16 a[{c}:{c+3}], v[{a}:{a+3}], v[{bb}:{bb+3}], a[{c}:{c+3}]\n"
        else:
            c = 16 * (m % 6)
            b += f"  v_mfma_f32_32x32x16_bf16 a[{c}:{c+15}], v[{a}:{a+3}], v[{bb}:{bb+3}], a[{c}:{c+15}]\n"
        for ch in gaps[m % len(gaps)]:
            b += op(ch)
    b += "  s_add_u32 s48, s48, 4096\n  s_sub_u32 s16, s16, 1\n  s_cmp_lg_u32 s16, 0\n  s_cbranch_scc1 L_loop\n  s_waitcnt lgkmcnt(0)\n  s_nop 15\n  s_barrier\n"
    b += stamps_epilogue()
    return wrap(b, 256, block, 65536, 384 if block == 256 else 256+0, 256 if block == 256 else 192) if block == 256 else None

if __name__ == "__main__":
    pats = ["", "o|||||||||||", "oo|||||||||||", "oooo|||||||||||", "oooooooo|||||||||||||||||||||||", "oooooooooooo|||||||||||||||||||||||",
            "O|||||||||||", "OOOO|||||||||||", "OOOOOOOO|||||||||||||||||||||||", "pppp|||||||||||", "p|||||||||||", "aoooo|||||||||||", "ooooa|||||||||||", "nnoooo|||||||||||",
            "oooo|e|e|e|e|ta|ta|c|c|d||", "y|||||||||||", "yyyy|||||||||||"]
    names = []
    for i, p in enumerate(pats):
        nm = f"mb_c{i:02d}.s"
        open(nm, "w").write(gen(p))
        names.append(nm)
    print(" ".join(names))
    for nm, p in zip(names, pats):
        print(nm, repr(p))
```

```python
import argparse
import math
import struct
from fw import *
from asmlib import wrap

NQB = 6
TILE_G = 12288
TAU = 4192
TILE_L = 3 * TAU
HEAD_Q = 147456
HEAD_KV = 393216

V_KA, V_VA, V_DMA, V_QA = "v0", "v1", "v2", "v3"
L0 = 4
T0, T1 = "v10", "v11"
S0 = 12
P0 = 20
OV0, NOV = 68, 47
QA0 = 0
QBUF = 120
KA0 = 124
VA0 = 148
OA0 = 156
SRD_K, SRD_V, SRD_Q, SRD_O = "s[16:19]", "s[20:23]", "s[24:27]", "s[28:31]"
S_W, S_KOFF, S_VOFF, S_DMA, S_SLOT, S_NEW, S_DELTA, S_CNT, S_C, S_WOFF, S_T = (f"s{i}" for i in range(32, 43))
S_DLIM = "s54"
S_ONE = "s55"


def f32(x):
    return "0x%08x" % struct.unpack("<I", struct.pack("<f", x))[0]


SPREAD = False


def Oreg(j, db):
    if not SPREAD:
        n = j * 12 + db
        return R("v", OV0 + 4 * n, 4) if n < NOV else R("a", OA0 + 4 * (n - NOV), 4)
    return Oreg2(j, db)


def Oreg2(j, db):
    if db >= 8:
        return R("a", OA0 + 4 * (j * 4 + db - 8), 4)
    n = j * 8 + db
    return R("v", OV0 + 4 * n, 4) if n < NOV else R("a", OA0 + 4 * 24, 4)


def Qreg(j, s):
    return R("a", QA0 + 4 * (j * 5 + s), 4) if s < 5 else R("a", QBUF, 4)


def Kreg(s):
    return R("a", KA0 + 4 * s, 4)


def Preg(par, j):
    return P0 + 24 * par + 4 * j


DOC = """;
; All matrix work is v_mfma_f32_16x16x32_bf16 on transposed tiles: S^T = K Q^T, O^T = V^T P^T, so a lane keeps
;
;
; three tiles ahead, one barrier per period. The last two tiles run per group of query blocks (4, then 2) so
;
;
"""


class Gen:
    def __init__(self, ring=5, pol="nt", opol="", stamps=False, cinit="-4.0", abl="", provar="356", groups="42", estep=2, espace=9, pref=1, remap=1, touch=0, qpol="nt", dist=3, dpos="s", pk=1, lat=7, jitter="", ahead=3, dot=0, early=0):
        self.early = early
        self.dot = dot
        self.ahead = ahead
        self.jitter = jitter
        self.lat = lat
        self.pk = pk
        self.dpos = dpos
        self.D = dist
        self.qpol = qpol
        self.remap, self.touch = remap, touch
        self.pref = pref
        self.groups, self.estep, self.espace = [int(c) for c in groups], estep, espace
        self.provar = provar
        self.abl = abl
        self.R = ring
        self.pol, self.opol, self.stamps, self.cinit = pol, opol, stamps, cinit
        self.VBASE = ring * TILE_L
        assert ring == 5
        self.QBASE = (2 * ring + 1) * TILE_L
        self.FLAG = self.QBASE + 24576
        self.lds = self.FLAG + 256
        self.nstamp = 0

    def stamp(self):
        if not self.stamps:
            return []
        r = 64 + 4 * self.nstamp
        self.nstamp += 1
        return [raw(f"s_memtime s[{r}:{r+1}]", "salu"), raw(f"s_memrealtime s[{r+2}:{r+3}]", "salu")]

    def kread(self, kb, s, slot=0):
        return ds_read("ds_read_b128", Kreg(s), V_KA, slot * TILE_L + (s >> 1) * TAU + (s & 1) * 64 + kb * 512)

    def vread(self, db, half, base, slot=0, file="a"):
        return ds_read("ds_read_b64_tr_b16", R(file, base + 2 * half, 2), V_VA,
                       slot * TILE_L + (db >> 2) * TAU + (db & 3) * 32 + half * 512)

    def qread(self, j):
        return ds_read("ds_read_b128", R("a", QBUF, 4), V_QA, j * 1024)

    def dma_pair(self, k, base_sgpr=S_DMA, koff=S_KOFF, voff=S_VOFF, slot_off=0):
        tau = k % 3
        isv = k >= 3
        imm = (self.VBASE if isv else 0) + slot_off + tau * TAU - tau * 128
        return (salu("s_add_u32", "m0", base_sgpr, imm),
                buf_dma(V_DMA, SRD_V if isv else SRD_K, voff if isv else koff, tau * 128, self.pol))

    def softmax_ops(self, n, ppar):
        kb, j = divmod(n % 12, 6)
        s = S0 + 4 * (n % 2)
        p = Preg(ppar, j) + 2 * kb
        e = [valu("v_exp_f32", f"v{s+i}", f"v{s+i}") for i in range(4)]
        a = [valu("v_add_f32", f"v{L0+j}", f"v{s+i}", f"v{L0+j}") for i in range(4)]
        c = [valu("v_cvt_pk_bf16_f32", f"v{p+i}", f"v{s+2*i}", f"v{s+2*i+1}") for i in range(2)]
        return e, a, c

    def dot_ops(self, par, js):
        return [I(f"v_dot2c_f32_bf16 v{L0+j}, {S_ONE}, v{Preg(par, j)+i}", "valu",
                  [S_ONE, f"v{Preg(par, j)+i}", f"v{L0+j}"], [f"v{L0+j}"]) for i in range(4) for j in js]

    def qk(self, n, s):
        j = n % 6
        d = R("v", S0 + 4 * (n % 2), 4)
        return mfma(d, Kreg(s), Qreg(j, s), self.cinit if s == 0 else d)

    def pv(self, db, j, par, vbase, file="a"):
        return mfma(Oreg(j, db), R(file, vbase, 4), R("v", Preg(par, j), 4), Oreg(j, db))

    def period(self, par, fill=False):
        N = 144
        sc = [[] for _ in range(N + 12)]
        mem = [[] for _ in range(N + 12)]
        va = [[] for _ in range(N + 12)]
        heavy = lambda n: n % 6 == 5
        for n in range(-1, 12):
            if n == -1 and fill:
                continue
            e, a, c = self.softmax_ops(n, par if n == -1 else 1 - par)
            g = 12 * n
            if heavy(n):
                plan = [(10, e[0]), (11, e[1]), (12, e[2]), (13, e[3]), (14, a[0]), (15, a[1]), (16, c[0]), (16, a[2]),
                        (17, a[3]), (18, c[1])]
            elif heavy(n + 1):
                plan = [(9, e[0]), (10, e[1]), (11, e[2]), (12, e[3]), (13, a[0]), (14, a[1]), (15, c[0]), (16, a[2]),
                        (17, a[3]), (18, c[1])]
            else:
                plan = [(9, e[0]), (10, e[1]), (11, e[2]), (12, e[3]), (13, a[0]), (14, a[1]), (15, c[0]), (16, a[2]),
                        (17, a[3]), (19, c[1])]
            for o, ins in plan:
                if g + o >= 0 and not (self.dot and ins.text.startswith("v_add_f32")):
                    va[g + o].append(ins)
        for n in range(12):
            g = 12 * n
            nv = (n + 1) % 12
            vb = VA0 + 4 * ((n + 1) % 2)
            tpos = (8, 9) if heavy(n) else ((2, 3) if heavy(n - 1) else (1, 2))
            if not fill or n == 11:
                for h in range(2):
                    mem[g + tpos[h]].append(self.vread(nv, h, vb))
            mem[g + (7 if heavy(n) else 5)].append(self.qread((n + 1) % 6))
            if heavy(n):
                for s in range(6):
                    mem[g + 1 + s].append(self.kread(1 if n == 5 else 0, s))
        if not fill:
            pos = {"s": [(1, 6), (2, 6), (3, 6), (4, 6), (7, 6), (8, 6)],
                   "e": [(0, 8), (1, 6), (1, 8), (2, 6), (2, 8), (3, 6)],
                   "m": [(0, 8), (1, 6), (2, 6), (3, 6), (4, 6), (6, 8)],
                   "l": [(4, 6), (6, 8), (7, 6), (7, 8), (8, 6), (8, 8)]}[self.dpos]
            for k, (n, o) in enumerate(pos):
                m, d = self.dma_pair(k)
                sc[12 * n + o - 1].append(m)
                mem[12 * n + o].append(d)
        if self.dot:
            dots = self.dot_ops(par, range(NQB))
            k = len(dots) // self.dot
            for i_, n in enumerate({1: (3,), 2: (2, 8), 3: (2, 4, 8), 6: (1, 2, 3, 7, 8, 9)}[self.dot]):
                va[12 * n + 8] += dots[i_ * k:(i_ + 1) * k]
        g = 12 * 9
        book = [salu("s_add_u32", S_DMA, S_DMA, TILE_L),
                salu("s_cmp_eq_u32", S_DMA, S_DLIM),
                salu("s_cselect_b32", S_DMA, S_WOFF, S_DMA),
                salu("s_add_u32", S_NEW, S_SLOT, TILE_L),
                salu("s_cmp_eq_u32", S_NEW, self.R * TILE_L),
                salu("s_cselect_b32", S_NEW, 0, S_NEW),
                salu("s_sub_u32", S_DELTA, S_NEW, S_SLOT),
                salu("s_mov_b32", S_SLOT, S_NEW),
                salu("s_add_u32", S_KOFF, S_KOFF, TILE_G), salu("s_add_u32", S_VOFF, S_VOFF, TILE_G)]
        for o, ins in zip((0, 1, 2, 3, 6, 7, 8, 9, 10, 11), book):
            sc[g + o].append(ins)
        g = 12 * 10
        va[g + 6] += [valu("v_add_u32", V_KA, S_DELTA, V_KA), valu("v_add_u32", V_VA, S_DELTA, V_VA)]
        sc[g + 7].append(wait(vm=6 * (self.D - 2), lgkm=1))
        sc[g + 8].append(barrier())
        mf = []
        for n in range(12):
            mf += [self.qk(n, s) for s in range(6)]
            mf += [None if fill else self.pv(n, j, par, VA0 + 4 * (n % 2)) for j in range(6)]
        if not fill and self.abl:
            def keep(x):
                t = x.text
                if "e" in self.abl and t.startswith("v_exp"): return False
                if "a" in self.abl and t.startswith("v_add_f32"): return False
                if "c" in self.abl and t.startswith("v_cvt"): return False
                if "k" in self.abl and x.kind == "lds_rd" and V_KA in x.rd: return False
                if "v" in self.abl and x.kind == "lds_rd" and V_VA in x.rd: return False
                if "q" in self.abl and x.kind == "lds_rd" and V_QA in x.rd: return False
                if "d" in self.abl and x.kind == "dma": return False
                if "b" in self.abl and x.kind == "barrier": return False
                return True
            mem = [[x for x in g_ if keep(x)] for g_ in mem]
            va = [[x for x in g_ if keep(x)] for g_ in va]
            sc = [[x for x in g_ if keep(x)] for g_ in sc]
            if "c" in self.abl:
                mf = [m if (i % 12) < 6 else self.pv(i // 12, i % 12 - 6, 0, VA0 + 4 * ((i // 12) % 2)) for i, m in enumerate(mf)]
        gaps = [sc[i] + mem[i] + va[i] for i in range(N)]
        tail = [x for i in range(N, N + 12) for x in va[i]]
        return mf, gaps, tail

    @staticmethod
    def flat(mf, gaps, lo, hi):
        out = []
        for i in range(lo, hi):
            if mf[i] is not None:
                out.append(mf[i])
            out += gaps[i]
        return out

    def addr_setup(self, lane, w):
        b = [valu("v_lshrrev_b32", "v6", 4, lane), valu("v_lshlrev_b32", "v6", 3, "v6"),
             valu("v_bfe_u32", "v7", lane, 3, 1), valu("v_add_u32", "v6", "v6", "v7"),
             valu("v_lshl_add_u32", "v6", w, 1, "v6"), valu("v_mul_u32_u24", "v6", 384, "v6"),
             valu("v_and_b32", "v7", 7, lane), valu("v_lshl_add_u32", V_DMA, "v7", 4, "v6")]

        def lds_row(dst, key):
            return [valu("v_bfe_u32", "v8", key, 1, 2), valu("v_mul_u32_u24", "v8", 1056, "v8"),
                    valu("v_lshrrev_b32", "v9", 3, key), valu("v_lshlrev_b32", "v9", 1, "v9"),
                    valu("v_and_b32", dst, 1, key), valu("v_add_u32", "v9", "v9", dst),
                    valu("v_lshl_add_u32", dst, "v9", 7, "v8")]
        b += [valu("v_and_b32", "v6", 15, lane), valu("v_lshrrev_b32", "v7", 4, lane)]
        b += lds_row(V_KA, "v6") + [valu("v_lshl_add_u32", V_KA, "v7", 4, V_KA)]
        b += [valu("v_lshrrev_b32", "v6", 2, lane)] + lds_row(V_VA, "v6")
        b += [valu("v_and_b32", "v6", 3, lane), valu("v_lshl_add_u32", V_VA, "v6", 3, V_VA),
              valu("v_add_u32", V_VA, self.VBASE, V_VA)]
        return b

    def slow_path(self):
        M = ["v16", "v17", "v18", "v19", T0, T1]
        S = S0
        SD = R("v", S, 4)
        QL = Preg(1, 0)
        lane, w, vq = "v4", "v5", V_QA

        def qreg(j, s):
            return Qreg(j, s) if s < 5 else R("v", QL + 4 * j, 4)
        setup = [wait(vm=0, lgkm=0), barrier(),
                 raw(f"v_mbcnt_lo_u32_b32 {lane}, -1, 0", "valu", [], [lane]),
                 raw(f"v_mbcnt_hi_u32_b32 {lane}, -1, {lane}", "valu", [lane], [lane]),
                 valu("v_mov_b32", w, S_W)]
        setup += self.addr_setup(lane, w)
        setup += [valu("v_mul_u32_u24", vq, 96, w), valu("v_and_b32", "v6", 15, lane), valu("v_add_u32", vq, vq, "v6"),
                  valu("v_mul_u32_u24", vq, 384, vq), valu("v_lshl_add_u32", vq, "v7", 4, vq)]
        for j in range(NQB):
            setup.append(salu("s_mov_b32", S_T, j * 16 * 384))
            setup += [buf_load(qreg(j, s), vq, SRD_Q, S_T, s * 64) for s in range(6)]
        setup += [wait(vm=0)]
        setup += [valu("v_mov_b32", m, "0xff800000") for m in M]
        setup += [salu("s_mov_b32", S_KOFF, 0)]

        def load(with_v):
            o = []
            for k in range(6 if with_v else 3):
                o += list(self.dma_pair(k, S_WOFF, S_KOFF, S_KOFF))
            return o + [wait(vm=0), barrier()]

        def chain(j):
            return [mfma(SD, Kreg(s), qreg(j, s), "0" if s == 0 else SD) for s in range(6)]

        def close(name):
            return [wait(lgkm=0), barrier(), salu("s_add_u32", S_KOFF, S_KOFF, TILE_G),
                    salu("s_cmp_lt_u32", S_KOFF, HEAD_KV), branch("s_cbranch_scc1", name)]
        maxl = load(False)
        for kb in range(2):
            maxl += [self.kread(kb, s) for s in range(6)]
            for j in range(NQB):
                maxl += chain(j) + [valu("v_max3_f32", M[j], M[j], f"v{S}", f"v{S+1}"),
                                    valu("v_max3_f32", M[j], M[j], f"v{S+2}", f"v{S+3}")]
        maxl += close("L_slow_max")
        mid = []
        for m in M:
            for op in ("v_permlane32_swap_b32", "v_permlane16_swap_b32"):
                mid += [valu("v_mov_b32", vq, m), valu(op, m, vq), valu("v_max_f32", m, m, vq)]
        mid += [valu("v_mul_f32", m, S_C, m) for m in M]
        mid += [valu("v_accvgpr_write_b32", f"a{r}", 0) for r in range(OA0, 256)]
        mid += [valu("v_mov_b32", f"v{r}", 0) for r in list(range(OV0, 256)) + list(range(L0, L0 + 6))]
        mid += [salu("s_mov_b32", S_KOFF, 0)]
        main = load(True)
        for kb in range(2):
            main += [self.kread(kb, s) for s in range(6)]
            for j in range(NQB):
                p = Preg(0, j) + 2 * kb
                main += chain(j)
                main += [valu("v_fma_f32", f"v{S+i}", f"v{S+i}", S_C, "-" + M[j]) for i in range(4)]
                main += [valu("v_exp_f32", f"v{S+i}", f"v{S+i}") for i in range(4)]
                main += [valu("v_add_f32", f"v{L0+j}", f"v{S+i}", f"v{L0+j}") for i in range(4)]
                main += [valu("v_cvt_pk_bf16_f32", f"v{p+i}", f"v{S+2*i}", f"v{S+2*i+1}") for i in range(2)]
        for db in range(12):
            vb = VA0 + 4 * (db % 2)
            main += [self.vread(db, h, vb) for h in range(2)]
            main += [self.pv(db, j, 0, vb) for j in range(NQB)]
        main += close("L_slow_main")
        return setup, maxl, mid, main, self.epilogue_plain()

    def prologue(self):
        b = []
        b += [salu("s_cmp_ge_u32", "s2", 256), branch("s_cbranch_scc1", "L_end"),
              raw("s_load_dwordx4 s[4:7], s[0:1], 0", "smem"), raw("s_load_dwordx4 s[8:11], s[0:1], 16", "smem")]
        if self.stamps:
            b += [raw("s_load_dwordx4 s[12:15], s[0:1], 32", "smem"),
                  raw("s_memrealtime s[56:57]"), raw("s_memtime s[58:59]")]
        lane, w = "v4", "v5"
        b += [valu("v_and_b32", lane, 63, "v0"), valu("v_lshrrev_b32", w, 6, "v0"),
              valu("v_readfirstlane_b32", S_W, w)]
        if self.pref:
            b += [raw("s_getpc_b64 s[50:51]", "salu", [], ["s50", "s51"]), label("L_pc"),
                  salu("s_lshr_b32", S_T, "s2", 3), salu("s_lshl_b32", S_T, S_T, 2), salu("s_add_u32", S_T, S_T, S_W),
                  salu("s_min_u32", S_T, S_T, "(L_end-L_pc)/1024"), salu("s_lshl_b32", S_T, S_T, 10),
                  valu("v_lshl_add_u32", "v6", lane, 4, S_T),
                  I(f"global_load_dwordx4 v[{OV0}:{OV0+3}], v6, s[50:51]", "vm_ld", ["v6", "s50", "s51"], regs("v", OV0, 4))]
        b += self.addr_setup(lane, w)
        g = "v7"
        b += [valu("v_mul_u32_u24", V_QA, 6144, w), valu("v_lshl_add_u32", V_QA, lane, 4, V_QA),
              valu("v_add_u32", V_QA, self.QBASE, V_QA)]
        for i_ in range(3):
            d = f"v{OV0+80+i_}"
            b += [valu("v_add_u32", d, 64 * i_, lane), valu("v_mul_u32_u24", "v6", 2731, d),
                  valu("v_lshrrev_b32", "v6", 16, "v6"), valu("v_and_b32", "v6", 6, "v6"),
                  valu("v_xor_b32", d, d, "v6"), valu("v_lshlrev_b32", d, 4, d)]
        b += [valu("v_and_b32", "v6", 15, lane), valu("v_and_b32", "v8", 6, lane), valu("v_xor_b32", "v8", "v8", g),
              valu("v_mul_u32_u24", "v6", 384, "v6"), valu("v_lshl_add_u32", f"v{OV0+83}", "v8", 4, "v6"),
              valu("v_xor_b32", f"v{OV0+84}", 64, f"v{OV0+83}")]
        head = "s2"
        if self.remap:
            head = "s3"
            b += [salu("s_and_b32", head, "s2", 7), salu("s_lshl_b32", head, head, 5),
                  salu("s_lshr_b32", S_T, "s2", 3), salu("s_add_u32", head, head, S_T)]
        S_SA, S_SB = "s43", "s44"
        VQ = [f"v{OV0+80+i_}" for i_ in range(3)]
        b += [salu("s_mul_i32", S_KOFF, head, HEAD_KV), salu("s_mul_i32", S_VOFF, head, HEAD_Q),
              salu("s_mov_b32", "s18", HEAD_KV), salu("s_mov_b32", "s19", "0x20000"),
              salu("s_mov_b32", "s26", HEAD_Q), salu("s_mov_b32", "s27", "0x20000"),
              salu("s_mul_i32", S_WOFF, S_W, 1056),
              salu("s_lshr_b32", S_T, S_W, 1), salu("s_mul_i32", S_T, S_T, 3), salu("s_add_u32", S_T, S_T, S_W),
              salu("s_add_u32", S_T, S_T, 2), salu("s_mul_i32", S_SB, S_T, TILE_L),
              salu("s_add_u32", S_SA, S_SB, 2 * TILE_L), salu("s_mul_i32", S_T, S_W, 36864)]
        b += [valu("v_add_u32", VQ[i_], S_T, VQ[i_]) for i_ in range(3)]
        b += [raw("s_waitcnt lgkmcnt(0)", "salu")]
        b += [salu("s_add_u32", "s16", "s6", S_KOFF), salu("s_addc_u32", "s17", "s7", 0),
              salu("s_add_u32", "s24", "s4", S_VOFF), salu("s_addc_u32", "s25", "s5", 0)]
        late = [salu("s_add_u32", "s20", "s8", S_KOFF), salu("s_addc_u32", "s21", "s9", 0),
                salu("s_mov_b32", "s22", HEAD_KV), salu("s_mov_b32", "s23", "0x20000"),
                salu("s_add_u32", "s28", "s10", S_VOFF), salu("s_addc_u32", "s29", "s11", 0),
                salu("s_mov_b32", "s30", HEAD_Q), salu("s_mov_b32", "s31", "0x20000"),
                salu("s_mov_b32", S_C, f32(math.log2(math.e) / math.sqrt(192.0))),
                salu("s_mov_b32", S_CNT, 14), salu("s_mov_b32", S_ONE, "0x3f803f80")]

        def group(ktile, vtile):
            o = []
            for k in range(6):
                tile = vtile if k >= 3 else ktile
                if tile is None:
                    continue
                slot = (tile + 1) % self.R if k >= 3 else tile % self.R
                if k % 3 == 0:
                    o.append(salu("s_mov_b32", S_T, tile * TILE_G))
                o += list(self.dma_pair(k, S_WOFF, S_T, S_T, slot * TILE_L))
            return o
        RAW = OV0
        LO = OV0 + 48
        Q5 = OV0 + 72
        VR = [f"v{OV0+83+i_}" for i_ in range(2)]
        LAST = OV0 + 96
        ZERO = "a[252:255]"
        CV = T0
        KB = Preg(1, 0)

        def ubase(u):
            return (S_SB if u in (2, 3) else S_SA), (u & 1) * 6144

        def qunit(u):
            sb, off = ubase(u)
            o = []
            for i_ in range(3):
                o += [salu("s_add_u32", "m0", sb, off + i_ * 1024)]
                o += [salu("s_mov_b32", S_T, u * 6144)] if i_ == 0 else [nop(0)]
                o += [buf_dma(VQ[i_], SRD_Q, S_T, h * 3072, self.qpol) for h in range(2)]
            return o

        def qraw(u):
            sb, off = ubase(u)
            o = [valu("v_add_u32", T0, sb, VR[0]), valu("v_add_u32", T1, sb, VR[1])]
            for s_ in range(6):
                o.append(ds_read("ds_read_b128", R("v", RAW + 4 * ((u % 2) * 6 + s_), 4), (T0, T1)[s_ & 1],
                                 off + (s_ >> 1) * 128))
            return o

        def unpack(j):
            r0 = RAW + 24 * (j % 2)
            o = []
            for i_ in range(24):
                o += [valu("v_lshlrev_b32", f"v{LO+i_}", 16, f"v{r0+i_}"),
                      valu("v_and_b32", f"v{r0+i_}", "0xffff0000", f"v{r0+i_}")]
            return o

        def scale(j):
            o = []
            for base in (LO, RAW + 24 * (j % 2)):
                o += [I(f"v_pk_mul_f32 {R('v', base+2*i_, 2)}, {R('v', base+2*i_, 2)}, s[52:53]", "valu",
                        regs("v", base + 2 * i_, 2) + ["s52", "s53"], regs("v", base + 2 * i_, 2)) for i_ in range(12)]
            return o

        def pack(j):
            o = []
            for s_ in range(6):
                r0 = RAW + 24 * (j % 2) + 4 * s_
                dst = r0 if s_ < 5 else Q5 + 4 * (j % 2)
                o += [valu("v_cvt_pk_bf16_f32", f"v{dst+i_}", f"v{LO+4*s_+i_}", f"v{r0+i_}") for i_ in range(4)]
                if s_ < 5:
                    o += [valu("v_accvgpr_write_b32", f"a{QA0+4*(j*5+s_)+i_}", f"v{dst+i_}") for i_ in range(4)]
                else:
                    o.append(ds_write("ds_write_b128", V_QA, R("v", dst, 4), j * 1024))
            return o

        def clear(file, lo, hi):
            o = []
            while hi - lo >= 16:
                o.append(mfma32(R(file, lo, 16), ZERO, ZERO, "0"))
                lo += 16
            while lo < hi:
                o.append(mfma(R(file, lo, 4), ZERO, ZERO, "0"))
                lo += 4
            return o

        def chains(j):
            o = []
            for kb in range(2):
                d = R("v", S0 + 4 * kb, 4)
                for s_ in range(6):
                    a_ = Kreg(s_) if kb == 0 else R("v", KB + 4 * s_, 4)
                    q_ = Qreg(j, s_) if s_ < 5 else R("v", Q5 + 4 * (j % 2), 4)
                    o.append(mfma(d, a_, q_, self.cinit if s_ == 0 else d))
            return o

        def soft(j, kb):
            sreg = S0 + 4 * kb
            p = Preg(0, j) + 2 * kb
            e = [valu("v_exp_f32", f"v{sreg+i_}", f"v{sreg+i_}") for i_ in range(4)]
            a_ = [valu("v_add_f32", f"v{L0+j}", f"v{sreg+i_}", f"v{L0+j}") for i_ in range(4)]
            c = [valu("v_cvt_pk_bf16_f32", f"v{p+i_}", f"v{sreg+2*i_}", f"v{sreg+2*i_+1}") for i_ in range(2)]
            return e + ([] if self.dot else a_) + c

        def weave(ms, ops, per=2):
            o = []
            ops = list(ops)
            for m in ms:
                o.append(m)
                o += ops[:per]
                ops = ops[per:]
            return o, ops

        plan = [int(c) for c in self.provar]
        queue = []

        def issue(name, ops):
            queue.append((name, sum(1 for x in ops if x.kind == "dma")))
            return ops

        def landed(name, **kw):
            k = [n for n, _ in queue].index(name)
            return wait(vm=sum(c for _, c in queue[k + 1:]), **kw)

        def extras(u):
            o = []
            if plan[0] == u:
                o += issue("KV0", group(1, 0))
            if plan[1] == u:
                o += issue("G4", group(2, 1))
            if plan[2] == u and self.D >= 4:
                o += issue("G3", group(3, 2))
            return o

        if self.early:
            return b + self.early_start(locals())
        b += issue("K0", group(0, None)) + issue("U0", qunit(0)) + issue("U1", qunit(1))
        b += late + [salu("s_mov_b32", "s52", S_C), salu("s_mov_b32", "s53", S_C)]
        b += [valu("v_accvgpr_write_b32", f"a{r}", 0) for r in range(252, 256)]
        b += [valu("v_mov_b32", f"v{r}", 0) for r in range(L0, L0 + 6)]
        b += [valu("v_mov_b32", "v14", self.FLAG), valu("v_mov_b32", "v15", 0), ds_write("ds_write_b32", "v14", "v15", 0)]
        b += clear("a", OA0, 252) + clear("v", LAST, 256)
        A = self.ahead
        for u in range(2, A):
            b += issue(f"U{u}", qunit(u))
        b += [landed("U0")] + qraw(0) + [barrier()]
        b += [self.kread(0, s_) for s_ in range(6)]
        b += [ds_read("ds_read_b128", R("v", KB + 4 * s_, 4), V_KA, (s_ >> 1) * TAU + (s_ & 1) * 64 + 512) for s_ in range(6)]
        b += issue(f"U{A}", qunit(A))
        b += unpack(0) + scale(0) + pack(0)
        for u in range(1, 6):
            b += self.stamp() if self.touch == 2 and u in (1, 2, 4) else []
            b += [landed(f"U{u}")] + (self.stamp() if (self.touch == 1 and u >= 4) or (self.touch == 2 and u in (1, 2, 4)) else []) + qraw(u)
            if u == 3:
                b += [wait(lgkm=0), barrier()]
            ex = (issue(f"U{u+A}", qunit(u + A)) if u + A < 6 else []) + extras(u)
            sa, sb = soft(u - 1, 0), soft(u - 1, 1)
            b += sched(chains(u - 1), [[Op(x) for x in ex], [Op(x, 4) for x in unpack(u)]])
            b += sa[:4] + sb[:4] + scale(u) + sa[4:] + sb[4:]
            pk_ = pack(u)
            if u == 5:
                z = clear("v", RAW, RAW + 16) + clear("v", OV0 + 80, LAST)
                pk_ = pk_[:8] + z[:1] + pk_[8:16] + z[1:] + pk_[16:]
            b += pk_
        b += [valu("v_add_u32", V_KA, TILE_L, V_KA), valu("v_add_u32", V_VA, TILE_L, V_VA),
              salu("s_mov_b32", S_SLOT, TILE_L), salu("s_add_u32", S_DMA, S_WOFF, (self.D % 5) * TILE_L),
              salu("s_add_u32", S_DLIM, S_WOFF, self.R * TILE_L),
              salu("s_mov_b32", S_KOFF, self.D * TILE_G), salu("s_mov_b32", S_VOFF, (self.D - 1) * TILE_G)]
        st_ = self.stamp if self.touch == 1 else list
        b += st_() + [landed("KV0", lgkm=0)] + st_() + [barrier()]
        ch = chains(5)
        for s_ in range(6):
            b += [ch[s_], self.kread(0, s_)]
        b += [ch[6], self.qread(0), ch[7], self.vread(0, 0, VA0), ch[8], self.vread(0, 1, VA0)] + ch[9:]
        z = clear("v", RAW + 16, OV0 + 80)
        sa = soft(5, 0)
        rest = extras(6) + (group(4, 3) if self.D == 5 else [])
        b += [z[0]] + sa[:3] + [z[1]] + sa[3:5] + [z[2]] + sa[5:] + rest + [z[3]] + soft(5, 1)[:2]
        return b

    def early_start(self, c):
        group, qunit, qraw, unpack, scale, pack = (c[k] for k in ("group", "qunit", "qraw", "unpack", "scale", "pack"))
        issue, landed, late, Q5 = c["issue"], c["landed"], c["late"], c["Q5"]
        assert self.D == 3
        S2 = OV0 + 88
        KT = OV0 + 96
        plan = [int(x) for x in self.provar]

        def kreg(tile, kb, s):
            return Kreg(s) if (tile, kb) == (0, 0) else R("v", KT + 24 * (2 * tile + kb - 1) + 4 * s, 4)

        def sreg(tile, kb):
            return (S2 if tile == 0 else S0) + 4 * kb

        def chains(j):
            o = []
            for tile in range(2):
                for kb in range(2):
                    d = R("v", sreg(tile, kb), 4)
                    for s in range(6):
                        q_ = Qreg(j, s) if s < 5 else R("v", Q5 + 4 * (j % 2), 4)
                        o.append(mfma(d, kreg(tile, kb, s), q_, self.cinit if s == 0 else d))
            return o

        def soft(j, tile, kb):
            r, p = sreg(tile, kb), Preg(tile, j) + 2 * kb
            e = [valu("v_exp_f32", f"v{r+i}", f"v{r+i}") for i in range(4)]
            a = [valu("v_add_f32", f"v{L0+j}", f"v{r+i}", f"v{L0+j}") for i in range(4)]
            cv = [valu("v_cvt_pk_bf16_f32", f"v{p+i}", f"v{r+2*i}", f"v{r+2*i+1}") for i in range(2)]
            return e + [cv[0], a[0], cv[1], a[1], a[2], a[3]]

        def extras(u):
            o = []
            if plan[0] == u:
                o += issue("V0", group(None, 0))
            if plan[1] == u:
                o += issue("G2", group(2, 1))
            return o
        A = self.ahead
        b = issue("K0", group(0, None)) + issue("K1", group(1, None)) + issue("U0", qunit(0))
        b += late + [salu("s_mov_b32", "s52", S_C), salu("s_mov_b32", "s53", S_C)]
        b += [valu("v_mov_b32", f"v{r}", 0) for r in range(L0, L0 + 6)]
        b += [valu("v_mov_b32", "v14", self.FLAG), valu("v_mov_b32", "v15", 0), ds_write("ds_write_b32", "v14", "v15", 0)]
        for u in range(1, A):
            b += issue(f"U{u}", qunit(u))
        b += [landed("U0")] + qraw(0) + [barrier()]
        for tile in range(2):
            for kb in range(2):
                b += [ds_read("ds_read_b128", kreg(tile, kb, s), V_KA,
                              tile * TILE_L + (s >> 1) * TAU + (s & 1) * 64 + kb * 512) for s in range(6)]
        b += issue(f"U{A}", qunit(A))
        b += unpack(0) + scale(0) + pack(0)
        for u in range(1, 6):
            b += [landed(f"U{u}")] + qraw(u)
            if u == 3:
                b += [wait(lgkm=0), barrier()]
            ex = (issue(f"U{u+A}", qunit(u + A)) if u + A < 6 else []) + extras(u)
            sm = [Op(x, 8) for x in soft(u - 1, 0, 0)] + [Op(x, 14) for x in soft(u - 1, 0, 1)]
            sa, sb = soft(u - 1, 1, 0), soft(u - 1, 1, 1)
            b += sched(chains(u - 1), [[Op(x) for x in ex], sm, [Op(x, 4) for x in unpack(u)]])
            b += sa[:4] + sb[:4] + scale(u) + sa[4:] + sb[4:] + pack(u)
        b += [valu("v_add_u32", V_KA, 2 * TILE_L, V_KA), valu("v_add_u32", V_VA, TILE_L, V_VA),
              salu("s_mov_b32", S_SLOT, 2 * TILE_L), salu("s_add_u32", S_DMA, S_WOFF, 4 * TILE_L),
              salu("s_add_u32", S_DLIM, S_WOFF, self.R * TILE_L),
              salu("s_mov_b32", S_KOFF, 4 * TILE_G), salu("s_mov_b32", S_VOFF, 3 * TILE_G)]
        b += [landed("V0", lgkm=0), barrier()]
        vb = lambda i: KA0 + 4 * (i % 4) if i < 8 else VA0 + 4 * (i % 2)
        mf = chains(5)
        g0 = len(mf)
        for db in range(12):
            mf += [mfma(Oreg(j, db), R("a", vb(db), 4), R("v", Preg(0, j), 4), "0") for j in range(NQB)]
        sm = [Op(x, 8, g0 - 2) for x in soft(5, 0, 0)] + [Op(x, 14, g0 + 2) for x in soft(5, 0, 1)]
        sm += [Op(x, 20) for x in soft(5, 1, 0)] + [Op(x, 27) for x in soft(5, 1, 1)[:2]]
        vst = []
        for db in range(12):
            lo = 6 if db < 4 else (g0 + 6 * (db - 4) + 5 if db < 8 else (g0 + 12 if db < 10 else g0 + 6 * (db - 2) + 5))
            vst += [Op(self.vread(db, h, vb(db)), lo, max(lo, g0 + 6 * db - 6)) for h in range(2)]
        ex = extras(6) + issue("G3", group(3, 2))
        sync = g0 + 6 * 8
        last = [Op(landed("G2"), sync - 1, sync - 1), Op(barrier(), sync, sync)]
        last += [Op(self.kread(0, s), sync + 1) for s in range(6)] + [Op(self.qread(0), sync + 1)]
        last += [Op(self.vread(0, h, VA0, 1), g0 + 6 * 10 + 5) for h in range(2)]
        last += [Op(valu("v_add_u32", V_VA, TILE_L, V_VA), g0 + 6 * 10 + 5)]
        b += sched(mf, [sm, vst, [Op(x, g0 + 2, sync - 2) for x in ex], last])
        return b

    def group_tail(self, js, bufs, first, carry=(), extra=(), fin=()):
        n = len(js)
        LAT = self.lat
        mf, cstart, gstart = [], [], []
        v = 0
        for c in range(4 * n):
            ph, k = divmod(c, 2 * n)
            jj = js[c % n]
            d = R("v", S0 + 4 * (c % 2), 4)
            cstart.append(len(mf))
            mf += [mfma(d, Kreg(s), Qreg(jj, s), self.cinit if s == 0 else d) for s in range(6)]
            upto = 12 * ph + (k + 1) * 12 // (2 * n)
            if ph == 1 and k < 2 * n - 1:
                upto -= (4 + n - 1) // n * (k + 1) // (2 * n - 1)
            if c == 4 * n - 1:
                upto = 36
            while v < upto:
                gstart.append(len(mf))
                f_, b_ = bufs[v % len(bufs)]
                mf += [self.pv(v % 12, x, (1, 0, 1)[v // 12], b_, f_) for x in js]
                v += 1
        sm = [Op(x, 0, cstart[1] - 1) for x in carry]
        dots = [Op(x, gstart[1], gstart[1]) for x in self.dot_ops(1, js)] if self.dot else []
        for c in range(4 * n):
            ph, kb, jj = c // (2 * n), (c // n) % 2, js[c % n]
            sreg = S0 + 4 * (c % 2)
            p = Preg(ph, jj) + 2 * kb
            hi = gstart[12 * (ph + 1)] + js.index(jj) - 2
            if c + 2 < 4 * n:
                hi = min(hi, cstart[c + 2] - 1)
            e = [valu("v_exp_f32", f"v{sreg+i}", f"v{sreg+i}") for i in range(4)]
            a = [valu("v_add_f32", f"v{L0+jj}", f"v{sreg+i}", f"v{L0+jj}") for i in range(4)]
            cv = [valu("v_cvt_pk_bf16_f32", f"v{p+i}", f"v{sreg+2*i}", f"v{sreg+2*i+1}") for i in range(2)]
            lo = cstart[c] + 5 + 3
            for k, x in enumerate(e + [cv[0], a[0], cv[1], a[1], a[2], a[3]]):
                last = c + 2 < 4 * n
                h = hi - (9 - k) // 2 if (last or k < 7) else 10 ** 9
                sm.append(Op(x, lo, max(h, lo)))
        sm += [Op(x, gstart[24] + n) for x in fin]
        sync_gap = cstart[n] + 2 if first else -1
        sync, sync2 = [], sync_gap
        if first and self.D == 3:
            for k in range(3, 6):
                m_, d_ = self.dma_pair(k)
                sync += [Op(m_, 2 * k - 5, 2 * k - 5), Op(d_, 2 * k - 4, 2 * k - 4)]
            sync2 = gstart[24 - len(bufs)] - 2
            sync += [Op(wait(vm=3), sync_gap - 1, sync_gap - 1), Op(barrier(), sync_gap, sync_gap),
                     Op(wait(vm=0), sync2 - 1, sync2 - 1), Op(barrier(), sync2, sync2)]
        elif first:
            sync = [Op(wait(vm=0), sync_gap - 1, sync_gap - 1), Op(barrier(), sync_gap, sync_gap)]
        kst = []
        for st_ in range(1, 4):
            for s in range(6):
                lo = max(cstart[st_ * n - 1] + s, sync_gap + 1 if st_ == 2 else 0)
                kst.append(Op(self.kread(st_ % 2, s, st_ // 2), lo, max(cstart[st_ * n] + s - LAT, lo)))
        qst = [Op(self.qread(js[c % n]), cstart[c - 1] + 5, cstart[c] + 5 - LAT) for c in range(1, 4 * n)]
        vst = []
        pre = []
        for v in range(36):
            f_, b_ = bufs[v % len(bufs)]
            rd = [self.vread(v % 12, h, b_, v // 12, f_) for h in range(2)]
            if v == 0 and first:
                continue
            if v < len(bufs) and not first:
                pre += rd
                continue
            lo = gstart[v - len(bufs)] + n - 1 if v >= len(bufs) else 0
            if v >= 12:
                lo = max(lo, (sync2 if v >= 24 else sync_gap) + 1)
            vst += [Op(x, lo, max(gstart[v] - LAT, lo)) for x in rd]
        if not first:
            pre = [self.kread(0, s) for s in range(6)] + [self.qread(js[0])] + pre
        return pre, sched(mf, [sm, kst, qst, vst, sync, list(extra), dots])

    def row_sums(self, js, t0):
        b = []
        for op in ("v_permlane32_swap_b32", "v_permlane16_swap_b32"):
            b += [valu("v_mov_b32", f"v{t0+k}", f"v{L0+j}") for k, j in enumerate(js)]
            b += [valu(op, f"v{L0+j}", f"v{t0+k}") for k, j in enumerate(js)]
            b += [valu("v_add_f32", f"v{L0+j}", f"v{L0+j}", f"v{t0+k}") for k, j in enumerate(js)]
        return b

    def range_check(self, js, first):
        b = []
        if first:
            b += [salu("s_mov_b32", S_NEW, f32(2.0 ** 12)), salu("s_mov_b32", S_DELTA, f32(2.0 ** -20)),
                  salu("s_mov_b64", "s[44:45]", 0)]
        for j in js:
            b += [valu("v_cmp_nge_f32", "s[46:47]", S_NEW, f"v{L0+j}"), valu("v_cmp_nle_f32", "s[48:49]", S_DELTA, f"v{L0+j}")]
            b += [salu("s_or_b64", "s[44:45]", "s[44:45]", "s[46:47]"), salu("s_or_b64", "s[44:45]", "s[44:45]", "s[48:49]")]
        return b

    EW = [f"v{P0+i}" for i in range(4)]
    ER = [f"v{P0+4+i}" for i in range(3)]
    EG = f"v{P0+7}"

    def epi_addr(self):
        lane, t, u = T0, T1, V_DMA
        b = [raw(f"v_mbcnt_lo_u32_b32 {lane}, -1, 0", "valu", [], [lane]),
             raw(f"v_mbcnt_hi_u32_b32 {lane}, -1, {lane}", "valu", [lane], [lane]),
             salu("s_lshr_b32", S_T, S_W, 1), salu("s_mul_i32", S_T, S_T, 6 * TILE_L),
             salu("s_and_b32", S_SLOT, S_W, 1), salu("s_mul_i32", S_SLOT, S_SLOT, 12288),
             salu("s_add_u32", S_T, S_T, S_SLOT), salu("s_add_u32", S_T, S_T, (2 * TILE_L + 127) // 128 * 128),
             salu("s_and_b32", S_T, S_T, "0xffffff80"),
             valu("v_and_b32", t, 15, lane), valu("v_mul_u32_u24", u, 384, t), valu("v_add_u32", u, S_T, u),
             valu("v_bfe_u32", t, lane, 4, 1), valu("v_lshl_add_u32", u, t, 3, u),
             valu("v_lshrrev_b32", t, 5, lane), valu("v_xor_b32", t, t, lane), valu("v_and_b32", t, 7, t),
             valu("v_lshl_add_u32", self.EW[0], t, 4, u)]
        b += [valu("v_xor_b32", self.EW[i], 32 * i, self.EW[0]) for i in range(1, 4)]
        for i in range(3):
            r = self.ER[i]
            b += [valu("v_add_u32", r, 64 * i, lane), valu("v_mul_u32_u24", t, 2731, r),
                  valu("v_lshrrev_b32", t, 16, t), valu("v_xor_b32", r, r, t), valu("v_lshl_add_u32", r, r, 4, S_T)]
        b += [salu("s_mul_i32", S_T, S_W, 36864), valu("v_lshl_add_u32", self.EG, lane, 4, S_T)]
        return b

    def epi_stores(self, j):
        o = []
        for i in range(6):
            pre = [salu("s_mov_b32", S_T, j * 6144 + i * 1024)] if i % 4 == 0 else []
            o.append(pre + [buf_store(Oreg(j, i), self.EG, SRD_O, S_T, (i % 4) * 1024, self.opol)])
        return o

    def epi_block(self, j, pend, first=3, step=1):
        b = []
        for db in range(12):
            src = expand(Oreg(j, db))
            if src[0][0] == "a":
                t = S0 + 4 * (db % 2)
                b += [valu("v_accvgpr_read_b32", f"v{t+i}", src[i]) for i in range(4)]
                src = [f"v{t+i}" for i in range(4)]
            if self.pk:
                r0, lp = int(src[0][1:]), (L0 + j) & ~1
                sel = "op_sel:[0,1] op_sel_hi:[1,1]" if (L0 + j) & 1 else "op_sel_hi:[1,0]"
                b += [I(f"v_pk_mul_f32 {R('v', r0+2*i, 2)}, {R('v', r0+2*i, 2)}, {R('v', lp, 2)} {sel}", "valu",
                        regs("v", r0 + 2 * i, 2) + regs("v", lp, 2), regs("v", r0 + 2 * i, 2)) for i in range(2)]
            else:
                b += [valu("v_mul_f32", src[i], src[i], f"v{L0+j}") for i in range(4)]
            b += [valu("v_cvt_pk_bf16_f32", src[i], src[2 * i], src[2 * i + 1]) for i in range(2)]
            b += [ds_write("ds_write_b64", self.EW[db & 3], R("v", int(src[0][1:]), 2), (j % 2) * 6144 + (db >> 2) * 128)]
            if db >= first and (db - first) % step == 0 and pend:
                b += pend.pop(0)
        b += [ds_read("ds_read_b128", Oreg(j, i), self.ER[i % 3], (j % 2) * 6144 + (i // 3) * 3072) for i in range(6)]
        return b

    def epi_all(self, js, pend):
        b = []
        for j in js:
            b += self.epi_block(j, pend)
            b += [x for p in pend for x in p]
            pend = self.epi_stores(j)
        return b + [x for p in pend for x in p]

    def rcp(self, js):
        return [valu("v_rcp_f32", f"v{L0+j}", f"v{L0+j}") for j in js]

    def epilogue_plain(self):
        js = list(range(NQB))
        return self.row_sums(js, S0) + self.rcp(js) + self.epi_addr() + self.epi_all(js, [])

    def tail(self, carry):
        groups, k = [], 0
        for n in self.groups:
            groups.append(list(range(k, k + n)))
            k += n
        assert k == NQB and groups[0][-1] < 4 and len(groups[0]) >= 2
        bufs0 = [("a", VA0), ("a", VA0 + 4), ("v", Preg(0, 4)), ("v", Preg(0, 5))]
        bufs1 = [("a", VA0), ("a", VA0 + 4), ("a", 0), ("a", 4)]
        def fin(gi):
            js = groups[gi]
            o = self.row_sums(js, S0) + self.range_check(js, gi == 0) + self.rcp(js)
            return o + (self.epi_addr() if gi == 0 else [])
        _, b = self.group_tail(groups[0], bufs0, True, carry, (), fin(0))
        left = []
        for gi, js in enumerate(groups):
            last = gi == len(groups) - 1
            b += self.stamp() if gi in (0, len(groups) - 1) and self.touch != 2 else []
            if last:
                b += self.epi_all(js, left)
                break
            nxt = groups[gi + 1]
            for x, j in enumerate(js):
                if x == len(js) - 1:
                    pos = len(b)
                b += self.epi_block(j, left, 2, self.estep)
                left += self.epi_stores(j)
            nm = 60 * len(nxt)
            take = min(len(left), max(0, (nm - 4) // self.espace))
            extra = [Op(x, 4 + self.espace * i, 4 + self.espace * i) for i, p in enumerate(left[:take]) for x in p]
            left = left[take:]
            pre, t1 = self.group_tail(nxt, bufs1, False, (), extra, fin(gi + 1))
            b[pos:pos] = pre
            b += t1
        b += [salu("s_cmp_eq_u64", "s[44:45]", 0), branch("s_cbranch_scc1", "L_inrange"),
              valu("v_mov_b32", T0, self.FLAG), valu("v_mov_b32", T1, 1), ds_write("ds_write_b32", T0, T1, 0),
              label("L_inrange")]
        b += [wait(lgkm=0), barrier(), valu("v_mov_b32", T1, self.FLAG), ds_read("ds_read_b32", T1, T1, 0),
              valu("v_readfirstlane_b32", S_T, T1), salu("s_cmp_lg_u32", S_T, 0), branch("s_cbranch_scc1", "L_slow")]
        return b

    def stamp_out(self):
        if not self.stamps:
            return ""
        n = 4 + 2 * self.nstamp
        s = "  s_waitcnt vmcnt(0)\n  s_barrier\n  s_memrealtime s[60:61]\n  s_memtime s[62:63]\n  s_waitcnt lgkmcnt(0)\n"
        s += f"  s_cmp_lg_u32 {S_W}, 0\n  s_cbranch_scc1 L_end\n  s_mov_b64 exec, 1\n"
        if self.stamps == "prof":
            s += f"  s_mov_b64 exec, 0xffffffff\n  v_mbcnt_lo_u32_b32 v1, -1, 0\n  v_lshlrev_b32 v1, 2, v1\n  v_add_u32 v2, {self.FLAG + 8}, v1\n  ds_read_b32 v2, v2\n"
            s += f"  s_lshl_b32 s3, s2, 7\n  v_add_u32 v1, s3, v1\n  v_add_u32 v1, 0x100000, v1\n  s_waitcnt lgkmcnt(0)\n  global_store_dword v1, v2, s[14:15]\n  s_mov_b64 exec, 1\n"
        if self.stamps == "dbg":
            s += "  v_mov_b32 v1, 0\n  v_mov_b32 v2, s60\n  global_atomic_umax v1, v2, s[12:13]\n"
            s += "  s_not_b32 s3, s56\n  v_mov_b32 v3, s3\n  global_atomic_umax v1, v3, s[12:13] offset:4\n"
            s += "  v_mov_b32 v4, s56\n  global_atomic_umax v1, v4, s[12:13] offset:8\n"
            s += "  s_cmp_lg_u32 s2, 100\n  s_cbranch_scc1 L_end\n"
            vals = [(66 + 4 * i, 56) for i in range(self.nstamp)] + [(60, 56)] + [(64 + 4 * i, 58) for i in range(self.nstamp)] + [(62, 58)]
            for i, (x, y) in enumerate(vals):
                s += f"  s_sub_u32 s3, s{x}, s{y}\n  v_mov_b32 v2, s3\n  global_store_dword v1, v2, s[12:13] offset:{16+4*i}\n"
            return s
        s += f"  s_mul_i32 s3, s2, {8*n}\n  v_mov_b32 v1, s3\n"
        for i in range(n):
            r = 56 + 2 * i
            s += f"  v_mov_b32 v2, s{r}\n  v_mov_b32 v3, s{r+1}\n  global_store_dwordx2 v1, v[2:3], s[14:15] offset:{8*i}\n  s_nop 1\n"
        return s

    def build(self, verbose=False):
        ROT = 8
        pro = self.prologue()
        mfE, gE, tailE = self.period(0)
        mfO, gO, _ = self.period(1)
        if self.stamps == "prof":
            for gg in (gE, gO):
                gg[12 * 2 + 7] += [valu("v_mov_b32", T0, "s52"), valu("v_add_u32", T1, 4, T1)]
                gg[12 * 2 + 8] += [raw("s_memrealtime s[52:53]"), ds_write("ds_write_b32", T1, T0, 0)]
            pro += [valu("v_mov_b32", T1, self.FLAG + 4), raw("s_memrealtime s[52:53]")]
        gE[12 * 11 + 7].append(salu("s_cmp_eq_u32", S_CNT, 0))
        exit_tail = gE[143] + tailE
        gE[143] = [branch("s_cbranch_scc1", "L_drain")] + gE[143]
        gO[12 * 11 + 7].append(salu("s_sub_u32", S_CNT, S_CNT, 1))
        fill = self.stamp()
        log = []
        pro, st = fix(pro + fill, State(), hoist=bool(self.early))
        if self.early:
            head = self.flat(mfO, gO, 0, ROT)
            body = self.flat(mfO, gO, ROT, 144) + self.flat(mfE, gE, 0, 144) + self.flat(mfO, gO, 0, ROT)
        else:
            head = self.flat(mfE, gE, 0, ROT)
            body = self.flat(mfE, gE, ROT, 144) + self.flat(mfO, gO, 0, 144) + self.flat(mfE, gE, 0, ROT)
        body.append(branch("s_branch", "L_top"))
        head1, st1 = fix(head, st, hoist=True)
        body1, st2 = fix(body, st1, hoist=True, log=log)
        body2, st3 = fix(body1, st2, hoist=True, log=log)
        errs, _ = verify(pro + head1 + body2 + body2 + body2)
        assert not errs, errs[:10]
        kx = next(i for i, x in enumerate(body2) if x.kind == "branch")
        _, stx = verify(pro + head1 + body2 + body2[:kx + 1])
        post = self.stamp() + self.tail(exit_tail)
        post, _ = fix(post, stx, hoist=True)
        errs, _ = verify(pro + head1 + body2[:kx + 1] + post)
        assert not errs, errs[:10]
        if verbose:
            tot, over = estimate(body2)
            print("loop estimate cycles (288 mfma, ideal 4608):", tot)
            for o in over:
                print("  over:", o)
            print("  inserted:", [x for x in log if x[0] == "nop"])
            print("  waits:", len([x for x in log if x[0] == "wait"]), "instrs:", len(body2))
            tot, over = estimate(post)
            print("tail estimate:", tot, "mfma:", sum(x.kind == "mfma" for x in post), "instrs:", len(post))
            print("  over:", [(o[0], o[1]) for o in over])
        self.njit = 0

        def jit(block):
            if not self.jitter:
                return block
            mask, where, amount = self.jitter.split(",")
            out = []
            for x in block:
                if x.kind != "barrier":
                    out.append(x)
                    continue
                self.njit += 1
                lab = f"L_jit{self.njit}"
                nap = [raw("s_cselect_b32 s99, 1, 0"), raw(f"s_lshl_b32 s98, 1, {S_W}"), raw(f"s_and_b32 s98, s98, {mask}"),
                       raw(f"s_cbranch_scc0 {lab}"), raw(f"s_sleep {amount}"), label(lab), raw("s_cmp_lg_u32 s99, 0")]
                out += nap + [x] if where == "b" else [x] + nap
            return out
        text = "  ; prologue: addresses, descriptors, Q staging and scaling, QK of tile 0\n" + emit(jit(pro + head1))
        text += "  ; main loop: two periods per trip\n.p2align 6\nL_top:\n" + emit(jit(body2))
        text += "  ; last two tiles per group of query blocks, range check, output\nL_drain:\n" + emit(jit(post))
        text += self.stamp_out() + "L_end:\n  s_endpgm\n"
        setup, maxl, mid, main, epi = self.slow_path()
        st = State()
        blocks = []
        for blk, loop in ((setup, False), (maxl, True), (mid, False), (main, True), (epi, False)):
            blk, st = fix(blk, st)
            if loop:
                blk, st = fix(blk, st)
            blocks.append(blk)
        setup, maxl, mid, main, epi = blocks
        errs, _ = verify(post + setup + maxl + maxl + mid + main + main + epi)
        assert not errs, errs[:10]
        text += "  ; fallback: reload Q unscaled\nL_slow:\n" + emit(setup)
        text += "  ; fallback pass 1: true row maximum\nL_slow_max:\n" + emit(maxl) + emit(mid)
        text += "  ; fallback pass 2: P = exp2(c*S - c*max), O += P V\nL_slow_main:\n" + emit(main)
        text += emit(epi) + "  s_endpgm\n"
        return wrap(text, 256, 256, self.lds, 512, 256, extra_comment=DOC)


if __name__ == "__main__":
    ap = argparse.ArgumentParser()
    ap.add_argument("-o", default="k.s")
    ap.add_argument("--stamps", default="")
    ap.add_argument("--ring", type=int, default=5)
    ap.add_argument("--pol", default="nt")
    ap.add_argument("--opol", default="nt")
    ap.add_argument("--abl", default="")
    ap.add_argument("--pref", type=int, default=1)
    ap.add_argument("--qpol", default="nt")
    ap.add_argument("--dist", type=int, default=3)
    ap.add_argument("--dpos", default="s")
    ap.add_argument("--pk", type=int, default=1)
    ap.add_argument("--lat", type=int, default=7)
    ap.add_argument("--jitter", default="")
    ap.add_argument("--ahead", type=int, default=3)
    ap.add_argument("--dot", type=int, default=0)
    ap.add_argument("--early", type=int, default=0)
    ap.add_argument("--spread", type=int, default=0)
    ap.add_argument("--remap", type=int, default=1)
    ap.add_argument("--touch", type=int, default=0)
    ap.add_argument("--groups", default="42")
    ap.add_argument("--estep", type=int, default=2)
    ap.add_argument("--espace", type=int, default=9)
    ap.add_argument("--provar", default="356")
    ap.add_argument("-v", action="store_true")
    a = ap.parse_args()
    SPREAD = bool(a.spread)
    g = Gen(ring=a.ring, pol=a.pol, opol=a.opol, stamps=a.stamps, abl=a.abl, provar=a.provar, groups=a.groups, estep=a.estep, espace=a.espace, pref=a.pref, remap=a.remap, touch=a.touch, qpol=a.qpol, dist=a.dist, dpos=a.dpos, pk=a.pk, lat=a.lat, jitter=a.jitter, ahead=a.ahead, dot=a.dot, early=a.early)
    open(a.o, "w").write(g.build(a.v))
```

```python
import argparse
import math
import struct
from fw import *
from asmlib import wrap

NQB = 6
TILE_G = 12288
TAU = 4192
TILE_L = 3 * TAU
HEAD_Q = 147456
HEAD_KV = 393216

V_KA, V_VA, V_DMA, V_QA = "v0", "v1", "v2", "v3"
L0 = 4
T0, T1 = "v10", "v11"
S0 = 12
P0 = 20
OV0, NOV = 68, 47
QA0 = 0
QBUF = 120
KA0 = 124
VA0 = 148
OA0 = 156
SRD_K, SRD_V, SRD_Q, SRD_O = "s[16:19]", "s[20:23]", "s[24:27]", "s[28:31]"
S_W, S_KOFF, S_VOFF, S_DMA, S_SLOT, S_NEW, S_DELTA, S_CNT, S_C, S_WOFF, S_T = (f"s{i}" for i in range(32, 43))
S_DLIM = "s54"
S_ONE = "s55"


def f32(x):
    return "0x%08x" % struct.unpack("<I", struct.pack("<f", x))[0]


SPREAD = False


def Oreg(j, db):
    if not SPREAD:
        n = j * 12 + db
        return R("v", OV0 + 4 * n, 4) if n < NOV else R("a", OA0 + 4 * (n - NOV), 4)
    return Oreg2(j, db)


def Oreg2(j, db):
    if db >= 8:
        return R("a", OA0 + 4 * (j * 4 + db - 8), 4)
    n = j * 8 + db
    return R("v", OV0 + 4 * n, 4) if n < NOV else R("a", OA0 + 4 * 24, 4)


def Qreg(j, s):
    return R("a", QA0 + 4 * (j * 5 + s), 4) if s < 5 else R("a", QBUF, 4)


def Kreg(s):
    return R("a", KA0 + 4 * s, 4)


def Preg(par, j):
    return P0 + 24 * par + 4 * j


DOC = """;
; All matrix work is v_mfma_f32_16x16x32_bf16 on transposed tiles: S^T = K Q^T, O^T = V^T P^T, so a lane keeps
;
;
; three tiles ahead, one barrier per period. The last two tiles run per group of query blocks (4, then 2) so
;
;
"""


class Gen:
    def __init__(self, ring=5, pol="nt", opol="", stamps=False, cinit="-4.0", abl="", provar="356", groups="42", estep=2, espace=9, pref=1, remap=1, touch=0, qpol="nt", dist=3, dpos="s", pk=1, lat=7, jitter="", ahead=3, dot=0, early=0):
        self.early = early
        self.dot = dot
        self.ahead = ahead
        self.jitter = jitter
        self.lat = lat
        self.pk = pk
        self.dpos = dpos
        self.D = dist
        self.qpol = qpol
        self.remap, self.touch = remap, touch
        self.pref = pref
        self.groups, self.estep, self.espace = [int(c) for c in groups], estep, espace
        self.provar = provar
        self.abl = abl
        self.R = ring
        self.pol, self.opol, self.stamps, self.cinit = pol, opol, stamps, cinit
        self.VBASE = ring * TILE_L
        assert ring == 5
        self.QBASE = (2 * ring + 1) * TILE_L
        self.FLAG = self.QBASE + 24576
        self.lds = self.FLAG + 256
        self.nstamp = 0

    def stamp(self):
        if not self.stamps:
            return []
        r = 64 + 4 * self.nstamp
        self.nstamp += 1
        return [raw(f"s_memtime s[{r}:{r+1}]", "salu"), raw(f"s_memrealtime s[{r+2}:{r+3}]", "salu")]

    def kread(self, kb, s, slot=0):
        return ds_read("ds_read_b128", Kreg(s), V_KA, slot * TILE_L + (s >> 1) * TAU + (s & 1) * 64 + kb * 512)

    def vread(self, db, half, base, slot=0, file="a"):
        return ds_read("ds_read_b64_tr_b16", R(file, base + 2 * half, 2), V_VA,
                       slot * TILE_L + (db >> 2) * TAU + (db & 3) * 32 + half * 512)

    def qread(self, j):
        return ds_read("ds_read_b128", R("a", QBUF, 4), V_QA, j * 1024)

    def dma_pair(self, k, base_sgpr=S_DMA, koff=S_KOFF, voff=S_VOFF, slot_off=0):
        tau = k % 3
        isv = k >= 3
        imm = (self.VBASE if isv else 0) + slot_off + tau * TAU - tau * 128
        return (salu("s_add_u32", "m0", base_sgpr, imm),
                buf_dma(V_DMA, SRD_V if isv else SRD_K, voff if isv else koff, tau * 128, self.pol))

    def softmax_ops(self, n, ppar):
        kb, j = divmod(n % 12, 6)
        s = S0 + 4 * (n % 2)
        p = Preg(ppar, j) + 2 * kb
        e = [valu("v_exp_f32", f"v{s+i}", f"v{s+i}") for i in range(4)]
        a = [valu("v_add_f32", f"v{L0+j}", f"v{s+i}", f"v{L0+j}") for i in range(4)]
        c = [valu("v_cvt_pk_bf16_f32", f"v{p+i}", f"v{s+2*i}", f"v{s+2*i+1}") for i in range(2)]
        return e, a, c

    def dot_ops(self, par, js):
        return [I(f"v_dot2c_f32_bf16 v{L0+j}, {S_ONE}, v{Preg(par, j)+i}", "valu",
                  [S_ONE, f"v{Preg(par, j)+i}", f"v{L0+j}"], [f"v{L0+j}"]) for i in range(4) for j in js]

    def qk(self, n, s):
        j = n % 6
        d = R("v", S0 + 4 * (n % 2), 4)
        return mfma(d, Kreg(s), Qreg(j, s), self.cinit if s == 0 else d)

    def pv(self, db, j, par, vbase, file="a"):
        return mfma(Oreg(j, db), R(file, vbase, 4), R("v", Preg(par, j), 4), Oreg(j, db))

    def period(self, par, fill=False):
        N = 144
        sc = [[] for _ in range(N + 12)]
        mem = [[] for _ in range(N + 12)]
        va = [[] for _ in range(N + 12)]
        heavy = lambda n: n % 6 == 5
        for n in range(-1, 12):
            if n == -1 and fill:
                continue
            e, a, c = self.softmax_ops(n, par if n == -1 else 1 - par)
            g = 12 * n
            if heavy(n):
                plan = [(10, e[0]), (11, e[1]), (12, e[2]), (13, e[3]), (14, a[0]), (15, a[1]), (16, c[0]), (16, a[2]),
                        (17, a[3]), (18, c[1])]
            elif heavy(n + 1):
                plan = [(9, e[0]), (10, e[1]), (11, e[2]), (12, e[3]), (13, a[0]), (14, a[1]), (15, c[0]), (16, a[2]),
                        (17, a[3]), (18, c[1])]
            else:
                plan = [(9, e[0]), (10, e[1]), (11, e[2]), (12, e[3]), (13, a[0]), (14, a[1]), (15, c[0]), (16, a[2]),
                        (17, a[3]), (19, c[1])]
            for o, ins in plan:
                if g + o >= 0 and not (self.dot and ins.text.startswith("v_add_f32")):
                    va[g + o].append(ins)
        for n in range(12):
            g = 12 * n
            nv = (n + 1) % 12
            vb = VA0 + 4 * ((n + 1) % 2)
            tpos = (8, 9) if heavy(n) else ((2, 3) if heavy(n - 1) else (1, 2))
            if not fill or n == 11:
                for h in range(2):
                    mem[g + tpos[h]].append(self.vread(nv, h, vb))
            mem[g + (7 if heavy(n) else 5)].append(self.qread((n + 1) % 6))
            if heavy(n):
                for s in range(6):
                    mem[g + 1 + s].append(self.kread(1 if n == 5 else 0, s))
        if not fill:
            pos = {"s": [(1, 6), (2, 6), (3, 6), (4, 6), (7, 6), (8, 6)],
                   "e": [(0, 8), (1, 6), (1, 8), (2, 6), (2, 8), (3, 6)],
                   "m": [(0, 8), (1, 6), (2, 6), (3, 6), (4, 6), (6, 8)],
                   "l": [(4, 6), (6, 8), (7, 6), (7, 8), (8, 6), (8, 8)]}[self.dpos]
            for k, (n, o) in enumerate(pos):
                m, d = self.dma_pair(k)
                sc[12 * n + o - 1].append(m)
                mem[12 * n + o].append(d)
        if self.dot:
            dots = self.dot_ops(par, range(NQB))
            k = len(dots) // self.dot
            for i_, n in enumerate({1: (3,), 2: (2, 8), 3: (2, 4, 8), 6: (1, 2, 3, 7, 8, 9)}[self.dot]):
                va[12 * n + 8] += dots[i_ * k:(i_ + 1) * k]
        g = 12 * 9
        book = [salu("s_add_u32", S_DMA, S_DMA, TILE_L),
                salu("s_cmp_eq_u32", S_DMA, S_DLIM),
                salu("s_cselect_b32", S_DMA, S_WOFF, S_DMA),
                salu("s_add_u32", S_NEW, S_SLOT, TILE_L),
                salu("s_cmp_eq_u32", S_NEW, self.R * TILE_L),
                salu("s_cselect_b32", S_NEW, 0, S_NEW),
                salu("s_sub_u32", S_DELTA, S_NEW, S_SLOT),
                salu("s_mov_b32", S_SLOT, S_NEW),
                salu("s_add_u32", S_KOFF, S_KOFF, TILE_G), salu("s_add_u32", S_VOFF, S_VOFF, TILE_G)]
        for o, ins in zip((0, 1, 2, 3, 6, 7, 8, 9, 10, 11), book):
            sc[g + o].append(ins)
        g = 12 * 10
        va[g + 6] += [valu("v_add_u32", V_KA, S_DELTA, V_KA), valu("v_add_u32", V_VA, S_DELTA, V_VA)]
        sc[g + 7].append(wait(vm=6 * (self.D - 2), lgkm=1))
        sc[g + 8].append(barrier())
        mf = []
        for n in range(12):
            mf += [self.qk(n, s) for s in range(6)]
            mf += [None if fill else self.pv(n, j, par, VA0 + 4 * (n % 2)) for j in range(6)]
        if not fill and self.abl:
            def keep(x):
                t = x.text
                if "e" in self.abl and t.startswith("v_exp"): return False
                if "a" in self.abl and t.startswith("v_add_f32"): return False
                if "c" in self.abl and t.startswith("v_cvt"): return False
                if "k" in self.abl and x.kind == "lds_rd" and V_KA in x.rd: return False
                if "v" in self.abl and x.kind == "lds_rd" and V_VA in x.rd: return False
                if "q" in self.abl and x.kind == "lds_rd" and V_QA in x.rd: return False
                if "d" in self.abl and x.kind == "dma": return False
                if "b" in self.abl and x.kind == "barrier": return False
                return True
            mem = [[x for x in g_ if keep(x)] for g_ in mem]
            va = [[x for x in g_ if keep(x)] for g_ in va]
            sc = [[x for x in g_ if keep(x)] for g_ in sc]
            if "c" in self.abl:
                mf = [m if (i % 12) < 6 else self.pv(i // 12, i % 12 - 6, 0, VA0 + 4 * ((i // 12) % 2)) for i, m in enumerate(mf)]
        gaps = [sc[i] + mem[i] + va[i] for i in range(N)]
        tail = [x for i in range(N, N + 12) for x in va[i]]
        return mf, gaps, tail

    @staticmethod
    def flat(mf, gaps, lo, hi):
        out = []
        for i in range(lo, hi):
            if mf[i] is not None:
                out.append(mf[i])
            out += gaps[i]
        return out

    def addr_setup(self, lane, w):
        b = [valu("v_lshrrev_b32", "v6", 4, lane), valu("v_lshlrev_b32", "v6", 3, "v6"),
             valu("v_bfe_u32", "v7", lane, 3, 1), valu("v_add_u32", "v6", "v6", "v7"),
             valu("v_lshl_add_u32", "v6", w, 1, "v6"), valu("v_mul_u32_u24", "v6", 384, "v6"),
             valu("v_and_b32", "v7", 7, lane), valu("v_lshl_add_u32", V_DMA, "v7", 4, "v6")]

        def lds_row(dst, key):
            return [valu("v_bfe_u32", "v8", key, 1, 2), valu("v_mul_u32_u24", "v8", 1056, "v8"),
                    valu("v_lshrrev_b32", "v9", 3, key), valu("v_lshlrev_b32", "v9", 1, "v9"),
                    valu("v_and_b32", dst, 1, key), valu("v_add_u32", "v9", "v9", dst),
                    valu("v_lshl_add_u32", dst, "v9", 7, "v8")]
        b += [valu("v_and_b32", "v6", 15, lane), valu("v_lshrrev_b32", "v7", 4, lane)]
        b += lds_row(V_KA, "v6") + [valu("v_lshl_add_u32", V_KA, "v7", 4, V_KA)]
        b += [valu("v_lshrrev_b32", "v6", 2, lane)] + lds_row(V_VA, "v6")
        b += [valu("v_and_b32", "v6", 3, lane), valu("v_lshl_add_u32", V_VA, "v6", 3, V_VA),
              valu("v_add_u32", V_VA, self.VBASE, V_VA)]
        return b

    def slow_path(self):
        M = ["v16", "v17", "v18", "v19", T0, T1]
        S = S0
        SD = R("v", S, 4)
        QL = Preg(1, 0)
        lane, w, vq = "v4", "v5", V_QA

        def qreg(j, s):
            return Qreg(j, s) if s < 5 else R("v", QL + 4 * j, 4)
        setup = [wait(vm=0, lgkm=0), barrier(),
                 raw(f"v_mbcnt_lo_u32_b32 {lane}, -1, 0", "valu", [], [lane]),
                 raw(f"v_mbcnt_hi_u32_b32 {lane}, -1, {lane}", "valu", [lane], [lane]),
                 valu("v_mov_b32", w, S_W)]
        setup += self.addr_setup(lane, w)
        setup += [valu("v_mul_u32_u24", vq, 96, w), valu("v_and_b32", "v6", 15, lane), valu("v_add_u32", vq, vq, "v6"),
                  valu("v_mul_u32_u24", vq, 384, vq), valu("v_lshl_add_u32", vq, "v7", 4, vq)]
        for j in range(NQB):
            setup.append(salu("s_mov_b32", S_T, j * 16 * 384))
            setup += [buf_load(qreg(j, s), vq, SRD_Q, S_T, s * 64) for s in range(6)]
        setup += [wait(vm=0)]
        setup += [valu("v_mov_b32", m, "0xff800000") for m in M]
        setup += [salu("s_mov_b32", S_KOFF, 0)]

        def load(with_v):
            o = []
            for k in range(6 if with_v else 3):
                o += list(self.dma_pair(k, S_WOFF, S_KOFF, S_KOFF))
            return o + [wait(vm=0), barrier()]

        def chain(j):
            return [mfma(SD, Kreg(s), qreg(j, s), "0" if s == 0 else SD) for s in range(6)]

        def close(name):
            return [wait(lgkm=0), barrier(), salu("s_add_u32", S_KOFF, S_KOFF, TILE_G),
                    salu("s_cmp_lt_u32", S_KOFF, HEAD_KV), branch("s_cbranch_scc1", name)]
        maxl = load(False)
        for kb in range(2):
            maxl += [self.kread(kb, s) for s in range(6)]
            for j in range(NQB):
                maxl += chain(j) + [valu("v_max3_f32", M[j], M[j], f"v{S}", f"v{S+1}"),
                                    valu("v_max3_f32", M[j], M[j], f"v{S+2}", f"v{S+3}")]
        maxl += close("L_slow_max")
        mid = []
        for m in M:
            for op in ("v_permlane32_swap_b32", "v_permlane16_swap_b32"):
                mid += [valu("v_mov_b32", vq, m), valu(op, m, vq), valu("v_max_f32", m, m, vq)]
        mid += [valu("v_mul_f32", m, S_C, m) for m in M]
        mid += [valu("v_accvgpr_write_b32", f"a{r}", 0) for r in range(OA0, 256)]
        mid += [valu("v_mov_b32", f"v{r}", 0) for r in list(range(OV0, 256)) + list(range(L0, L0 + 6))]
        mid += [salu("s_mov_b32", S_KOFF, 0)]
        main = load(True)
        for kb in range(2):
            main += [self.kread(kb, s) for s in range(6)]
            for j in range(NQB):
                p = Preg(0, j) + 2 * kb
                main += chain(j)
                main += [valu("v_fma_f32", f"v{S+i}", f"v{S+i}", S_C, "-" + M[j]) for i in range(4)]
                main += [valu("v_exp_f32", f"v{S+i}", f"v{S+i}") for i in range(4)]
                main += [valu("v_add_f32", f"v{L0+j}", f"v{S+i}", f"v{L0+j}") for i in range(4)]
                main += [valu("v_cvt_pk_bf16_f32", f"v{p+i}", f"v{S+2*i}", f"v{S+2*i+1}") for i in range(2)]
        for db in range(12):
            vb = VA0 + 4 * (db % 2)
            main += [self.vread(db, h, vb) for h in range(2)]
            main += [self.pv(db, j, 0, vb) for j in range(NQB)]
        main += close("L_slow_main")
        return setup, maxl, mid, main, self.epilogue_plain()

    def prologue(self):
        b = []
        b += [salu("s_cmp_ge_u32", "s2", 256), branch("s_cbranch_scc1", "L_end"),
              raw("s_load_dwordx4 s[4:7], s[0:1], 0", "smem"), raw("s_load_dwordx4 s[8:11], s[0:1], 16", "smem")]
        if self.stamps:
            b += [raw("s_load_dwordx4 s[12:15], s[0:1], 32", "smem"),
                  raw("s_memrealtime s[56:57]"), raw("s_memtime s[58:59]")]
        lane, w = "v4", "v5"
        b += [valu("v_and_b32", lane, 63, "v0"), valu("v_lshrrev_b32", w, 6, "v0"),
              valu("v_readfirstlane_b32", S_W, w)]
        if self.pref:
            b += [raw("s_getpc_b64 s[50:51]", "salu", [], ["s50", "s51"]), label("L_pc"),
                  salu("s_lshr_b32", S_T, "s2", 3), salu("s_lshl_b32", S_T, S_T, 2), salu("s_add_u32", S_T, S_T, S_W),
                  salu("s_min_u32", S_T, S_T, "(L_end-L_pc)/1024"), salu("s_lshl_b32", S_T, S_T, 10),
                  valu("v_lshl_add_u32", "v6", lane, 4, S_T),
                  I(f"global_load_dwordx4 v[{OV0}:{OV0+3}], v6, s[50:51]", "vm_ld", ["v6", "s50", "s51"], regs("v", OV0, 4))]
        b += self.addr_setup(lane, w)
        g = "v7"
        b += [valu("v_mul_u32_u24", V_QA, 6144, w), valu("v_lshl_add_u32", V_QA, lane, 4, V_QA),
              valu("v_add_u32", V_QA, self.QBASE, V_QA)]
        for i_ in range(3):
            d = f"v{OV0+80+i_}"
            b += [valu("v_add_u32", d, 64 * i_, lane), valu("v_mul_u32_u24", "v6", 2731, d),
                  valu("v_lshrrev_b32", "v6", 16, "v6"), valu("v_and_b32", "v6", 6, "v6"),
                  valu("v_xor_b32", d, d, "v6"), valu("v_lshlrev_b32", d, 4, d)]
        b += [valu("v_and_b32", "v6", 15, lane), valu("v_and_b32", "v8", 6, lane), valu("v_xor_b32", "v8", "v8", g),
              valu("v_mul_u32_u24", "v6", 384, "v6"), valu("v_lshl_add_u32", f"v{OV0+83}", "v8", 4, "v6"),
              valu("v_xor_b32", f"v{OV0+84}", 64, f"v{OV0+83}")]
        head = "s2"
        if self.remap:
            head = "s3"
            b += [salu("s_and_b32", head, "s2", 7), salu("s_lshl_b32", head, head, 5),
                  salu("s_lshr_b32", S_T, "s2", 3), salu("s_add_u32", head, head, S_T)]
        S_SA, S_SB = "s43", "s44"
        VQ = [f"v{OV0+80+i_}" for i_ in range(3)]
        b += [salu("s_mul_i32", S_KOFF, head, HEAD_KV), salu("s_mul_i32", S_VOFF, head, HEAD_Q),
              salu("s_mov_b32", "s18", HEAD_KV), salu("s_mov_b32", "s19", "0x20000"),
              salu("s_mov_b32", "s26", HEAD_Q), salu("s_mov_b32", "s27", "0x20000"),
              salu("s_mul_i32", S_WOFF, S_W, 1056),
              salu("s_lshr_b32", S_T, S_W, 1), salu("s_mul_i32", S_T, S_T, 3), salu("s_add_u32", S_T, S_T, S_W),
              salu("s_add_u32", S_T, S_T, 2), salu("s_mul_i32", S_SB, S_T, TILE_L),
              salu("s_add_u32", S_SA, S_SB, 2 * TILE_L), salu("s_mul_i32", S_T, S_W, 36864)]
        b += [valu("v_add_u32", VQ[i_], S_T, VQ[i_]) for i_ in range(3)]
        b += [raw("s_waitcnt lgkmcnt(0)", "salu")]
        b += [salu("s_add_u32", "s16", "s6", S_KOFF), salu("s_addc_u32", "s17", "s7", 0),
              salu("s_add_u32", "s24", "s4", S_VOFF), salu("s_addc_u32", "s25", "s5", 0)]
        late = [salu("s_add_u32", "s20", "s8", S_KOFF), salu("s_addc_u32", "s21", "s9", 0),
                salu("s_mov_b32", "s22", HEAD_KV), salu("s_mov_b32", "s23", "0x20000"),
                salu("s_add_u32", "s28", "s10", S_VOFF), salu("s_addc_u32", "s29", "s11", 0),
                salu("s_mov_b32", "s30", HEAD_Q), salu("s_mov_b32", "s31", "0x20000"),
                salu("s_mov_b32", S_C, f32(math.log2(math.e) / math.sqrt(192.0))),
                salu("s_mov_b32", S_CNT, 14), salu("s_mov_b32", S_ONE, "0x3f803f80")]

        def group(ktile, vtile):
            o = []
            for k in range(6):
                tile = vtile if k >= 3 else ktile
                if tile is None:
                    continue
                slot = (tile + 1) % self.R if k >= 3 else tile % self.R
                if k % 3 == 0:
                    o.append(salu("s_mov_b32", S_T, tile * TILE_G))
                o += list(self.dma_pair(k, S_WOFF, S_T, S_T, slot * TILE_L))
            return o
        RAW = OV0
        LO = OV0 + 48
        Q5 = OV0 + 72
        VR = [f"v{OV0+83+i_}" for i_ in range(2)]
        LAST = OV0 + 96
        ZERO = "a[252:255]"
        CV = T0
        KB = Preg(1, 0)

        def ubase(u):
            return (S_SB if u in (2, 3) else S_SA), (u & 1) * 6144

        def qunit(u):
            sb, off = ubase(u)
            o = []
            for i_ in range(3):
                o += [salu("s_add_u32", "m0", sb, off + i_ * 1024)]
                o += [salu("s_mov_b32", S_T, u * 6144)] if i_ == 0 else [nop(0)]
                o += [buf_dma(VQ[i_], SRD_Q, S_T, h * 3072, self.qpol) for h in range(2)]
            return o

        def qraw(u):
            sb, off = ubase(u)
            o = [valu("v_add_u32", T0, sb, VR[0]), valu("v_add_u32", T1, sb, VR[1])]
            for s_ in range(6):
                o.append(ds_read("ds_read_b128", R("v", RAW + 4 * ((u % 2) * 6 + s_), 4), (T0, T1)[s_ & 1],
                                 off + (s_ >> 1) * 128))
            return o

        def unpack(j):
            r0 = RAW + 24 * (j % 2)
            o = []
            for i_ in range(24):
                o += [valu("v_lshlrev_b32", f"v{LO+i_}", 16, f"v{r0+i_}"),
                      valu("v_and_b32", f"v{r0+i_}", "0xffff0000", f"v{r0+i_}")]
            return o

        def scale(j):
            o = []
            for base in (LO, RAW + 24 * (j % 2)):
                o += [I(f"v_pk_mul_f32 {R('v', base+2*i_, 2)}, {R('v', base+2*i_, 2)}, s[52:53]", "valu",
                        regs("v", base + 2 * i_, 2) + ["s52", "s53"], regs("v", base + 2 * i_, 2)) for i_ in range(12)]
            return o

        def pack(j):
            o = []
            for s_ in range(6):
                r0 = RAW + 24 * (j % 2) + 4 * s_
                dst = r0 if s_ < 5 else Q5 + 4 * (j % 2)
                o += [valu("v_cvt_pk_bf16_f32", f"v{dst+i_}", f"v{LO+4*s_+i_}", f"v{r0+i_}") for i_ in range(4)]
                if s_ < 5:
                    o += [valu("v_accvgpr_write_b32", f"a{QA0+4*(j*5+s_)+i_}", f"v{dst+i_}") for i_ in range(4)]
                else:
                    o.append(ds_write("ds_write_b128", V_QA, R("v", dst, 4), j * 1024))
            return o

        def clear(file, lo, hi):
            o = []
            while hi - lo >= 16:
                o.append(mfma32(R(file, lo, 16), ZERO, ZERO, "0"))
                lo += 16
            while lo < hi:
                o.append(mfma(R(file, lo, 4), ZERO, ZERO, "0"))
                lo += 4
            return o

        def chains(j):
            o = []
            for kb in range(2):
                d = R("v", S0 + 4 * kb, 4)
                for s_ in range(6):
                    a_ = Kreg(s_) if kb == 0 else R("v", KB + 4 * s_, 4)
                    q_ = Qreg(j, s_) if s_ < 5 else R("v", Q5 + 4 * (j % 2), 4)
                    o.append(mfma(d, a_, q_, self.cinit if s_ == 0 else d))
            return o

        def soft(j, kb):
            sreg = S0 + 4 * kb
            p = Preg(0, j) + 2 * kb
            e = [valu("v_exp_f32", f"v{sreg+i_}", f"v{sreg+i_}") for i_ in range(4)]
            a_ = [valu("v_add_f32", f"v{L0+j}", f"v{sreg+i_}", f"v{L0+j}") for i_ in range(4)]
            c = [valu("v_cvt_pk_bf16_f32", f"v{p+i_}", f"v{sreg+2*i_}", f"v{sreg+2*i_+1}") for i_ in range(2)]
            return e + ([] if self.dot else a_) + c

        def weave(ms, ops, per=2):
            o = []
            ops = list(ops)
            for m in ms:
                o.append(m)
                o += ops[:per]
                ops = ops[per:]
            return o, ops

        plan = [int(c) for c in self.provar]
        queue = []

        def issue(name, ops):
            queue.append((name, sum(1 for x in ops if x.kind == "dma")))
            return ops

        def landed(name, **kw):
            k = [n for n, _ in queue].index(name)
            return wait(vm=sum(c for _, c in queue[k + 1:]), **kw)

        def extras(u):
            o = []
            if plan[0] == u:
                o += issue("KV0", group(1, 0))
            if plan[1] == u:
                o += issue("G4", group(2, 1))
            if plan[2] == u and self.D >= 4:
                o += issue("G3", group(3, 2))
            return o

        if self.early:
            return b + self.early_start(locals())
        b += issue("K0", group(0, None)) + issue("U0", qunit(0)) + issue("U1", qunit(1))
        b += late + [salu("s_mov_b32", "s52", S_C), salu("s_mov_b32", "s53", S_C)]
        b += [valu("v_accvgpr_write_b32", f"a{r}", 0) for r in range(252, 256)]
        b += [valu("v_mov_b32", f"v{r}", 0) for r in range(L0, L0 + 6)]
        b += [valu("v_mov_b32", "v14", self.FLAG), valu("v_mov_b32", "v15", 0), ds_write("ds_write_b32", "v14", "v15", 0)]
        b += clear("a", OA0, 252) + clear("v", LAST, 256)
        A = self.ahead
        for u in range(2, A):
            b += issue(f"U{u}", qunit(u))
        b += [landed("U0")] + qraw(0) + [barrier()]
        b += [self.kread(0, s_) for s_ in range(6)]
        b += [ds_read("ds_read_b128", R("v", KB + 4 * s_, 4), V_KA, (s_ >> 1) * TAU + (s_ & 1) * 64 + 512) for s_ in range(6)]
        b += issue(f"U{A}", qunit(A))
        b += unpack(0) + scale(0) + pack(0)
        for u in range(1, 6):
            b += self.stamp() if self.touch == 2 and u in (1, 2, 4) else []
            b += [landed(f"U{u}")] + (self.stamp() if (self.touch == 1 and u >= 4) or (self.touch == 2 and u in (1, 2, 4)) else []) + qraw(u)
            if u == 3:
                b += [wait(lgkm=0), barrier()]
            ex = (issue(f"U{u+A}", qunit(u + A)) if u + A < 6 else []) + extras(u)
            sa, sb = soft(u - 1, 0), soft(u - 1, 1)
            b += sched(chains(u - 1), [[Op(x) for x in ex], [Op(x, 4) for x in unpack(u)]])
            b += sa[:4] + sb[:4] + scale(u) + sa[4:] + sb[4:]
            pk_ = pack(u)
            if u == 5:
                z = clear("v", RAW, RAW + 16) + clear("v", OV0 + 80, LAST)
                pk_ = pk_[:8] + z[:1] + pk_[8:16] + z[1:] + pk_[16:]
            b += pk_
        b += [valu("v_add_u32", V_KA, TILE_L, V_KA), valu("v_add_u32", V_VA, TILE_L, V_VA),
              salu("s_mov_b32", S_SLOT, TILE_L), salu("s_add_u32", S_DMA, S_WOFF, (self.D % 5) * TILE_L),
              salu("s_add_u32", S_DLIM, S_WOFF, self.R * TILE_L),
              salu("s_mov_b32", S_KOFF, self.D * TILE_G), salu("s_mov_b32", S_VOFF, (self.D - 1) * TILE_G)]
        st_ = self.stamp if self.touch == 1 else list
        b += st_() + [landed("KV0", lgkm=0)] + st_() + [barrier()]
        ch = chains(5)
        for s_ in range(6):
            b += [ch[s_], self.kread(0, s_)]
        b += [ch[6], self.qread(0), ch[7], self.vread(0, 0, VA0), ch[8], self.vread(0, 1, VA0)] + ch[9:]
        z = clear("v", RAW + 16, OV0 + 80)
        sa = soft(5, 0)
        rest = extras(6) + (group(4, 3) if self.D == 5 else [])
        b += [z[0]] + sa[:3] + [z[1]] + sa[3:5] + [z[2]] + sa[5:] + rest + [z[3]] + soft(5, 1)[:2]
        return b

    def early_start(self, c):
        group, qunit, qraw, unpack, scale, pack = (c[k] for k in ("group", "qunit", "qraw", "unpack", "scale", "pack"))
        issue, landed, late, Q5 = c["issue"], c["landed"], c["late"], c["Q5"]
        assert self.D == 3
        S2 = OV0 + 88
        KT = OV0 + 96
        plan = [int(x) for x in self.provar]

        def kreg(tile, kb, s):
            return Kreg(s) if (tile, kb) == (0, 0) else R("v", KT + 24 * (2 * tile + kb - 1) + 4 * s, 4)

        def sreg(tile, kb):
            return (S2 if tile == 0 else S0) + 4 * kb

        def chains(j):
            o = []
            for tile in range(2):
                for kb in range(2):
                    d = R("v", sreg(tile, kb), 4)
                    for s in range(6):
                        q_ = Qreg(j, s) if s < 5 else R("v", Q5 + 4 * (j % 2), 4)
                        o.append(mfma(d, kreg(tile, kb, s), q_, self.cinit if s == 0 else d))
            return o

        def soft(j, tile, kb):
            r, p = sreg(tile, kb), Preg(tile, j) + 2 * kb
            e = [valu("v_exp_f32", f"v{r+i}", f"v{r+i}") for i in range(4)]
            a = [valu("v_add_f32", f"v{L0+j}", f"v{r+i}", f"v{L0+j}") for i in range(4)]
            cv = [valu("v_cvt_pk_bf16_f32", f"v{p+i}", f"v{r+2*i}", f"v{r+2*i+1}") for i in range(2)]
            return e + [cv[0], a[0], cv[1], a[1], a[2], a[3]]

        def extras(u):
            o = []
            if plan[0] == u:
                o += issue("V0", group(None, 0))
            if plan[1] == u:
                o += issue("G2", group(2, 1))
            return o
        A = self.ahead
        b = issue("K0", group(0, None)) + issue("K1", group(1, None)) + issue("U0", qunit(0))
        b += late + [salu("s_mov_b32", "s52", S_C), salu("s_mov_b32", "s53", S_C)]
        b += [valu("v_mov_b32", f"v{r}", 0) for r in range(L0, L0 + 6)]
        b += [valu("v_mov_b32", "v14", self.FLAG), valu("v_mov_b32", "v15", 0), ds_write("ds_write_b32", "v14", "v15", 0)]
        for u in range(1, A):
            b += issue(f"U{u}", qunit(u))
        b += [landed("U0")] + qraw(0) + [barrier()]
        for tile in range(2):
            for kb in range(2):
                b += [ds_read("ds_read_b128", kreg(tile, kb, s), V_KA,
                              tile * TILE_L + (s >> 1) * TAU + (s & 1) * 64 + kb * 512) for s in range(6)]
        if A < 4:
            b += issue(f"U{A}", qunit(A)) + unpack(0)
        else:
            b += unpack(0) + issue("U4", qunit(4))
        b += scale(0) + pack(0)
        for u in range(1, 6):
            b += [landed(f"U{u}")] + qraw(u)
            if u == 3:
                b += [wait(lgkm=0), barrier()]
            ex = (issue(f"U{u+A}", qunit(u + A)) if u + A < 6 and A < 4 else []) + extras(u)
            sm = [Op(x, 8) for x in soft(u - 1, 0, 0)] + [Op(x, 14) for x in soft(u - 1, 0, 1)]
            sa, sb = soft(u - 1, 1, 0), soft(u - 1, 1, 1)
            b += sched(chains(u - 1), [[Op(x) for x in ex], sm, [Op(x, 4) for x in unpack(u)]])
            if A == 4 and u == 1:
                b += issue("U5", qunit(5))
            b += sa[:4] + sb[:4] + scale(u) + sa[4:] + sb[4:] + pack(u)
        b += [valu("v_add_u32", V_KA, 2 * TILE_L, V_KA), valu("v_add_u32", V_VA, TILE_L, V_VA),
              salu("s_mov_b32", S_SLOT, 2 * TILE_L), salu("s_add_u32", S_DMA, S_WOFF, 4 * TILE_L),
              salu("s_add_u32", S_DLIM, S_WOFF, self.R * TILE_L),
              salu("s_mov_b32", S_KOFF, 4 * TILE_G), salu("s_mov_b32", S_VOFF, 3 * TILE_G)]
        b += [landed("V0", lgkm=0), barrier()]
        vb = lambda i: KA0 + 4 * (i % 4) if i < 8 else VA0 + 4 * (i % 2)
        mf = chains(5)
        g0 = len(mf)
        for db in range(12):
            mf += [mfma(Oreg(j, db), R("a", vb(db), 4), R("v", Preg(0, j), 4), "0") for j in range(NQB)]
        sm = [Op(x, 8, g0 - 2) for x in soft(5, 0, 0)] + [Op(x, 14, g0 + 2) for x in soft(5, 0, 1)]
        sm += [Op(x, 20) for x in soft(5, 1, 0)] + [Op(x, 27) for x in soft(5, 1, 1)[:2]]
        vst = []
        for db in range(12):
            lo = 6 if db < 4 else (g0 + 6 * (db - 4) + 5 if db < 8 else (g0 + 12 if db < 10 else g0 + 6 * (db - 2) + 5))
            vst += [Op(self.vread(db, h, vb(db)), lo, max(lo, g0 + 6 * db - 6)) for h in range(2)]
        ex = extras(6) + issue("G3", group(3, 2))
        sync = g0 + 6 * 8
        last = [Op(landed("G2"), sync - 1, sync - 1), Op(barrier(), sync, sync)]
        last += [Op(self.kread(0, s), sync + 1) for s in range(6)] + [Op(self.qread(0), sync + 1)]
        last += [Op(self.vread(0, h, VA0, 1), g0 + 6 * 10 + 5) for h in range(2)]
        last += [Op(valu("v_add_u32", V_VA, TILE_L, V_VA), g0 + 6 * 10 + 5)]
        b += sched(mf, [sm, vst, [Op(x, g0 + 2, sync - 2) for x in ex], last])
        return b

    def group_tail(self, js, bufs, first, carry=(), extra=(), fin=()):
        n = len(js)
        LAT = self.lat
        mf, cstart, gstart = [], [], []
        v = 0
        for c in range(4 * n):
            ph, k = divmod(c, 2 * n)
            jj = js[c % n]
            d = R("v", S0 + 4 * (c % 2), 4)
            cstart.append(len(mf))
            mf += [mfma(d, Kreg(s), Qreg(jj, s), self.cinit if s == 0 else d) for s in range(6)]
            upto = 12 * ph + (k + 1) * 12 // (2 * n)
            if ph == 1 and k < 2 * n - 1:
                upto -= (4 + n - 1) // n * (k + 1) // (2 * n - 1)
            if c == 4 * n - 1:
                upto = 36
            while v < upto:
                gstart.append(len(mf))
                f_, b_ = bufs[v % len(bufs)]
                mf += [self.pv(v % 12, x, (1, 0, 1)[v // 12], b_, f_) for x in js]
                v += 1
        sm = [Op(x, 0, cstart[1] - 1) for x in carry]
        dots = [Op(x, gstart[1], gstart[1]) for x in self.dot_ops(1, js)] if self.dot else []
        for c in range(4 * n):
            ph, kb, jj = c // (2 * n), (c // n) % 2, js[c % n]
            sreg = S0 + 4 * (c % 2)
            p = Preg(ph, jj) + 2 * kb
            hi = gstart[12 * (ph + 1)] + js.index(jj) - 2
            if c + 2 < 4 * n:
                hi = min(hi, cstart[c + 2] - 1)
            e = [valu("v_exp_f32", f"v{sreg+i}", f"v{sreg+i}") for i in range(4)]
            a = [valu("v_add_f32", f"v{L0+jj}", f"v{sreg+i}", f"v{L0+jj}") for i in range(4)]
            cv = [valu("v_cvt_pk_bf16_f32", f"v{p+i}", f"v{sreg+2*i}", f"v{sreg+2*i+1}") for i in range(2)]
            lo = cstart[c] + 5 + 3
            for k, x in enumerate(e + [cv[0], a[0], cv[1], a[1], a[2], a[3]]):
                last = c + 2 < 4 * n
                h = hi - (9 - k) // 2 if (last or k < 7) else 10 ** 9
                sm.append(Op(x, lo, max(h, lo)))
        sm += [Op(x, gstart[24] + n) for x in fin]
        sync_gap = cstart[n] + 2 if first else -1
        sync, sync2 = [], sync_gap
        if first and self.D == 3:
            for k in range(3, 6):
                m_, d_ = self.dma_pair(k)
                sync += [Op(m_, 2 * k - 5, 2 * k - 5), Op(d_, 2 * k - 4, 2 * k - 4)]
            sync2 = gstart[24 - len(bufs)] - 2
            sync += [Op(wait(vm=3), sync_gap - 1, sync_gap - 1), Op(barrier(), sync_gap, sync_gap),
                     Op(wait(vm=0), sync2 - 1, sync2 - 1), Op(barrier(), sync2, sync2)]
        elif first:
            sync = [Op(wait(vm=0), sync_gap - 1, sync_gap - 1), Op(barrier(), sync_gap, sync_gap)]
        kst = []
        for st_ in range(1, 4):
            for s in range(6):
                lo = max(cstart[st_ * n - 1] + s, sync_gap + 1 if st_ == 2 else 0)
                kst.append(Op(self.kread(st_ % 2, s, st_ // 2), lo, max(cstart[st_ * n] + s - LAT, lo)))
        qst = [Op(self.qread(js[c % n]), cstart[c - 1] + 5, cstart[c] + 5 - LAT) for c in range(1, 4 * n)]
        vst = []
        pre = []
        for v in range(36):
            f_, b_ = bufs[v % len(bufs)]
            rd = [self.vread(v % 12, h, b_, v // 12, f_) for h in range(2)]
            if v == 0 and first:
                continue
            if v < len(bufs) and not first:
                pre += rd
                continue
            lo = gstart[v - len(bufs)] + n - 1 if v >= len(bufs) else 0
            if v >= 12:
                lo = max(lo, (sync2 if v >= 24 else sync_gap) + 1)
            vst += [Op(x, lo, max(gstart[v] - LAT, lo)) for x in rd]
        if not first:
            pre = [self.kread(0, s) for s in range(6)] + [self.qread(js[0])] + pre
        return pre, sched(mf, [sm, kst, qst, vst, sync, list(extra), dots])

    def row_sums(self, js, t0):
        b = []
        for op in ("v_permlane32_swap_b32", "v_permlane16_swap_b32"):
            b += [valu("v_mov_b32", f"v{t0+k}", f"v{L0+j}") for k, j in enumerate(js)]
            b += [valu(op, f"v{L0+j}", f"v{t0+k}") for k, j in enumerate(js)]
            b += [valu("v_add_f32", f"v{L0+j}", f"v{L0+j}", f"v{t0+k}") for k, j in enumerate(js)]
        return b

    def range_check(self, js, first):
        b = []
        if first:
            b += [salu("s_mov_b32", S_NEW, f32(2.0 ** 12)), salu("s_mov_b32", S_DELTA, f32(2.0 ** -20)),
                  salu("s_mov_b64", "s[44:45]", 0)]
        for j in js:
            b += [valu("v_cmp_nge_f32", "s[46:47]", S_NEW, f"v{L0+j}"), valu("v_cmp_nle_f32", "s[48:49]", S_DELTA, f"v{L0+j}")]
            b += [salu("s_or_b64", "s[44:45]", "s[44:45]", "s[46:47]"), salu("s_or_b64", "s[44:45]", "s[44:45]", "s[48:49]")]
        return b

    EW = [f"v{P0+i}" for i in range(4)]
    ER = [f"v{P0+4+i}" for i in range(3)]
    EG = f"v{P0+7}"

    def epi_addr(self):
        lane, t, u = T0, T1, V_DMA
        b = [raw(f"v_mbcnt_lo_u32_b32 {lane}, -1, 0", "valu", [], [lane]),
             raw(f"v_mbcnt_hi_u32_b32 {lane}, -1, {lane}", "valu", [lane], [lane]),
             salu("s_lshr_b32", S_T, S_W, 1), salu("s_mul_i32", S_T, S_T, 6 * TILE_L),
             salu("s_and_b32", S_SLOT, S_W, 1), salu("s_mul_i32", S_SLOT, S_SLOT, 12288),
             salu("s_add_u32", S_T, S_T, S_SLOT), salu("s_add_u32", S_T, S_T, (2 * TILE_L + 127) // 128 * 128),
             salu("s_and_b32", S_T, S_T, "0xffffff80"),
             valu("v_and_b32", t, 15, lane), valu("v_mul_u32_u24", u, 384, t), valu("v_add_u32", u, S_T, u),
             valu("v_bfe_u32", t, lane, 4, 1), valu("v_lshl_add_u32", u, t, 3, u),
             valu("v_lshrrev_b32", t, 5, lane), valu("v_xor_b32", t, t, lane), valu("v_and_b32", t, 7, t),
             valu("v_lshl_add_u32", self.EW[0], t, 4, u)]
        b += [valu("v_xor_b32", self.EW[i], 32 * i, self.EW[0]) for i in range(1, 4)]
        for i in range(3):
            r = self.ER[i]
            b += [valu("v_add_u32", r, 64 * i, lane), valu("v_mul_u32_u24", t, 2731, r),
                  valu("v_lshrrev_b32", t, 16, t), valu("v_xor_b32", r, r, t), valu("v_lshl_add_u32", r, r, 4, S_T)]
        b += [salu("s_mul_i32", S_T, S_W, 36864), valu("v_lshl_add_u32", self.EG, lane, 4, S_T)]
        return b

    def epi_stores(self, j):
        o = []
        for i in range(6):
            pre = [salu("s_mov_b32", S_T, j * 6144 + i * 1024)] if i % 4 == 0 else []
            o.append(pre + [buf_store(Oreg(j, i), self.EG, SRD_O, S_T, (i % 4) * 1024, self.opol)])
        return o

    def epi_block(self, j, pend, first=3, step=1):
        b = []
        for db in range(12):
            src = expand(Oreg(j, db))
            if src[0][0] == "a":
                t = S0 + 4 * (db % 2)
                b += [valu("v_accvgpr_read_b32", f"v{t+i}", src[i]) for i in range(4)]
                src = [f"v{t+i}" for i in range(4)]
            if self.pk:
                r0, lp = int(src[0][1:]), (L0 + j) & ~1
                sel = "op_sel:[0,1] op_sel_hi:[1,1]" if (L0 + j) & 1 else "op_sel_hi:[1,0]"
                b += [I(f"v_pk_mul_f32 {R('v', r0+2*i, 2)}, {R('v', r0+2*i, 2)}, {R('v', lp, 2)} {sel}", "valu",
                        regs("v", r0 + 2 * i, 2) + regs("v", lp, 2), regs("v", r0 + 2 * i, 2)) for i in range(2)]
            else:
                b += [valu("v_mul_f32", src[i], src[i], f"v{L0+j}") for i in range(4)]
            b += [valu("v_cvt_pk_bf16_f32", src[i], src[2 * i], src[2 * i + 1]) for i in range(2)]
            b += [ds_write("ds_write_b64", self.EW[db & 3], R("v", int(src[0][1:]), 2), (j % 2) * 6144 + (db >> 2) * 128)]
            if db >= first and (db - first) % step == 0 and pend:
                b += pend.pop(0)
        b += [ds_read("ds_read_b128", Oreg(j, i), self.ER[i % 3], (j % 2) * 6144 + (i // 3) * 3072) for i in range(6)]
        return b

    def epi_all(self, js, pend):
        b = []
        for j in js:
            b += self.epi_block(j, pend)
            b += [x for p in pend for x in p]
            pend = self.epi_stores(j)
        return b + [x for p in pend for x in p]

    def rcp(self, js):
        return [valu("v_rcp_f32", f"v{L0+j}", f"v{L0+j}") for j in js]

    def epilogue_plain(self):
        js = list(range(NQB))
        return self.row_sums(js, S0) + self.rcp(js) + self.epi_addr() + self.epi_all(js, [])

    def tail(self, carry):
        groups, k = [], 0
        for n in self.groups:
            groups.append(list(range(k, k + n)))
            k += n
        assert k == NQB and groups[0][-1] < 4 and len(groups[0]) >= 2
        bufs0 = [("a", VA0), ("a", VA0 + 4), ("v", Preg(0, 4)), ("v", Preg(0, 5))]
        bufs1 = [("a", VA0), ("a", VA0 + 4), ("a", 0), ("a", 4)]
        def fin(gi):
            js = groups[gi]
            o = self.row_sums(js, S0) + self.range_check(js, gi == 0) + self.rcp(js)
            return o + (self.epi_addr() if gi == 0 else [])
        _, b = self.group_tail(groups[0], bufs0, True, carry, (), fin(0))
        left = []
        for gi, js in enumerate(groups):
            last = gi == len(groups) - 1
            b += self.stamp() if gi in (0, len(groups) - 1) and self.touch != 2 else []
            if last:
                b += self.epi_all(js, left)
                break
            nxt = groups[gi + 1]
            for x, j in enumerate(js):
                if x == len(js) - 1:
                    pos = len(b)
                b += self.epi_block(j, left, 2, self.estep)
                left += self.epi_stores(j)
            nm = 60 * len(nxt)
            take = min(len(left), max(0, (nm - 4) // self.espace))
            extra = [Op(x, 4 + self.espace * i, 4 + self.espace * i) for i, p in enumerate(left[:take]) for x in p]
            left = left[take:]
            pre, t1 = self.group_tail(nxt, bufs1, False, (), extra, fin(gi + 1))
            b[pos:pos] = pre
            b += t1
        b += [salu("s_cmp_eq_u64", "s[44:45]", 0), branch("s_cbranch_scc1", "L_inrange"),
              valu("v_mov_b32", T0, self.FLAG), valu("v_mov_b32", T1, 1), ds_write("ds_write_b32", T0, T1, 0),
              label("L_inrange")]
        b += [wait(lgkm=0), barrier(), valu("v_mov_b32", T1, self.FLAG), ds_read("ds_read_b32", T1, T1, 0),
              valu("v_readfirstlane_b32", S_T, T1), salu("s_cmp_lg_u32", S_T, 0), branch("s_cbranch_scc1", "L_slow")]
        return b

    def stamp_out(self):
        if not self.stamps:
            return ""
        n = 4 + 2 * self.nstamp
        s = "  s_waitcnt vmcnt(0)\n  s_barrier\n  s_memrealtime s[60:61]\n  s_memtime s[62:63]\n  s_waitcnt lgkmcnt(0)\n"
        s += f"  s_cmp_lg_u32 {S_W}, 0\n  s_cbranch_scc1 L_end\n  s_mov_b64 exec, 1\n"
        if self.stamps == "prof":
            s += f"  s_mov_b64 exec, 0xffffffff\n  v_mbcnt_lo_u32_b32 v1, -1, 0\n  v_lshlrev_b32 v1, 2, v1\n  v_add_u32 v2, {self.FLAG + 8}, v1\n  ds_read_b32 v2, v2\n"
            s += f"  s_lshl_b32 s3, s2, 7\n  v_add_u32 v1, s3, v1\n  v_add_u32 v1, 0x100000, v1\n  s_waitcnt lgkmcnt(0)\n  global_store_dword v1, v2, s[14:15]\n  s_mov_b64 exec, 1\n"
        if self.stamps == "dbg":
            s += "  v_mov_b32 v1, 0\n  v_mov_b32 v2, s60\n  global_atomic_umax v1, v2, s[12:13]\n"
            s += "  s_not_b32 s3, s56\n  v_mov_b32 v3, s3\n  global_atomic_umax v1, v3, s[12:13] offset:4\n"
            s += "  v_mov_b32 v4, s56\n  global_atomic_umax v1, v4, s[12:13] offset:8\n"
            s += "  s_cmp_lg_u32 s2, 100\n  s_cbranch_scc1 L_end\n"
            vals = [(66 + 4 * i, 56) for i in range(self.nstamp)] + [(60, 56)] + [(64 + 4 * i, 58) for i in range(self.nstamp)] + [(62, 58)]
            for i, (x, y) in enumerate(vals):
                s += f"  s_sub_u32 s3, s{x}, s{y}\n  v_mov_b32 v2, s3\n  global_store_dword v1, v2, s[12:13] offset:{16+4*i}\n"
            return s
        s += f"  s_mul_i32 s3, s2, {8*n}\n  v_mov_b32 v1, s3\n"
        for i in range(n):
            r = 56 + 2 * i
            s += f"  v_mov_b32 v2, s{r}\n  v_mov_b32 v3, s{r+1}\n  global_store_dwordx2 v1, v[2:3], s[14:15] offset:{8*i}\n  s_nop 1\n"
        return s

    def build(self, verbose=False):
        ROT = 8
        pro = self.prologue()
        mfE, gE, tailE = self.period(0)
        mfO, gO, _ = self.period(1)
        if self.stamps == "prof":
            for gg in (gE, gO):
                gg[12 * 2 + 7] += [valu("v_mov_b32", T0, "s52"), valu("v_add_u32", T1, 4, T1)]
                gg[12 * 2 + 8] += [raw("s_memrealtime s[52:53]"), ds_write("ds_write_b32", T1, T0, 0)]
            pro += [valu("v_mov_b32", T1, self.FLAG + 4), raw("s_memrealtime s[52:53]")]
        gE[12 * 11 + 7].append(salu("s_cmp_eq_u32", S_CNT, 0))
        exit_tail = gE[143] + tailE
        gE[143] = [branch("s_cbranch_scc1", "L_drain")] + gE[143]
        gO[12 * 11 + 7].append(salu("s_sub_u32", S_CNT, S_CNT, 1))
        fill = self.stamp()
        log = []
        pro, st = fix(pro + fill, State(), hoist=bool(self.early))
        if self.early:
            head = self.flat(mfO, gO, 0, ROT)
            body = self.flat(mfO, gO, ROT, 144) + self.flat(mfE, gE, 0, 144) + self.flat(mfO, gO, 0, ROT)
        else:
            head = self.flat(mfE, gE, 0, ROT)
            body = self.flat(mfE, gE, ROT, 144) + self.flat(mfO, gO, 0, 144) + self.flat(mfE, gE, 0, ROT)
        body.append(branch("s_branch", "L_top"))
        head1, st1 = fix(head, st, hoist=True)
        body1, st2 = fix(body, st1, hoist=True, log=log)
        body2, st3 = fix(body1, st2, hoist=True, log=log)
        errs, _ = verify(pro + head1 + body2 + body2 + body2)
        assert not errs, errs[:10]
        kx = next(i for i, x in enumerate(body2) if x.kind == "branch")
        _, stx = verify(pro + head1 + body2 + body2[:kx + 1])
        post = self.stamp() + self.tail(exit_tail)
        post, _ = fix(post, stx, hoist=True)
        errs, _ = verify(pro + head1 + body2[:kx + 1] + post)
        assert not errs, errs[:10]
        if verbose:
            tot, over = estimate(body2)
            print("loop estimate cycles (288 mfma, ideal 4608):", tot)
            for o in over:
                print("  over:", o)
            print("  inserted:", [x for x in log if x[0] == "nop"])
            print("  waits:", len([x for x in log if x[0] == "wait"]), "instrs:", len(body2))
            tot, over = estimate(post)
            print("tail estimate:", tot, "mfma:", sum(x.kind == "mfma" for x in post), "instrs:", len(post))
            print("  over:", [(o[0], o[1]) for o in over])
        self.njit = 0

        def jit(block):
            if not self.jitter:
                return block
            mask, where, amount = self.jitter.split(",")
            out = []
            for x in block:
                if x.kind != "barrier":
                    out.append(x)
                    continue
                self.njit += 1
                lab = f"L_jit{self.njit}"
                nap = [raw("s_cselect_b32 s99, 1, 0"), raw(f"s_lshl_b32 s98, 1, {S_W}"), raw(f"s_and_b32 s98, s98, {mask}"),
                       raw(f"s_cbranch_scc0 {lab}"), raw(f"s_sleep {amount}"), label(lab), raw("s_cmp_lg_u32 s99, 0")]
                out += nap + [x] if where == "b" else [x] + nap
            return out
        text = "  ; prologue: addresses, descriptors, Q staging and scaling, QK of tile 0\n" + emit(jit(pro + head1))
        text += "  ; main loop: two periods per trip\n.p2align 6\nL_top:\n" + emit(jit(body2))
        text += "  ; last two tiles per group of query blocks, range check, output\nL_drain:\n" + emit(jit(post))
        text += self.stamp_out() + "L_end:\n  s_endpgm\n"
        setup, maxl, mid, main, epi = self.slow_path()
        st = State()
        blocks = []
        for blk, loop in ((setup, False), (maxl, True), (mid, False), (main, True), (epi, False)):
            blk, st = fix(blk, st)
            if loop:
                blk, st = fix(blk, st)
            blocks.append(blk)
        setup, maxl, mid, main, epi = blocks
        errs, _ = verify(post + setup + maxl + maxl + mid + main + main + epi)
        assert not errs, errs[:10]
        text += "  ; fallback: reload Q unscaled\nL_slow:\n" + emit(setup)
        text += "  ; fallback pass 1: true row maximum\nL_slow_max:\n" + emit(maxl) + emit(mid)
        text += "  ; fallback pass 2: P = exp2(c*S - c*max), O += P V\nL_slow_main:\n" + emit(main)
        text += emit(epi) + "  s_endpgm\n"
        return wrap(text, 256, 256, self.lds, 512, 256, extra_comment=DOC)


if __name__ == "__main__":
    ap = argparse.ArgumentParser()
    ap.add_argument("-o", default="k.s")
    ap.add_argument("--stamps", default="")
    ap.add_argument("--ring", type=int, default=5)
    ap.add_argument("--pol", default="nt")
    ap.add_argument("--opol", default="nt")
    ap.add_argument("--abl", default="")
    ap.add_argument("--pref", type=int, default=1)
    ap.add_argument("--qpol", default="nt")
    ap.add_argument("--dist", type=int, default=3)
    ap.add_argument("--dpos", default="s")
    ap.add_argument("--pk", type=int, default=1)
    ap.add_argument("--lat", type=int, default=7)
    ap.add_argument("--jitter", default="")
    ap.add_argument("--ahead", type=int, default=3)
    ap.add_argument("--dot", type=int, default=0)
    ap.add_argument("--early", type=int, default=1)
    ap.add_argument("--spread", type=int, default=0)
    ap.add_argument("--remap", type=int, default=1)
    ap.add_argument("--touch", type=int, default=0)
    ap.add_argument("--groups", default="42")
    ap.add_argument("--estep", type=int, default=2)
    ap.add_argument("--espace", type=int, default=9)
    ap.add_argument("--provar", default="45")
    ap.add_argument("-v", action="store_true")
    a = ap.parse_args()
    SPREAD = bool(a.spread)
    g = Gen(ring=a.ring, pol=a.pol, opol=a.opol, stamps=a.stamps, abl=a.abl, provar=a.provar, groups=a.groups, estep=a.estep, espace=a.espace, pref=a.pref, remap=a.remap, touch=a.touch, qpol=a.qpol, dist=a.dist, dpos=a.dpos, pk=a.pk, lat=a.lat, jitter=a.jitter, ahead=a.ahead, dot=a.dot, early=a.early)
    open(a.o, "w").write(g.build(a.v))
```

```python
import argparse
import math
import struct
from fw import *
from asmlib import wrap

NQB = 6
TILE_G = 12288
TAU = 4192
TILE_L = 3 * TAU
HEAD_Q = 147456
HEAD_KV = 393216

V_KA, V_VA, V_DMA, V_QA = "v0", "v1", "v2", "v3"
L0 = 4
T0, T1 = "v10", "v11"
S0 = 12
P0 = 20
OV0, NOV = 68, 47
QA0 = 0
QBUF = 120
KA0 = 124
VA0 = 148
OA0 = 156
SRD_K, SRD_V, SRD_Q, SRD_O = "s[16:19]", "s[20:23]", "s[24:27]", "s[28:31]"
S_W, S_KOFF, S_VOFF, S_DMA, S_SLOT, S_NEW, S_DELTA, S_CNT, S_C, S_WOFF, S_T = (f"s{i}" for i in range(32, 43))
S_DLIM = "s54"
S_ONE = "s55"


def f32(x):
    return "0x%08x" % struct.unpack("<I", struct.pack("<f", x))[0]


SPREAD = False


def Oreg(j, db):
    if not SPREAD:
        n = j * 12 + db
        return R("v", OV0 + 4 * n, 4) if n < NOV else R("a", OA0 + 4 * (n - NOV), 4)
    return Oreg2(j, db)


def Oreg2(j, db):
    if db >= 8:
        return R("a", OA0 + 4 * (j * 4 + db - 8), 4)
    n = j * 8 + db
    return R("v", OV0 + 4 * n, 4) if n < NOV else R("a", OA0 + 4 * 24, 4)


def Qreg(j, s):
    return R("a", QA0 + 4 * (j * 5 + s), 4) if s < 5 else R("a", QBUF, 4)


def Kreg(s):
    return R("a", KA0 + 4 * s, 4)


def Preg(par, j):
    return P0 + 24 * par + 4 * j


DOC = """;
; All matrix work is v_mfma_f32_16x16x32_bf16 on transposed tiles: S^T = K Q^T, O^T = V^T P^T, so a lane keeps
;
;
; three tiles ahead, one barrier per period. The last two tiles run per group of query blocks (4, then 2) so
;
;
"""


class Gen:
    def __init__(self, ring=5, pol="nt", opol="", stamps=False, cinit="-4.0", abl="", provar="356", groups="42", estep=2, espace=9, pref=1, remap=1, touch=0, qpol="nt", dist=3, dpos="s", pk=1, lat=7, jitter="", ahead=3, dot=0, early=0, eblock=0, efrac=80, opol2="nt", olast=4):
        self.opol2, self.olast = opol2, olast
        self.eblock, self.efrac = eblock, efrac
        self.early = early
        self.dot = dot
        self.ahead = ahead
        self.jitter = jitter
        self.lat = lat
        self.pk = pk
        self.dpos = dpos
        self.D = dist
        self.qpol = qpol
        self.remap, self.touch = remap, touch
        self.pref = pref
        self.groups, self.estep, self.espace = [int(c) for c in groups], estep, espace
        self.provar = provar
        self.abl = abl
        self.R = ring
        self.pol, self.opol, self.stamps, self.cinit = pol, opol, stamps, cinit
        self.VBASE = ring * TILE_L
        assert ring == 5
        self.QBASE = (2 * ring + 1) * TILE_L
        self.FLAG = self.QBASE + 24576
        self.lds = self.FLAG + 256
        self.nstamp = 0

    def stamp(self):
        if not self.stamps:
            return []
        r = 64 + 4 * self.nstamp
        self.nstamp += 1
        return [raw(f"s_memtime s[{r}:{r+1}]", "salu"), raw(f"s_memrealtime s[{r+2}:{r+3}]", "salu")]

    def kread(self, kb, s, slot=0):
        return ds_read("ds_read_b128", Kreg(s), V_KA, slot * TILE_L + (s >> 1) * TAU + (s & 1) * 64 + kb * 512)

    def vread(self, db, half, base, slot=0, file="a"):
        return ds_read("ds_read_b64_tr_b16", R(file, base + 2 * half, 2), V_VA,
                       slot * TILE_L + (db >> 2) * TAU + (db & 3) * 32 + half * 512)

    def qread(self, j):
        return ds_read("ds_read_b128", R("a", QBUF, 4), V_QA, j * 1024)

    def dma_pair(self, k, base_sgpr=S_DMA, koff=S_KOFF, voff=S_VOFF, slot_off=0):
        tau = k % 3
        isv = k >= 3
        imm = (self.VBASE if isv else 0) + slot_off + tau * TAU - tau * 128
        return (salu("s_add_u32", "m0", base_sgpr, imm),
                buf_dma(V_DMA, SRD_V if isv else SRD_K, voff if isv else koff, tau * 128, self.pol))

    def softmax_ops(self, n, ppar):
        kb, j = divmod(n % 12, 6)
        s = S0 + 4 * (n % 2)
        p = Preg(ppar, j) + 2 * kb
        e = [valu("v_exp_f32", f"v{s+i}", f"v{s+i}") for i in range(4)]
        a = [valu("v_add_f32", f"v{L0+j}", f"v{s+i}", f"v{L0+j}") for i in range(4)]
        c = [valu("v_cvt_pk_bf16_f32", f"v{p+i}", f"v{s+2*i}", f"v{s+2*i+1}") for i in range(2)]
        return e, a, c

    def dot_ops(self, par, js):
        return [I(f"v_dot2c_f32_bf16 v{L0+j}, {S_ONE}, v{Preg(par, j)+i}", "valu",
                  [S_ONE, f"v{Preg(par, j)+i}", f"v{L0+j}"], [f"v{L0+j}"]) for i in range(4) for j in js]

    def qk(self, n, s):
        j = n % 6
        d = R("v", S0 + 4 * (n % 2), 4)
        return mfma(d, Kreg(s), Qreg(j, s), self.cinit if s == 0 else d)

    def pv(self, db, j, par, vbase, file="a"):
        return mfma(Oreg(j, db), R(file, vbase, 4), R("v", Preg(par, j), 4), Oreg(j, db))

    def period(self, par, fill=False):
        N = 144
        sc = [[] for _ in range(N + 12)]
        mem = [[] for _ in range(N + 12)]
        va = [[] for _ in range(N + 12)]
        heavy = lambda n: n % 6 == 5
        for n in range(-1, 12):
            if n == -1 and fill:
                continue
            e, a, c = self.softmax_ops(n, par if n == -1 else 1 - par)
            g = 12 * n
            if heavy(n):
                plan = [(10, e[0]), (11, e[1]), (12, e[2]), (13, e[3]), (14, a[0]), (15, a[1]), (16, c[0]), (16, a[2]),
                        (17, a[3]), (18, c[1])]
            elif heavy(n + 1):
                plan = [(9, e[0]), (10, e[1]), (11, e[2]), (12, e[3]), (13, a[0]), (14, a[1]), (15, c[0]), (16, a[2]),
                        (17, a[3]), (18, c[1])]
            else:
                plan = [(9, e[0]), (10, e[1]), (11, e[2]), (12, e[3]), (13, a[0]), (14, a[1]), (15, c[0]), (16, a[2]),
                        (17, a[3]), (19, c[1])]
            for o, ins in plan:
                if g + o >= 0 and not (self.dot and ins.text.startswith("v_add_f32")):
                    va[g + o].append(ins)
        for n in range(12):
            g = 12 * n
            nv = (n + 1) % 12
            vb = VA0 + 4 * ((n + 1) % 2)
            tpos = (8, 9) if heavy(n) else ((2, 3) if heavy(n - 1) else (1, 2))
            if not fill or n == 11:
                for h in range(2):
                    mem[g + tpos[h]].append(self.vread(nv, h, vb))
            mem[g + (7 if heavy(n) else 5)].append(self.qread((n + 1) % 6))
            if heavy(n):
                for s in range(6):
                    mem[g + 1 + s].append(self.kread(1 if n == 5 else 0, s))
        if not fill:
            pos = {"s": [(1, 6), (2, 6), (3, 6), (4, 6), (7, 6), (8, 6)],
                   "e": [(0, 8), (1, 6), (1, 8), (2, 6), (2, 8), (3, 6)],
                   "m": [(0, 8), (1, 6), (2, 6), (3, 6), (4, 6), (6, 8)],
                   "l": [(4, 6), (6, 8), (7, 6), (7, 8), (8, 6), (8, 8)]}[self.dpos]
            for k, (n, o) in enumerate(pos):
                m, d = self.dma_pair(k)
                sc[12 * n + o - 1].append(m)
                mem[12 * n + o].append(d)
        if self.dot:
            dots = self.dot_ops(par, range(NQB))
            k = len(dots) // self.dot
            for i_, n in enumerate({1: (3,), 2: (2, 8), 3: (2, 4, 8), 6: (1, 2, 3, 7, 8, 9)}[self.dot]):
                va[12 * n + 8] += dots[i_ * k:(i_ + 1) * k]
        g = 12 * 9
        book = [salu("s_add_u32", S_DMA, S_DMA, TILE_L),
                salu("s_cmp_eq_u32", S_DMA, S_DLIM),
                salu("s_cselect_b32", S_DMA, S_WOFF, S_DMA),
                salu("s_add_u32", S_NEW, S_SLOT, TILE_L),
                salu("s_cmp_eq_u32", S_NEW, self.R * TILE_L),
                salu("s_cselect_b32", S_NEW, 0, S_NEW),
                salu("s_sub_u32", S_DELTA, S_NEW, S_SLOT),
                salu("s_mov_b32", S_SLOT, S_NEW),
                salu("s_add_u32", S_KOFF, S_KOFF, TILE_G), salu("s_add_u32", S_VOFF, S_VOFF, TILE_G)]
        for o, ins in zip((0, 1, 2, 3, 6, 7, 8, 9, 10, 11), book):
            sc[g + o].append(ins)
        g = 12 * 10
        va[g + 6] += [valu("v_add_u32", V_KA, S_DELTA, V_KA), valu("v_add_u32", V_VA, S_DELTA, V_VA)]
        sc[g + 7].append(wait(vm=6 * (self.D - 2), lgkm=1))
        sc[g + 8].append(barrier())
        mf = []
        for n in range(12):
            mf += [self.qk(n, s) for s in range(6)]
            mf += [None if fill else self.pv(n, j, par, VA0 + 4 * (n % 2)) for j in range(6)]
        if not fill and self.abl:
            def keep(x):
                t = x.text
                if "e" in self.abl and t.startswith("v_exp"): return False
                if "a" in self.abl and t.startswith("v_add_f32"): return False
                if "c" in self.abl and t.startswith("v_cvt"): return False
                if "k" in self.abl and x.kind == "lds_rd" and V_KA in x.rd: return False
                if "v" in self.abl and x.kind == "lds_rd" and V_VA in x.rd: return False
                if "q" in self.abl and x.kind == "lds_rd" and V_QA in x.rd: return False
                if "d" in self.abl and x.kind == "dma": return False
                if "b" in self.abl and x.kind == "barrier": return False
                return True
            mem = [[x for x in g_ if keep(x)] for g_ in mem]
            va = [[x for x in g_ if keep(x)] for g_ in va]
            sc = [[x for x in g_ if keep(x)] for g_ in sc]
            if "c" in self.abl:
                mf = [m if (i % 12) < 6 else self.pv(i // 12, i % 12 - 6, 0, VA0 + 4 * ((i // 12) % 2)) for i, m in enumerate(mf)]
        gaps = [sc[i] + mem[i] + va[i] for i in range(N)]
        tail = [x for i in range(N, N + 12) for x in va[i]]
        return mf, gaps, tail

    @staticmethod
    def flat(mf, gaps, lo, hi):
        out = []
        for i in range(lo, hi):
            if mf[i] is not None:
                out.append(mf[i])
            out += gaps[i]
        return out

    def addr_setup(self, lane, w):
        b = [valu("v_lshrrev_b32", "v6", 4, lane), valu("v_lshlrev_b32", "v6", 3, "v6"),
             valu("v_bfe_u32", "v7", lane, 3, 1), valu("v_add_u32", "v6", "v6", "v7"),
             valu("v_lshl_add_u32", "v6", w, 1, "v6"), valu("v_mul_u32_u24", "v6", 384, "v6"),
             valu("v_and_b32", "v7", 7, lane), valu("v_lshl_add_u32", V_DMA, "v7", 4, "v6")]

        def lds_row(dst, key):
            return [valu("v_bfe_u32", "v8", key, 1, 2), valu("v_mul_u32_u24", "v8", 1056, "v8"),
                    valu("v_lshrrev_b32", "v9", 3, key), valu("v_lshlrev_b32", "v9", 1, "v9"),
                    valu("v_and_b32", dst, 1, key), valu("v_add_u32", "v9", "v9", dst),
                    valu("v_lshl_add_u32", dst, "v9", 7, "v8")]
        b += [valu("v_and_b32", "v6", 15, lane), valu("v_lshrrev_b32", "v7", 4, lane)]
        b += lds_row(V_KA, "v6") + [valu("v_lshl_add_u32", V_KA, "v7", 4, V_KA)]
        b += [valu("v_lshrrev_b32", "v6", 2, lane)] + lds_row(V_VA, "v6")
        b += [valu("v_and_b32", "v6", 3, lane), valu("v_lshl_add_u32", V_VA, "v6", 3, V_VA),
              valu("v_add_u32", V_VA, self.VBASE, V_VA)]
        return b

    def slow_path(self):
        M = ["v16", "v17", "v18", "v19", T0, T1]
        S = S0
        SD = R("v", S, 4)
        QL = Preg(1, 0)
        lane, w, vq = "v4", "v5", V_QA

        def qreg(j, s):
            return Qreg(j, s) if s < 5 else R("v", QL + 4 * j, 4)
        setup = [wait(vm=0, lgkm=0), barrier(),
                 raw(f"v_mbcnt_lo_u32_b32 {lane}, -1, 0", "valu", [], [lane]),
                 raw(f"v_mbcnt_hi_u32_b32 {lane}, -1, {lane}", "valu", [lane], [lane]),
                 valu("v_mov_b32", w, S_W)]
        setup += self.addr_setup(lane, w)
        setup += [valu("v_mul_u32_u24", vq, 96, w), valu("v_and_b32", "v6", 15, lane), valu("v_add_u32", vq, vq, "v6"),
                  valu("v_mul_u32_u24", vq, 384, vq), valu("v_lshl_add_u32", vq, "v7", 4, vq)]
        for j in range(NQB):
            setup.append(salu("s_mov_b32", S_T, j * 16 * 384))
            setup += [buf_load(qreg(j, s), vq, SRD_Q, S_T, s * 64) for s in range(6)]
        setup += [wait(vm=0)]
        setup += [valu("v_mov_b32", m, "0xff800000") for m in M]
        setup += [salu("s_mov_b32", S_KOFF, 0)]

        def load(with_v):
            o = []
            for k in range(6 if with_v else 3):
                o += list(self.dma_pair(k, S_WOFF, S_KOFF, S_KOFF))
            return o + [wait(vm=0), barrier()]

        def chain(j):
            return [mfma(SD, Kreg(s), qreg(j, s), "0" if s == 0 else SD) for s in range(6)]

        def close(name):
            return [wait(lgkm=0), barrier(), salu("s_add_u32", S_KOFF, S_KOFF, TILE_G),
                    salu("s_cmp_lt_u32", S_KOFF, HEAD_KV), branch("s_cbranch_scc1", name)]
        maxl = load(False)
        for kb in range(2):
            maxl += [self.kread(kb, s) for s in range(6)]
            for j in range(NQB):
                maxl += chain(j) + [valu("v_max3_f32", M[j], M[j], f"v{S}", f"v{S+1}"),
                                    valu("v_max3_f32", M[j], M[j], f"v{S+2}", f"v{S+3}")]
        maxl += close("L_slow_max")
        mid = []
        for m in M:
            for op in ("v_permlane32_swap_b32", "v_permlane16_swap_b32"):
                mid += [valu("v_mov_b32", vq, m), valu(op, m, vq), valu("v_max_f32", m, m, vq)]
        mid += [valu("v_mul_f32", m, S_C, m) for m in M]
        mid += [valu("v_accvgpr_write_b32", f"a{r}", 0) for r in range(OA0, 256)]
        mid += [valu("v_mov_b32", f"v{r}", 0) for r in list(range(OV0, 256)) + list(range(L0, L0 + 6))]
        mid += [salu("s_mov_b32", S_KOFF, 0)]
        main = load(True)
        for kb in range(2):
            main += [self.kread(kb, s) for s in range(6)]
            for j in range(NQB):
                p = Preg(0, j) + 2 * kb
                main += chain(j)
                main += [valu("v_fma_f32", f"v{S+i}", f"v{S+i}", S_C, "-" + M[j]) for i in range(4)]
                main += [valu("v_exp_f32", f"v{S+i}", f"v{S+i}") for i in range(4)]
                main += [valu("v_add_f32", f"v{L0+j}", f"v{S+i}", f"v{L0+j}") for i in range(4)]
                main += [valu("v_cvt_pk_bf16_f32", f"v{p+i}", f"v{S+2*i}", f"v{S+2*i+1}") for i in range(2)]
        for db in range(12):
            vb = VA0 + 4 * (db % 2)
            main += [self.vread(db, h, vb) for h in range(2)]
            main += [self.pv(db, j, 0, vb) for j in range(NQB)]
        main += close("L_slow_main")
        return setup, maxl, mid, main, self.epilogue_plain()

    def prologue(self):
        b = []
        b += [salu("s_cmp_ge_u32", "s2", 256), branch("s_cbranch_scc1", "L_end"),
              raw("s_load_dwordx4 s[4:7], s[0:1], 0", "smem"), raw("s_load_dwordx4 s[8:11], s[0:1], 16", "smem")]
        if self.stamps:
            b += [raw("s_load_dwordx4 s[12:15], s[0:1], 32", "smem"),
                  raw("s_memrealtime s[56:57]"), raw("s_memtime s[58:59]")]
        lane, w = "v4", "v5"
        b += [valu("v_and_b32", lane, 63, "v0"), valu("v_lshrrev_b32", w, 6, "v0"),
              valu("v_readfirstlane_b32", S_W, w)]
        if self.pref:
            b += [raw("s_getpc_b64 s[50:51]", "salu", [], ["s50", "s51"]), label("L_pc"),
                  salu("s_lshr_b32", S_T, "s2", 3), salu("s_lshl_b32", S_T, S_T, 2), salu("s_add_u32", S_T, S_T, S_W),
                  salu("s_min_u32", S_T, S_T, "(L_end-L_pc)/1024"), salu("s_lshl_b32", S_T, S_T, 10),
                  valu("v_lshl_add_u32", "v6", lane, 4, S_T),
                  I(f"global_load_dwordx4 v[{OV0}:{OV0+3}], v6, s[50:51]", "vm_ld", ["v6", "s50", "s51"], regs("v", OV0, 4))]
        b += self.addr_setup(lane, w)
        g = "v7"
        b += [valu("v_mul_u32_u24", V_QA, 6144, w), valu("v_lshl_add_u32", V_QA, lane, 4, V_QA),
              valu("v_add_u32", V_QA, self.QBASE, V_QA)]
        for i_ in range(3):
            d = f"v{OV0+80+i_}"
            b += [valu("v_add_u32", d, 64 * i_, lane), valu("v_mul_u32_u24", "v6", 2731, d),
                  valu("v_lshrrev_b32", "v6", 16, "v6"), valu("v_and_b32", "v6", 6, "v6"),
                  valu("v_xor_b32", d, d, "v6"), valu("v_lshlrev_b32", d, 4, d)]
        b += [valu("v_and_b32", "v6", 15, lane), valu("v_and_b32", "v8", 6, lane), valu("v_xor_b32", "v8", "v8", g),
              valu("v_mul_u32_u24", "v6", 384, "v6"), valu("v_lshl_add_u32", f"v{OV0+83}", "v8", 4, "v6"),
              valu("v_xor_b32", f"v{OV0+84}", 64, f"v{OV0+83}")]
        head = "s2"
        if self.remap:
            head = "s3"
            b += [salu("s_and_b32", head, "s2", 7), salu("s_lshl_b32", head, head, 5),
                  salu("s_lshr_b32", S_T, "s2", 3), salu("s_add_u32", head, head, S_T)]
        S_SA, S_SB = "s43", "s44"
        VQ = [f"v{OV0+80+i_}" for i_ in range(3)]
        b += [salu("s_mul_i32", S_KOFF, head, HEAD_KV), salu("s_mul_i32", S_VOFF, head, HEAD_Q),
              salu("s_mov_b32", "s18", HEAD_KV), salu("s_mov_b32", "s19", "0x20000"),
              salu("s_mov_b32", "s26", HEAD_Q), salu("s_mov_b32", "s27", "0x20000"),
              salu("s_mul_i32", S_WOFF, S_W, 1056),
              salu("s_lshr_b32", S_T, S_W, 1), salu("s_mul_i32", S_T, S_T, 3), salu("s_add_u32", S_T, S_T, S_W),
              salu("s_add_u32", S_T, S_T, 2), salu("s_mul_i32", S_SB, S_T, TILE_L),
              salu("s_add_u32", S_SA, S_SB, 2 * TILE_L), salu("s_mul_i32", S_T, S_W, 36864)]
        b += [valu("v_add_u32", VQ[i_], S_T, VQ[i_]) for i_ in range(3)]
        b += [raw("s_waitcnt lgkmcnt(0)", "salu")]
        b += [salu("s_add_u32", "s16", "s6", S_KOFF), salu("s_addc_u32", "s17", "s7", 0),
              salu("s_add_u32", "s24", "s4", S_VOFF), salu("s_addc_u32", "s25", "s5", 0)]
        late = [salu("s_add_u32", "s20", "s8", S_KOFF), salu("s_addc_u32", "s21", "s9", 0),
                salu("s_mov_b32", "s22", HEAD_KV), salu("s_mov_b32", "s23", "0x20000"),
                salu("s_add_u32", "s28", "s10", S_VOFF), salu("s_addc_u32", "s29", "s11", 0),
                salu("s_mov_b32", "s30", HEAD_Q), salu("s_mov_b32", "s31", "0x20000"),
                salu("s_mov_b32", S_C, f32(math.log2(math.e) / math.sqrt(192.0))),
                salu("s_mov_b32", S_CNT, 14), salu("s_mov_b32", S_ONE, "0x3f803f80")]

        def group(ktile, vtile):
            o = []
            for k in range(6):
                tile = vtile if k >= 3 else ktile
                if tile is None:
                    continue
                slot = (tile + 1) % self.R if k >= 3 else tile % self.R
                if k % 3 == 0:
                    o.append(salu("s_mov_b32", S_T, tile * TILE_G))
                o += list(self.dma_pair(k, S_WOFF, S_T, S_T, slot * TILE_L))
            return o
        RAW = OV0
        LO = OV0 + 48
        Q5 = OV0 + 72
        VR = [f"v{OV0+83+i_}" for i_ in range(2)]
        LAST = OV0 + 96
        ZERO = "a[252:255]"
        CV = T0
        KB = Preg(1, 0)

        def ubase(u):
            return (S_SB if u in (2, 3) else S_SA), (u & 1) * 6144

        def qunit(u):
            sb, off = ubase(u)
            o = []
            for i_ in range(3):
                o += [salu("s_add_u32", "m0", sb, off + i_ * 1024)]
                o += [salu("s_mov_b32", S_T, u * 6144)] if i_ == 0 else [nop(0)]
                o += [buf_dma(VQ[i_], SRD_Q, S_T, h * 3072, self.qpol) for h in range(2)]
            return o

        def qraw(u):
            sb, off = ubase(u)
            o = [valu("v_add_u32", T0, sb, VR[0]), valu("v_add_u32", T1, sb, VR[1])]
            for s_ in range(6):
                o.append(ds_read("ds_read_b128", R("v", RAW + 4 * ((u % 2) * 6 + s_), 4), (T0, T1)[s_ & 1],
                                 off + (s_ >> 1) * 128))
            return o

        def unpack(j):
            r0 = RAW + 24 * (j % 2)
            o = []
            for i_ in range(24):
                o += [valu("v_lshlrev_b32", f"v{LO+i_}", 16, f"v{r0+i_}"),
                      valu("v_and_b32", f"v{r0+i_}", "0xffff0000", f"v{r0+i_}")]
            return o

        def scale(j):
            o = []
            for base in (LO, RAW + 24 * (j % 2)):
                o += [I(f"v_pk_mul_f32 {R('v', base+2*i_, 2)}, {R('v', base+2*i_, 2)}, s[52:53]", "valu",
                        regs("v", base + 2 * i_, 2) + ["s52", "s53"], regs("v", base + 2 * i_, 2)) for i_ in range(12)]
            return o

        def pack(j):
            o = []
            for s_ in range(6):
                r0 = RAW + 24 * (j % 2) + 4 * s_
                dst = r0 if s_ < 5 else Q5 + 4 * (j % 2)
                o += [valu("v_cvt_pk_bf16_f32", f"v{dst+i_}", f"v{LO+4*s_+i_}", f"v{r0+i_}") for i_ in range(4)]
                if s_ < 5:
                    o += [valu("v_accvgpr_write_b32", f"a{QA0+4*(j*5+s_)+i_}", f"v{dst+i_}") for i_ in range(4)]
                else:
                    o.append(ds_write("ds_write_b128", V_QA, R("v", dst, 4), j * 1024))
            return o

        def clear(file, lo, hi):
            o = []
            while hi - lo >= 16:
                o.append(mfma32(R(file, lo, 16), ZERO, ZERO, "0"))
                lo += 16
            while lo < hi:
                o.append(mfma(R(file, lo, 4), ZERO, ZERO, "0"))
                lo += 4
            return o

        def chains(j):
            o = []
            for kb in range(2):
                d = R("v", S0 + 4 * kb, 4)
                for s_ in range(6):
                    a_ = Kreg(s_) if kb == 0 else R("v", KB + 4 * s_, 4)
                    q_ = Qreg(j, s_) if s_ < 5 else R("v", Q5 + 4 * (j % 2), 4)
                    o.append(mfma(d, a_, q_, self.cinit if s_ == 0 else d))
            return o

        def soft(j, kb):
            sreg = S0 + 4 * kb
            p = Preg(0, j) + 2 * kb
            e = [valu("v_exp_f32", f"v{sreg+i_}", f"v{sreg+i_}") for i_ in range(4)]
            a_ = [valu("v_add_f32", f"v{L0+j}", f"v{sreg+i_}", f"v{L0+j}") for i_ in range(4)]
            c = [valu("v_cvt_pk_bf16_f32", f"v{p+i_}", f"v{sreg+2*i_}", f"v{sreg+2*i_+1}") for i_ in range(2)]
            return e + ([] if self.dot else a_) + c

        def weave(ms, ops, per=2):
            o = []
            ops = list(ops)
            for m in ms:
                o.append(m)
                o += ops[:per]
                ops = ops[per:]
            return o, ops

        plan = [int(c) for c in self.provar]
        queue = []

        def issue(name, ops):
            queue.append((name, sum(1 for x in ops if x.kind == "dma")))
            return ops

        def landed(name, **kw):
            k = [n for n, _ in queue].index(name)
            return wait(vm=sum(c for _, c in queue[k + 1:]), **kw)

        def extras(u):
            o = []
            if plan[0] == u:
                o += issue("KV0", group(1, 0))
            if plan[1] == u:
                o += issue("G4", group(2, 1))
            if plan[2] == u and self.D >= 4:
                o += issue("G3", group(3, 2))
            return o

        if self.early:
            return b + self.early_start(locals())
        b += issue("K0", group(0, None)) + issue("U0", qunit(0)) + issue("U1", qunit(1))
        b += late + [salu("s_mov_b32", "s52", S_C), salu("s_mov_b32", "s53", S_C)]
        b += [valu("v_accvgpr_write_b32", f"a{r}", 0) for r in range(252, 256)]
        b += [valu("v_mov_b32", f"v{r}", 0) for r in range(L0, L0 + 6)]
        b += [valu("v_mov_b32", "v14", self.FLAG), valu("v_mov_b32", "v15", 0), ds_write("ds_write_b32", "v14", "v15", 0)]
        b += clear("a", OA0, 252) + clear("v", LAST, 256)
        A = self.ahead
        for u in range(2, A):
            b += issue(f"U{u}", qunit(u))
        b += [landed("U0")] + qraw(0) + [barrier()]
        b += [self.kread(0, s_) for s_ in range(6)]
        b += [ds_read("ds_read_b128", R("v", KB + 4 * s_, 4), V_KA, (s_ >> 1) * TAU + (s_ & 1) * 64 + 512) for s_ in range(6)]
        b += issue(f"U{A}", qunit(A))
        b += unpack(0) + scale(0) + pack(0)
        for u in range(1, 6):
            b += self.stamp() if self.touch == 2 and u in (1, 2, 4) else []
            b += [landed(f"U{u}")] + (self.stamp() if (self.touch == 1 and u >= 4) or (self.touch == 2 and u in (1, 2, 4)) else []) + qraw(u)
            if u == 3:
                b += [wait(lgkm=0), barrier()]
            ex = (issue(f"U{u+A}", qunit(u + A)) if u + A < 6 else []) + extras(u)
            sa, sb = soft(u - 1, 0), soft(u - 1, 1)
            b += sched(chains(u - 1), [[Op(x) for x in ex], [Op(x, 4) for x in unpack(u)]])
            b += sa[:4] + sb[:4] + scale(u) + sa[4:] + sb[4:]
            pk_ = pack(u)
            if u == 5:
                z = clear("v", RAW, RAW + 16) + clear("v", OV0 + 80, LAST)
                pk_ = pk_[:8] + z[:1] + pk_[8:16] + z[1:] + pk_[16:]
            b += pk_
        b += [valu("v_add_u32", V_KA, TILE_L, V_KA), valu("v_add_u32", V_VA, TILE_L, V_VA),
              salu("s_mov_b32", S_SLOT, TILE_L), salu("s_add_u32", S_DMA, S_WOFF, (self.D % 5) * TILE_L),
              salu("s_add_u32", S_DLIM, S_WOFF, self.R * TILE_L),
              salu("s_mov_b32", S_KOFF, self.D * TILE_G), salu("s_mov_b32", S_VOFF, (self.D - 1) * TILE_G)]
        st_ = self.stamp if self.touch == 1 else list
        b += st_() + [landed("KV0", lgkm=0)] + st_() + [barrier()]
        ch = chains(5)
        for s_ in range(6):
            b += [ch[s_], self.kread(0, s_)]
        b += [ch[6], self.qread(0), ch[7], self.vread(0, 0, VA0), ch[8], self.vread(0, 1, VA0)] + ch[9:]
        z = clear("v", RAW + 16, OV0 + 80)
        sa = soft(5, 0)
        rest = extras(6) + (group(4, 3) if self.D == 5 else [])
        b += [z[0]] + sa[:3] + [z[1]] + sa[3:5] + [z[2]] + sa[5:] + rest + [z[3]] + soft(5, 1)[:2]
        return b

    def early_start(self, c):
        group, qunit, qraw, unpack, scale, pack = (c[k] for k in ("group", "qunit", "qraw", "unpack", "scale", "pack"))
        issue, landed, late, Q5 = c["issue"], c["landed"], c["late"], c["Q5"]
        assert self.D == 3
        S2 = OV0 + 88
        KT = OV0 + 96
        plan = [int(x) for x in self.provar]

        def kreg(tile, kb, s):
            return Kreg(s) if (tile, kb) == (0, 0) else R("v", KT + 24 * (2 * tile + kb - 1) + 4 * s, 4)

        def sreg(tile, kb):
            return (S2 if tile == 0 else S0) + 4 * kb

        def chains(j):
            o = []
            for tile in range(2):
                for kb in range(2):
                    d = R("v", sreg(tile, kb), 4)
                    for s in range(6):
                        q_ = Qreg(j, s) if s < 5 else R("v", Q5 + 4 * (j % 2), 4)
                        o.append(mfma(d, kreg(tile, kb, s), q_, self.cinit if s == 0 else d))
            return o

        def soft(j, tile, kb):
            r, p = sreg(tile, kb), Preg(tile, j) + 2 * kb
            e = [valu("v_exp_f32", f"v{r+i}", f"v{r+i}") for i in range(4)]
            a = [valu("v_add_f32", f"v{L0+j}", f"v{r+i}", f"v{L0+j}") for i in range(4)]
            cv = [valu("v_cvt_pk_bf16_f32", f"v{p+i}", f"v{r+2*i}", f"v{r+2*i+1}") for i in range(2)]
            return e + [cv[0], a[0], cv[1], a[1], a[2], a[3]]

        def extras(u):
            o = []
            if plan[0] == u:
                o += issue("V0", group(None, 0))
            if plan[1] == u:
                o += issue("G2", group(2, 1))
            return o
        A = self.ahead
        b = issue("K0", group(0, None)) + issue("K1", group(1, None)) + issue("U0", qunit(0))
        b += late + [salu("s_mov_b32", "s52", S_C), salu("s_mov_b32", "s53", S_C)]
        b += [valu("v_mov_b32", f"v{r}", 0) for r in range(L0, L0 + 6)]
        b += [valu("v_mov_b32", "v14", self.FLAG), valu("v_mov_b32", "v15", 0), ds_write("ds_write_b32", "v14", "v15", 0)]
        for u in range(1, A):
            b += issue(f"U{u}", qunit(u))
        b += [landed("U0")] + qraw(0) + [barrier()]
        for tile in range(2):
            for kb in range(2):
                b += [ds_read("ds_read_b128", kreg(tile, kb, s), V_KA,
                              tile * TILE_L + (s >> 1) * TAU + (s & 1) * 64 + kb * 512) for s in range(6)]
        if A < 4:
            b += issue(f"U{A}", qunit(A)) + unpack(0)
        else:
            b += unpack(0) + issue("U4", qunit(4))
        b += scale(0) + pack(0)
        for u in range(1, 6):
            b += [landed(f"U{u}")] + qraw(u)
            if u == 3:
                b += [wait(lgkm=0), barrier()]
            ex = (issue(f"U{u+A}", qunit(u + A)) if u + A < 6 and A < 4 else []) + extras(u)
            sm = [Op(x, 8) for x in soft(u - 1, 0, 0)] + [Op(x, 14) for x in soft(u - 1, 0, 1)]
            sa, sb = soft(u - 1, 1, 0), soft(u - 1, 1, 1)
            b += sched(chains(u - 1), [[Op(x) for x in ex], sm, [Op(x, 4) for x in unpack(u)]])
            if A == 4 and u == 1:
                b += issue("U5", qunit(5))
            b += sa[:4] + sb[:4] + scale(u) + sa[4:] + sb[4:] + pack(u)
        b += [valu("v_add_u32", V_KA, 2 * TILE_L, V_KA), valu("v_add_u32", V_VA, TILE_L, V_VA),
              salu("s_mov_b32", S_SLOT, 2 * TILE_L), salu("s_add_u32", S_DMA, S_WOFF, 4 * TILE_L),
              salu("s_add_u32", S_DLIM, S_WOFF, self.R * TILE_L),
              salu("s_mov_b32", S_KOFF, 4 * TILE_G), salu("s_mov_b32", S_VOFF, 3 * TILE_G)]
        b += [landed("V0", lgkm=0), barrier()]
        vb = lambda i: KA0 + 4 * (i % 4) if i < 8 else VA0 + 4 * (i % 2)
        mf = chains(5)
        g0 = len(mf)
        for db in range(12):
            mf += [mfma(Oreg(j, db), R("a", vb(db), 4), R("v", Preg(0, j), 4), "0") for j in range(NQB)]
        sm = [Op(x, 8, g0 - 2) for x in soft(5, 0, 0)] + [Op(x, 14, g0 + 2) for x in soft(5, 0, 1)]
        sm += [Op(x, 20) for x in soft(5, 1, 0)] + [Op(x, 27) for x in soft(5, 1, 1)[:2]]
        vst = []
        for db in range(12):
            lo = 6 if db < 4 else (g0 + 6 * (db - 4) + 5 if db < 8 else (g0 + 12 if db < 10 else g0 + 6 * (db - 2) + 5))
            vst += [Op(self.vread(db, h, vb(db)), lo, max(lo, g0 + 6 * db - 6)) for h in range(2)]
        ex = extras(6) + issue("G3", group(3, 2))
        sync = g0 + 6 * 8
        last = [Op(landed("G2"), sync - 1, sync - 1), Op(barrier(), sync, sync)]
        last += [Op(self.kread(0, s), sync + 1) for s in range(6)] + [Op(self.qread(0), sync + 1)]
        last += [Op(self.vread(0, h, VA0, 1), g0 + 6 * 10 + 5) for h in range(2)]
        last += [Op(valu("v_add_u32", V_VA, TILE_L, V_VA), g0 + 6 * 10 + 5)]
        b += sched(mf, [sm, vst, [Op(x, g0 + 2, sync - 2) for x in ex], last])
        return b

    def group_tail(self, js, bufs, first, carry=(), extra=(), fin=()):
        n = len(js)
        LAT = self.lat
        mf, cstart, gstart = [], [], []
        v = 0
        for c in range(4 * n):
            ph, k = divmod(c, 2 * n)
            jj = js[c % n]
            d = R("v", S0 + 4 * (c % 2), 4)
            cstart.append(len(mf))
            mf += [mfma(d, Kreg(s), Qreg(jj, s), self.cinit if s == 0 else d) for s in range(6)]
            upto = 12 * ph + (k + 1) * 12 // (2 * n)
            if ph == 1 and k < 2 * n - 1:
                upto -= (4 + n - 1) // n * (k + 1) // (2 * n - 1)
            if c == 4 * n - 1:
                upto = 36
            while v < upto:
                gstart.append(len(mf))
                f_, b_ = bufs[v % len(bufs)]
                mf += [self.pv(v % 12, x, (1, 0, 1)[v // 12], b_, f_) for x in js]
                v += 1
        sm = [Op(x, 0, cstart[1] - 1) for x in carry]
        dots = [Op(x, gstart[1], gstart[1]) for x in self.dot_ops(1, js)] if self.dot else []
        for c in range(4 * n):
            ph, kb, jj = c // (2 * n), (c // n) % 2, js[c % n]
            sreg = S0 + 4 * (c % 2)
            p = Preg(ph, jj) + 2 * kb
            hi = gstart[12 * (ph + 1)] + js.index(jj) - 2
            if c + 2 < 4 * n:
                hi = min(hi, cstart[c + 2] - 1)
            e = [valu("v_exp_f32", f"v{sreg+i}", f"v{sreg+i}") for i in range(4)]
            a = [valu("v_add_f32", f"v{L0+jj}", f"v{sreg+i}", f"v{L0+jj}") for i in range(4)]
            cv = [valu("v_cvt_pk_bf16_f32", f"v{p+i}", f"v{sreg+2*i}", f"v{sreg+2*i+1}") for i in range(2)]
            lo = cstart[c] + 5 + 3
            for k, x in enumerate(e + [cv[0], a[0], cv[1], a[1], a[2], a[3]]):
                last = c + 2 < 4 * n
                h = hi - (9 - k) // 2 if (last or k < 7) else 10 ** 9
                sm.append(Op(x, lo, max(h, lo)))
        sm += [Op(x, gstart[24] + n) for x in fin]
        sync_gap = cstart[n] + 2 if first else -1
        sync, sync2 = [], sync_gap
        if first and self.D == 3:
            for k in range(3, 6):
                m_, d_ = self.dma_pair(k)
                sync += [Op(m_, 2 * k - 5, 2 * k - 5), Op(d_, 2 * k - 4, 2 * k - 4)]
            sync2 = gstart[24 - len(bufs)] - 2
            sync += [Op(wait(vm=3), sync_gap - 1, sync_gap - 1), Op(barrier(), sync_gap, sync_gap),
                     Op(wait(vm=0), sync2 - 1, sync2 - 1), Op(barrier(), sync2, sync2)]
        elif first:
            sync = [Op(wait(vm=0), sync_gap - 1, sync_gap - 1), Op(barrier(), sync_gap, sync_gap)]
        kst = []
        for st_ in range(1, 4):
            for s in range(6):
                lo = max(cstart[st_ * n - 1] + s, sync_gap + 1 if st_ == 2 else 0)
                kst.append(Op(self.kread(st_ % 2, s, st_ // 2), lo, max(cstart[st_ * n] + s - LAT, lo)))
        qst = [Op(self.qread(js[c % n]), cstart[c - 1] + 5, cstart[c] + 5 - LAT) for c in range(1, 4 * n)]
        vst = []
        pre = []
        for v in range(36):
            f_, b_ = bufs[v % len(bufs)]
            rd = [self.vread(v % 12, h, b_, v // 12, f_) for h in range(2)]
            if v == 0 and first:
                continue
            if v < len(bufs) and not first:
                pre += rd
                continue
            lo = gstart[v - len(bufs)] + n - 1 if v >= len(bufs) else 0
            if v >= 12:
                lo = max(lo, (sync2 if v >= 24 else sync_gap) + 1)
            vst += [Op(x, lo, max(gstart[v] - LAT, lo)) for x in rd]
        if not first:
            pre = [self.kread(0, s) for s in range(6)] + [self.qread(js[0])] + pre
        return pre, sched(mf, [sm, kst, qst, vst, sync, list(extra), dots])

    def row_sums(self, js, t0):
        b = []
        for op in ("v_permlane32_swap_b32", "v_permlane16_swap_b32"):
            b += [valu("v_mov_b32", f"v{t0+k}", f"v{L0+j}") for k, j in enumerate(js)]
            b += [valu(op, f"v{L0+j}", f"v{t0+k}") for k, j in enumerate(js)]
            b += [valu("v_add_f32", f"v{L0+j}", f"v{L0+j}", f"v{t0+k}") for k, j in enumerate(js)]
        return b

    def range_check(self, js, first):
        b = []
        if first:
            b += [salu("s_mov_b32", S_NEW, f32(2.0 ** 12)), salu("s_mov_b32", S_DELTA, f32(2.0 ** -20)),
                  salu("s_mov_b64", "s[44:45]", 0)]
        for j in js:
            b += [valu("v_cmp_nge_f32", "s[46:47]", S_NEW, f"v{L0+j}"), valu("v_cmp_nle_f32", "s[48:49]", S_DELTA, f"v{L0+j}")]
            b += [salu("s_or_b64", "s[44:45]", "s[44:45]", "s[46:47]"), salu("s_or_b64", "s[44:45]", "s[44:45]", "s[48:49]")]
        return b

    EW = [f"v{P0+i}" for i in range(4)]
    ER = [f"v{P0+4+i}" for i in range(3)]
    EG = f"v{P0+7}"

    def epi_addr(self):
        lane, t, u = T0, T1, V_DMA
        b = [raw(f"v_mbcnt_lo_u32_b32 {lane}, -1, 0", "valu", [], [lane]),
             raw(f"v_mbcnt_hi_u32_b32 {lane}, -1, {lane}", "valu", [lane], [lane]),
             salu("s_lshr_b32", S_T, S_W, 1), salu("s_mul_i32", S_T, S_T, 6 * TILE_L),
             salu("s_and_b32", S_SLOT, S_W, 1), salu("s_mul_i32", S_SLOT, S_SLOT, 12288),
             salu("s_add_u32", S_T, S_T, S_SLOT), salu("s_add_u32", S_T, S_T, (2 * TILE_L + 127) // 128 * 128),
             salu("s_and_b32", S_T, S_T, "0xffffff80"),
             valu("v_and_b32", t, 15, lane), valu("v_mul_u32_u24", u, 384, t), valu("v_add_u32", u, S_T, u),
             valu("v_bfe_u32", t, lane, 4, 1), valu("v_lshl_add_u32", u, t, 3, u),
             valu("v_lshrrev_b32", t, 5, lane), valu("v_xor_b32", t, t, lane), valu("v_and_b32", t, 7, t),
             valu("v_lshl_add_u32", self.EW[0], t, 4, u)]
        b += [valu("v_xor_b32", self.EW[i], 32 * i, self.EW[0]) for i in range(1, 4)]
        for i in range(3):
            r = self.ER[i]
            b += [valu("v_add_u32", r, 64 * i, lane), valu("v_mul_u32_u24", t, 2731, r),
                  valu("v_lshrrev_b32", t, 16, t), valu("v_xor_b32", r, r, t), valu("v_lshl_add_u32", r, r, 4, S_T)]
        b += [salu("s_mul_i32", S_T, S_W, 36864), valu("v_lshl_add_u32", self.EG, lane, 4, S_T)]
        return b

    def epi_stores(self, j):
        o = []
        for i in range(6):
            pre = [salu("s_mov_b32", S_T, j * 6144 + i * 1024)] if i % 4 == 0 else []
            o.append(pre + [buf_store(Oreg(j, i), self.EG, SRD_O, S_T, (i % 4) * 1024, self.opol if j < self.olast else self.opol2)])
        return o

    def epi_block(self, j, pend, first=3, step=1, pk=None):
        b = []
        for db in range(12):
            src = expand(Oreg(j, db))
            if src[0][0] == "a":
                t = OV0 + 24 + 4 * (db % 6)
                b += [valu("v_accvgpr_read_b32", f"v{t+i}", src[i]) for i in range(4)]
                src = [f"v{t+i}" for i in range(4)]
            if self.pk if pk is None else pk:
                r0, lp = int(src[0][1:]), (L0 + j) & ~1
                sel = "op_sel:[0,1] op_sel_hi:[1,1]" if (L0 + j) & 1 else "op_sel_hi:[1,0]"
                b += [I(f"v_pk_mul_f32 {R('v', r0+2*i, 2)}, {R('v', r0+2*i, 2)}, {R('v', lp, 2)} {sel}", "valu",
                        regs("v", r0 + 2 * i, 2) + regs("v", lp, 2), regs("v", r0 + 2 * i, 2)) for i in range(2)]
            else:
                b += [valu("v_mul_f32", src[i], src[i], f"v{L0+j}") for i in range(4)]
            b += [valu("v_cvt_pk_bf16_f32", src[i], src[2 * i], src[2 * i + 1]) for i in range(2)]
            b += [ds_write("ds_write_b64", self.EW[db & 3], R("v", int(src[0][1:]), 2), (j % 2) * 6144 + (db >> 2) * 128)]
            if db >= first and (db - first) % step == 0 and pend:
                b += pend.pop(0)
        b += [ds_read("ds_read_b128", Oreg(j, i), self.ER[i % 3], (j % 2) * 6144 + (i // 3) * 3072) for i in range(6)]
        return b

    def epi_all(self, js, pend):
        b = []
        for j in js:
            b += self.epi_block(j, pend)
            b += [x for p in pend for x in p]
            pend = self.epi_stores(j)
        return b + [x for p in pend for x in p]

    def rcp(self, js):
        return [valu("v_rcp_f32", f"v{L0+j}", f"v{L0+j}") for j in js]

    def epilogue_plain(self):
        js = list(range(NQB))
        return self.row_sums(js, S0) + self.rcp(js) + self.epi_addr() + self.epi_all(js, [])

    def tail(self, carry):
        groups, k = [], 0
        for n in self.groups:
            groups.append(list(range(k, k + n)))
            k += n
        assert k == NQB and groups[0][-1] < 4 and len(groups[0]) >= 2
        bufs0 = [("a", VA0), ("a", VA0 + 4), ("v", Preg(0, 4)), ("v", Preg(0, 5))]
        bufs1 = [("a", VA0), ("a", VA0 + 4), ("a", 0), ("a", 4)]
        def fin(gi):
            js = groups[gi]
            o = self.row_sums(js, S0) + self.range_check(js, gi == 0) + self.rcp(js)
            return o + (self.epi_addr() if gi == 0 else [])
        _, b = self.group_tail(groups[0], bufs0, True, carry, (), fin(0))
        left = []
        for gi, js in enumerate(groups):
            last = gi == len(groups) - 1
            b += self.stamp() if gi in (0, len(groups) - 1) and self.touch != 2 else []
            if last:
                b += self.epi_all(js, left)
                break
            nxt = groups[gi + 1]
            nb = min(self.eblock or len(js), len(js))
            for x, j in enumerate(js[:nb]):
                if x == nb - 1:
                    pos = len(b)
                b += self.epi_block(j, left, 2, self.estep)
                left += self.epi_stores(j)
            nm = 60 * len(nxt)
            woven = []
            for j in js[nb:]:
                woven += self.epi_block(j, left, 2, self.estep, pk=0)
                left += self.epi_stores(j)
            g0 = nm * self.efrac // 100 if woven else 0
            extra = [Op(x, k * g0 // len(woven), k * g0 // len(woven)) for k, x in enumerate(woven)]
            take = min(len(left), max(0, (nm - g0 - 4) // self.espace))
            extra += [Op(x, g0 + 4 + self.espace * i, g0 + 4 + self.espace * i) for i, p in enumerate(left[:take]) for x in p]
            left = left[take:]
            pre, t1 = self.group_tail(nxt, bufs1, False, (), extra, fin(gi + 1))
            b[pos:pos] = pre
            b += t1
        b += [salu("s_cmp_eq_u64", "s[44:45]", 0), branch("s_cbranch_scc1", "L_inrange"),
              valu("v_mov_b32", T0, self.FLAG), valu("v_mov_b32", T1, 1), ds_write("ds_write_b32", T0, T1, 0),
              label("L_inrange")]
        b += [wait(lgkm=0), barrier(), valu("v_mov_b32", T1, self.FLAG), ds_read("ds_read_b32", T1, T1, 0),
              valu("v_readfirstlane_b32", S_T, T1), salu("s_cmp_lg_u32", S_T, 0), branch("s_cbranch_scc1", "L_slow")]
        return b

    def stamp_out(self):
        if not self.stamps:
            return ""
        n = 4 + 2 * self.nstamp
        s = "  s_waitcnt vmcnt(0)\n  s_barrier\n  s_memrealtime s[60:61]\n  s_memtime s[62:63]\n  s_waitcnt lgkmcnt(0)\n"
        s += f"  s_cmp_lg_u32 {S_W}, 0\n  s_cbranch_scc1 L_end\n  s_mov_b64 exec, 1\n"
        if self.stamps == "prof":
            s += f"  s_mov_b64 exec, 0xffffffff\n  v_mbcnt_lo_u32_b32 v1, -1, 0\n  v_lshlrev_b32 v1, 2, v1\n  v_add_u32 v2, {self.FLAG + 8}, v1\n  ds_read_b32 v2, v2\n"
            s += f"  s_lshl_b32 s3, s2, 7\n  v_add_u32 v1, s3, v1\n  v_add_u32 v1, 0x100000, v1\n  s_waitcnt lgkmcnt(0)\n  global_store_dword v1, v2, s[14:15]\n  s_mov_b64 exec, 1\n"
        if self.stamps == "dbg":
            s += "  v_mov_b32 v1, 0\n  v_mov_b32 v2, s60\n  global_atomic_umax v1, v2, s[12:13]\n"
            s += "  s_not_b32 s3, s56\n  v_mov_b32 v3, s3\n  global_atomic_umax v1, v3, s[12:13] offset:4\n"
            s += "  v_mov_b32 v4, s56\n  global_atomic_umax v1, v4, s[12:13] offset:8\n"
            s += "  s_cmp_lg_u32 s2, 100\n  s_cbranch_scc1 L_end\n"
            vals = [(66 + 4 * i, 56) for i in range(self.nstamp)] + [(60, 56)] + [(64 + 4 * i, 58) for i in range(self.nstamp)] + [(62, 58)]
            for i, (x, y) in enumerate(vals):
                s += f"  s_sub_u32 s3, s{x}, s{y}\n  v_mov_b32 v2, s3\n  global_store_dword v1, v2, s[12:13] offset:{16+4*i}\n"
            return s
        s += f"  s_mul_i32 s3, s2, {8*n}\n  v_mov_b32 v1, s3\n"
        for i in range(n):
            r = 56 + 2 * i
            s += f"  v_mov_b32 v2, s{r}\n  v_mov_b32 v3, s{r+1}\n  global_store_dwordx2 v1, v[2:3], s[14:15] offset:{8*i}\n  s_nop 1\n"
        return s

    def build(self, verbose=False):
        ROT = 8
        pro = self.prologue()
        mfE, gE, tailE = self.period(0)
        mfO, gO, _ = self.period(1)
        if self.stamps == "prof":
            for gg in (gE, gO):
                gg[12 * 2 + 7] += [valu("v_mov_b32", T0, "s52"), valu("v_add_u32", T1, 4, T1)]
                gg[12 * 2 + 8] += [raw("s_memrealtime s[52:53]"), ds_write("ds_write_b32", T1, T0, 0)]
            pro += [valu("v_mov_b32", T1, self.FLAG + 4), raw("s_memrealtime s[52:53]")]
        gE[12 * 11 + 7].append(salu("s_cmp_eq_u32", S_CNT, 0))
        exit_tail = gE[143] + tailE
        gE[143] = [branch("s_cbranch_scc1", "L_drain")] + gE[143]
        gO[12 * 11 + 7].append(salu("s_sub_u32", S_CNT, S_CNT, 1))
        fill = self.stamp()
        log = []
        pro, st = fix(pro + fill, State(), hoist=bool(self.early))
        if self.early:
            head = self.flat(mfO, gO, 0, ROT)
            body = self.flat(mfO, gO, ROT, 144) + self.flat(mfE, gE, 0, 144) + self.flat(mfO, gO, 0, ROT)
        else:
            head = self.flat(mfE, gE, 0, ROT)
            body = self.flat(mfE, gE, ROT, 144) + self.flat(mfO, gO, 0, 144) + self.flat(mfE, gE, 0, ROT)
        body.append(branch("s_branch", "L_top"))
        head1, st1 = fix(head, st, hoist=True)
        body1, st2 = fix(body, st1, hoist=True, log=log)
        body2, st3 = fix(body1, st2, hoist=True, log=log)
        errs, _ = verify(pro + head1 + body2 + body2 + body2)
        assert not errs, errs[:10]
        kx = next(i for i, x in enumerate(body2) if x.kind == "branch")
        _, stx = verify(pro + head1 + body2 + body2[:kx + 1])
        post = self.stamp() + self.tail(exit_tail)
        post, _ = fix(post, stx, hoist=True)
        errs, _ = verify(pro + head1 + body2[:kx + 1] + post)
        assert not errs, errs[:10]
        if verbose:
            tot, over = estimate(body2)
            print("loop estimate cycles (288 mfma, ideal 4608):", tot)
            for o in over:
                print("  over:", o)
            print("  inserted:", [x for x in log if x[0] == "nop"])
            print("  waits:", len([x for x in log if x[0] == "wait"]), "instrs:", len(body2))
            tot, over = estimate(post)
            print("tail estimate:", tot, "mfma:", sum(x.kind == "mfma" for x in post), "instrs:", len(post))
            print("  over:", [(o[0], o[1]) for o in over])
        self.njit = 0

        def jit(block):
            if not self.jitter:
                return block
            mask, where, amount = self.jitter.split(",")
            out = []
            for x in block:
                if x.kind != "barrier":
                    out.append(x)
                    continue
                self.njit += 1
                lab = f"L_jit{self.njit}"
                nap = [raw("s_cselect_b32 s99, 1, 0"), raw(f"s_lshl_b32 s98, 1, {S_W}"), raw(f"s_and_b32 s98, s98, {mask}"),
                       raw(f"s_cbranch_scc0 {lab}"), raw(f"s_sleep {amount}"), label(lab), raw("s_cmp_lg_u32 s99, 0")]
                out += nap + [x] if where == "b" else [x] + nap
            return out
        text = "  ; prologue: addresses, descriptors, Q staging and scaling, QK of tiles 0 and 1, PV of tile 0\n" + emit(jit(pro + head1))
        text += "  ; main loop: two periods per trip\n.p2align 6\nL_top:\n" + emit(jit(body2))
        text += "  ; last two tiles per group of query blocks, range check, output\nL_drain:\n" + emit(jit(post))
        text += self.stamp_out() + "L_end:\n  s_endpgm\n"
        setup, maxl, mid, main, epi = self.slow_path()
        st = State()
        blocks = []
        for blk, loop in ((setup, False), (maxl, True), (mid, False), (main, True), (epi, False)):
            blk, st = fix(blk, st)
            if loop:
                blk, st = fix(blk, st)
            blocks.append(blk)
        setup, maxl, mid, main, epi = blocks
        errs, _ = verify(post + setup + maxl + maxl + mid + main + main + epi)
        assert not errs, errs[:10]
        text += "  ; fallback: reload Q unscaled\nL_slow:\n" + emit(setup)
        text += "  ; fallback pass 1: true row maximum\nL_slow_max:\n" + emit(maxl) + emit(mid)
        text += "  ; fallback pass 2: P = exp2(c*S - c*max), O += P V\nL_slow_main:\n" + emit(main)
        text += emit(epi) + "  s_endpgm\n"
        return wrap(text, 256, 256, self.lds, 512, 256, extra_comment=DOC)


if __name__ == "__main__":
    ap = argparse.ArgumentParser()
    ap.add_argument("-o", default="k.s")
    ap.add_argument("--stamps", default="")
    ap.add_argument("--ring", type=int, default=5)
    ap.add_argument("--pol", default="nt")
    ap.add_argument("--opol", default="nt")
    ap.add_argument("--abl", default="")
    ap.add_argument("--pref", type=int, default=1)
    ap.add_argument("--qpol", default="nt")
    ap.add_argument("--dist", type=int, default=3)
    ap.add_argument("--dpos", default="s")
    ap.add_argument("--pk", type=int, default=1)
    ap.add_argument("--lat", type=int, default=7)
    ap.add_argument("--jitter", default="")
    ap.add_argument("--ahead", type=int, default=3)
    ap.add_argument("--dot", type=int, default=0)
    ap.add_argument("--early", type=int, default=1)
    ap.add_argument("--eblock", type=int, default=0)
    ap.add_argument("--efrac", type=int, default=80)
    ap.add_argument("--opol2", default="nt")
    ap.add_argument("--olast", type=int, default=4)
    ap.add_argument("--spread", type=int, default=0)
    ap.add_argument("--remap", type=int, default=1)
    ap.add_argument("--touch", type=int, default=0)
    ap.add_argument("--groups", default="42")
    ap.add_argument("--estep", type=int, default=2)
    ap.add_argument("--espace", type=int, default=9)
    ap.add_argument("--provar", default="45")
    ap.add_argument("-v", action="store_true")
    a = ap.parse_args()
    SPREAD = bool(a.spread)
    g = Gen(ring=a.ring, pol=a.pol, opol=a.opol, stamps=a.stamps, abl=a.abl, provar=a.provar, groups=a.groups, estep=a.estep, espace=a.espace, pref=a.pref, remap=a.remap, touch=a.touch, qpol=a.qpol, dist=a.dist, dpos=a.dpos, pk=a.pk, lat=a.lat, jitter=a.jitter, ahead=a.ahead, dot=a.dot, early=a.early, eblock=a.eblock, efrac=a.efrac, opol2=a.opol2, olast=a.olast)
    open(a.o, "w").write(g.build(a.v))
```

```python
import re


def R(p, i, n=1):
    return f"{p}{i}" if n == 1 else f"{p}[{i}:{i+n-1}]"


def regs(p, i, n=1):
    return [f"{p}{k}" for k in range(i, i + n)]


def expand(op):
    op = op.strip()
    op = op.lstrip("-")
    if op.startswith("|") and op.endswith("|"):
        op = op[1:-1]
    m = re.fullmatch(r"([vas])\[(\d+):(\d+)\]", op)
    if m:
        return regs(m.group(1), int(m.group(2)), int(m.group(3)) - int(m.group(2)) + 1)
    m = re.fullmatch(r"([vas])(\d+)", op)
    if m:
        return [op]
    if op in ("vcc", "m0", "exec"):
        return [op]
    return []


TRANS = ("v_exp_f32", "v_rcp_f32", "v_log_f32", "v_rsq_f32", "v_sqrt_f32")


class I:
    def __init__(self, text, kind, rd=(), wr=(), tag=None, srcc=()):
        self.text, self.kind = text, kind
        self.rd, self.wr = set(rd), set(wr)
        self.srcc = set(srcc)
        self.tag = tag
        self.extra = 0

    def __repr__(self):
        return self.text

    @property
    def is_valu(self):
        return self.kind in ("valu", "trans", "perm")

    @property
    def is_scalar(self):
        return self.kind in ("salu", "wait", "barrier", "nop", "branch", "smem")

    @property
    def states(self):
        if self.kind == "label":
            return 0
        if self.kind == "nop":
            return int(self.text.split()[1]) + 1
        return 1


def valu(op, dst, *src):
    kind = "trans" if op in TRANS else "valu"
    rd = [r for s in src for r in expand(str(s))]
    wr = expand(dst)
    if op.startswith("v_fmac") or op.startswith("v_permlane"):
        rd += wr
    if op.startswith("v_permlane"):
        kind = "perm"
        wr = wr + expand(src[0])
    if op.startswith("v_cndmask") and len(src) == 2:
        rd.append("vcc")
    return I(f"{op} {dst}, " + ", ".join(str(s) for s in src), kind, rd, wr)


def salu(op, dst, *src):
    rd = [r for s in src for r in expand(str(s))]
    if op.startswith("s_cmp"):
        return I(f"{op} {dst}, {src[0]}", "salu", rd + expand(str(dst)), ["scc"])
    wr = expand(dst)
    if op.startswith("s_cselect") or op in ("s_addc_u32", "s_subb_u32"):
        rd.append("scc")
    if not (op.startswith("s_mov") or op.startswith("s_cselect") or op.startswith("s_mul")):
        wr = wr + ["scc"]
    if "saveexec" in op:
        wr = wr + ["exec"]
    return I(f"{op} {dst}, " + ", ".join(str(s) for s in src), "salu", rd, wr)


def mfma(d, a, b, c):
    return I(f"v_mfma_f32_16x16x32_bf16 {d}, {a}, {b}, {c}", "mfma",
             expand(a) + expand(b) + expand(c), expand(d), srcc=expand(c))


def mfma32(d, a, b, c):
    i = I(f"v_mfma_f32_32x32x16_bf16 {d}, {a}, {b}, {c}", "mfma",
          expand(a) + expand(b) + expand(c), expand(d), srcc=expand(c))
    i.extra = 4
    return i


def mfma_f32(d, a, b, c):
    i = I(f"v_mfma_f32_16x16x4_f32 {d}, {a}, {b}, {c}", "mfma",
          expand(a) + expand(b) + expand(c), expand(d), srcc=expand(c))
    i.extra = 4
    return i


def ds_read(op, dst, addr, off, tag=None):
    assert 0 <= off < 65536, off
    return I(f"{op} {dst}, {addr} offset:{off}", "lds_rd", [addr], expand(dst), tag)


def ds_write(op, addr, src, off):
    assert 0 <= off < 65536, off
    return I(f"{op} {addr}, {src} offset:{off}", "lds_wr", [addr] + expand(src), [])


def buf_load(dst, voff, srd, soff, off, pol="", op="buffer_load_dwordx4", tag=None):
    assert 0 <= off < 4096
    return I(f"{op} {dst}, {voff}, {srd}, {soff} offen offset:{off} {pol}".rstrip(), "vm_ld",
             [voff] + expand(srd) + expand(str(soff)), expand(dst), tag)


def buf_dma(voff, srd, soff, off, pol="", tag=None):
    assert 0 <= off < 4096
    return I(f"buffer_load_dwordx4 {voff}, {srd}, {soff} offen offset:{off} {pol} lds".replace("  ", " "), "dma",
             [voff, "m0"] + expand(srd) + expand(str(soff)), [], tag)


def buf_store(src, voff, srd, soff, off, pol="", op="buffer_store_dwordx4"):
    assert 0 <= off < 4096
    return I(f"{op} {src}, {voff}, {srd}, {soff} offen offset:{off} {pol}".rstrip(), "vm_st",
             [voff] + expand(src) + expand(srd) + expand(str(soff)), [], tag=("data", tuple(expand(src))))


def wait(vm=None, lgkm=None):
    parts = []
    if vm is not None:
        assert 0 <= vm < 64
        parts.append(f"vmcnt({vm})")
    if lgkm is not None:
        assert 0 <= lgkm < 16
        parts.append(f"lgkmcnt({lgkm})")
    i = I("s_waitcnt " + " ".join(parts), "wait")
    i.vm, i.lgkm = vm, lgkm
    return i


def nop(n=0):
    return I(f"s_nop {n}", "nop")


def barrier():
    return I("s_barrier", "barrier")


def label(name):
    return I(f"{name}:", "label")


def branch(op, target):
    rd = ["scc"] if "scc" in op else (["vcc"] if "vcc" in op else [])
    return I(f"{op} {target}", "branch", rd)


def raw(text, kind="salu", rd=(), wr=()):
    return I(text, kind, rd, wr)


def need_states(p, c):
    n = 0
    if p.is_valu:
        vw = {r for r in p.wr if r[0] in "va" and r != "vcc"}
        sw = {r for r in p.wr if r[0] == "s" or r == "vcc"}
        if c.kind == "mfma" and vw & c.rd:
            n = max(n, 2)
        if c.kind == "perm" and vw & c.rd:
            n = max(n, 2)
        if c.text.startswith(("v_readfirstlane", "v_readlane")) and vw & c.rd:
            n = max(n, 1)
        if p.kind == "trans" and c.is_valu and c.kind != "trans" and vw & c.rd:
            n = max(n, 1)
        if c.is_valu and sw & c.rd:
            n = max(n, 2)
        if c.kind in ("vm_ld", "vm_st", "dma") and sw & c.rd:
            n = max(n, 5)
        if c.kind in ("salu", "branch") and sw & c.rd:
            n = max(n, 2)
        if "_dpp" in c.text and vw & c.rd:
            n = max(n, 2)
        if "exec" in p.wr and c.kind == "mfma":
            n = max(n, 4)
    if p.text.startswith("v_dot2") and not c.text.startswith("v_dot2") and p.wr & (c.rd | c.wr):
        n = max(n, 3)
    if p.kind == "mfma":
        if c.kind == "mfma":
            if p.wr & (c.rd - c.srcc):
                n = max(n, 8 + p.extra)
            if p.wr & c.srcc and p.wr != c.srcc:
                n = max(n, 6 + p.extra)
            if p.wr & c.wr and p.wr != c.srcc and not (p.wr & c.srcc):
                n = max(n, 0)
        elif c.is_valu or c.kind in ("lds_rd", "lds_wr", "vm_ld", "vm_st", "dma"):
            if p.wr & (c.rd | c.wr):
                n = max(n, 8 + p.extra)
            if c.is_valu and p.srcc & c.wr:
                n = max(n, 3 + p.extra)
    if p.kind == "salu" and "m0" in p.wr and c.kind == "dma":
        n = max(n, 1)
    if p.kind == "vm_st" and (c.is_valu or c.kind in ("lds_rd", "vm_ld", "mfma")):
        if set(p.tag[1]) & c.wr:
            n = max(n, 2)
    return n


class State:
    def __init__(self):
        self.lgkm = []
        self.vm = []
        self.recent = []

    def copy(self):
        s = State()
        s.lgkm, s.vm, s.recent = list(self.lgkm), list(self.vm), list(self.recent)
        return s

    def step(self, ins):
        if ins.kind == "wait":
            if ins.lgkm is not None:
                self.lgkm = self.lgkm[len(self.lgkm) - ins.lgkm:] if ins.lgkm < len(self.lgkm) else self.lgkm
            if ins.vm is not None:
                self.vm = self.vm[len(self.vm) - ins.vm:] if ins.vm < len(self.vm) else self.vm
        elif ins.kind in ("lds_rd", "lds_wr"):
            self.lgkm.append(ins)
        elif ins.kind in ("vm_ld", "vm_st", "dma"):
            self.vm.append(ins)
        if ins.kind != "label":
            self.recent.append(ins)
            self.recent = self.recent[-24:]

    def pending_need(self, ins):
        touch = ins.rd | ins.wr
        nl = nv = None
        for k, p in enumerate(self.lgkm):
            if p.wr & touch:
                nl = len(self.lgkm) - 1 - k
        for k, p in enumerate(self.vm):
            if p.wr & touch:
                nv = len(self.vm) - 1 - k
        return nl, nv

    def missing_states(self, ins):
        d = 0
        miss = 0
        for p in reversed(self.recent):
            n = need_states(p, ins)
            if n > d:
                miss = max(miss, n - d)
            d += p.states
            if d >= 14:
                break
        return miss


def fix(block, state, hoist=False, log=None):
    out = []
    st = state.copy()
    hist = []
    for ins in block:
        nl, nv = st.pending_need(ins)
        if nl is not None or nv is not None:
            pos = len(out)
            if hoist:
                stops = ("label", "barrier")
                cands = []
                k = len(out) - 1
                while k >= 0 and len(cands) < 4 and out[k].kind not in stops:
                    if out[k].kind == "mfma":
                        cands.append(k)
                    k -= 1
                best = None
                for k in cands:
                    later = out[k + 1:]
                    if any((x.wr & (ins.rd | ins.wr)) for x in later if x.kind in ("lds_rd", "vm_ld")):
                        break
                    s2 = hist[k + 1] if k + 1 < len(hist) else st
                    l2, v2 = s2.pending_need(ins)
                    e = k + 1
                    while e < len(out) and out[e].kind != "mfma":
                        e += 1
                    g = out[k + 1:e]
                    free = gap_cost([nop(0)] + g) == gap_cost(g)
                    if best is None or free:
                        best = (k + 1, l2, v2)
                    if free:
                        break
                if best is not None:
                    pos, nl, nv = best
            w = wait(vm=min(nv, 63) if nv is not None else None, lgkm=min(nl, 15) if nl is not None else None)
            tail = out[pos:]
            if pos < len(out):
                st = hist[pos].copy()
            out = out[:pos]
            hist = hist[:pos]
            for x in [w] + tail:
                hist.append(st.copy())
                st.step(x)
                out.append(x)
            if log is not None:
                log.append(("wait", w.text, ins.text))
        miss = st.missing_states(ins)
        if miss:
            nn = nop(miss - 1)
            hist.append(st.copy())
            st.step(nn)
            out.append(nn)
            if log is not None:
                log.append(("nop", nn.text, ins.text))
        hist.append(st.copy())
        st.step(ins)
        out.append(ins)
    return out, st


def verify(trace, state=None):
    st = state.copy() if state else State()
    errs = []
    for ins in trace:
        nl, nv = st.pending_need(ins)
        if nl is not None or nv is not None:
            errs.append(f"pending load touched by: {ins.text}")
        if st.missing_states(ins):
            errs.append(f"hazard before: {ins.text}")
        st.step(ins)
    return errs, st


MEMK = ("lds_rd", "lds_wr", "vm_ld", "vm_st", "dma")


def gap_cost(ops):
    t = 1
    prev = None
    for o in ops:
        if o.kind == "label":
            continue
        if o.is_scalar:
            t += o.states
        else:
            t = max(t, 2)
            if o.kind in ("lds_rd", "lds_wr", "vm_ld", "vm_st", "dma") and prev is not None and prev.is_valu:
                t += 2
            if o.kind in MEMK and prev is not None and prev.kind in MEMK:
                t += 1
            t += 2 if o.kind in ("trans", "perm") else 1
            if o.kind in ("lds_wr", "vm_st"):
                t += 3
        prev = o
    return max(t, 4) * 4


def estimate(block):
    total = 0
    over = []
    cur = None
    n = 0
    for ins in block:
        if ins.kind == "mfma":
            if cur is not None:
                c = gap_cost(cur)
                total += c
                if c > 16:
                    over.append((n - 1, c, [x.text for x in cur]))
            cur = []
            n += 1
        elif cur is not None:
            cur.append(ins)
    if cur is not None:
        c = gap_cost(cur)
        total += c
        if c > 16:
            over.append((n - 1, c, [x.text for x in cur]))
    return total, over


def emit(block):
    return "".join((x.text if x.kind == "label" else "  " + x.text) + "\n" for x in block)


class Op:
    def __init__(self, ins, lo=0, hi=10 ** 9):
        self.ins, self.lo, self.hi = ins, lo, hi


def sched(mf, streams, pre=(), rate=None):
    streams = [list(s) for s in streams]
    for s in streams:
        hi = 10 ** 9
        for o in reversed(s):
            hi = o.hi = min(o.hi, hi)
    rate = rate or {}
    out = list(pre)
    def cls(x):
        return 0 if x.is_scalar else (1 if x.kind in MEMK else 2)

    def insert(gap, ins):
        pos = next((k for k, x in enumerate(gap) if cls(x) > cls(ins)), len(gap))
        for k, x in enumerate(gap):
            dep = (x.wr & (ins.rd | ins.wr)) or (x.rd & ins.wr)
            dep = dep or (x.kind in ("wait", "barrier") or ins.kind in ("wait", "barrier") or
                          (x.kind in MEMK and ins.kind in MEMK))
            if dep:
                pos = max(pos, k + 1)
        return gap[:pos] + [ins] + gap[pos:]
    for g, m in enumerate(mf):
        gap = []
        taken = {k: 0 for k in range(len(streams))}
        while True:
            ready = [(s[0].hi, k) for k, s in enumerate(streams) if s and s[0].lo <= g]
            ready.sort()
            done = True
            for hi, k in ready:
                ins = streams[k][0].ins
                trial = insert(gap, ins)
                force = hi <= g or taken[k] < rate.get(k, 0)
                if gap_cost(trial) <= 16 or force:
                    if any(x.kind == "trans" and x.wr & ins.rd for x in gap) and not hi <= g:
                        continue
                    gap = trial
                    streams[k].pop(0)
                    taken[k] += 1
                    done = False
                    break
            if done:
                break
        out += [m] + gap
    rest = sorted(((o.hi, k, i, o.ins) for k, s in enumerate(streams) for i, o in enumerate(s)), key=lambda t: (t[1], t[2]))
    return out + [r[3] for r in rest]
```

```python
import argparse
import math
import struct
from fw import *
from asmlib import wrap

NQB = 6
TILE_G = 12288
TAU = 4192
TILE_L = 3 * TAU
HEAD_Q = 147456
HEAD_KV = 393216

V_KA, V_VA, V_DMA, V_QA = "v0", "v1", "v2", "v3"
L0 = 4
T0, T1 = "v10", "v11"
S0 = 12
P0 = 20
OV0, NOV = 68, 47
QA0 = 0
QBUF = 120
KA0 = 124
VA0 = 148
OA0 = 156
SRD_K, SRD_V, SRD_Q, SRD_O = "s[16:19]", "s[20:23]", "s[24:27]", "s[28:31]"
S_W, S_KOFF, S_VOFF, S_DMA, S_SLOT, S_NEW, S_DELTA, S_CNT, S_C, S_WOFF, S_T = (f"s{i}" for i in range(32, 43))
S_DLIM = "s54"
S_ONE = "s55"
S_DMAV, S_WOFFV, S_W16 = "s96", "s97", "s3"


def f32(x):
    return "0x%08x" % struct.unpack("<I", struct.pack("<f", x))[0]


SPREAD = False


def Oreg(j, db):
    if not SPREAD:
        n = j * 12 + db
        return R("v", OV0 + 4 * n, 4) if n < NOV else R("a", OA0 + 4 * (n - NOV), 4)
    return Oreg2(j, db)


def Oreg2(j, db):
    if db >= 8:
        return R("a", OA0 + 4 * (j * 4 + db - 8), 4)
    n = j * 8 + db
    return R("v", OV0 + 4 * n, 4) if n < NOV else R("a", OA0 + 4 * 24, 4)


def Qreg(j, s):
    return R("a", QA0 + 4 * (j * 5 + s), 4) if s < 5 else R("a", QBUF, 4)


def Kreg(s):
    return R("a", KA0 + 4 * s, 4)


def Preg(par, j):
    return P0 + 24 * par + 4 * j


DOC = """;
; All matrix work is v_mfma_f32_16x16x32_bf16 on transposed tiles: S^T = K Q^T, O^T = V^T P^T, so a lane keeps
;
;
; three tiles ahead, one barrier per period. The last two tiles run per group of query blocks (4, then 2) so
; the first output stores overlap the remaining matrix work. Output goes through an LDS transpose to
;
;
"""


class Gen:
    def __init__(self, ring=5, pol="nt", opol="", stamps=False, cinit="-4.0", abl="", provar="356", groups="42", estep=2, espace=9, pref=1, remap=1, touch=0, qpol="nt", dist=3, dpos="s", pk=1, lat=7, jitter="", ahead=3, dot=0, early=0, eblock=0, efrac=80, opol2="nt", olast=4, swap=0):
        self.swap = swap
        self.opol2, self.olast = opol2, olast
        self.eblock, self.efrac = eblock, efrac
        self.early = early
        self.dot = dot
        self.ahead = ahead
        self.jitter = jitter
        self.lat = lat
        self.pk = pk
        self.dpos = dpos
        self.D = dist
        self.qpol = qpol
        self.remap, self.touch = remap, touch
        self.pref = pref
        self.groups, self.estep, self.espace = [int(c) for c in groups], estep, espace
        self.provar = provar
        self.abl = abl
        self.R = ring
        self.pol, self.opol, self.stamps, self.cinit = pol, opol, stamps, cinit
        self.VBASE = ring * TILE_L
        assert ring == 5
        self.QBASE = (2 * ring + 1) * TILE_L
        self.FLAG = self.QBASE + 24576
        self.lds = self.FLAG + 256
        self.nstamp = 0

    def stamp(self):
        if not self.stamps:
            return []
        r = 64 + 4 * self.nstamp
        self.nstamp += 1
        return [raw(f"s_memtime s[{r}:{r+1}]", "salu"), raw(f"s_memrealtime s[{r+2}:{r+3}]", "salu")]

    def kread(self, kb, s, slot=0):
        return ds_read("ds_read_b128", Kreg(s), V_KA, slot * TILE_L + (s >> 1) * TAU + (s & 1) * 64 + kb * 512)

    def vread(self, db, half, base, slot=0, file="a"):
        return ds_read("ds_read_b64_tr_b16", R(file, base + 2 * half, 2), V_VA,
                       slot * TILE_L + (db >> 2) * TAU + (db & 3) * (16 if self.swap else 32) + half * 512)

    def qread(self, j):
        return ds_read("ds_read_b128", R("a", QBUF, 4), V_QA, j * 1024)

    def dma_pair(self, k, base_sgpr=S_DMA, koff=S_KOFF, voff=S_VOFF, slot_off=0):
        tau = k % 3
        isv = k >= 3
        imm = (self.VBASE if isv else 0) + slot_off + tau * TAU - tau * 128
        if isv and self.swap:
            base_sgpr = {S_DMA: S_DMAV, S_WOFF: S_WOFFV}[base_sgpr]
        return (salu("s_add_u32", "m0", base_sgpr, imm),
                buf_dma(V_DMA, SRD_V if isv else SRD_K, voff if isv else koff, tau * 128, self.pol))

    def softmax_ops(self, n, ppar):
        kb, j = divmod(n % 12, 6)
        s = S0 + 4 * (n % 2)
        p = Preg(ppar, j) + 2 * kb
        e = [valu("v_exp_f32", f"v{s+i}", f"v{s+i}") for i in range(4)]
        a = [valu("v_add_f32", f"v{L0+j}", f"v{s+i}", f"v{L0+j}") for i in range(4)]
        c = [valu("v_cvt_pk_bf16_f32", f"v{p+i}", f"v{s+2*i}", f"v{s+2*i+1}") for i in range(2)]
        return e, a, c

    def dot_ops(self, par, js):
        return [I(f"v_dot2c_f32_bf16 v{L0+j}, {S_ONE}, v{Preg(par, j)+i}", "valu",
                  [S_ONE, f"v{Preg(par, j)+i}", f"v{L0+j}"], [f"v{L0+j}"]) for i in range(4) for j in js]

    def qk(self, n, s):
        j = n % 6
        d = R("v", S0 + 4 * (n % 2), 4)
        return mfma(d, Kreg(s), Qreg(j, s), self.cinit if s == 0 else d)

    def pv(self, db, j, par, vbase, file="a", c=None):
        if self.swap:
            return mfma(Oreg(j, db), R("v", Preg(par, j), 4), R(file, vbase, 4), c or Oreg(j, db))
        if c:
            return mfma(Oreg(j, db), R(file, vbase, 4), R("v", Preg(par, j), 4), c)
        return mfma(Oreg(j, db), R(file, vbase, 4), R("v", Preg(par, j), 4), Oreg(j, db))

    def period(self, par, fill=False):
        N = 144
        sc = [[] for _ in range(N + 12)]
        mem = [[] for _ in range(N + 12)]
        va = [[] for _ in range(N + 12)]
        heavy = lambda n: n % 6 == 5
        for n in range(-1, 12):
            if n == -1 and fill:
                continue
            e, a, c = self.softmax_ops(n, par if n == -1 else 1 - par)
            g = 12 * n
            if heavy(n):
                plan = [(10, e[0]), (11, e[1]), (12, e[2]), (13, e[3]), (14, a[0]), (15, a[1]), (16, c[0]), (16, a[2]),
                        (17, a[3]), (18, c[1])]
            elif heavy(n + 1):
                plan = [(9, e[0]), (10, e[1]), (11, e[2]), (12, e[3]), (13, a[0]), (14, a[1]), (15, c[0]), (16, a[2]),
                        (17, a[3]), (18, c[1])]
            else:
                plan = [(9, e[0]), (10, e[1]), (11, e[2]), (12, e[3]), (13, a[0]), (14, a[1]), (15, c[0]), (16, a[2]),
                        (17, a[3]), (19, c[1])]
            for o, ins in plan:
                if g + o >= 0 and not (self.dot and ins.text.startswith("v_add_f32")):
                    va[g + o].append(ins)
        for n in range(12):
            g = 12 * n
            nv = (n + 1) % 12
            vb = VA0 + 4 * ((n + 1) % 2)
            tpos = (8, 9) if heavy(n) else ((2, 3) if heavy(n - 1) else (1, 2))
            if not fill or n == 11:
                for h in range(2):
                    mem[g + tpos[h]].append(self.vread(nv, h, vb))
            mem[g + (7 if heavy(n) else 5)].append(self.qread((n + 1) % 6))
            if heavy(n):
                for s in range(6):
                    mem[g + 1 + s].append(self.kread(1 if n == 5 else 0, s))
        if not fill:
            pos = {"s": [(1, 6), (2, 6), (3, 6), (4, 6), (7, 6), (8, 6)],
                   "e": [(0, 8), (1, 6), (1, 8), (2, 6), (2, 8), (3, 6)],
                   "m": [(0, 8), (1, 6), (2, 6), (3, 6), (4, 6), (6, 8)],
                   "l": [(4, 6), (6, 8), (7, 6), (7, 8), (8, 6), (8, 8)]}[self.dpos]
            for k, (n, o) in enumerate(pos):
                m, d = self.dma_pair(k)
                sc[12 * n + o - 1].append(m)
                mem[12 * n + o].append(d)
        if self.dot:
            dots = self.dot_ops(par, range(NQB))
            k = len(dots) // self.dot
            for i_, n in enumerate({1: (3,), 2: (2, 8), 3: (2, 4, 8), 6: (1, 2, 3, 7, 8, 9)}[self.dot]):
                va[12 * n + 8] += dots[i_ * k:(i_ + 1) * k]
        g = 12 * 9
        book = [salu("s_add_u32", S_DMA, S_DMA, TILE_L),
                salu("s_cmp_eq_u32", S_DMA, S_DLIM),
                salu("s_cselect_b32", S_DMA, S_WOFF, S_DMA),
                salu("s_add_u32", S_NEW, S_SLOT, TILE_L),
                salu("s_cmp_eq_u32", S_NEW, self.R * TILE_L),
                salu("s_cselect_b32", S_NEW, 0, S_NEW),
                salu("s_sub_u32", S_DELTA, S_NEW, S_SLOT),
                salu("s_mov_b32", S_SLOT, S_NEW),
                salu("s_add_u32", S_KOFF, S_KOFF, TILE_G), salu("s_add_u32", S_VOFF, S_VOFF, TILE_G)]
        for o, ins in zip((0, 1, 2, 3, 6, 7, 8, 9, 10, 11), book):
            sc[g + o].append(ins)
        if self.swap:
            sc[g + 12].append(salu("s_sub_u32", S_DMAV, S_DMA, S_W16))
        g = 12 * 10
        va[g + 6] += [valu("v_add_u32", V_KA, S_DELTA, V_KA), valu("v_add_u32", V_VA, S_DELTA, V_VA)]
        sc[g + 7].append(wait(vm=6 * (self.D - 2), lgkm=1))
        sc[g + 8].append(barrier())
        mf = []
        for n in range(12):
            mf += [self.qk(n, s) for s in range(6)]
            mf += [None if fill else self.pv(n, j, par, VA0 + 4 * (n % 2)) for j in range(6)]
        if not fill and "z" in self.abl:
            for n in range(12):
                for k in range(6):
                    jj = 3 * (n % 2) + k // 2
                    h = ((k + 1) // 2) % 2
                    mf[12 * n + 6 + k] = mfma(Oreg(jj, (n & ~1) + h), R("a", VA0 + 4 * h, 4), R("v", Preg(par, jj), 4), Oreg(jj, (n & ~1) + h))
        if not fill and "s" in self.abl:
            for n in range(12):
                for k in range(6):
                    mf[12 * n + 6 + k] = mfma(Oreg(k, n), R("v", Preg(par, k), 4), R("a", VA0 + 4 * (n % 2), 4), Oreg(k, n))
        if not fill and self.abl:
            def keep(x):
                t = x.text
                if "e" in self.abl and t.startswith("v_exp"): return False
                if "a" in self.abl and t.startswith("v_add_f32"): return False
                if "c" in self.abl and t.startswith("v_cvt"): return False
                if "k" in self.abl and x.kind == "lds_rd" and V_KA in x.rd: return False
                if "v" in self.abl and x.kind == "lds_rd" and V_VA in x.rd: return False
                if "q" in self.abl and x.kind == "lds_rd" and V_QA in x.rd: return False
                if "d" in self.abl and x.kind == "dma": return False
                if "b" in self.abl and x.kind == "barrier": return False
                return True
            mem = [[x for x in g_ if keep(x)] for g_ in mem]
            va = [[x for x in g_ if keep(x)] for g_ in va]
            sc = [[x for x in g_ if keep(x)] for g_ in sc]
            if "c" in self.abl:
                mf = [m if (i % 12) < 6 else self.pv(i // 12, i % 12 - 6, 0, VA0 + 4 * ((i // 12) % 2)) for i, m in enumerate(mf)]
        gaps = [sc[i] + mem[i] + va[i] for i in range(N)]
        tail = [x for i in range(N, N + 12) for x in va[i]]
        return mf, gaps, tail

    @staticmethod
    def flat(mf, gaps, lo, hi):
        out = []
        for i in range(lo, hi):
            if mf[i] is not None:
                out.append(mf[i])
            out += gaps[i]
        return out

    def addr_setup(self, lane, w):
        b = [valu("v_lshrrev_b32", "v6", 4, lane), valu("v_lshlrev_b32", "v6", 3, "v6"),
             valu("v_bfe_u32", "v7", lane, 3, 1), valu("v_add_u32", "v6", "v6", "v7"),
             valu("v_lshl_add_u32", "v6", w, 1, "v6"), valu("v_mul_u32_u24", "v6", 384, "v6"),
             valu("v_and_b32", "v7", 7, lane), valu("v_lshl_add_u32", V_DMA, "v7", 4, "v6")]

        def lds_row(dst, key, pitch=1056):
            return [valu("v_bfe_u32", "v8", key, 1, 2), valu("v_mul_u32_u24", "v8", pitch, "v8"),
                    valu("v_lshrrev_b32", "v9", 3, key), valu("v_lshlrev_b32", "v9", 1, "v9"),
                    valu("v_and_b32", dst, 1, key), valu("v_add_u32", "v9", "v9", dst),
                    valu("v_lshl_add_u32", dst, "v9", 7, "v8")]
        b += [valu("v_and_b32", "v6", 15, lane), valu("v_lshrrev_b32", "v7", 4, lane)]
        b += lds_row(V_KA, "v6") + [valu("v_lshl_add_u32", V_KA, "v7", 4, V_KA)]
        b += [valu("v_lshrrev_b32", "v6", 2, lane)] + lds_row(V_VA, "v6", 1040 if self.swap else 1056)
        if self.swap:
            b += [valu("v_and_b32", "v6", 1, lane), valu("v_lshl_add_u32", V_VA, "v6", 3, V_VA),
                  valu("v_bfe_u32", "v6", lane, 1, 1), valu("v_lshl_add_u32", V_VA, "v6", 6, V_VA)]
        else:
            b += [valu("v_and_b32", "v6", 3, lane), valu("v_lshl_add_u32", V_VA, "v6", 3, V_VA)]
        b += [valu("v_add_u32", V_VA, self.VBASE, V_VA)]
        return b

    def slow_path(self):
        M = ["v16", "v17", "v18", "v19", T0, T1]
        S = S0
        SD = R("v", S, 4)
        QL = Preg(1, 0)
        lane, w, vq = "v4", "v5", V_QA

        def qreg(j, s):
            return Qreg(j, s) if s < 5 else R("v", QL + 4 * j, 4)
        setup = [wait(vm=0, lgkm=0), barrier(),
                 raw(f"v_mbcnt_lo_u32_b32 {lane}, -1, 0", "valu", [], [lane]),
                 raw(f"v_mbcnt_hi_u32_b32 {lane}, -1, {lane}", "valu", [lane], [lane]),
                 valu("v_mov_b32", w, S_W)]
        setup += self.addr_setup(lane, w)
        setup += [valu("v_mul_u32_u24", vq, 96, w), valu("v_and_b32", "v6", 15, lane), valu("v_add_u32", vq, vq, "v6"),
                  valu("v_mul_u32_u24", vq, 384, vq), valu("v_lshl_add_u32", vq, "v7", 4, vq)]
        for j in range(NQB):
            setup.append(salu("s_mov_b32", S_T, j * 16 * 384))
            setup += [buf_load(qreg(j, s), vq, SRD_Q, S_T, s * 64) for s in range(6)]
        setup += [wait(vm=0)]
        setup += [valu("v_mov_b32", m, "0xff800000") for m in M]
        setup += [salu("s_mov_b32", S_KOFF, 0)]

        def load(with_v):
            o = []
            for k in range(6 if with_v else 3):
                o += list(self.dma_pair(k, S_WOFF, S_KOFF, S_KOFF))
            return o + [wait(vm=0), barrier()]

        def chain(j):
            return [mfma(SD, Kreg(s), qreg(j, s), "0" if s == 0 else SD) for s in range(6)]

        def close(name):
            return [wait(lgkm=0), barrier(), salu("s_add_u32", S_KOFF, S_KOFF, TILE_G),
                    salu("s_cmp_lt_u32", S_KOFF, HEAD_KV), branch("s_cbranch_scc1", name)]
        maxl = load(False)
        for kb in range(2):
            maxl += [self.kread(kb, s) for s in range(6)]
            for j in range(NQB):
                maxl += chain(j) + [valu("v_max3_f32", M[j], M[j], f"v{S}", f"v{S+1}"),
                                    valu("v_max3_f32", M[j], M[j], f"v{S+2}", f"v{S+3}")]
        maxl += close("L_slow_max")
        mid = []
        for m in M:
            for op in ("v_permlane32_swap_b32", "v_permlane16_swap_b32"):
                mid += [valu("v_mov_b32", vq, m), valu(op, m, vq), valu("v_max_f32", m, m, vq)]
        mid += [valu("v_mul_f32", m, S_C, m) for m in M]
        mid += [valu("v_accvgpr_write_b32", f"a{r}", 0) for r in range(OA0, 256)]
        mid += [valu("v_mov_b32", f"v{r}", 0) for r in list(range(OV0, 256)) + list(range(L0, L0 + 6))]
        mid += [salu("s_mov_b32", S_KOFF, 0)]
        main = load(True)
        for kb in range(2):
            main += [self.kread(kb, s) for s in range(6)]
            for j in range(NQB):
                p = Preg(0, j) + 2 * kb
                main += chain(j)
                main += [valu("v_fma_f32", f"v{S+i}", f"v{S+i}", S_C, "-" + M[j]) for i in range(4)]
                main += [valu("v_exp_f32", f"v{S+i}", f"v{S+i}") for i in range(4)]
                main += [valu("v_add_f32", f"v{L0+j}", f"v{S+i}", f"v{L0+j}") for i in range(4)]
                main += [valu("v_cvt_pk_bf16_f32", f"v{p+i}", f"v{S+2*i}", f"v{S+2*i+1}") for i in range(2)]
        for db in range(12):
            vb = VA0 + 4 * (db % 2)
            main += [self.vread(db, h, vb) for h in range(2)]
            main += [self.pv(db, j, 0, vb) for j in range(NQB)]
        main += close("L_slow_main")
        return setup, maxl, mid, main, self.epilogue_plain()

    def prologue(self):
        b = []
        b += [salu("s_cmp_ge_u32", "s2", 256), branch("s_cbranch_scc1", "L_end"),
              raw("s_load_dwordx4 s[4:7], s[0:1], 0", "smem"), raw("s_load_dwordx4 s[8:11], s[0:1], 16", "smem")]
        if self.stamps:
            b += [raw("s_load_dwordx4 s[12:15], s[0:1], 32", "smem"),
                  raw("s_memrealtime s[56:57]"), raw("s_memtime s[58:59]")]
        lane, w = "v4", "v5"
        b += [valu("v_and_b32", lane, 63, "v0"), valu("v_lshrrev_b32", w, 6, "v0"),
              valu("v_readfirstlane_b32", S_W, w)]
        if self.pref:
            b += [raw("s_getpc_b64 s[50:51]", "salu", [], ["s50", "s51"]), label("L_pc"),
                  salu("s_lshr_b32", S_T, "s2", 3), salu("s_lshl_b32", S_T, S_T, 2), salu("s_add_u32", S_T, S_T, S_W),
                  salu("s_min_u32", S_T, S_T, "(L_end-L_pc)/1024"), salu("s_lshl_b32", S_T, S_T, 10),
                  valu("v_lshl_add_u32", "v6", lane, 4, S_T),
                  I(f"global_load_dwordx4 v[{OV0}:{OV0+3}], v6, s[50:51]", "vm_ld", ["v6", "s50", "s51"], regs("v", OV0, 4))]
        b += self.addr_setup(lane, w)
        g = "v7"
        b += [valu("v_mul_u32_u24", V_QA, 6144, w), valu("v_lshl_add_u32", V_QA, lane, 4, V_QA),
              valu("v_add_u32", V_QA, self.QBASE, V_QA)]
        for i_ in range(3):
            d = f"v{OV0+80+i_}"
            b += [valu("v_add_u32", d, 64 * i_, lane), valu("v_mul_u32_u24", "v6", 2731, d),
                  valu("v_lshrrev_b32", "v6", 16, "v6"), valu("v_and_b32", "v6", 6, "v6"),
                  valu("v_xor_b32", d, d, "v6"), valu("v_lshlrev_b32", d, 4, d)]
        b += [valu("v_and_b32", "v6", 15, lane), valu("v_and_b32", "v8", 6, lane), valu("v_xor_b32", "v8", "v8", g),
              valu("v_mul_u32_u24", "v6", 384, "v6"), valu("v_lshl_add_u32", f"v{OV0+83}", "v8", 4, "v6"),
              valu("v_xor_b32", f"v{OV0+84}", 64, f"v{OV0+83}")]
        head = "s2"
        if self.remap:
            head = "s3"
            b += [salu("s_and_b32", head, "s2", 7), salu("s_lshl_b32", head, head, 5),
                  salu("s_lshr_b32", S_T, "s2", 3), salu("s_add_u32", head, head, S_T)]
        S_SA, S_SB = "s43", "s44"
        VQ = [f"v{OV0+80+i_}" for i_ in range(3)]
        b += [salu("s_mul_i32", S_KOFF, head, HEAD_KV), salu("s_mul_i32", S_VOFF, head, HEAD_Q),
              salu("s_mov_b32", "s18", HEAD_KV), salu("s_mov_b32", "s19", "0x20000"),
              salu("s_mov_b32", "s26", HEAD_Q), salu("s_mov_b32", "s27", "0x20000"),
              salu("s_mul_i32", S_WOFF, S_W, 1056),
              salu("s_lshr_b32", S_T, S_W, 1), salu("s_mul_i32", S_T, S_T, 3), salu("s_add_u32", S_T, S_T, S_W),
              salu("s_add_u32", S_T, S_T, 2), salu("s_mul_i32", S_SB, S_T, TILE_L),
              salu("s_add_u32", S_SA, S_SB, 2 * TILE_L), salu("s_mul_i32", S_T, S_W, 36864)]
        b += [valu("v_add_u32", VQ[i_], S_T, VQ[i_]) for i_ in range(3)]
        b += [raw("s_waitcnt lgkmcnt(0)", "salu")]
        b += [salu("s_add_u32", "s16", "s6", S_KOFF), salu("s_addc_u32", "s17", "s7", 0),
              salu("s_add_u32", "s24", "s4", S_VOFF), salu("s_addc_u32", "s25", "s5", 0)]
        late = [salu("s_add_u32", "s20", "s8", S_KOFF), salu("s_addc_u32", "s21", "s9", 0),
                salu("s_mov_b32", "s22", HEAD_KV), salu("s_mov_b32", "s23", "0x20000"),
                salu("s_add_u32", "s28", "s10", S_VOFF), salu("s_addc_u32", "s29", "s11", 0),
                salu("s_mov_b32", "s30", HEAD_Q), salu("s_mov_b32", "s31", "0x20000"),
                salu("s_mov_b32", S_C, f32(math.log2(math.e) / math.sqrt(192.0))),
                salu("s_mov_b32", S_CNT, 14)]
        if self.dot:
            late += [salu("s_mov_b32", S_ONE, "0x3f803f80")]
        if self.swap:
            late += [salu("s_lshl_b32", S_W16, S_W, 4), salu("s_sub_u32", S_WOFFV, S_WOFF, S_W16)]

        def group(ktile, vtile):
            o = []
            for k in range(6):
                tile = vtile if k >= 3 else ktile
                if tile is None:
                    continue
                slot = (tile + 1) % self.R if k >= 3 else tile % self.R
                if k % 3 == 0:
                    o.append(salu("s_mov_b32", S_T, tile * TILE_G))
                o += list(self.dma_pair(k, S_WOFF, S_T, S_T, slot * TILE_L))
            return o
        RAW = OV0
        LO = OV0 + 48
        Q5 = OV0 + 72
        VR = [f"v{OV0+83+i_}" for i_ in range(2)]
        LAST = OV0 + 96
        ZERO = "a[252:255]"
        CV = T0
        KB = Preg(1, 0)

        def ubase(u):
            return (S_SB if u in (2, 3) else S_SA), (u & 1) * 6144

        def qunit(u):
            sb, off = ubase(u)
            o = []
            for i_ in range(3):
                o += [salu("s_add_u32", "m0", sb, off + i_ * 1024)]
                o += [salu("s_mov_b32", S_T, u * 6144)] if i_ == 0 else [nop(0)]
                o += [buf_dma(VQ[i_], SRD_Q, S_T, h * 3072, self.qpol) for h in range(2)]
            return o

        def qraw(u):
            sb, off = ubase(u)
            o = [valu("v_add_u32", T0, sb, VR[0]), valu("v_add_u32", T1, sb, VR[1])]
            for s_ in range(6):
                o.append(ds_read("ds_read_b128", R("v", RAW + 4 * ((u % 2) * 6 + s_), 4), (T0, T1)[s_ & 1],
                                 off + (s_ >> 1) * 128))
            return o

        def unpack(j):
            r0 = RAW + 24 * (j % 2)
            o = []
            for i_ in range(24):
                o += [valu("v_lshlrev_b32", f"v{LO+i_}", 16, f"v{r0+i_}"),
                      valu("v_and_b32", f"v{r0+i_}", "0xffff0000", f"v{r0+i_}")]
            return o

        def scale(j):
            o = []
            for base in (LO, RAW + 24 * (j % 2)):
                o += [I(f"v_pk_mul_f32 {R('v', base+2*i_, 2)}, {R('v', base+2*i_, 2)}, s[52:53]", "valu",
                        regs("v", base + 2 * i_, 2) + ["s52", "s53"], regs("v", base + 2 * i_, 2)) for i_ in range(12)]
            return o

        def pack(j):
            o = []
            for s_ in range(6):
                r0 = RAW + 24 * (j % 2) + 4 * s_
                dst = r0 if s_ < 5 else Q5 + 4 * (j % 2)
                o += [valu("v_cvt_pk_bf16_f32", f"v{dst+i_}", f"v{LO+4*s_+i_}", f"v{r0+i_}") for i_ in range(4)]
                if s_ < 5:
                    o += [valu("v_accvgpr_write_b32", f"a{QA0+4*(j*5+s_)+i_}", f"v{dst+i_}") for i_ in range(4)]
                else:
                    o.append(ds_write("ds_write_b128", V_QA, R("v", dst, 4), j * 1024))
            return o

        def clear(file, lo, hi):
            o = []
            while hi - lo >= 16:
                o.append(mfma32(R(file, lo, 16), ZERO, ZERO, "0"))
                lo += 16
            while lo < hi:
                o.append(mfma(R(file, lo, 4), ZERO, ZERO, "0"))
                lo += 4
            return o

        def chains(j):
            o = []
            for kb in range(2):
                d = R("v", S0 + 4 * kb, 4)
                for s_ in range(6):
                    a_ = Kreg(s_) if kb == 0 else R("v", KB + 4 * s_, 4)
                    q_ = Qreg(j, s_) if s_ < 5 else R("v", Q5 + 4 * (j % 2), 4)
                    o.append(mfma(d, a_, q_, self.cinit if s_ == 0 else d))
            return o

        def soft(j, kb):
            sreg = S0 + 4 * kb
            p = Preg(0, j) + 2 * kb
            e = [valu("v_exp_f32", f"v{sreg+i_}", f"v{sreg+i_}") for i_ in range(4)]
            a_ = [valu("v_add_f32", f"v{L0+j}", f"v{sreg+i_}", f"v{L0+j}") for i_ in range(4)]
            c = [valu("v_cvt_pk_bf16_f32", f"v{p+i_}", f"v{sreg+2*i_}", f"v{sreg+2*i_+1}") for i_ in range(2)]
            return e + ([] if self.dot else a_) + c

        def weave(ms, ops, per=2):
            o = []
            ops = list(ops)
            for m in ms:
                o.append(m)
                o += ops[:per]
                ops = ops[per:]
            return o, ops

        plan = [int(c) for c in self.provar]
        queue = []

        def issue(name, ops):
            queue.append((name, sum(1 for x in ops if x.kind == "dma")))
            return ops

        def landed(name, **kw):
            k = [n for n, _ in queue].index(name)
            return wait(vm=sum(c for _, c in queue[k + 1:]), **kw)

        def extras(u):
            o = []
            if plan[0] == u:
                o += issue("KV0", group(1, 0))
            if plan[1] == u:
                o += issue("G4", group(2, 1))
            if plan[2] == u and self.D >= 4:
                o += issue("G3", group(3, 2))
            return o

        if self.early:
            return b + self.early_start(locals())
        b += issue("K0", group(0, None)) + issue("U0", qunit(0)) + issue("U1", qunit(1))
        b += late + [salu("s_mov_b32", "s52", S_C), salu("s_mov_b32", "s53", S_C)]
        b += [valu("v_accvgpr_write_b32", f"a{r}", 0) for r in range(252, 256)]
        b += [valu("v_mov_b32", f"v{r}", 0) for r in range(L0, L0 + 6)]
        b += [valu("v_mov_b32", "v14", self.FLAG), valu("v_mov_b32", "v15", 0), ds_write("ds_write_b32", "v14", "v15", 0)]
        b += clear("a", OA0, 252) + clear("v", LAST, 256)
        A = self.ahead
        for u in range(2, A):
            b += issue(f"U{u}", qunit(u))
        b += [landed("U0")] + qraw(0) + [barrier()]
        b += [self.kread(0, s_) for s_ in range(6)]
        b += [ds_read("ds_read_b128", R("v", KB + 4 * s_, 4), V_KA, (s_ >> 1) * TAU + (s_ & 1) * 64 + 512) for s_ in range(6)]
        b += issue(f"U{A}", qunit(A))
        b += unpack(0) + scale(0) + pack(0)
        for u in range(1, 6):
            b += self.stamp() if self.touch == 2 and u in (1, 2, 4) else []
            b += [landed(f"U{u}")] + (self.stamp() if (self.touch == 1 and u >= 4) or (self.touch == 2 and u in (1, 2, 4)) else []) + qraw(u)
            if u == 3:
                b += [wait(lgkm=0), barrier()]
            ex = (issue(f"U{u+A}", qunit(u + A)) if u + A < 6 else []) + extras(u)
            sa, sb = soft(u - 1, 0), soft(u - 1, 1)
            b += sched(chains(u - 1), [[Op(x) for x in ex], [Op(x, 4) for x in unpack(u)]])
            b += sa[:4] + sb[:4] + scale(u) + sa[4:] + sb[4:]
            pk_ = pack(u)
            if u == 5:
                z = clear("v", RAW, RAW + 16) + clear("v", OV0 + 80, LAST)
                pk_ = pk_[:8] + z[:1] + pk_[8:16] + z[1:] + pk_[16:]
            b += pk_
        b += [valu("v_add_u32", V_KA, TILE_L, V_KA), valu("v_add_u32", V_VA, TILE_L, V_VA),
              salu("s_mov_b32", S_SLOT, TILE_L), salu("s_add_u32", S_DMA, S_WOFF, (self.D % 5) * TILE_L),
              salu("s_add_u32", S_DLIM, S_WOFF, self.R * TILE_L),
              salu("s_mov_b32", S_KOFF, self.D * TILE_G), salu("s_mov_b32", S_VOFF, (self.D - 1) * TILE_G)]
        st_ = self.stamp if self.touch == 1 else list
        b += st_() + [landed("KV0", lgkm=0)] + st_() + [barrier()]
        ch = chains(5)
        for s_ in range(6):
            b += [ch[s_], self.kread(0, s_)]
        b += [ch[6], self.qread(0), ch[7], self.vread(0, 0, VA0), ch[8], self.vread(0, 1, VA0)] + ch[9:]
        z = clear("v", RAW + 16, OV0 + 80)
        sa = soft(5, 0)
        rest = extras(6) + (group(4, 3) if self.D == 5 else [])
        b += [z[0]] + sa[:3] + [z[1]] + sa[3:5] + [z[2]] + sa[5:] + rest + [z[3]] + soft(5, 1)[:2]
        return b

    def early_start(self, c):
        group, qunit, qraw, unpack, scale, pack = (c[k] for k in ("group", "qunit", "qraw", "unpack", "scale", "pack"))
        issue, landed, late, Q5 = c["issue"], c["landed"], c["late"], c["Q5"]
        assert self.D == 3
        S2 = OV0 + 88
        KT = OV0 + 96
        plan = [int(x) for x in self.provar]

        def kreg(tile, kb, s):
            return Kreg(s) if (tile, kb) == (0, 0) else R("v", KT + 24 * (2 * tile + kb - 1) + 4 * s, 4)

        def sreg(tile, kb):
            return (S2 if tile == 0 else S0) + 4 * kb

        def chains(j):
            o = []
            for tile in range(2):
                for kb in range(2):
                    d = R("v", sreg(tile, kb), 4)
                    for s in range(6):
                        q_ = Qreg(j, s) if s < 5 else R("v", Q5 + 4 * (j % 2), 4)
                        o.append(mfma(d, kreg(tile, kb, s), q_, self.cinit if s == 0 else d))
            return o

        def soft(j, tile, kb):
            r, p = sreg(tile, kb), Preg(tile, j) + 2 * kb
            e = [valu("v_exp_f32", f"v{r+i}", f"v{r+i}") for i in range(4)]
            a = [valu("v_add_f32", f"v{L0+j}", f"v{r+i}", f"v{L0+j}") for i in range(4)]
            cv = [valu("v_cvt_pk_bf16_f32", f"v{p+i}", f"v{r+2*i}", f"v{r+2*i+1}") for i in range(2)]
            return e + [cv[0], a[0], cv[1], a[1], a[2], a[3]]

        def extras(u):
            o = []
            if plan[0] == u:
                o += issue("V0", group(None, 0))
            if plan[1] == u:
                o += issue("G2", group(2, 1))
            return o
        A = self.ahead
        b = issue("K0", group(0, None)) + issue("K1", group(1, None)) + issue("U0", qunit(0))
        b += late + [salu("s_mov_b32", "s52", S_C), salu("s_mov_b32", "s53", S_C)]
        b += [valu("v_mov_b32", f"v{r}", 0) for r in range(L0, L0 + 6)]
        b += [valu("v_mov_b32", "v14", self.FLAG), valu("v_mov_b32", "v15", 0), ds_write("ds_write_b32", "v14", "v15", 0)]
        for u in range(1, A):
            b += issue(f"U{u}", qunit(u))
        b += [landed("U0")] + qraw(0) + [barrier()]
        for tile in range(2):
            for kb in range(2):
                b += [ds_read("ds_read_b128", kreg(tile, kb, s), V_KA,
                              tile * TILE_L + (s >> 1) * TAU + (s & 1) * 64 + kb * 512) for s in range(6)]
        if A < 4:
            b += issue(f"U{A}", qunit(A)) + unpack(0)
        else:
            b += unpack(0) + issue("U4", qunit(4))
        b += scale(0) + pack(0)
        for u in range(1, 6):
            b += [landed(f"U{u}")] + qraw(u)
            if u == 3:
                b += [wait(lgkm=0), barrier()]
            ex = (issue(f"U{u+A}", qunit(u + A)) if u + A < 6 and A < 4 else []) + extras(u)
            sm = [Op(x, 8) for x in soft(u - 1, 0, 0)] + [Op(x, 14) for x in soft(u - 1, 0, 1)]
            sa, sb = soft(u - 1, 1, 0), soft(u - 1, 1, 1)
            b += sched(chains(u - 1), [[Op(x) for x in ex], sm, [Op(x, 4) for x in unpack(u)]])
            if A == 4 and u == 1:
                b += issue("U5", qunit(5))
            b += sa[:4] + sb[:4] + scale(u) + sa[4:] + sb[4:] + pack(u)
        b += [valu("v_add_u32", V_KA, 2 * TILE_L, V_KA), valu("v_add_u32", V_VA, TILE_L, V_VA),
              salu("s_mov_b32", S_SLOT, 2 * TILE_L), salu("s_add_u32", S_DMA, S_WOFF, 4 * TILE_L),
              salu("s_add_u32", S_DLIM, S_WOFF, self.R * TILE_L),
              salu("s_mov_b32", S_KOFF, 4 * TILE_G), salu("s_mov_b32", S_VOFF, 3 * TILE_G)]
        if self.swap:
            b += [salu("s_sub_u32", S_DMAV, S_DMA, S_W16)]
        b += [landed("V0", lgkm=0), barrier()]
        vb = lambda i: KA0 + 4 * (i % 4) if i < 8 else VA0 + 4 * (i % 2)
        mf = chains(5)
        g0 = len(mf)
        for db in range(12):
            mf += [self.pv(db, j, 0, vb(db), c="0") for j in range(NQB)]
        sm = [Op(x, 8, g0 - 2) for x in soft(5, 0, 0)] + [Op(x, 14, g0 + 2) for x in soft(5, 0, 1)]
        sm += [Op(x, 20) for x in soft(5, 1, 0)] + [Op(x, 27) for x in soft(5, 1, 1)[:2]]
        vst = []
        for db in range(12):
            lo = 6 if db < 4 else (g0 + 6 * (db - 4) + 5 if db < 8 else (g0 + 12 if db < 10 else g0 + 6 * (db - 2) + 5))
            vst += [Op(self.vread(db, h, vb(db)), lo, max(lo, g0 + 6 * db - 6)) for h in range(2)]
        ex = extras(6) + issue("G3", group(3, 2))
        sync = g0 + 6 * 8
        last = [Op(landed("G2"), sync - 1, sync - 1), Op(barrier(), sync, sync)]
        last += [Op(self.kread(0, s), sync + 1) for s in range(6)] + [Op(self.qread(0), sync + 1)]
        last += [Op(self.vread(0, h, VA0, 1), g0 + 6 * 10 + 5) for h in range(2)]
        last += [Op(valu("v_add_u32", V_VA, TILE_L, V_VA), g0 + 6 * 10 + 5)]
        b += sched(mf, [sm, vst, [Op(x, g0 + 2, sync - 2) for x in ex], last])
        return b

    def group_tail(self, js, bufs, first, carry=(), extra=(), fin=(), side=()):
        n = len(js)
        LAT = self.lat
        mf, cstart, gstart = [], [], []
        v = 0
        for c in range(4 * n):
            ph, k = divmod(c, 2 * n)
            jj = js[c % n]
            d = R("v", S0 + 4 * (c % 2), 4)
            cstart.append(len(mf))
            mf += [mfma(d, Kreg(s), Qreg(jj, s), self.cinit if s == 0 else d) for s in range(6)]
            upto = 12 * ph + (k + 1) * 12 // (2 * n)
            if ph == 1 and k < 2 * n - 1:
                upto -= (4 + n - 1) // n * (k + 1) // (2 * n - 1)
            if c == 4 * n - 1:
                upto = 36
            while v < upto:
                gstart.append(len(mf))
                f_, b_ = bufs[v % len(bufs)]
                mf += [self.pv(v % 12, x, (1, 0, 1)[v // 12], b_, f_) for x in js]
                v += 1
        sm = [Op(x, 0, cstart[1] - 1) for x in carry]
        dots = [Op(x, gstart[1], gstart[1]) for x in self.dot_ops(1, js)] if self.dot else []
        for c in range(4 * n):
            ph, kb, jj = c // (2 * n), (c // n) % 2, js[c % n]
            sreg = S0 + 4 * (c % 2)
            p = Preg(ph, jj) + 2 * kb
            hi = gstart[12 * (ph + 1)] + js.index(jj) - 2
            if c + 2 < 4 * n:
                hi = min(hi, cstart[c + 2] - 1)
            e = [valu("v_exp_f32", f"v{sreg+i}", f"v{sreg+i}") for i in range(4)]
            a = [valu("v_add_f32", f"v{L0+jj}", f"v{sreg+i}", f"v{L0+jj}") for i in range(4)]
            cv = [valu("v_cvt_pk_bf16_f32", f"v{p+i}", f"v{sreg+2*i}", f"v{sreg+2*i+1}") for i in range(2)]
            lo = cstart[c] + 5 + 3
            for k, x in enumerate(e + [cv[0], a[0], cv[1], a[1], a[2], a[3]]):
                last = c + 2 < 4 * n
                h = hi - (9 - k) // 2 if (last or k < 7) else 10 ** 9
                sm.append(Op(x, lo, max(h, lo)))
        lo = gstart[24] + n
        for x in fin:
            sm.append(Op(x, lo))
            if x.kind == "mfma" and x is [y for y in fin if y.kind == "mfma"][-1]:
                lo = gstart[24] + n + 8
        sync_gap = cstart[n] + 2 if first else -1
        sync, sync2 = [], sync_gap
        if first and self.D == 3:
            for k in range(3, 6):
                m_, d_ = self.dma_pair(k)
                sync += [Op(m_, 2 * k - 5, 2 * k - 5), Op(d_, 2 * k - 4, 2 * k - 4)]
            sync2 = gstart[24 - len(bufs)] - 2
            sync += [Op(wait(vm=3), sync_gap - 1, sync_gap - 1), Op(barrier(), sync_gap, sync_gap),
                     Op(wait(vm=0), sync2 - 1, sync2 - 1), Op(barrier(), sync2, sync2)]
        elif first:
            sync = [Op(wait(vm=0), sync_gap - 1, sync_gap - 1), Op(barrier(), sync_gap, sync_gap)]
        kst = []
        for st_ in range(1, 4):
            for s in range(6):
                lo = max(cstart[st_ * n - 1] + s, sync_gap + 1 if st_ == 2 else 0)
                kst.append(Op(self.kread(st_ % 2, s, st_ // 2), lo, max(cstart[st_ * n] + s - LAT, lo)))
        qst = [Op(self.qread(js[c % n]), cstart[c - 1] + 5, cstart[c] + 5 - LAT) for c in range(1, 4 * n)]
        vst = []
        pre = []
        for v in range(36):
            f_, b_ = bufs[v % len(bufs)]
            rd = [self.vread(v % 12, h, b_, v // 12, f_) for h in range(2)]
            if v == 0 and first:
                continue
            if v < len(bufs) and not first:
                pre += rd
                continue
            lo = gstart[v - len(bufs)] + n - 1 if v >= len(bufs) else 0
            if v >= 12:
                lo = max(lo, (sync2 if v >= 24 else sync_gap) + 1)
            vst += [Op(x, lo, max(gstart[v] - LAT, lo)) for x in rd]
        if not first:
            pre = [self.kread(0, s) for s in range(6)] + [self.qread(js[0])] + pre
        return pre, sched(mf, [sm, kst, qst, vst, sync, list(extra), dots, [Op(x, gstart[24]) for x in side]])

    def row_sums(self, js, t0):
        b = []
        for op in ("v_permlane32_swap_b32", "v_permlane16_swap_b32"):
            b += [valu("v_mov_b32", f"v{t0+k}", f"v{L0+j}") for k, j in enumerate(js)]
            b += [valu(op, f"v{L0+j}", f"v{t0+k}") for k, j in enumerate(js)]
            b += [valu("v_add_f32", f"v{L0+j}", f"v{L0+j}", f"v{t0+k}") for k, j in enumerate(js)]
        return b

    def range_check(self, js, first):
        b = []
        if first:
            b += [salu("s_mov_b32", S_NEW, f32(2.0 ** 12)), salu("s_mov_b32", S_DELTA, f32(2.0 ** -20)),
                  salu("s_mov_b64", "s[44:45]", 0)]
        for j in js:
            b += [valu("v_cmp_nge_f32", "s[46:47]", S_NEW, f"v{L0+j}"), valu("v_cmp_nle_f32", "s[48:49]", S_DELTA, f"v{L0+j}")]
            b += [salu("s_or_b64", "s[44:45]", "s[44:45]", "s[46:47]"), salu("s_or_b64", "s[44:45]", "s[44:45]", "s[48:49]")]
        return b

    EW = [f"v{P0+i}" for i in range(4)]
    ER = [f"v{P0+4+i}" for i in range(3)]
    EG = f"v{P0+7}"

    def epi_addr_swap(self):
        lane, t = T0, T1
        ew, er, eg = (f"v{P0+i}" for i in range(3))
        b = [raw(f"v_mbcnt_lo_u32_b32 {lane}, -1, 0", "valu", [], [lane]),
             raw(f"v_mbcnt_hi_u32_b32 {lane}, -1, {lane}", "valu", [lane], [lane]),
             salu("s_lshr_b32", S_T, S_W, 1), salu("s_mul_i32", S_T, S_T, 6 * TILE_L),
             salu("s_and_b32", S_SLOT, S_W, 1), salu("s_mul_i32", S_SLOT, S_SLOT, 12288),
             salu("s_add_u32", S_T, S_T, S_SLOT), salu("s_add_u32", S_T, S_T, (2 * TILE_L + 127) // 128 * 128),
             salu("s_and_b32", S_T, S_T, "0xffffff80"),
             valu("v_and_b32", t, 48, lane), valu("v_mul_u32_u24", ew, 96, t), valu("v_lshl_add_u32", er, t, 4, S_T),
             valu("v_and_b32", t, 7, lane), valu("v_lshl_add_u32", ew, t, 4, ew),
             valu("v_and_b32", t, 8, lane), valu("v_add3_u32", ew, ew, t, S_T),
             valu("v_and_b32", t, 28, lane), valu("v_lshl_add_u32", er, t, 2, er),
             valu("v_and_b32", t, 2, lane), valu("v_lshl_add_u32", er, t, 6, er),
             valu("v_and_b32", t, 1, lane), valu("v_lshl_add_u32", er, t, 3, er),
             salu("s_mul_i32", S_T, S_W, 36864), valu("v_lshl_add_u32", eg, lane, 4, S_T)]
        return b

    @staticmethod
    def inv_reg(j):
        return S0 if j == 3 else P0 + 4 + 4 * (j % 4)

    VMAX, VMIN = V_DMA, f"v{P0+3}"

    def inv_rows(self, js, check=None):
        one = f"v{S0+4}"
        b = [valu("v_mov_b32", one, "1.0")]
        if check == "first":
            b += [valu("v_mov_b32", self.VMAX, 0), valu("v_mov_b32", self.VMIN, -1)]
        b += [mfma_f32(R("v", self.inv_reg(j), 4), f"v{L0+j}", one, "0") for j in js]
        for j in js:
            r = self.inv_reg(j)
            if check:
                for op, acc in (("v_max3_u32", self.VMAX), ("v_min3_u32", self.VMIN)):
                    b += [valu(op, acc, acc, f"v{r}", f"v{r+1}"), valu(op, acc, acc, f"v{r+2}", f"v{r+3}")]
            b += [valu("v_rcp_f32", f"v{r+i}", f"v{r+i}") for i in range(4)]
        return b

    def epi_block_swap(self, j, pend, first, step, pk, nxt):
        ew, er = (f"v{P0}", f"v{S0+6}"), (f"v{P0+1}", f"v{S0+7}")
        inv = self.inv_reg(j)
        b = [valu("v_xor_b32", ew[1], 64, ew[0]), valu("v_xor_b32", er[1], 64, er[0])] if j in (0, self.groups[0]) else []

        def scale(m):
            X, o = [], []
            for t in range(4):
                src = expand(Oreg(j, 4 * m + t))
                u = []
                if src[0][0] == "a":
                    tmp = OV0 + 24 + 4 * ((4 * m + t) % 8)
                    u += [valu("v_accvgpr_read_b32", f"v{tmp+i}", src[i]) for i in range(4)]
                    src = regs("v", tmp, 4)
                r0 = int(src[0][1:])
                X.append(r0)
                if pk:
                    u += [I(f"v_pk_mul_f32 {R('v', r0+2*i, 2)}, {R('v', r0+2*i, 2)}, {R('v', inv+2*i, 2)}", "valu",
                            regs("v", r0 + 2 * i, 2) + regs("v", inv + 2 * i, 2), regs("v", r0 + 2 * i, 2)) for i in range(2)]
                else:
                    u += [valu("v_mul_f32", f"v{r0+i}", f"v{r0+i}", f"v{inv+i}") for i in range(4)]
                o.append(u)
            return X, o
        X, o = scale(0)
        b += [x for u in o for x in u]
        k = 0
        for m in range(3):
            Xn, on = scale(m + 1) if m < 2 else (None, [[]] * 4)
            for rq, dst in enumerate((int(T0[1:]), X[0], X[1], X[0] + 2)):
                b += [valu("v_cvt_pk_bf16_f32", f"v{dst}", f"v{X[0]+rq}", f"v{X[1]+rq}"),
                      valu("v_cvt_pk_bf16_f32", f"v{dst+1}", f"v{X[2]+rq}", f"v{X[3]+rq}"),
                      ds_write("ds_write_b64", ew[((3 * rq + m) >> 1) & 1], R("v", dst, 2), (j % 2) * 6144 + rq * 384 + m * 128)]
                if k >= first and (k - first) % step == 0 and pend:
                    b += pend.pop(0)
                b += on[rq]
                k += 1
            X = Xn
        for i in range(6):
            o = expand(Oreg(j, i))
            b += [ds_read("ds_read_b64_tr_b16", R(o[0][0], int(o[0][1:]) + 2 * h, 2), er[h], (j % 2) * 6144 + i * 1024)
                  for h in range(2)]
        return b

    def epi_addr(self):
        if self.swap:
            return self.epi_addr_swap()
        lane, t, u = T0, T1, V_DMA
        b = [raw(f"v_mbcnt_lo_u32_b32 {lane}, -1, 0", "valu", [], [lane]),
             raw(f"v_mbcnt_hi_u32_b32 {lane}, -1, {lane}", "valu", [lane], [lane]),
             salu("s_lshr_b32", S_T, S_W, 1), salu("s_mul_i32", S_T, S_T, 6 * TILE_L),
             salu("s_and_b32", S_SLOT, S_W, 1), salu("s_mul_i32", S_SLOT, S_SLOT, 12288),
             salu("s_add_u32", S_T, S_T, S_SLOT), salu("s_add_u32", S_T, S_T, (2 * TILE_L + 127) // 128 * 128),
             salu("s_and_b32", S_T, S_T, "0xffffff80"),
             valu("v_and_b32", t, 15, lane), valu("v_mul_u32_u24", u, 384, t), valu("v_add_u32", u, S_T, u),
             valu("v_bfe_u32", t, lane, 4, 1), valu("v_lshl_add_u32", u, t, 3, u),
             valu("v_lshrrev_b32", t, 5, lane), valu("v_xor_b32", t, t, lane), valu("v_and_b32", t, 7, t),
             valu("v_lshl_add_u32", self.EW[0], t, 4, u)]
        b += [valu("v_xor_b32", self.EW[i], 32 * i, self.EW[0]) for i in range(1, 4)]
        for i in range(3):
            r = self.ER[i]
            b += [valu("v_add_u32", r, 64 * i, lane), valu("v_mul_u32_u24", t, 2731, r),
                  valu("v_lshrrev_b32", t, 16, t), valu("v_xor_b32", r, r, t), valu("v_lshl_add_u32", r, r, 4, S_T)]
        b += [salu("s_mul_i32", S_T, S_W, 36864), valu("v_lshl_add_u32", self.EG, lane, 4, S_T)]
        return b

    def epi_stores(self, j):
        o = []
        for i in range(6):
            pre = [salu("s_mov_b32", S_T, j * 6144 + i * 1024)] if i % 4 == 0 else []
            o.append(pre + [buf_store(Oreg(j, i), f"v{P0+2}" if self.swap else self.EG, SRD_O, S_T, (i % 4) * 1024, self.opol if j < self.olast else self.opol2)])
        return o

    def epi_block(self, j, pend, first=3, step=1, pk=None, nxt=None):
        if self.swap:
            return self.epi_block_swap(j, pend, first, step, self.pk if pk is None else pk, nxt)
        b = []
        for db in range(12):
            src = expand(Oreg(j, db))
            if src[0][0] == "a":
                t = OV0 + 24 + 4 * (db % 6)
                b += [valu("v_accvgpr_read_b32", f"v{t+i}", src[i]) for i in range(4)]
                src = [f"v{t+i}" for i in range(4)]
            if self.pk if pk is None else pk:
                r0, lp = int(src[0][1:]), (L0 + j) & ~1
                sel = "op_sel:[0,1] op_sel_hi:[1,1]" if (L0 + j) & 1 else "op_sel_hi:[1,0]"
                b += [I(f"v_pk_mul_f32 {R('v', r0+2*i, 2)}, {R('v', r0+2*i, 2)}, {R('v', lp, 2)} {sel}", "valu",
                        regs("v", r0 + 2 * i, 2) + regs("v", lp, 2), regs("v", r0 + 2 * i, 2)) for i in range(2)]
            else:
                b += [valu("v_mul_f32", src[i], src[i], f"v{L0+j}") for i in range(4)]
            b += [valu("v_cvt_pk_bf16_f32", src[i], src[2 * i], src[2 * i + 1]) for i in range(2)]
            b += [ds_write("ds_write_b64", self.EW[db & 3], R("v", int(src[0][1:]), 2), (j % 2) * 6144 + (db >> 2) * 128)]
            if db >= first and (db - first) % step == 0 and pend:
                b += pend.pop(0)
        b += [ds_read("ds_read_b128", Oreg(j, i), self.ER[i % 3], (j % 2) * 6144 + (i // 3) * 3072) for i in range(6)]
        return b

    def epi_all(self, js, pend, fetch=False):
        b = []
        for j in js:
            b += self.epi_block(j, pend, nxt=j + 1 if fetch and j + 1 in js else None)
            b += [x for p in pend for x in p]
            pend = self.epi_stores(j)
        return b + [x for p in pend for x in p]

    def rcp(self, js):
        return [valu("v_rcp_f32", f"v{L0+j}", f"v{L0+j}") for j in js]

    def epilogue_plain(self):
        js = list(range(NQB))
        if not self.swap:
            return self.row_sums(js, S0) + self.rcp(js) + self.epi_addr() + self.epi_all(js, [])
        k = self.groups[0]
        b = self.epi_addr() + self.inv_rows(js[:k]) + self.epi_all(js[:k], [])
        return b + self.inv_rows(js[k:]) + self.epi_all(js[k:], [])

    def tail(self, carry):
        groups, k = [], 0
        for n in self.groups:
            groups.append(list(range(k, k + n)))
            k += n
        assert k == NQB and groups[0][-1] < 4 and len(groups[0]) >= 2
        assert not self.swap or self.groups == [4, 2]
        bufs0 = [("a", VA0), ("a", VA0 + 4), ("v", Preg(0, 4)), ("v", Preg(0, 5))]
        bufs1 = [("a", VA0), ("a", VA0 + 4), ("a", 0), ("a", 4)]
        def fin(gi):
            js = groups[gi]
            if not self.swap:
                o = self.row_sums(js, S0) + self.range_check(js, gi == 0) + self.rcp(js)
                return o + (self.epi_addr() if gi == 0 else [])
            return self.inv_rows(js, "more" if gi else "first")
        side = self.epi_addr() if self.swap else []
        side += [salu("s_mov_b32", S_NEW, f32(2.0 ** 12)), salu("s_mov_b32", S_DELTA, f32(2.0 ** -20))] if self.swap else []
        _, b = self.group_tail(groups[0], bufs0, True, carry, (), fin(0), side)
        left = []
        for gi, js in enumerate(groups):
            last = gi == len(groups) - 1
            b += self.stamp() if gi in (0, len(groups) - 1) and self.touch != 2 else []
            if last:
                b += self.epi_all(js, left)
                break
            nxt = groups[gi + 1]
            nb = min(self.eblock or len(js), len(js))
            for x, j in enumerate(js[:nb]):
                if x == nb - 1:
                    pos = len(b)
                b += self.epi_block(j, left, 2, self.estep)
                left += self.epi_stores(j)
            nm = 60 * len(nxt)
            woven = []
            for j in js[nb:]:
                woven += self.epi_block(j, left, 2, self.estep, pk=0)
                left += self.epi_stores(j)
            g0 = nm * self.efrac // 100 if woven else 0
            extra = [Op(x, k * g0 // len(woven), k * g0 // len(woven)) for k, x in enumerate(woven)]
            take = min(len(left), max(0, (nm - g0 - 4) // self.espace))
            extra += [Op(x, g0 + 4 + self.espace * i, g0 + 4 + self.espace * i) for i, p in enumerate(left[:take]) for x in p]
            left = left[take:]
            pre, t1 = self.group_tail(nxt, bufs1, False, (), extra, fin(gi + 1))
            b[pos:pos] = pre
            b += t1
        if self.swap:
            b += [valu("v_cmp_lt_u32", "s[44:45]", S_NEW, self.VMAX), valu("v_cmp_gt_u32", "s[46:47]", S_DELTA, self.VMIN),
                  salu("s_or_b64", "s[44:45]", "s[44:45]", "s[46:47]")]
        b += [salu("s_cmp_eq_u64", "s[44:45]", 0), branch("s_cbranch_scc1", "L_inrange"),
              valu("v_mov_b32", T0, self.FLAG), valu("v_mov_b32", T1, 1), ds_write("ds_write_b32", T0, T1, 0),
              label("L_inrange")]
        b += [wait(lgkm=0), barrier(), valu("v_mov_b32", T1, self.FLAG), ds_read("ds_read_b32", T1, T1, 0),
              valu("v_readfirstlane_b32", S_T, T1), salu("s_cmp_lg_u32", S_T, 0), branch("s_cbranch_scc1", "L_slow")]
        return b

    def stamp_out(self):
        if not self.stamps:
            return ""
        n = 4 + 2 * self.nstamp
        s = "  s_waitcnt vmcnt(0)\n  s_barrier\n  s_memrealtime s[60:61]\n  s_memtime s[62:63]\n  s_waitcnt lgkmcnt(0)\n"
        s += f"  s_cmp_lg_u32 {S_W}, 0\n  s_cbranch_scc1 L_end\n  s_mov_b64 exec, 1\n"
        if self.stamps == "prof":
            s += f"  s_mov_b64 exec, 0xffffffff\n  v_mbcnt_lo_u32_b32 v1, -1, 0\n  v_lshlrev_b32 v1, 2, v1\n  v_add_u32 v2, {self.FLAG + 8}, v1\n  ds_read_b32 v2, v2\n"
            s += f"  s_lshl_b32 s3, s2, 7\n  v_add_u32 v1, s3, v1\n  v_add_u32 v1, 0x100000, v1\n  s_waitcnt lgkmcnt(0)\n  global_store_dword v1, v2, s[14:15]\n  s_mov_b64 exec, 1\n"
        if self.stamps == "dbg":
            s += "  v_mov_b32 v1, 0\n  v_mov_b32 v2, s60\n  global_atomic_umax v1, v2, s[12:13]\n"
            s += "  s_not_b32 s3, s56\n  v_mov_b32 v3, s3\n  global_atomic_umax v1, v3, s[12:13] offset:4\n"
            s += "  v_mov_b32 v4, s56\n  global_atomic_umax v1, v4, s[12:13] offset:8\n"
            s += "  s_cmp_lg_u32 s2, 100\n  s_cbranch_scc1 L_end\n"
            vals = [(66 + 4 * i, 56) for i in range(self.nstamp)] + [(60, 56)] + [(64 + 4 * i, 58) for i in range(self.nstamp)] + [(62, 58)]
            for i, (x, y) in enumerate(vals):
                s += f"  s_sub_u32 s3, s{x}, s{y}\n  v_mov_b32 v2, s3\n  global_store_dword v1, v2, s[12:13] offset:{16+4*i}\n"
            return s
        s += f"  s_mul_i32 s3, s2, {8*n}\n  v_mov_b32 v1, s3\n"
        for i in range(n):
            r = 56 + 2 * i
            s += f"  v_mov_b32 v2, s{r}\n  v_mov_b32 v3, s{r+1}\n  global_store_dwordx2 v1, v[2:3], s[14:15] offset:{8*i}\n  s_nop 1\n"
        return s

    def build(self, verbose=False):
        ROT = 8
        pro = self.prologue()
        mfE, gE, tailE = self.period(0)
        mfO, gO, _ = self.period(1)
        if self.stamps == "prof":
            for gg in (gE, gO):
                gg[12 * 2 + 7] += [valu("v_mov_b32", T0, "s52"), valu("v_add_u32", T1, 4, T1)]
                gg[12 * 2 + 8] += [raw("s_memrealtime s[52:53]"), ds_write("ds_write_b32", T1, T0, 0)]
            pro += [valu("v_mov_b32", T1, self.FLAG + 4), raw("s_memrealtime s[52:53]")]
        gE[12 * 11 + 7].append(salu("s_cmp_eq_u32", S_CNT, 0))
        exit_tail = gE[143] + tailE
        gE[143] = [branch("s_cbranch_scc1", "L_drain")] + gE[143]
        gO[12 * 11 + 7].append(salu("s_sub_u32", S_CNT, S_CNT, 1))
        fill = self.stamp()
        log = []
        pro, st = fix(pro + fill, State(), hoist=bool(self.early))
        if self.early:
            head = self.flat(mfO, gO, 0, ROT)
            body = self.flat(mfO, gO, ROT, 144) + self.flat(mfE, gE, 0, 144) + self.flat(mfO, gO, 0, ROT)
        else:
            head = self.flat(mfE, gE, 0, ROT)
            body = self.flat(mfE, gE, ROT, 144) + self.flat(mfO, gO, 0, 144) + self.flat(mfE, gE, 0, ROT)
        body.append(branch("s_branch", "L_top"))
        head1, st1 = fix(head, st, hoist=True)
        body1, st2 = fix(body, st1, hoist=True, log=log)
        body2, st3 = fix(body1, st2, hoist=True, log=log)
        errs, _ = verify(pro + head1 + body2 + body2 + body2)
        assert not errs, errs[:10]
        kx = next(i for i, x in enumerate(body2) if x.kind == "branch")
        _, stx = verify(pro + head1 + body2 + body2[:kx + 1])
        post = self.stamp() + self.tail(exit_tail)
        post, _ = fix(post, stx, hoist=True)
        errs, _ = verify(pro + head1 + body2[:kx + 1] + post)
        assert not errs, errs[:10]
        if verbose:
            tot, over = estimate(body2)
            print("loop estimate cycles (288 mfma, ideal 4608):", tot)
            for o in over:
                print("  over:", o)
            print("  inserted:", [x for x in log if x[0] == "nop"])
            print("  waits:", len([x for x in log if x[0] == "wait"]), "instrs:", len(body2))
            tot, over = estimate(post)
            print("tail estimate:", tot, "mfma:", sum(x.kind == "mfma" for x in post), "instrs:", len(post))
            print("  over:", [(o[0], o[1]) for o in over])
        self.njit = 0

        def jit(block):
            if not self.jitter:
                return block
            mask, where, amount = self.jitter.split(",")
            out = []
            for x in block:
                if x.kind != "barrier":
                    out.append(x)
                    continue
                self.njit += 1
                lab = f"L_jit{self.njit}"
                nap = [raw("s_cselect_b32 s99, 1, 0"), raw(f"s_lshl_b32 s98, 1, {S_W}"), raw(f"s_and_b32 s98, s98, {mask}"),
                       raw(f"s_cbranch_scc0 {lab}"), raw(f"s_sleep {amount}"), label(lab), raw("s_cmp_lg_u32 s99, 0")]
                out += nap + [x] if where == "b" else [x] + nap
            return out
        text = "  ; prologue: addresses, descriptors, Q staging and scaling, QK of tiles 0 and 1, PV of tile 0\n" + emit(jit(pro + head1))
        text += "  ; main loop: two periods per trip\n.p2align 6\nL_top:\n" + emit(jit(body2))
        text += "  ; last two tiles per group of query blocks, range check, output\nL_drain:\n" + emit(jit(post))
        text += self.stamp_out() + "L_end:\n  s_endpgm\n"
        setup, maxl, mid, main, epi = self.slow_path()
        st = State()
        blocks = []
        for blk, loop in ((setup, False), (maxl, True), (mid, False), (main, True), (epi, False)):
            blk, st = fix(blk, st)
            if loop:
                blk, st = fix(blk, st)
            blocks.append(blk)
        setup, maxl, mid, main, epi = blocks
        errs, _ = verify(post + setup + maxl + maxl + mid + main + main + epi)
        assert not errs, errs[:10]
        text += "  ; fallback: reload Q unscaled\nL_slow:\n" + emit(setup)
        text += "  ; fallback pass 1: true row maximum\nL_slow_max:\n" + emit(maxl) + emit(mid)
        text += "  ; fallback pass 2: P = exp2(c*S - c*max), O += P V\nL_slow_main:\n" + emit(main)
        text += emit(epi) + "  s_endpgm\n"
        return wrap(text, 256, 256, self.lds, 512, 256, extra_comment=DOC)


if __name__ == "__main__":
    ap = argparse.ArgumentParser()
    ap.add_argument("-o", default="k.s")
    ap.add_argument("--stamps", default="")
    ap.add_argument("--ring", type=int, default=5)
    ap.add_argument("--pol", default="nt")
    ap.add_argument("--opol", default="nt")
    ap.add_argument("--abl", default="")
    ap.add_argument("--pref", type=int, default=1)
    ap.add_argument("--qpol", default="nt")
    ap.add_argument("--dist", type=int, default=3)
    ap.add_argument("--dpos", default="s")
    ap.add_argument("--pk", type=int, default=1)
    ap.add_argument("--lat", type=int, default=7)
    ap.add_argument("--jitter", default="")
    ap.add_argument("--ahead", type=int, default=3)
    ap.add_argument("--dot", type=int, default=0)
    ap.add_argument("--early", type=int, default=1)
    ap.add_argument("--eblock", type=int, default=0)
    ap.add_argument("--efrac", type=int, default=80)
    ap.add_argument("--opol2", default="nt")
    ap.add_argument("--olast", type=int, default=4)
    ap.add_argument("--swap", type=int, default=0)
    ap.add_argument("--spread", type=int, default=0)
    ap.add_argument("--remap", type=int, default=1)
    ap.add_argument("--touch", type=int, default=0)
    ap.add_argument("--groups", default="42")
    ap.add_argument("--estep", type=int, default=2)
    ap.add_argument("--espace", type=int, default=9)
    ap.add_argument("--provar", default="45")
    ap.add_argument("-v", action="store_true")
    a = ap.parse_args()
    SPREAD = bool(a.spread)
    g = Gen(ring=a.ring, pol=a.pol, opol=a.opol, stamps=a.stamps, abl=a.abl, provar=a.provar, groups=a.groups, estep=a.estep, espace=a.espace, pref=a.pref, remap=a.remap, touch=a.touch, qpol=a.qpol, dist=a.dist, dpos=a.dpos, pk=a.pk, lat=a.lat, jitter=a.jitter, ahead=a.ahead, dot=a.dot, early=a.early, eblock=a.eblock, efrac=a.efrac, opol2=a.opol2, olast=a.olast, swap=a.swap)
    open(a.o, "w").write(g.build(a.v))
```

```python
import argparse
import math
import struct
from fw import *
from asmlib import wrap

NQB = 6
TILE_G = 12288
TAU = 4192
TILE_L = 3 * TAU
HEAD_Q = 147456
HEAD_KV = 393216

V_KA, V_VA, V_DMA, V_QA = "v0", "v1", "v2", "v3"
L0 = 4
T0, T1 = "v10", "v11"
S0 = 12
P0 = 20
OV0, NOV = 68, 47
QA0 = 0
QBUF = 120
KA0 = 124
VA0 = 148
OA0 = 156
SRD_K, SRD_V, SRD_Q, SRD_O = "s[16:19]", "s[20:23]", "s[24:27]", "s[28:31]"
S_W, S_KOFF, S_VOFF, S_DMA, S_SLOT, S_NEW, S_DELTA, S_CNT, S_C, S_WOFF, S_T = (f"s{i}" for i in range(32, 43))
S_DLIM = "s54"
S_ONE = "s55"
S_DMAV, S_WOFFV, S_W16 = "s96", "s97", "s3"


def f32(x):
    return "0x%08x" % struct.unpack("<I", struct.pack("<f", x))[0]


SPREAD = False


ROT_O = 0


def Oreg(j, db):
    if not SPREAD:
        n = (j + ROT_O) % 6 * 12 + db
        return R("v", OV0 + 4 * n, 4) if n < NOV else R("a", OA0 + 4 * (n - NOV), 4)
    return Oreg2(j, db)


def Oreg2(j, db):
    if db >= 8:
        return R("a", OA0 + 4 * (j * 4 + db - 8), 4)
    n = j * 8 + db
    return R("v", OV0 + 4 * n, 4) if n < NOV else R("a", OA0 + 4 * 24, 4)


def Qreg(j, s):
    return R("a", QA0 + 4 * (j * 5 + s), 4) if s < 5 else R("a", QBUF, 4)


def Kreg(s):
    return R("a", KA0 + 4 * s, 4)


def Preg(par, j):
    return P0 + 24 * par + 4 * j


DOC = """;
; Matrix work is v_mfma_f32_16x16x32_bf16: S^T = K Q^T leaves one query per lane, which is the A-operand layout
;
;
; three tiles ahead, one barrier per period. The last two tiles run per group of query blocks (4, then 2) so
; the first output stores overlap the remaining matrix work. One f32 MFMA per query block adds the partial row
;
;
"""


class Gen:
    def __init__(self, ring=5, pol="nt", opol="", stamps=False, cinit="-4.0", abl="", provar="356", groups="42", estep=2, espace=9, pref=1, remap=1, touch=0, qpol="nt", dist=3, dpos="s", pk=1, lat=7, jitter="", ahead=3, dot=0, early=0, eblock=0, efrac=80, opol2="nt", olast=4, swap=0, lite=0):
        self.lite = lite
        self.swap = swap
        self.opol2, self.olast = opol2, olast
        self.eblock, self.efrac = eblock, efrac
        self.early = early
        self.dot = dot
        self.ahead = ahead
        self.jitter = jitter
        self.lat = lat
        self.pk = pk
        self.dpos = dpos
        self.D = dist
        self.qpol = qpol
        self.remap, self.touch = remap, touch
        self.pref = pref
        self.groups, self.estep, self.espace = [int(c) for c in groups], estep, espace
        self.provar = provar
        self.abl = abl
        self.R = ring
        self.pol, self.opol, self.stamps, self.cinit = pol, opol, stamps, cinit
        self.VBASE = ring * TILE_L
        assert ring == 5
        self.QBASE = (2 * ring + 1) * TILE_L
        self.FLAG = self.QBASE + 24576
        self.lds = self.FLAG + 256
        self.nstamp = 0

    def stamp(self):
        if not self.stamps:
            return []
        r = 64 + 4 * self.nstamp
        self.nstamp += 1
        return [raw(f"s_memtime s[{r}:{r+1}]", "salu"), raw(f"s_memrealtime s[{r+2}:{r+3}]", "salu")]

    def kread(self, kb, s, slot=0):
        return ds_read("ds_read_b128", Kreg(s), V_KA, slot * TILE_L + (s >> 1) * TAU + (s & 1) * 64 + kb * 512)

    def vread(self, db, half, base, slot=0, file="a"):
        return ds_read("ds_read_b64_tr_b16", R(file, base + 2 * half, 2), V_VA,
                       slot * TILE_L + (db >> 2) * TAU + (db & 3) * (16 if self.swap else 32) + half * 512)

    def qread(self, j):
        return ds_read("ds_read_b128", R("a", QBUF, 4), V_QA, j * 1024)

    def dma_pair(self, k, base_sgpr=S_DMA, koff=S_KOFF, voff=S_VOFF, slot_off=0):
        tau = k % 3
        isv = k >= 3
        imm = (self.VBASE if isv else 0) + slot_off + tau * TAU - tau * 128
        if isv and self.swap:
            base_sgpr = {S_DMA: S_DMAV, S_WOFF: S_WOFFV}[base_sgpr]
        return (salu("s_add_u32", "m0", base_sgpr, imm),
                buf_dma(V_DMA, SRD_V if isv else SRD_K, voff if isv else koff, tau * 128, self.pol))

    def softmax_ops(self, n, ppar):
        kb, j = divmod(n % 12, 6)
        s = S0 + 4 * (n % 2)
        p = Preg(ppar, j) + 2 * kb
        e = [valu("v_exp_f32", f"v{s+i}", f"v{s+i}") for i in range(4)]
        a = [valu("v_add_f32", f"v{L0+j}", f"v{s+i}", f"v{L0+j}") for i in range(4)]
        c = [valu("v_cvt_pk_bf16_f32", f"v{p+i}", f"v{s+2*i}", f"v{s+2*i+1}") for i in range(2)]
        return e, a, c

    def dot_ops(self, par, js):
        return [I(f"v_dot2c_f32_bf16 v{L0+j}, {S_ONE}, v{Preg(par, j)+i}", "valu",
                  [S_ONE, f"v{Preg(par, j)+i}", f"v{L0+j}"], [f"v{L0+j}"]) for i in range(4) for j in js]

    def qk(self, n, s):
        j = n % 6
        d = R("v", S0 + 4 * (n % 2), 4)
        return mfma(d, Kreg(s), Qreg(j, s), self.cinit if s == 0 else d)

    def pv(self, db, j, par, vbase, file="a", c=None):
        if self.swap:
            return mfma(Oreg(j, db), R("v", Preg(par, j), 4), R(file, vbase, 4), c or Oreg(j, db))
        if c:
            return mfma(Oreg(j, db), R(file, vbase, 4), R("v", Preg(par, j), 4), c)
        return mfma(Oreg(j, db), R(file, vbase, 4), R("v", Preg(par, j), 4), Oreg(j, db))

    def period(self, par, fill=False):
        N = 144
        sc = [[] for _ in range(N + 12)]
        mem = [[] for _ in range(N + 12)]
        va = [[] for _ in range(N + 12)]
        heavy = lambda n: n % 6 == 5
        for n in range(-1, 12):
            if n == -1 and fill:
                continue
            e, a, c = self.softmax_ops(n, par if n == -1 else 1 - par)
            g = 12 * n
            if heavy(n):
                plan = [(10, e[0]), (11, e[1]), (12, e[2]), (13, e[3]), (14, a[0]), (15, a[1]), (16, c[0]), (16, a[2]),
                        (17, a[3]), (18, c[1])]
            elif heavy(n + 1):
                plan = [(9, e[0]), (10, e[1]), (11, e[2]), (12, e[3]), (13, a[0]), (14, a[1]), (15, c[0]), (16, a[2]),
                        (17, a[3]), (18, c[1])]
            else:
                plan = [(9, e[0]), (10, e[1]), (11, e[2]), (12, e[3]), (13, a[0]), (14, a[1]), (15, c[0]), (16, a[2]),
                        (17, a[3]), (19, c[1])]
            for o, ins in plan:
                if g + o >= 0 and not (self.dot and ins.text.startswith("v_add_f32")):
                    va[g + o].append(ins)
        for n in range(12):
            g = 12 * n
            nv = (n + 1) % 12
            vb = VA0 + 4 * ((n + 1) % 2)
            tpos = (8, 9) if heavy(n) else ((2, 3) if heavy(n - 1) else (1, 2))
            if not fill or n == 11:
                for h in range(2):
                    mem[g + tpos[h]].append(self.vread(nv, h, vb))
            mem[g + (7 if heavy(n) else 5)].append(self.qread((n + 1) % 6))
            if heavy(n):
                for s in range(6):
                    mem[g + 1 + s].append(self.kread(1 if n == 5 else 0, s))
        if not fill:
            pos = {"s": [(1, 6), (2, 6), (3, 6), (4, 6), (7, 6), (8, 6)],
                   "e": [(0, 8), (1, 6), (1, 8), (2, 6), (2, 8), (3, 6)],
                   "m": [(0, 8), (1, 6), (2, 6), (3, 6), (4, 6), (6, 8)],
                   "l": [(4, 6), (6, 8), (7, 6), (7, 8), (8, 6), (8, 8)]}[self.dpos]
            for k, (n, o) in enumerate(pos):
                m, d = self.dma_pair(k)
                sc[12 * n + o - 1].append(m)
                mem[12 * n + o].append(d)
        if self.dot:
            dots = self.dot_ops(par, range(NQB))
            k = len(dots) // self.dot
            for i_, n in enumerate({1: (3,), 2: (2, 8), 3: (2, 4, 8), 6: (1, 2, 3, 7, 8, 9)}[self.dot]):
                va[12 * n + 8] += dots[i_ * k:(i_ + 1) * k]
        g = 12 * 9
        book = [salu("s_add_u32", S_DMA, S_DMA, TILE_L),
                salu("s_cmp_eq_u32", S_DMA, S_DLIM),
                salu("s_cselect_b32", S_DMA, S_WOFF, S_DMA),
                salu("s_add_u32", S_NEW, S_SLOT, TILE_L),
                salu("s_cmp_eq_u32", S_NEW, self.R * TILE_L),
                salu("s_cselect_b32", S_NEW, 0, S_NEW),
                salu("s_sub_u32", S_DELTA, S_NEW, S_SLOT),
                salu("s_mov_b32", S_SLOT, S_NEW),
                salu("s_add_u32", S_KOFF, S_KOFF, TILE_G), salu("s_add_u32", S_VOFF, S_VOFF, TILE_G)]
        for o, ins in zip((0, 1, 2, 3, 6, 7, 8, 9, 10, 11), book):
            sc[g + o].append(ins)
        if self.swap:
            sc[g + 12].append(salu("s_sub_u32", S_DMAV, S_DMA, S_W16))
        g = 12 * 10
        va[g + 6] += [valu("v_add_u32", V_KA, S_DELTA, V_KA), valu("v_add_u32", V_VA, S_DELTA, V_VA)]
        sc[g + 7].append(wait(vm=6 * (self.D - 2), lgkm=1))
        sc[g + 8].append(barrier())
        mf = []
        for n in range(12):
            mf += [self.qk(n, s) for s in range(6)]
            mf += [None if fill else self.pv(n, j, par, VA0 + 4 * (n % 2)) for j in range(6)]
        if not fill and "z" in self.abl:
            for n in range(12):
                for k in range(6):
                    jj = 3 * (n % 2) + k // 2
                    h = ((k + 1) // 2) % 2
                    mf[12 * n + 6 + k] = mfma(Oreg(jj, (n & ~1) + h), R("a", VA0 + 4 * h, 4), R("v", Preg(par, jj), 4), Oreg(jj, (n & ~1) + h))
        if not fill and "s" in self.abl:
            for n in range(12):
                for k in range(6):
                    mf[12 * n + 6 + k] = mfma(Oreg(k, n), R("v", Preg(par, k), 4), R("a", VA0 + 4 * (n % 2), 4), Oreg(k, n))
        if not fill and self.abl:
            def keep(x):
                t = x.text
                if "e" in self.abl and t.startswith("v_exp"): return False
                if "a" in self.abl and t.startswith("v_add_f32"): return False
                if "c" in self.abl and t.startswith("v_cvt"): return False
                if "k" in self.abl and x.kind == "lds_rd" and V_KA in x.rd: return False
                if "v" in self.abl and x.kind == "lds_rd" and V_VA in x.rd: return False
                if "q" in self.abl and x.kind == "lds_rd" and V_QA in x.rd: return False
                if "d" in self.abl and x.kind == "dma": return False
                if "b" in self.abl and x.kind == "barrier": return False
                return True
            mem = [[x for x in g_ if keep(x)] for g_ in mem]
            va = [[x for x in g_ if keep(x)] for g_ in va]
            sc = [[x for x in g_ if keep(x)] for g_ in sc]
            if "c" in self.abl:
                mf = [m if (i % 12) < 6 else self.pv(i // 12, i % 12 - 6, 0, VA0 + 4 * ((i // 12) % 2)) for i, m in enumerate(mf)]
        gaps = [sc[i] + mem[i] + va[i] for i in range(N)]
        tail = [x for i in range(N, N + 12) for x in va[i]]
        return mf, gaps, tail

    @staticmethod
    def flat(mf, gaps, lo, hi):
        out = []
        for i in range(lo, hi):
            if mf[i] is not None:
                out.append(mf[i])
            out += gaps[i]
        return out

    def addr_setup(self, lane, w):
        b = [valu("v_lshrrev_b32", "v6", 4, lane), valu("v_lshlrev_b32", "v6", 3, "v6"),
             valu("v_bfe_u32", "v7", lane, 3, 1), valu("v_add_u32", "v6", "v6", "v7"),
             valu("v_lshl_add_u32", "v6", w, 1, "v6"), valu("v_mul_u32_u24", "v6", 384, "v6"),
             valu("v_and_b32", "v7", 7, lane), valu("v_lshl_add_u32", V_DMA, "v7", 4, "v6")]

        def lds_row(dst, key, pitch=1056):
            return [valu("v_bfe_u32", "v8", key, 1, 2), valu("v_mul_u32_u24", "v8", pitch, "v8"),
                    valu("v_lshrrev_b32", "v9", 3, key), valu("v_lshlrev_b32", "v9", 1, "v9"),
                    valu("v_and_b32", dst, 1, key), valu("v_add_u32", "v9", "v9", dst),
                    valu("v_lshl_add_u32", dst, "v9", 7, "v8")]
        b += [valu("v_and_b32", "v6", 15, lane), valu("v_lshrrev_b32", "v7", 4, lane)]
        b += lds_row(V_KA, "v6") + [valu("v_lshl_add_u32", V_KA, "v7", 4, V_KA)]
        b += [valu("v_lshrrev_b32", "v6", 2, lane)] + lds_row(V_VA, "v6", 1040 if self.swap else 1056)
        if self.swap:
            b += [valu("v_and_b32", "v6", 1, lane), valu("v_lshl_add_u32", V_VA, "v6", 3, V_VA),
                  valu("v_bfe_u32", "v6", lane, 1, 1), valu("v_lshl_add_u32", V_VA, "v6", 6, V_VA)]
        else:
            b += [valu("v_and_b32", "v6", 3, lane), valu("v_lshl_add_u32", V_VA, "v6", 3, V_VA)]
        b += [valu("v_add_u32", V_VA, self.VBASE, V_VA)]
        return b

    def slow_path(self):
        M = ["v16", "v17", "v18", "v19", T0, T1]
        S = S0
        SD = R("v", S, 4)
        QL = Preg(1, 0)
        lane, w, vq = "v4", "v5", V_QA

        def qreg(j, s):
            return Qreg(j, s) if s < 5 else R("v", QL + 4 * j, 4)
        setup = [wait(vm=0, lgkm=0), barrier(),
                 raw(f"v_mbcnt_lo_u32_b32 {lane}, -1, 0", "valu", [], [lane]),
                 raw(f"v_mbcnt_hi_u32_b32 {lane}, -1, {lane}", "valu", [lane], [lane]),
                 valu("v_mov_b32", w, S_W)]
        setup += self.addr_setup(lane, w)
        setup += [valu("v_mul_u32_u24", vq, 96, w), valu("v_and_b32", "v6", 15, lane), valu("v_add_u32", vq, vq, "v6"),
                  valu("v_mul_u32_u24", vq, 384, vq), valu("v_lshl_add_u32", vq, "v7", 4, vq)]
        for j in range(NQB):
            setup.append(salu("s_mov_b32", S_T, j * 16 * 384))
            setup += [buf_load(qreg(j, s), vq, SRD_Q, S_T, s * 64) for s in range(6)]
        setup += [wait(vm=0)]
        setup += [valu("v_mov_b32", m, "0xff800000") for m in M]
        setup += [salu("s_mov_b32", S_KOFF, 0)]

        def load(with_v):
            o = []
            for k in range(6 if with_v else 3):
                o += list(self.dma_pair(k, S_WOFF, S_KOFF, S_KOFF))
            return o + [wait(vm=0), barrier()]

        def chain(j):
            return [mfma(SD, Kreg(s), qreg(j, s), "0" if s == 0 else SD) for s in range(6)]

        def close(name):
            return [wait(lgkm=0), barrier(), salu("s_add_u32", S_KOFF, S_KOFF, TILE_G),
                    salu("s_cmp_lt_u32", S_KOFF, HEAD_KV), branch("s_cbranch_scc1", name)]
        maxl = load(False)
        for kb in range(2):
            maxl += [self.kread(kb, s) for s in range(6)]
            for j in range(NQB):
                maxl += chain(j) + [valu("v_max3_f32", M[j], M[j], f"v{S}", f"v{S+1}"),
                                    valu("v_max3_f32", M[j], M[j], f"v{S+2}", f"v{S+3}")]
        maxl += close("L_slow_max")
        mid = []
        for m in M:
            for op in ("v_permlane32_swap_b32", "v_permlane16_swap_b32"):
                mid += [valu("v_mov_b32", vq, m), valu(op, m, vq), valu("v_max_f32", m, m, vq)]
        mid += [valu("v_mul_f32", m, S_C, m) for m in M]
        mid += [valu("v_accvgpr_write_b32", f"a{r}", 0) for r in range(OA0, 256)]
        mid += [valu("v_mov_b32", f"v{r}", 0) for r in list(range(OV0, 256)) + list(range(L0, L0 + 6))]
        mid += [salu("s_mov_b32", S_KOFF, 0)]
        main = load(True)
        for kb in range(2):
            main += [self.kread(kb, s) for s in range(6)]
            for j in range(NQB):
                p = Preg(0, j) + 2 * kb
                main += chain(j)
                main += [valu("v_fma_f32", f"v{S+i}", f"v{S+i}", S_C, "-" + M[j]) for i in range(4)]
                main += [valu("v_exp_f32", f"v{S+i}", f"v{S+i}") for i in range(4)]
                main += [valu("v_add_f32", f"v{L0+j}", f"v{S+i}", f"v{L0+j}") for i in range(4)]
                main += [valu("v_cvt_pk_bf16_f32", f"v{p+i}", f"v{S+2*i}", f"v{S+2*i+1}") for i in range(2)]
        for db in range(12):
            vb = VA0 + 4 * (db % 2)
            main += [self.vread(db, h, vb) for h in range(2)]
            main += [self.pv(db, j, 0, vb) for j in range(NQB)]
        main += close("L_slow_main")
        return setup, maxl, mid, main, self.epilogue_plain()

    def prologue(self):
        b = []
        b += [salu("s_cmp_ge_u32", "s2", 256), branch("s_cbranch_scc1", "L_end"),
              raw("s_load_dwordx4 s[4:7], s[0:1], 0", "smem"), raw("s_load_dwordx4 s[8:11], s[0:1], 16", "smem")]
        if self.stamps:
            b += [raw("s_load_dwordx4 s[12:15], s[0:1], 32", "smem"),
                  raw("s_memrealtime s[56:57]"), raw("s_memtime s[58:59]")]
        lane, w = "v4", "v5"
        b += [valu("v_and_b32", lane, 63, "v0"), valu("v_lshrrev_b32", w, 6, "v0"),
              valu("v_readfirstlane_b32", S_W, w)]
        if self.pref:
            b += [raw("s_getpc_b64 s[50:51]", "salu", [], ["s50", "s51"]), label("L_pc"),
                  salu("s_lshr_b32", S_T, "s2", 3), salu("s_lshl_b32", S_T, S_T, 2), salu("s_add_u32", S_T, S_T, S_W),
                  salu("s_min_u32", S_T, S_T, "(L_end-L_pc)/1024"), salu("s_lshl_b32", S_T, S_T, 10),
                  valu("v_lshl_add_u32", "v6", lane, 4, S_T),
                  I(f"global_load_dwordx4 v[{OV0}:{OV0+3}], v6, s[50:51]", "vm_ld", ["v6", "s50", "s51"], regs("v", OV0, 4))]
        b += self.addr_setup(lane, w)
        g = "v7"
        b += [valu("v_mul_u32_u24", V_QA, 6144, w), valu("v_lshl_add_u32", V_QA, lane, 4, V_QA),
              valu("v_add_u32", V_QA, self.QBASE, V_QA)]
        for i_ in range(3):
            d = f"v{OV0+80+i_}"
            b += [valu("v_add_u32", d, 64 * i_, lane), valu("v_mul_u32_u24", "v6", 2731, d),
                  valu("v_lshrrev_b32", "v6", 16, "v6"), valu("v_and_b32", "v6", 6, "v6"),
                  valu("v_xor_b32", d, d, "v6"), valu("v_lshlrev_b32", d, 4, d)]
        b += [valu("v_and_b32", "v6", 15, lane), valu("v_and_b32", "v8", 6, lane), valu("v_xor_b32", "v8", "v8", g),
              valu("v_mul_u32_u24", "v6", 384, "v6"), valu("v_lshl_add_u32", f"v{OV0+83}", "v8", 4, "v6"),
              valu("v_xor_b32", f"v{OV0+84}", 64, f"v{OV0+83}")]
        head = "s2"
        if self.remap:
            head = "s3"
            b += [salu("s_and_b32", head, "s2", 7), salu("s_lshl_b32", head, head, 5),
                  salu("s_lshr_b32", S_T, "s2", 3), salu("s_add_u32", head, head, S_T)]
        S_SA, S_SB = "s43", "s44"
        VQ = [f"v{OV0+80+i_}" for i_ in range(3)]
        b += [salu("s_mul_i32", S_KOFF, head, HEAD_KV), salu("s_mul_i32", S_VOFF, head, HEAD_Q),
              salu("s_mov_b32", "s18", HEAD_KV), salu("s_mov_b32", "s19", "0x20000"),
              salu("s_mov_b32", "s26", HEAD_Q), salu("s_mov_b32", "s27", "0x20000"),
              salu("s_mul_i32", S_WOFF, S_W, 1056),
              salu("s_lshr_b32", S_T, S_W, 1), salu("s_mul_i32", S_T, S_T, 3), salu("s_add_u32", S_T, S_T, S_W),
              salu("s_add_u32", S_T, S_T, 2), salu("s_mul_i32", S_SB, S_T, TILE_L),
              salu("s_add_u32", S_SA, S_SB, 2 * TILE_L), salu("s_mul_i32", S_T, S_W, 36864)]
        b += [valu("v_add_u32", VQ[i_], S_T, VQ[i_]) for i_ in range(3)]
        b += [raw("s_waitcnt lgkmcnt(0)", "salu")]
        b += [salu("s_add_u32", "s16", "s6", S_KOFF), salu("s_addc_u32", "s17", "s7", 0),
              salu("s_add_u32", "s24", "s4", S_VOFF), salu("s_addc_u32", "s25", "s5", 0)]
        late = [salu("s_add_u32", "s20", "s8", S_KOFF), salu("s_addc_u32", "s21", "s9", 0),
                salu("s_mov_b32", "s22", HEAD_KV), salu("s_mov_b32", "s23", "0x20000"),
                salu("s_add_u32", "s28", "s10", S_VOFF), salu("s_addc_u32", "s29", "s11", 0),
                salu("s_mov_b32", "s30", HEAD_Q), salu("s_mov_b32", "s31", "0x20000"),
                salu("s_mov_b32", S_C, f32(math.log2(math.e) / math.sqrt(192.0))),
                salu("s_mov_b32", S_CNT, 14)]
        if self.dot:
            late += [salu("s_mov_b32", S_ONE, "0x3f803f80")]
        if self.swap:
            late += [salu("s_lshl_b32", S_W16, S_W, 4), salu("s_sub_u32", S_WOFFV, S_WOFF, S_W16)]

        def group(ktile, vtile):
            o = []
            for k in range(6):
                tile = vtile if k >= 3 else ktile
                if tile is None:
                    continue
                slot = (tile + 1) % self.R if k >= 3 else tile % self.R
                if k % 3 == 0:
                    o.append(salu("s_mov_b32", S_T, tile * TILE_G))
                o += list(self.dma_pair(k, S_WOFF, S_T, S_T, slot * TILE_L))
            return o
        RAW = OV0
        LO = OV0 + 48
        Q5 = OV0 + 72
        VR = [f"v{OV0+83+i_}" for i_ in range(2)]
        LAST = OV0 + 96
        ZERO = "a[252:255]"
        CV = T0
        KB = Preg(1, 0)

        def ubase(u):
            return (S_SB if u in (2, 3) else S_SA), (u & 1) * 6144

        def qunit(u):
            sb, off = ubase(u)
            o = []
            for i_ in range(3):
                o += [salu("s_add_u32", "m0", sb, off + i_ * 1024)]
                o += [salu("s_mov_b32", S_T, u * 6144)] if i_ == 0 else [nop(0)]
                o += [buf_dma(VQ[i_], SRD_Q, S_T, h * 3072, self.qpol) for h in range(2)]
            return o

        def qraw(u):
            sb, off = ubase(u)
            o = [valu("v_add_u32", T0, sb, VR[0]), valu("v_add_u32", T1, sb, VR[1])]
            for s_ in range(6):
                o.append(ds_read("ds_read_b128", R("v", RAW + 4 * ((u % 2) * 6 + s_), 4), (T0, T1)[s_ & 1],
                                 off + (s_ >> 1) * 128))
            return o

        def unpack(j):
            r0 = RAW + 24 * (j % 2)
            o = []
            for i_ in range(24):
                o += [valu("v_lshlrev_b32", f"v{LO+i_}", 16, f"v{r0+i_}"),
                      valu("v_and_b32", f"v{r0+i_}", "0xffff0000", f"v{r0+i_}")]
            return o

        def scale(j):
            o = []
            for base in (LO, RAW + 24 * (j % 2)):
                o += [I(f"v_pk_mul_f32 {R('v', base+2*i_, 2)}, {R('v', base+2*i_, 2)}, s[52:53]", "valu",
                        regs("v", base + 2 * i_, 2) + ["s52", "s53"], regs("v", base + 2 * i_, 2)) for i_ in range(12)]
            return o

        def pack(j):
            o = []
            for s_ in range(6):
                r0 = RAW + 24 * (j % 2) + 4 * s_
                dst = r0 if s_ < 5 else Q5 + 4 * (j % 2)
                o += [valu("v_cvt_pk_bf16_f32", f"v{dst+i_}", f"v{LO+4*s_+i_}", f"v{r0+i_}") for i_ in range(4)]
                if s_ < 5:
                    o += [valu("v_accvgpr_write_b32", f"a{QA0+4*(j*5+s_)+i_}", f"v{dst+i_}") for i_ in range(4)]
                else:
                    o.append(ds_write("ds_write_b128", V_QA, R("v", dst, 4), j * 1024))
            return o

        def clear(file, lo, hi):
            o = []
            while hi - lo >= 16:
                o.append(mfma32(R(file, lo, 16), ZERO, ZERO, "0"))
                lo += 16
            while lo < hi:
                o.append(mfma(R(file, lo, 4), ZERO, ZERO, "0"))
                lo += 4
            return o

        def chains(j):
            o = []
            for kb in range(2):
                d = R("v", S0 + 4 * kb, 4)
                for s_ in range(6):
                    a_ = Kreg(s_) if kb == 0 else R("v", KB + 4 * s_, 4)
                    q_ = Qreg(j, s_) if s_ < 5 else R("v", Q5 + 4 * (j % 2), 4)
                    o.append(mfma(d, a_, q_, self.cinit if s_ == 0 else d))
            return o

        def soft(j, kb):
            sreg = S0 + 4 * kb
            p = Preg(0, j) + 2 * kb
            e = [valu("v_exp_f32", f"v{sreg+i_}", f"v{sreg+i_}") for i_ in range(4)]
            a_ = [valu("v_add_f32", f"v{L0+j}", f"v{sreg+i_}", f"v{L0+j}") for i_ in range(4)]
            c = [valu("v_cvt_pk_bf16_f32", f"v{p+i_}", f"v{sreg+2*i_}", f"v{sreg+2*i_+1}") for i_ in range(2)]
            return e + ([] if self.dot else a_) + c

        def weave(ms, ops, per=2):
            o = []
            ops = list(ops)
            for m in ms:
                o.append(m)
                o += ops[:per]
                ops = ops[per:]
            return o, ops

        plan = [int(c) for c in self.provar]
        queue = []

        def issue(name, ops):
            queue.append((name, sum(1 for x in ops if x.kind == "dma")))
            return ops

        def landed(name, **kw):
            k = [n for n, _ in queue].index(name)
            return wait(vm=sum(c for _, c in queue[k + 1:]), **kw)

        def extras(u):
            o = []
            if plan[0] == u:
                o += issue("KV0", group(1, 0))
            if plan[1] == u:
                o += issue("G4", group(2, 1))
            if plan[2] == u and self.D >= 4:
                o += issue("G3", group(3, 2))
            return o

        if self.early:
            return b + self.early_start(locals())
        b += issue("K0", group(0, None)) + issue("U0", qunit(0)) + issue("U1", qunit(1))
        b += late + [salu("s_mov_b32", "s52", S_C), salu("s_mov_b32", "s53", S_C)]
        b += [valu("v_accvgpr_write_b32", f"a{r}", 0) for r in range(252, 256)]
        b += [valu("v_mov_b32", f"v{r}", 0) for r in range(L0, L0 + 6)]
        b += [valu("v_mov_b32", "v14", self.FLAG), valu("v_mov_b32", "v15", 0), ds_write("ds_write_b32", "v14", "v15", 0)]
        b += clear("a", OA0, 252) + clear("v", LAST, 256)
        A = self.ahead
        for u in range(2, A):
            b += issue(f"U{u}", qunit(u))
        b += [landed("U0")] + qraw(0) + [barrier()]
        b += [self.kread(0, s_) for s_ in range(6)]
        b += [ds_read("ds_read_b128", R("v", KB + 4 * s_, 4), V_KA, (s_ >> 1) * TAU + (s_ & 1) * 64 + 512) for s_ in range(6)]
        b += issue(f"U{A}", qunit(A))
        b += unpack(0) + scale(0) + pack(0)
        for u in range(1, 6):
            b += self.stamp() if self.touch == 2 and u in (1, 2, 4) else []
            b += [landed(f"U{u}")] + (self.stamp() if (self.touch == 1 and u >= 4) or (self.touch == 2 and u in (1, 2, 4)) else []) + qraw(u)
            if u == 3:
                b += [wait(lgkm=0), barrier()]
            ex = (issue(f"U{u+A}", qunit(u + A)) if u + A < 6 else []) + extras(u)
            sa, sb = soft(u - 1, 0), soft(u - 1, 1)
            b += sched(chains(u - 1), [[Op(x) for x in ex], [Op(x, 4) for x in unpack(u)]])
            b += sa[:4] + sb[:4] + scale(u) + sa[4:] + sb[4:]
            pk_ = pack(u)
            if u == 5:
                z = clear("v", RAW, RAW + 16) + clear("v", OV0 + 80, LAST)
                pk_ = pk_[:8] + z[:1] + pk_[8:16] + z[1:] + pk_[16:]
            b += pk_
        b += [valu("v_add_u32", V_KA, TILE_L, V_KA), valu("v_add_u32", V_VA, TILE_L, V_VA),
              salu("s_mov_b32", S_SLOT, TILE_L), salu("s_add_u32", S_DMA, S_WOFF, (self.D % 5) * TILE_L),
              salu("s_add_u32", S_DLIM, S_WOFF, self.R * TILE_L),
              salu("s_mov_b32", S_KOFF, self.D * TILE_G), salu("s_mov_b32", S_VOFF, (self.D - 1) * TILE_G)]
        st_ = self.stamp if self.touch == 1 else list
        b += st_() + [landed("KV0", lgkm=0)] + st_() + [barrier()]
        ch = chains(5)
        for s_ in range(6):
            b += [ch[s_], self.kread(0, s_)]
        b += [ch[6], self.qread(0), ch[7], self.vread(0, 0, VA0), ch[8], self.vread(0, 1, VA0)] + ch[9:]
        z = clear("v", RAW + 16, OV0 + 80)
        sa = soft(5, 0)
        rest = extras(6) + (group(4, 3) if self.D == 5 else [])
        b += [z[0]] + sa[:3] + [z[1]] + sa[3:5] + [z[2]] + sa[5:] + rest + [z[3]] + soft(5, 1)[:2]
        return b

    def early_start(self, c):
        group, qunit, qraw, unpack, scale, pack = (c[k] for k in ("group", "qunit", "qraw", "unpack", "scale", "pack"))
        issue, landed, late, Q5 = c["issue"], c["landed"], c["late"], c["Q5"]
        assert self.D == 3
        S2 = OV0 + 88
        KT = OV0 + 96
        plan = [int(x) for x in self.provar]

        def kreg(tile, kb, s):
            return Kreg(s) if (tile, kb) == (0, 0) else R("v", KT + 24 * (2 * tile + kb - 1) + 4 * s, 4)

        def sreg(tile, kb):
            return (S2 if tile == 0 else S0) + 4 * kb

        def chains(j):
            o = []
            for tile in range(2):
                for kb in range(2):
                    d = R("v", sreg(tile, kb), 4)
                    for s in range(6):
                        q_ = Qreg(j, s) if s < 5 else R("v", Q5 + 4 * (j % 2), 4)
                        o.append(mfma(d, kreg(tile, kb, s), q_, self.cinit if s == 0 else d))
            return o

        def soft(j, tile, kb):
            r, p = sreg(tile, kb), Preg(tile, j) + 2 * kb
            e = [valu("v_exp_f32", f"v{r+i}", f"v{r+i}") for i in range(4)]
            a = [valu("v_add_f32", f"v{L0+j}", f"v{r+i}", f"v{L0+j}") for i in range(4)]
            cv = [valu("v_cvt_pk_bf16_f32", f"v{p+i}", f"v{r+2*i}", f"v{r+2*i+1}") for i in range(2)]
            return e + [cv[0], a[0], cv[1], a[1], a[2], a[3]]

        def extras(u):
            o = []
            if plan[0] == u:
                o += issue("V0", group(None, 0))
            if plan[1] == u:
                o += issue("G2", group(2, 1))
            return o
        A = self.ahead
        b = issue("K0", group(0, None)) + issue("K1", group(1, None)) + issue("U0", qunit(0))
        b += late + [salu("s_mov_b32", "s52", S_C), salu("s_mov_b32", "s53", S_C)]
        b += [valu("v_mov_b32", f"v{r}", 0) for r in range(L0, L0 + 6)]
        b += [valu("v_mov_b32", "v14", self.FLAG), valu("v_mov_b32", "v15", 0), ds_write("ds_write_b32", "v14", "v15", 0)]
        for u in range(1, A):
            b += issue(f"U{u}", qunit(u))
        b += [landed("U0")] + qraw(0) + [barrier()]
        for tile in range(2):
            for kb in range(2):
                b += [ds_read("ds_read_b128", kreg(tile, kb, s), V_KA,
                              tile * TILE_L + (s >> 1) * TAU + (s & 1) * 64 + kb * 512) for s in range(6)]
        b += extras(0)
        if A < 4:
            b += issue(f"U{A}", qunit(A)) + unpack(0)
        else:
            b += unpack(0) + issue("U4", qunit(4))
        b += scale(0) + pack(0)
        for u in range(1, 6):
            b += (self.stamp() if self.touch == 3 and u == 5 else []) + [landed(f"U{u}")]
            b += (self.stamp() if self.touch == 3 and u == 5 else []) + qraw(u)
            if u == 3:
                b += [landed("V0", lgkm=0) if self.lite >= 2 else wait(lgkm=0), barrier()]
            ex = extras(u) if self.lite >= 2 else []
            ex += issue(f"U{u+A}", qunit(u + A)) if u + A < 6 and A < 4 else []
            ex += extras(u) if self.lite < 2 else []
            sm = [Op(x, 8) for x in soft(u - 1, 0, 0)] + [Op(x, 14) for x in soft(u - 1, 0, 1)]
            sa, sb = soft(u - 1, 1, 0), soft(u - 1, 1, 1)
            mf, vst = chains(u - 1), []
            if u == 3 and self.lite >= 2:
                vb2 = [VA0, VA0 + 4, QBUF]
                for db in range(12):
                    lo = 24 + 2 * (db - 3) + 1 if db >= 3 else 8
                    vst += [Op(self.vread(db, h_, vb2[db % 3], 1), lo, max(lo, 24 + 2 * db - 4)) for h_ in range(2)]
                    mf += [self.pv(db, j, 0, vb2[db % 3], c="0") for j in range(2)]
            b += sched(mf, [[Op(x) for x in ex], sm, [Op(x, 4) for x in unpack(u)], vst])
            if A == 4 and u == 1:
                b += issue("U5", qunit(5))
            b += sa[:4] + sb[:4] + scale(u) + sa[4:] + sb[4:] + pack(u)
        b += [valu("v_add_u32", V_KA, 2 * TILE_L, V_KA), valu("v_add_u32", V_VA, TILE_L, V_VA),
              salu("s_mov_b32", S_SLOT, 2 * TILE_L), salu("s_add_u32", S_DMA, S_WOFF, 4 * TILE_L),
              salu("s_add_u32", S_DLIM, S_WOFF, self.R * TILE_L),
              salu("s_mov_b32", S_KOFF, 4 * TILE_G), salu("s_mov_b32", S_VOFF, 3 * TILE_G)]
        if self.swap:
            b += [salu("s_sub_u32", S_DMAV, S_DMA, S_W16)]
        b += (self.stamp() if self.touch == 3 else []) + [landed("V0", lgkm=0), barrier()] + (self.stamp() if self.touch == 3 else [])
        vb = lambda i: KA0 + 4 * (i % 4) if i < 8 else VA0 + 4 * (i % 2)
        mf = chains(5)
        g0 = len(mf)
        jl = list(range(2 if self.lite >= 2 else 0, NQB))
        W = len(jl)
        for db in range(12):
            mf += [self.pv(db, j, 0, vb(db), c="0") for j in jl]
        sm = [Op(x, 8, g0 - 2) for x in soft(5, 0, 0)] + [Op(x, 14, g0 + W - 4) for x in soft(5, 0, 1)]
        sm += [Op(x, 20) for x in soft(5, 1, 0)] + [Op(x, 27) for x in soft(5, 1, 1)[:2]]
        vst = []
        for db in range(12):
            lo = 6 if db < 4 else (g0 + W * (db - 3) - 1 if db < 8 else (g0 + 8 if db < 10 else g0 + W * (db - 1) - 1))
            vst += [Op(self.vread(db, h, vb(db)), lo, max(lo, g0 + W * db - 6)) for h in range(2)]
        ex = extras(6) + issue("G3", group(3, 2))
        sync = g0 + W * 8
        last = [Op(x, sync - 2, sync - 2) for x in (self.stamp() if self.touch == 3 else [])]
        last += [Op(landed("G2"), sync - 1, sync - 1), Op(barrier(), sync, sync)]
        last += [Op(x, sync + 1, sync + 1) for x in (self.stamp() if self.touch == 3 else [])]
        last += [Op(self.kread(0, s), sync + 1) for s in range(6)] + [Op(self.qread(0), sync + 1)]
        last += [Op(self.vread(0, h, VA0, 1), g0 + W * 11 - 1) for h in range(2)]
        last += [Op(valu("v_add_u32", V_VA, TILE_L, V_VA), g0 + W * 11 - 1)]
        b += sched(mf, [sm, vst, [Op(x, g0 + 2, sync - 2) for x in ex], last])
        return b

    def group_tail(self, js, bufs, first, carry=(), extra=(), fin=(), side=()):
        n = len(js)
        LAT = self.lat
        mf, cstart, gstart = [], [], []
        v = 0
        for c in range(4 * n):
            ph, k = divmod(c, 2 * n)
            jj = js[c % n]
            d = R("v", S0 + 4 * (c % 2), 4)
            cstart.append(len(mf))
            mf += [mfma(d, Kreg(s), Qreg(jj, s), self.cinit if s == 0 else d) for s in range(6)]
            upto = 12 * ph + (k + 1) * 12 // (2 * n)
            if ph == 1 and k < 2 * n - 1:
                upto -= (4 + n - 1) // n * (k + 1) // (2 * n - 1)
            if c == 4 * n - 1:
                upto = 36
            while v < upto:
                gstart.append(len(mf))
                f_, b_ = bufs[v % len(bufs)]
                mf += [self.pv(v % 12, x, (1, 0, 1)[v // 12], b_, f_) for x in js]
                v += 1
        sm = [Op(x, 0, cstart[1] - 1) for x in carry]
        dots = [Op(x, gstart[1], gstart[1]) for x in self.dot_ops(1, js)] if self.dot else []
        for c in range(4 * n):
            ph, kb, jj = c // (2 * n), (c // n) % 2, js[c % n]
            sreg = S0 + 4 * (c % 2)
            p = Preg(ph, jj) + 2 * kb
            hi = gstart[12 * (ph + 1)] + js.index(jj) - 2
            if c + 2 < 4 * n:
                hi = min(hi, cstart[c + 2] - 1)
            e = [valu("v_exp_f32", f"v{sreg+i}", f"v{sreg+i}") for i in range(4)]
            a = [valu("v_add_f32", f"v{L0+jj}", f"v{sreg+i}", f"v{L0+jj}") for i in range(4)]
            cv = [valu("v_cvt_pk_bf16_f32", f"v{p+i}", f"v{sreg+2*i}", f"v{sreg+2*i+1}") for i in range(2)]
            lo = cstart[c] + 5 + 3
            for k, x in enumerate(e + [cv[0], a[0], cv[1], a[1], a[2], a[3]]):
                last = c + 2 < 4 * n
                h = hi - (9 - k) // 2 if (last or k < 7) else 10 ** 9
                sm.append(Op(x, lo, max(h, lo)))
        lo = gstart[24] + n
        for x in fin:
            sm.append(Op(x, lo))
            if x.kind == "mfma" and x is [y for y in fin if y.kind == "mfma"][-1]:
                lo = gstart[24] + n + 8
        sync_gap = cstart[n] + 2 if first else -1
        sync, sync2 = [], sync_gap
        if first and self.D == 3:
            for k in range(3, 6):
                m_, d_ = self.dma_pair(k)
                sync += [Op(m_, 2 * k - 5, 2 * k - 5), Op(d_, 2 * k - 4, 2 * k - 4)]
            sync2 = gstart[24 - len(bufs)] - 2
            sync += [Op(wait(vm=3), sync_gap - 1, sync_gap - 1), Op(barrier(), sync_gap, sync_gap),
                     Op(wait(vm=0), sync2 - 1, sync2 - 1), Op(barrier(), sync2, sync2)]
        elif first:
            sync = [Op(wait(vm=0), sync_gap - 1, sync_gap - 1), Op(barrier(), sync_gap, sync_gap)]
        kst = []
        for st_ in range(1, 4):
            for s in range(6):
                lo = max(cstart[st_ * n - 1] + s, sync_gap + 1 if st_ == 2 else 0)
                kst.append(Op(self.kread(st_ % 2, s, st_ // 2), lo, max(cstart[st_ * n] + s - LAT, lo)))
        qst = [Op(self.qread(js[c % n]), cstart[c - 1] + 5, cstart[c] + 5 - LAT) for c in range(1, 4 * n)]
        vst = []
        pre = []
        for v in range(36):
            f_, b_ = bufs[v % len(bufs)]
            rd = [self.vread(v % 12, h, b_, v // 12, f_) for h in range(2)]
            if v == 0 and first:
                continue
            if v < len(bufs) and not first:
                pre += rd
                continue
            lo = gstart[v - len(bufs)] + n - 1 if v >= len(bufs) else 0
            if v >= 12:
                lo = max(lo, (sync2 if v >= 24 else sync_gap) + 1)
            vst += [Op(x, lo, max(gstart[v] - LAT, lo)) for x in rd]
        if not first:
            pre = [self.kread(0, s) for s in range(6)] + [self.qread(js[0])] + pre
        return pre, sched(mf, [sm, kst, qst, vst, sync, list(extra), dots, [Op(x, gstart[24]) for x in side]])

    def row_sums(self, js, t0):
        b = []
        for op in ("v_permlane32_swap_b32", "v_permlane16_swap_b32"):
            b += [valu("v_mov_b32", f"v{t0+k}", f"v{L0+j}") for k, j in enumerate(js)]
            b += [valu(op, f"v{L0+j}", f"v{t0+k}") for k, j in enumerate(js)]
            b += [valu("v_add_f32", f"v{L0+j}", f"v{L0+j}", f"v{t0+k}") for k, j in enumerate(js)]
        return b

    def range_check(self, js, first):
        b = []
        if first:
            b += [salu("s_mov_b32", S_NEW, f32(2.0 ** 12)), salu("s_mov_b32", S_DELTA, f32(2.0 ** -20)),
                  salu("s_mov_b64", "s[44:45]", 0)]
        for j in js:
            b += [valu("v_cmp_nge_f32", "s[46:47]", S_NEW, f"v{L0+j}"), valu("v_cmp_nle_f32", "s[48:49]", S_DELTA, f"v{L0+j}")]
            b += [salu("s_or_b64", "s[44:45]", "s[44:45]", "s[46:47]"), salu("s_or_b64", "s[44:45]", "s[44:45]", "s[48:49]")]
        return b

    EW = [f"v{P0+i}" for i in range(4)]
    ER = [f"v{P0+4+i}" for i in range(3)]
    EG = f"v{P0+7}"

    def epi_addr_swap(self):
        lane, t = T0, T1
        ew, er, eg = (f"v{P0+i}" for i in range(3))
        b = [raw(f"v_mbcnt_lo_u32_b32 {lane}, -1, 0", "valu", [], [lane]),
             raw(f"v_mbcnt_hi_u32_b32 {lane}, -1, {lane}", "valu", [lane], [lane]),
             salu("s_lshr_b32", S_T, S_W, 1), salu("s_mul_i32", S_T, S_T, 6 * TILE_L),
             salu("s_and_b32", S_SLOT, S_W, 1), salu("s_mul_i32", S_SLOT, S_SLOT, 12288),
             salu("s_add_u32", S_T, S_T, S_SLOT), salu("s_add_u32", S_T, S_T, (2 * TILE_L + 127) // 128 * 128),
             salu("s_and_b32", S_T, S_T, "0xffffff80"),
             valu("v_and_b32", t, 48, lane), valu("v_mul_u32_u24", ew, 96, t), valu("v_lshl_add_u32", er, t, 4, S_T),
             valu("v_and_b32", t, 7, lane), valu("v_lshl_add_u32", ew, t, 4, ew),
             valu("v_and_b32", t, 8, lane), valu("v_add3_u32", ew, ew, t, S_T),
             valu("v_and_b32", t, 28, lane), valu("v_lshl_add_u32", er, t, 2, er),
             valu("v_and_b32", t, 2, lane), valu("v_lshl_add_u32", er, t, 6, er),
             valu("v_and_b32", t, 1, lane), valu("v_lshl_add_u32", er, t, 3, er),
             salu("s_mul_i32", S_T, S_W, 36864), valu("v_lshl_add_u32", eg, lane, 4, S_T)]
        return b

    @staticmethod
    def inv_reg(j):
        return S0 if j == 3 else P0 + 4 + 4 * (j % 4)

    VMAX, VMIN = V_DMA, f"v{P0+3}"

    def inv_rows(self, js, check=None):
        one = f"v{S0+4}"
        b = [valu("v_mov_b32", one, "1.0")]
        if check == "first":
            b += [valu("v_mov_b32", self.VMAX, 0), valu("v_mov_b32", self.VMIN, -1)]
        b += [mfma_f32(R("v", self.inv_reg(j), 4), f"v{L0+j}", one, "0") for j in js]
        for j in js:
            r = self.inv_reg(j)
            if check:
                for op, acc in (("v_max3_u32", self.VMAX), ("v_min3_u32", self.VMIN)):
                    b += [valu(op, acc, acc, f"v{r}", f"v{r+1}"), valu(op, acc, acc, f"v{r+2}", f"v{r+3}")]
            b += [valu("v_rcp_f32", f"v{r+i}", f"v{r+i}") for i in range(4)]
        return b

    def epi_block_swap(self, j, pend, first, step, pk, nxt):
        ew, er = (f"v{P0}", f"v{S0+6}"), (f"v{P0+1}", f"v{S0+7}")
        inv = self.inv_reg(j)
        lead = (2 if ROT_O else 0, self.groups[0])
        b = [valu("v_xor_b32", ew[1], 64, ew[0]), valu("v_xor_b32", er[1], 64, er[0])] if j in lead else []
        temps = [OV0 + 24 + 4 * i for i in range(6)] + [OV0 + 72 + 4 * i for i in range(2)]

        def scale(m):
            X, o = [], []
            for t in range(4):
                src = expand(Oreg(j, 4 * m + t))
                u = []
                if src[0][0] == "a":
                    tmp = temps[(4 * m + t) % 8]
                    u += [valu("v_accvgpr_read_b32", f"v{tmp+i}", src[i]) for i in range(4)]
                    src = regs("v", tmp, 4)
                r0 = int(src[0][1:])
                X.append(r0)
                if pk:
                    u += [I(f"v_pk_mul_f32 {R('v', r0+2*i, 2)}, {R('v', r0+2*i, 2)}, {R('v', inv+2*i, 2)}", "valu",
                            regs("v", r0 + 2 * i, 2) + regs("v", inv + 2 * i, 2), regs("v", r0 + 2 * i, 2)) for i in range(2)]
                else:
                    u += [valu("v_mul_f32", f"v{r0+i}", f"v{r0+i}", f"v{inv+i}") for i in range(4)]
                o.append(u)
            return X, o
        X, o = scale(0)
        b += [x for u in o for x in u]
        k = 0
        for m in range(3):
            Xn, on = scale(m + 1) if m < 2 else (None, [[]] * 4)
            for rq, dst in enumerate((int(T0[1:]), X[0], X[1], X[0] + 2)):
                b += [valu("v_cvt_pk_bf16_f32", f"v{dst}", f"v{X[0]+rq}", f"v{X[1]+rq}"),
                      valu("v_cvt_pk_bf16_f32", f"v{dst+1}", f"v{X[2]+rq}", f"v{X[3]+rq}"),
                      ds_write("ds_write_b64", ew[((3 * rq + m) >> 1) & 1], R("v", dst, 2), (j % 2) * 6144 + rq * 384 + m * 128)]
                if k >= first and (k - first) % step == 0 and pend:
                    b += pend.pop(0)
                b += on[rq]
                k += 1
            X = Xn
        for i in range(6):
            o = expand(Oreg(j, i))
            b += [ds_read("ds_read_b64_tr_b16", R(o[0][0], int(o[0][1:]) + 2 * h, 2), er[h], (j % 2) * 6144 + i * 1024)
                  for h in range(2)]
        return b

    def epi_addr(self):
        if self.swap:
            return self.epi_addr_swap()
        lane, t, u = T0, T1, V_DMA
        b = [raw(f"v_mbcnt_lo_u32_b32 {lane}, -1, 0", "valu", [], [lane]),
             raw(f"v_mbcnt_hi_u32_b32 {lane}, -1, {lane}", "valu", [lane], [lane]),
             salu("s_lshr_b32", S_T, S_W, 1), salu("s_mul_i32", S_T, S_T, 6 * TILE_L),
             salu("s_and_b32", S_SLOT, S_W, 1), salu("s_mul_i32", S_SLOT, S_SLOT, 12288),
             salu("s_add_u32", S_T, S_T, S_SLOT), salu("s_add_u32", S_T, S_T, (2 * TILE_L + 127) // 128 * 128),
             salu("s_and_b32", S_T, S_T, "0xffffff80"),
             valu("v_and_b32", t, 15, lane), valu("v_mul_u32_u24", u, 384, t), valu("v_add_u32", u, S_T, u),
             valu("v_bfe_u32", t, lane, 4, 1), valu("v_lshl_add_u32", u, t, 3, u),
             valu("v_lshrrev_b32", t, 5, lane), valu("v_xor_b32", t, t, lane), valu("v_and_b32", t, 7, t),
             valu("v_lshl_add_u32", self.EW[0], t, 4, u)]
        b += [valu("v_xor_b32", self.EW[i], 32 * i, self.EW[0]) for i in range(1, 4)]
        for i in range(3):
            r = self.ER[i]
            b += [valu("v_add_u32", r, 64 * i, lane), valu("v_mul_u32_u24", t, 2731, r),
                  valu("v_lshrrev_b32", t, 16, t), valu("v_xor_b32", r, r, t), valu("v_lshl_add_u32", r, r, 4, S_T)]
        b += [salu("s_mul_i32", S_T, S_W, 36864), valu("v_lshl_add_u32", self.EG, lane, 4, S_T)]
        return b

    def epi_stores(self, j):
        o = []
        for i in range(6):
            pre = [salu("s_mov_b32", S_T, j * 6144 + i * 1024)] if i % 4 == 0 else []
            o.append(pre + [buf_store(Oreg(j, i), f"v{P0+2}" if self.swap else self.EG, SRD_O, S_T, (i % 4) * 1024, self.opol if j < self.olast else self.opol2)])
        return o

    def epi_block(self, j, pend, first=3, step=1, pk=None, nxt=None):
        if self.swap:
            return self.epi_block_swap(j, pend, first, step, self.pk if pk is None else pk, nxt)
        b = []
        for db in range(12):
            src = expand(Oreg(j, db))
            if src[0][0] == "a":
                t = OV0 + 24 + 4 * (db % 6)
                b += [valu("v_accvgpr_read_b32", f"v{t+i}", src[i]) for i in range(4)]
                src = [f"v{t+i}" for i in range(4)]
            if self.pk if pk is None else pk:
                r0, lp = int(src[0][1:]), (L0 + j) & ~1
                sel = "op_sel:[0,1] op_sel_hi:[1,1]" if (L0 + j) & 1 else "op_sel_hi:[1,0]"
                b += [I(f"v_pk_mul_f32 {R('v', r0+2*i, 2)}, {R('v', r0+2*i, 2)}, {R('v', lp, 2)} {sel}", "valu",
                        regs("v", r0 + 2 * i, 2) + regs("v", lp, 2), regs("v", r0 + 2 * i, 2)) for i in range(2)]
            else:
                b += [valu("v_mul_f32", src[i], src[i], f"v{L0+j}") for i in range(4)]
            b += [valu("v_cvt_pk_bf16_f32", src[i], src[2 * i], src[2 * i + 1]) for i in range(2)]
            b += [ds_write("ds_write_b64", self.EW[db & 3], R("v", int(src[0][1:]), 2), (j % 2) * 6144 + (db >> 2) * 128)]
            if db >= first and (db - first) % step == 0 and pend:
                b += pend.pop(0)
        b += [ds_read("ds_read_b128", Oreg(j, i), self.ER[i % 3], (j % 2) * 6144 + (i // 3) * 3072) for i in range(6)]
        return b

    def epi_all(self, js, pend, fetch=False):
        b = []
        for j in js:
            b += self.epi_block(j, pend, nxt=j + 1 if fetch and j + 1 in js else None)
            b += [x for p in pend for x in p]
            pend = self.epi_stores(j)
        return b + [x for p in pend for x in p]

    def rcp(self, js):
        return [valu("v_rcp_f32", f"v{L0+j}", f"v{L0+j}") for j in js]

    def epilogue_plain(self):
        js = list(range(NQB))
        if not self.swap:
            return self.row_sums(js, S0) + self.rcp(js) + self.epi_addr() + self.epi_all(js, [])
        k = self.groups[0]
        b = self.epi_addr() + self.inv_rows(js[:k]) + self.epi_all([2, 3, 0, 1] if ROT_O else js[:k], [])
        return b + self.inv_rows(js[k:]) + self.epi_all(js[k:], [])

    def tail(self, carry):
        groups, k = [], 0
        for n in self.groups:
            groups.append(list(range(k, k + n)))
            k += n
        assert k == NQB and groups[0][-1] < 4 and len(groups[0]) >= 2
        assert not self.swap or self.groups == [4, 2]
        bufs0 = [("a", VA0), ("a", VA0 + 4), ("v", Preg(0, 4)), ("v", Preg(0, 5))]
        bufs1 = [("a", VA0), ("a", VA0 + 4), ("a", 0), ("a", 4)]
        def fin(gi):
            js = groups[gi]
            if not self.swap:
                o = self.row_sums(js, S0) + self.range_check(js, gi == 0) + self.rcp(js)
                return o + (self.epi_addr() if gi == 0 else [])
            return self.inv_rows(js, "more" if gi else "first")
        side = self.epi_addr() if self.swap else []
        side += [salu("s_mov_b32", S_NEW, f32(2.0 ** 12)), salu("s_mov_b32", S_DELTA, f32(2.0 ** -20))] if self.swap else []
        _, b = self.group_tail(groups[0], bufs0, True, carry, (), fin(0), side)
        left = []
        for gi, js in enumerate(groups):
            last = gi == len(groups) - 1
            b += self.stamp() if gi in (0, len(groups) - 1) and self.touch < 2 else []
            if last:
                b += self.epi_all(js, left)
                break
            nxt = groups[gi + 1]
            nb = min(self.eblock or len(js), len(js))
            if ROT_O and gi == 0:
                js = [2, 3, 0, 1]
            for x, j in enumerate(js[:nb]):
                if x == nb - 1:
                    pos = len(b)
                b += self.epi_block(j, left, 2, self.estep)
                left += self.epi_stores(j)
            nm = 60 * len(nxt)
            woven = []
            for j in js[nb:]:
                woven += self.epi_block(j, left, 2, self.estep, pk=0)
                left += self.epi_stores(j)
            g0 = nm * self.efrac // 100 if woven else 0
            extra = [Op(x, k * g0 // len(woven), k * g0 // len(woven)) for k, x in enumerate(woven)]
            take = min(len(left), max(0, (nm - g0 - 4) // self.espace))
            extra += [Op(x, g0 + 4 + self.espace * i, g0 + 4 + self.espace * i) for i, p in enumerate(left[:take]) for x in p]
            left = left[take:]
            pre, t1 = self.group_tail(nxt, bufs1, False, (), extra, fin(gi + 1))
            b[pos:pos] = pre
            b += t1
        if self.swap:
            b += [valu("v_cmp_lt_u32", "s[44:45]", S_NEW, self.VMAX), valu("v_cmp_gt_u32", "s[46:47]", S_DELTA, self.VMIN),
                  salu("s_or_b64", "s[44:45]", "s[44:45]", "s[46:47]")]
        b += [salu("s_cmp_eq_u64", "s[44:45]", 0), branch("s_cbranch_scc1", "L_inrange"),
              valu("v_mov_b32", T0, self.FLAG), valu("v_mov_b32", T1, 1), ds_write("ds_write_b32", T0, T1, 0),
              label("L_inrange")]
        b += [wait(lgkm=0), barrier(), valu("v_mov_b32", T1, self.FLAG), ds_read("ds_read_b32", T1, T1, 0),
              valu("v_readfirstlane_b32", S_T, T1), salu("s_cmp_lg_u32", S_T, 0), branch("s_cbranch_scc1", "L_slow")]
        return b

    def stamp_out(self):
        if not self.stamps:
            return ""
        n = 4 + 2 * self.nstamp
        s = "  s_waitcnt vmcnt(0)\n  s_barrier\n  s_memrealtime s[60:61]\n  s_memtime s[62:63]\n  s_waitcnt lgkmcnt(0)\n"
        s += f"  s_cmp_lg_u32 {S_W}, 0\n  s_cbranch_scc1 L_end\n  s_mov_b64 exec, 1\n"
        if self.stamps == "prof":
            s += f"  s_mov_b64 exec, 0xffffffff\n  v_mbcnt_lo_u32_b32 v1, -1, 0\n  v_lshlrev_b32 v1, 2, v1\n  v_add_u32 v2, {self.FLAG + 8}, v1\n  ds_read_b32 v2, v2\n"
            s += f"  s_lshl_b32 s3, s2, 7\n  v_add_u32 v1, s3, v1\n  v_add_u32 v1, 0x100000, v1\n  s_waitcnt lgkmcnt(0)\n  global_store_dword v1, v2, s[14:15]\n  s_mov_b64 exec, 1\n"
        if self.stamps == "dbg":
            s += "  v_mov_b32 v1, 0\n  v_mov_b32 v2, s60\n  global_atomic_umax v1, v2, s[12:13]\n"
            s += "  s_not_b32 s3, s56\n  v_mov_b32 v3, s3\n  global_atomic_umax v1, v3, s[12:13] offset:4\n"
            s += "  v_mov_b32 v4, s56\n  global_atomic_umax v1, v4, s[12:13] offset:8\n"
            s += "  s_cmp_lg_u32 s2, 100\n  s_cbranch_scc1 L_end\n"
            vals = [(66 + 4 * i, 56) for i in range(self.nstamp)] + [(60, 56)] + [(64 + 4 * i, 58) for i in range(self.nstamp)] + [(62, 58)]
            for i, (x, y) in enumerate(vals):
                s += f"  s_sub_u32 s3, s{x}, s{y}\n  v_mov_b32 v2, s3\n  global_store_dword v1, v2, s[12:13] offset:{16+4*i}\n"
            return s
        s += f"  s_mul_i32 s3, s2, {8*n}\n  v_mov_b32 v1, s3\n"
        for i in range(n):
            r = 56 + 2 * i
            s += f"  v_mov_b32 v2, s{r}\n  v_mov_b32 v3, s{r+1}\n  global_store_dwordx2 v1, v[2:3], s[14:15] offset:{8*i}\n  s_nop 1\n"
        return s

    def build(self, verbose=False):
        ROT = 8
        pro = self.prologue()
        mfE, gE, tailE = self.period(0)
        mfO, gO, _ = self.period(1)
        if self.stamps == "prof":
            for gg in (gE, gO):
                gg[12 * 2 + 7] += [valu("v_mov_b32", T0, "s52"), valu("v_add_u32", T1, 4, T1)]
                gg[12 * 2 + 8] += [raw("s_memrealtime s[52:53]"), ds_write("ds_write_b32", T1, T0, 0)]
            pro += [valu("v_mov_b32", T1, self.FLAG + 4), raw("s_memrealtime s[52:53]")]
        gE[12 * 11 + 7].append(salu("s_cmp_eq_u32", S_CNT, 0))
        exit_tail = gE[143] + tailE
        gE[143] = [branch("s_cbranch_scc1", "L_drain")] + gE[143]
        gO[12 * 11 + 7].append(salu("s_sub_u32", S_CNT, S_CNT, 1))
        fill = self.stamp()
        log = []
        pro, st = fix(pro + fill, State(), hoist=bool(self.early))
        if self.early:
            head = self.flat(mfO, gO, 0, ROT)
            body = self.flat(mfO, gO, ROT, 144) + self.flat(mfE, gE, 0, 144) + self.flat(mfO, gO, 0, ROT)
        else:
            head = self.flat(mfE, gE, 0, ROT)
            body = self.flat(mfE, gE, ROT, 144) + self.flat(mfO, gO, 0, 144) + self.flat(mfE, gE, 0, ROT)
        body.append(branch("s_branch", "L_top"))
        head1, st1 = fix(head, st, hoist=True)
        body1, st2 = fix(body, st1, hoist=True, log=log)
        body2, st3 = fix(body1, st2, hoist=True, log=log)
        errs, _ = verify(pro + head1 + body2 + body2 + body2)
        assert not errs, errs[:10]
        kx = next(i for i, x in enumerate(body2) if x.kind == "branch")
        _, stx = verify(pro + head1 + body2 + body2[:kx + 1])
        post = self.stamp() + self.tail(exit_tail)
        post, _ = fix(post, stx, hoist=True)
        errs, _ = verify(pro + head1 + body2[:kx + 1] + post)
        assert not errs, errs[:10]
        if verbose:
            tot, over = estimate(body2)
            print("loop estimate cycles (288 mfma, ideal 4608):", tot)
            for o in over:
                print("  over:", o)
            print("  inserted:", [x for x in log if x[0] == "nop"])
            print("  waits:", len([x for x in log if x[0] == "wait"]), "instrs:", len(body2))
            tot, over = estimate(post)
            print("tail estimate:", tot, "mfma:", sum(x.kind == "mfma" for x in post), "instrs:", len(post))
            print("  over:", [(o[0], o[1]) for o in over])
        self.njit = 0

        def jit(block):
            if not self.jitter:
                return block
            mask, where, amount = self.jitter.split(",")
            out = []
            for x in block:
                if x.kind != "barrier":
                    out.append(x)
                    continue
                self.njit += 1
                lab = f"L_jit{self.njit}"
                nap = [raw("s_cselect_b32 s99, 1, 0"), raw(f"s_lshl_b32 s98, 1, {S_W}"), raw(f"s_and_b32 s98, s98, {mask}"),
                       raw(f"s_cbranch_scc0 {lab}"), raw(f"s_sleep {amount}"), label(lab), raw("s_cmp_lg_u32 s99, 0")]
                out += nap + [x] if where == "b" else [x] + nap
            return out
        text = "  ; prologue: addresses, descriptors, Q staging and scaling, QK of tiles 0 and 1, PV of tile 0\n" + emit(jit(pro + head1))
        text += "  ; main loop: two periods per trip\n.p2align 6\nL_top:\n" + emit(jit(body2))
        text += "  ; last two tiles per group of query blocks, range check, output\nL_drain:\n" + emit(jit(post))
        text += self.stamp_out() + "L_end:\n  s_endpgm\n"
        setup, maxl, mid, main, epi = self.slow_path()
        st = State()
        blocks = []
        for blk, loop in ((setup, False), (maxl, True), (mid, False), (main, True), (epi, False)):
            blk, st = fix(blk, st)
            if loop:
                blk, st = fix(blk, st)
            blocks.append(blk)
        setup, maxl, mid, main, epi = blocks
        errs, _ = verify(post + setup + maxl + maxl + mid + main + main + epi)
        assert not errs, errs[:10]
        text += "  ; fallback: reload Q unscaled\nL_slow:\n" + emit(setup)
        text += "  ; fallback pass 1: true row maximum\nL_slow_max:\n" + emit(maxl) + emit(mid)
        text += "  ; fallback pass 2: P = exp2(c*S - c*max), O += P V\nL_slow_main:\n" + emit(main)
        text += emit(epi) + "  s_endpgm\n"
        return wrap(text, 256, 256, self.lds, 512, 256, extra_comment=DOC)


if __name__ == "__main__":
    ap = argparse.ArgumentParser()
    ap.add_argument("-o", default="k.s")
    ap.add_argument("--stamps", default="")
    ap.add_argument("--ring", type=int, default=5)
    ap.add_argument("--pol", default="nt")
    ap.add_argument("--opol", default="nt")
    ap.add_argument("--abl", default="")
    ap.add_argument("--pref", type=int, default=1)
    ap.add_argument("--qpol", default="nt")
    ap.add_argument("--dist", type=int, default=3)
    ap.add_argument("--dpos", default="s")
    ap.add_argument("--pk", type=int, default=1)
    ap.add_argument("--lat", type=int, default=7)
    ap.add_argument("--jitter", default="")
    ap.add_argument("--ahead", type=int, default=3)
    ap.add_argument("--dot", type=int, default=0)
    ap.add_argument("--early", type=int, default=1)
    ap.add_argument("--eblock", type=int, default=0)
    ap.add_argument("--efrac", type=int, default=80)
    ap.add_argument("--opol2", default="nt")
    ap.add_argument("--olast", type=int, default=4)
    ap.add_argument("--swap", type=int, default=1)
    ap.add_argument("--lite", type=int, default=0)
    ap.add_argument("--spread", type=int, default=0)
    ap.add_argument("--remap", type=int, default=1)
    ap.add_argument("--touch", type=int, default=0)
    ap.add_argument("--groups", default="42")
    ap.add_argument("--estep", type=int, default=2)
    ap.add_argument("--espace", type=int, default=9)
    ap.add_argument("--provar", default="45")
    ap.add_argument("-v", action="store_true")
    a = ap.parse_args()
    SPREAD = bool(a.spread)
    ROT_O = 4 if a.lite else 0
    g = Gen(ring=a.ring, pol=a.pol, opol=a.opol, stamps=a.stamps, abl=a.abl, provar=a.provar, groups=a.groups, estep=a.estep, espace=a.espace, pref=a.pref, remap=a.remap, touch=a.touch, qpol=a.qpol, dist=a.dist, dpos=a.dpos, pk=a.pk, lat=a.lat, jitter=a.jitter, ahead=a.ahead, dot=a.dot, early=a.early, eblock=a.eblock, efrac=a.efrac, opol2=a.opol2, olast=a.olast, swap=a.swap, lite=a.lite)
    open(a.o, "w").write(g.build(a.v))
```

```python
import argparse
import math
import struct
from fw import *
from asmlib import wrap

NQB = 6
TILE_G = 12288
TAU = 4192
TILE_L = 3 * TAU
HEAD_Q = 147456
HEAD_KV = 393216

V_KA, V_VA, V_DMA, V_QA = "v0", "v1", "v2", "v3"
L0 = 4
T0, T1 = "v10", "v11"
S0 = 12
P0 = 20
OV0, NOV = 68, 47
QA0 = 0
QBUF = 120
KA0 = 124
VA0 = 148
OA0 = 156
SRD_K, SRD_V, SRD_Q, SRD_O = "s[16:19]", "s[20:23]", "s[24:27]", "s[28:31]"
S_W, S_KOFF, S_VOFF, S_DMA, S_SLOT, S_NEW, S_DELTA, S_CNT, S_C, S_WOFF, S_T = (f"s{i}" for i in range(32, 43))
S_DLIM = "s54"
S_ONE = "s55"
S_DMAV, S_WOFFV, S_W16 = "s96", "s97", "s3"


def f32(x):
    return "0x%08x" % struct.unpack("<I", struct.pack("<f", x))[0]


SPREAD = False


ROT_O = 0


def Oreg(j, db):
    if not SPREAD:
        n = (j + ROT_O) % 6 * 12 + db
        return R("v", OV0 + 4 * n, 4) if n < NOV else R("a", OA0 + 4 * (n - NOV), 4)
    return Oreg2(j, db)


def Oreg2(j, db):
    if db >= 8:
        return R("a", OA0 + 4 * (j * 4 + db - 8), 4)
    n = j * 8 + db
    return R("v", OV0 + 4 * n, 4) if n < NOV else R("a", OA0 + 4 * 24, 4)


def Qreg(j, s):
    return R("a", QA0 + 4 * (j * 5 + s), 4) if s < 5 else R("a", QBUF, 4)


def Kreg(s):
    return R("a", KA0 + 4 * s, 4)


def Preg(par, j):
    return P0 + 24 * par + 4 * j


DOC = """;
; Matrix work is v_mfma_f32_16x16x32_bf16: S^T = K Q^T leaves one query per lane, which is the A-operand layout
;
;
; three tiles ahead, one barrier per period. The last two tiles run per group of query blocks (4, then 2) so
; the first output stores overlap the remaining matrix work. One f32 MFMA per query block adds the partial row
;
;
"""


class Gen:
    def __init__(self, ring=5, pol="nt", opol="", stamps=False, cinit="-4.0", abl="", provar="356", groups="42", estep=2, espace=9, pref=1, remap=1, touch=0, qpol="nt", dist=3, dpos="s", pk=1, lat=7, jitter="", ahead=3, dot=0, early=0, eblock=0, efrac=80, opol2="nt", olast=4, swap=0, lite=0, zig=0):
        self.zig = zig
        self.lite = lite
        self.swap = swap
        self.opol2, self.olast = opol2, olast
        self.eblock, self.efrac = eblock, efrac
        self.early = early
        self.dot = dot
        self.ahead = ahead
        self.jitter = jitter
        self.lat = lat
        self.pk = pk
        self.dpos = dpos
        self.D = dist
        self.qpol = qpol
        self.remap, self.touch = remap, touch
        self.pref = pref
        self.groups, self.estep, self.espace = [int(c) for c in groups], estep, espace
        self.provar = provar
        self.abl = abl
        self.R = ring
        self.pol, self.opol, self.stamps, self.cinit = pol, opol, stamps, cinit
        self.VBASE = ring * TILE_L
        assert ring == 5
        self.QBASE = (2 * ring + 1) * TILE_L
        self.FLAG = self.QBASE + 24576
        self.lds = self.FLAG + 256
        self.nstamp = 0

    def stamp(self):
        if not self.stamps:
            return []
        r = 64 + 4 * self.nstamp
        self.nstamp += 1
        return [raw(f"s_memtime s[{r}:{r+1}]", "salu"), raw(f"s_memrealtime s[{r+2}:{r+3}]", "salu")]

    def kread(self, kb, s, slot=0):
        return ds_read("ds_read_b128", Kreg(s), V_KA, slot * TILE_L + (s >> 1) * TAU + (s & 1) * 64 + kb * 512)

    def vread(self, db, half, base, slot=0, file="a"):
        return ds_read("ds_read_b64_tr_b16", R(file, base + 2 * half, 2), V_VA,
                       slot * TILE_L + (db >> 2) * TAU + (db & 3) * (16 if self.swap else 32) + half * 512)

    def qread(self, j):
        return ds_read("ds_read_b128", R("a", QBUF, 4), V_QA, j * 1024)

    def dma_pair(self, k, base_sgpr=S_DMA, koff=S_KOFF, voff=S_VOFF, slot_off=0):
        tau = k % 3
        isv = k >= 3
        imm = (self.VBASE if isv else 0) + slot_off + tau * TAU - tau * 128
        if isv and self.swap:
            base_sgpr = {S_DMA: S_DMAV, S_WOFF: S_WOFFV}[base_sgpr]
        return (salu("s_add_u32", "m0", base_sgpr, imm),
                buf_dma(V_DMA, SRD_V if isv else SRD_K, voff if isv else koff, tau * 128, self.pol))

    def jof(self, n):
        n %= 12
        return 11 - n if self.zig and n >= 6 else n % 6

    def softmax_ops(self, n, ppar):
        kb, j = (n % 12) // 6, self.jof(n)
        s = S0 + 4 * (n % 2)
        p = Preg(ppar, j) + 2 * kb
        e = [valu("v_exp_f32", f"v{s+i}", f"v{s+i}") for i in range(4)]
        a = [valu("v_add_f32", f"v{L0+j}", f"v{s+i}", f"v{L0+j}") for i in range(4)]
        c = [valu("v_cvt_pk_bf16_f32", f"v{p+i}", f"v{s+2*i}", f"v{s+2*i+1}") for i in range(2)]
        return e, a, c

    def dot_ops(self, par, js):
        return [I(f"v_dot2c_f32_bf16 v{L0+j}, {S_ONE}, v{Preg(par, j)+i}", "valu",
                  [S_ONE, f"v{Preg(par, j)+i}", f"v{L0+j}"], [f"v{L0+j}"]) for i in range(4) for j in js]

    def qk(self, n, s):
        j = self.jof(n)
        d = R("v", S0 + 4 * (n % 2), 4)
        return mfma(d, Kreg(s), Qreg(j, s), self.cinit if s == 0 else d)

    def pv(self, db, j, par, vbase, file="a", c=None):
        if self.swap:
            return mfma(Oreg(j, db), R("v", Preg(par, j), 4), R(file, vbase, 4), c or Oreg(j, db))
        if c:
            return mfma(Oreg(j, db), R(file, vbase, 4), R("v", Preg(par, j), 4), c)
        return mfma(Oreg(j, db), R(file, vbase, 4), R("v", Preg(par, j), 4), Oreg(j, db))

    def period(self, par, fill=False):
        N = 144
        sc = [[] for _ in range(N + 12)]
        mem = [[] for _ in range(N + 12)]
        va = [[] for _ in range(N + 12)]
        heavy = lambda n: n % 6 == 5
        for n in range(-1, 12):
            if n == -1 and fill:
                continue
            e, a, c = self.softmax_ops(n, par if n == -1 else 1 - par)
            g = 12 * n
            if heavy(n):
                plan = [(10, e[0]), (11, e[1]), (12, e[2]), (13, e[3]), (14, a[0]), (15, a[1]), (16, c[0]), (16, a[2]),
                        (17, a[3]), (18, c[1])]
            elif heavy(n + 1):
                plan = [(9, e[0]), (10, e[1]), (11, e[2]), (12, e[3]), (13, a[0]), (14, a[1]), (15, c[0]), (16, a[2]),
                        (17, a[3]), (18, c[1])]
            else:
                plan = [(9, e[0]), (10, e[1]), (11, e[2]), (12, e[3]), (13, a[0]), (14, a[1]), (15, c[0]), (16, a[2]),
                        (17, a[3]), (19, c[1])]
            for o, ins in plan:
                if g + o >= 0 and not (self.dot and ins.text.startswith("v_add_f32")):
                    va[g + o].append(ins)
        for n in range(12):
            g = 12 * n
            nv = (n + 1) % 12
            vb = VA0 + 4 * ((n + 1) % 2)
            tpos = (8, 9) if heavy(n) else ((2, 3) if heavy(n - 1) else (1, 2))
            if not fill or n == 11:
                for h in range(2):
                    mem[g + tpos[h]].append(self.vread(nv, h, vb))
            if self.jof(n + 1) != self.jof(n):
                mem[g + (7 if heavy(n) else 5)].append(self.qread(self.jof(n + 1)))
            if heavy(n):
                for s in range(6):
                    mem[g + 1 + s].append(self.kread(1 if n == 5 else 0, s))
        if not fill:
            pos = {"s": [(1, 6), (2, 6), (3, 6), (4, 6), (7, 6), (8, 6)],
                   "e": [(0, 8), (1, 6), (1, 8), (2, 6), (2, 8), (3, 6)],
                   "m": [(0, 8), (1, 6), (2, 6), (3, 6), (4, 6), (6, 8)],
                   "l": [(4, 6), (6, 8), (7, 6), (7, 8), (8, 6), (8, 8)]}[self.dpos]
            for k, (n, o) in enumerate(pos):
                m, d = self.dma_pair(k)
                sc[12 * n + o - 1].append(m)
                mem[12 * n + o].append(d)
        if self.dot:
            dots = self.dot_ops(par, range(NQB))
            k = len(dots) // self.dot
            for i_, n in enumerate({1: (3,), 2: (2, 8), 3: (2, 4, 8), 6: (1, 2, 3, 7, 8, 9)}[self.dot]):
                va[12 * n + 8] += dots[i_ * k:(i_ + 1) * k]
        g = 12 * 9
        book = [salu("s_add_u32", S_DMA, S_DMA, TILE_L),
                salu("s_cmp_eq_u32", S_DMA, S_DLIM),
                salu("s_cselect_b32", S_DMA, S_WOFF, S_DMA),
                salu("s_add_u32", S_NEW, S_SLOT, TILE_L),
                salu("s_cmp_eq_u32", S_NEW, self.R * TILE_L),
                salu("s_cselect_b32", S_NEW, 0, S_NEW),
                salu("s_sub_u32", S_DELTA, S_NEW, S_SLOT),
                salu("s_mov_b32", S_SLOT, S_NEW),
                salu("s_add_u32", S_KOFF, S_KOFF, TILE_G), salu("s_add_u32", S_VOFF, S_VOFF, TILE_G)]
        for o, ins in zip((0, 1, 2, 3, 6, 7, 8, 9, 10, 11), book):
            sc[g + o].append(ins)
        if self.swap:
            sc[g + 12].append(salu("s_sub_u32", S_DMAV, S_DMA, S_W16))
        g = 12 * 10
        va[g + 6] += [valu("v_add_u32", V_KA, S_DELTA, V_KA), valu("v_add_u32", V_VA, S_DELTA, V_VA)]
        sc[g + 7].append(wait(vm=6 * (self.D - 2), lgkm=1))
        sc[g + 8].append(barrier())
        mf = []
        for n in range(12):
            mf += [self.qk(n, s) for s in range(6)]
            mf += [self.pv(n, j, par, VA0 + 4 * (n % 2)) for j in ((5, 4, 3, 2, 1, 0) if self.zig else range(6))]
        if not fill and "z" in self.abl:
            for n in range(12):
                for k in range(6):
                    jj = 3 * (n % 2) + k // 2
                    h = ((k + 1) // 2) % 2
                    mf[12 * n + 6 + k] = mfma(Oreg(jj, (n & ~1) + h), R("a", VA0 + 4 * h, 4), R("v", Preg(par, jj), 4), Oreg(jj, (n & ~1) + h))
        if not fill and "s" in self.abl:
            for n in range(12):
                for k in range(6):
                    mf[12 * n + 6 + k] = mfma(Oreg(k, n), R("v", Preg(par, k), 4), R("a", VA0 + 4 * (n % 2), 4), Oreg(k, n))
        if not fill and self.abl:
            def keep(x):
                t = x.text
                if "e" in self.abl and t.startswith("v_exp"): return False
                if "a" in self.abl and t.startswith("v_add_f32"): return False
                if "c" in self.abl and t.startswith("v_cvt"): return False
                if "k" in self.abl and x.kind == "lds_rd" and V_KA in x.rd: return False
                if "v" in self.abl and x.kind == "lds_rd" and V_VA in x.rd: return False
                if "q" in self.abl and x.kind == "lds_rd" and V_QA in x.rd: return False
                if "d" in self.abl and x.kind == "dma": return False
                if "b" in self.abl and x.kind == "barrier": return False
                return True
            mem = [[x for x in g_ if keep(x)] for g_ in mem]
            va = [[x for x in g_ if keep(x)] for g_ in va]
            sc = [[x for x in g_ if keep(x)] for g_ in sc]
            if "c" in self.abl:
                mf = [m if (i % 12) < 6 else self.pv(i // 12, i % 12 - 6, 0, VA0 + 4 * ((i // 12) % 2)) for i, m in enumerate(mf)]
        gaps = [sc[i] + mem[i] + va[i] for i in range(N)]
        tail = [x for i in range(N, N + 12) for x in va[i]]
        return mf, gaps, tail

    @staticmethod
    def flat(mf, gaps, lo, hi):
        out = []
        for i in range(lo, hi):
            if mf[i] is not None:
                out.append(mf[i])
            out += gaps[i]
        return out

    def addr_setup(self, lane, w):
        b = [valu("v_lshrrev_b32", "v6", 4, lane), valu("v_lshlrev_b32", "v6", 3, "v6"),
             valu("v_bfe_u32", "v7", lane, 3, 1), valu("v_add_u32", "v6", "v6", "v7"),
             valu("v_lshl_add_u32", "v6", w, 1, "v6"), valu("v_mul_u32_u24", "v6", 384, "v6"),
             valu("v_and_b32", "v7", 7, lane), valu("v_lshl_add_u32", V_DMA, "v7", 4, "v6")]

        def lds_row(dst, key, pitch=1056):
            return [valu("v_bfe_u32", "v8", key, 1, 2), valu("v_mul_u32_u24", "v8", pitch, "v8"),
                    valu("v_lshrrev_b32", "v9", 3, key), valu("v_lshlrev_b32", "v9", 1, "v9"),
                    valu("v_and_b32", dst, 1, key), valu("v_add_u32", "v9", "v9", dst),
                    valu("v_lshl_add_u32", dst, "v9", 7, "v8")]
        b += [valu("v_and_b32", "v6", 15, lane), valu("v_lshrrev_b32", "v7", 4, lane)]
        b += lds_row(V_KA, "v6") + [valu("v_lshl_add_u32", V_KA, "v7", 4, V_KA)]
        b += [valu("v_lshrrev_b32", "v6", 2, lane)] + lds_row(V_VA, "v6", 1040 if self.swap else 1056)
        if self.swap:
            b += [valu("v_and_b32", "v6", 1, lane), valu("v_lshl_add_u32", V_VA, "v6", 3, V_VA),
                  valu("v_bfe_u32", "v6", lane, 1, 1), valu("v_lshl_add_u32", V_VA, "v6", 6, V_VA)]
        else:
            b += [valu("v_and_b32", "v6", 3, lane), valu("v_lshl_add_u32", V_VA, "v6", 3, V_VA)]
        b += [valu("v_add_u32", V_VA, self.VBASE, V_VA)]
        return b

    def slow_path(self):
        M = ["v16", "v17", "v18", "v19", T0, T1]
        S = S0
        SD = R("v", S, 4)
        QL = Preg(1, 0)
        lane, w, vq = "v4", "v5", V_QA

        def qreg(j, s):
            return Qreg(j, s) if s < 5 else R("v", QL + 4 * j, 4)
        setup = [wait(vm=0, lgkm=0), barrier(),
                 raw(f"v_mbcnt_lo_u32_b32 {lane}, -1, 0", "valu", [], [lane]),
                 raw(f"v_mbcnt_hi_u32_b32 {lane}, -1, {lane}", "valu", [lane], [lane]),
                 valu("v_mov_b32", w, S_W)]
        setup += self.addr_setup(lane, w)
        setup += [valu("v_mul_u32_u24", vq, 96, w), valu("v_and_b32", "v6", 15, lane), valu("v_add_u32", vq, vq, "v6"),
                  valu("v_mul_u32_u24", vq, 384, vq), valu("v_lshl_add_u32", vq, "v7", 4, vq)]
        for j in range(NQB):
            setup.append(salu("s_mov_b32", S_T, j * 16 * 384))
            setup += [buf_load(qreg(j, s), vq, SRD_Q, S_T, s * 64) for s in range(6)]
        setup += [wait(vm=0)]
        setup += [valu("v_mov_b32", m, "0xff800000") for m in M]
        setup += [salu("s_mov_b32", S_KOFF, 0)]

        def load(with_v):
            o = []
            for k in range(6 if with_v else 3):
                o += list(self.dma_pair(k, S_WOFF, S_KOFF, S_KOFF))
            return o + [wait(vm=0), barrier()]

        def chain(j):
            return [mfma(SD, Kreg(s), qreg(j, s), "0" if s == 0 else SD) for s in range(6)]

        def close(name):
            return [wait(lgkm=0), barrier(), salu("s_add_u32", S_KOFF, S_KOFF, TILE_G),
                    salu("s_cmp_lt_u32", S_KOFF, HEAD_KV), branch("s_cbranch_scc1", name)]
        maxl = load(False)
        for kb in range(2):
            maxl += [self.kread(kb, s) for s in range(6)]
            for j in range(NQB):
                maxl += chain(j) + [valu("v_max3_f32", M[j], M[j], f"v{S}", f"v{S+1}"),
                                    valu("v_max3_f32", M[j], M[j], f"v{S+2}", f"v{S+3}")]
        maxl += close("L_slow_max")
        mid = []
        for m in M:
            for op in ("v_permlane32_swap_b32", "v_permlane16_swap_b32"):
                mid += [valu("v_mov_b32", vq, m), valu(op, m, vq), valu("v_max_f32", m, m, vq)]
        mid += [valu("v_mul_f32", m, S_C, m) for m in M]
        mid += [valu("v_accvgpr_write_b32", f"a{r}", 0) for r in range(OA0, 256)]
        mid += [valu("v_mov_b32", f"v{r}", 0) for r in list(range(OV0, 256)) + list(range(L0, L0 + 6))]
        mid += [salu("s_mov_b32", S_KOFF, 0)]
        main = load(True)
        for kb in range(2):
            main += [self.kread(kb, s) for s in range(6)]
            for j in range(NQB):
                p = Preg(0, j) + 2 * kb
                main += chain(j)
                main += [valu("v_fma_f32", f"v{S+i}", f"v{S+i}", S_C, "-" + M[j]) for i in range(4)]
                main += [valu("v_exp_f32", f"v{S+i}", f"v{S+i}") for i in range(4)]
                main += [valu("v_add_f32", f"v{L0+j}", f"v{S+i}", f"v{L0+j}") for i in range(4)]
                main += [valu("v_cvt_pk_bf16_f32", f"v{p+i}", f"v{S+2*i}", f"v{S+2*i+1}") for i in range(2)]
        for db in range(12):
            vb = VA0 + 4 * (db % 2)
            main += [self.vread(db, h, vb) for h in range(2)]
            main += [self.pv(db, j, 0, vb) for j in range(NQB)]
        main += close("L_slow_main")
        return setup, maxl, mid, main, self.epilogue_plain()

    def prologue(self):
        b = []
        b += [salu("s_cmp_ge_u32", "s2", 256), branch("s_cbranch_scc1", "L_end"),
              raw("s_load_dwordx4 s[4:7], s[0:1], 0", "smem"), raw("s_load_dwordx4 s[8:11], s[0:1], 16", "smem")]
        if self.stamps:
            b += [raw("s_load_dwordx4 s[12:15], s[0:1], 32", "smem"),
                  raw("s_memrealtime s[56:57]"), raw("s_memtime s[58:59]")]
        lane, w = "v4", "v5"
        b += [valu("v_and_b32", lane, 63, "v0"), valu("v_lshrrev_b32", w, 6, "v0"),
              valu("v_readfirstlane_b32", S_W, w)]
        if self.pref:
            b += [raw("s_getpc_b64 s[50:51]", "salu", [], ["s50", "s51"]), label("L_pc"),
                  salu("s_lshr_b32", S_T, "s2", 3), salu("s_lshl_b32", S_T, S_T, 2), salu("s_add_u32", S_T, S_T, S_W),
                  salu("s_min_u32", S_T, S_T, "(L_end-L_pc)/1024"), salu("s_lshl_b32", S_T, S_T, 10),
                  valu("v_lshl_add_u32", "v6", lane, 4, S_T),
                  I(f"global_load_dwordx4 v[{OV0}:{OV0+3}], v6, s[50:51]", "vm_ld", ["v6", "s50", "s51"], regs("v", OV0, 4))]
        b += self.addr_setup(lane, w)
        g = "v7"
        b += [valu("v_mul_u32_u24", V_QA, 6144, w), valu("v_lshl_add_u32", V_QA, lane, 4, V_QA),
              valu("v_add_u32", V_QA, self.QBASE, V_QA)]
        for i_ in range(3):
            d = f"v{OV0+80+i_}"
            b += [valu("v_add_u32", d, 64 * i_, lane), valu("v_mul_u32_u24", "v6", 2731, d),
                  valu("v_lshrrev_b32", "v6", 16, "v6"), valu("v_and_b32", "v6", 6, "v6"),
                  valu("v_xor_b32", d, d, "v6"), valu("v_lshlrev_b32", d, 4, d)]
        b += [valu("v_and_b32", "v6", 15, lane), valu("v_and_b32", "v8", 6, lane), valu("v_xor_b32", "v8", "v8", g),
              valu("v_mul_u32_u24", "v6", 384, "v6"), valu("v_lshl_add_u32", f"v{OV0+83}", "v8", 4, "v6"),
              valu("v_xor_b32", f"v{OV0+84}", 64, f"v{OV0+83}")]
        head = "s2"
        if self.remap:
            head = "s3"
            b += [salu("s_and_b32", head, "s2", 7), salu("s_lshl_b32", head, head, 5),
                  salu("s_lshr_b32", S_T, "s2", 3), salu("s_add_u32", head, head, S_T)]
        S_SA, S_SB = "s43", "s44"
        VQ = [f"v{OV0+80+i_}" for i_ in range(3)]
        b += [salu("s_mul_i32", S_KOFF, head, HEAD_KV), salu("s_mul_i32", S_VOFF, head, HEAD_Q),
              salu("s_mov_b32", "s18", HEAD_KV), salu("s_mov_b32", "s19", "0x20000"),
              salu("s_mov_b32", "s26", HEAD_Q), salu("s_mov_b32", "s27", "0x20000"),
              salu("s_mul_i32", S_WOFF, S_W, 1056),
              salu("s_lshr_b32", S_T, S_W, 1), salu("s_mul_i32", S_T, S_T, 3), salu("s_add_u32", S_T, S_T, S_W),
              salu("s_add_u32", S_T, S_T, 2), salu("s_mul_i32", S_SB, S_T, TILE_L),
              salu("s_add_u32", S_SA, S_SB, 2 * TILE_L), salu("s_mul_i32", S_T, S_W, 36864)]
        b += [valu("v_add_u32", VQ[i_], S_T, VQ[i_]) for i_ in range(3)]
        b += [raw("s_waitcnt lgkmcnt(0)", "salu")]
        b += [salu("s_add_u32", "s16", "s6", S_KOFF), salu("s_addc_u32", "s17", "s7", 0),
              salu("s_add_u32", "s24", "s4", S_VOFF), salu("s_addc_u32", "s25", "s5", 0)]
        late = [salu("s_add_u32", "s20", "s8", S_KOFF), salu("s_addc_u32", "s21", "s9", 0),
                salu("s_mov_b32", "s22", HEAD_KV), salu("s_mov_b32", "s23", "0x20000"),
                salu("s_add_u32", "s28", "s10", S_VOFF), salu("s_addc_u32", "s29", "s11", 0),
                salu("s_mov_b32", "s30", HEAD_Q), salu("s_mov_b32", "s31", "0x20000"),
                salu("s_mov_b32", S_C, f32(math.log2(math.e) / math.sqrt(192.0))),
                salu("s_mov_b32", S_CNT, 14)]
        if self.dot:
            late += [salu("s_mov_b32", S_ONE, "0x3f803f80")]
        if self.swap:
            late += [salu("s_lshl_b32", S_W16, S_W, 4), salu("s_sub_u32", S_WOFFV, S_WOFF, S_W16)]

        def group(ktile, vtile):
            o = []
            for k in range(6):
                tile = vtile if k >= 3 else ktile
                if tile is None:
                    continue
                slot = (tile + 1) % self.R if k >= 3 else tile % self.R
                if k % 3 == 0:
                    o.append(salu("s_mov_b32", S_T, tile * TILE_G))
                o += list(self.dma_pair(k, S_WOFF, S_T, S_T, slot * TILE_L))
            return o
        RAW = OV0
        LO = OV0 + 48
        Q5 = OV0 + 72
        VR = [f"v{OV0+83+i_}" for i_ in range(2)]
        LAST = OV0 + 96
        ZERO = "a[252:255]"
        CV = T0
        KB = Preg(1, 0)

        def ubase(u):
            return (S_SB if u in (2, 3) else S_SA), (u & 1) * 6144

        def qunit(u):
            sb, off = ubase(u)
            o = []
            for i_ in range(3):
                o += [salu("s_add_u32", "m0", sb, off + i_ * 1024)]
                o += [salu("s_mov_b32", S_T, u * 6144)] if i_ == 0 else [nop(0)]
                o += [buf_dma(VQ[i_], SRD_Q, S_T, h * 3072, self.qpol) for h in range(2)]
            return o

        def qraw(u):
            sb, off = ubase(u)
            o = [valu("v_add_u32", T0, sb, VR[0]), valu("v_add_u32", T1, sb, VR[1])]
            for s_ in range(6):
                o.append(ds_read("ds_read_b128", R("v", RAW + 4 * ((u % 2) * 6 + s_), 4), (T0, T1)[s_ & 1],
                                 off + (s_ >> 1) * 128))
            return o

        def unpack(j):
            r0 = RAW + 24 * (j % 2)
            o = []
            for i_ in range(24):
                o += [valu("v_lshlrev_b32", f"v{LO+i_}", 16, f"v{r0+i_}"),
                      valu("v_and_b32", f"v{r0+i_}", "0xffff0000", f"v{r0+i_}")]
            return o

        def scale(j):
            o = []
            for base in (LO, RAW + 24 * (j % 2)):
                o += [I(f"v_pk_mul_f32 {R('v', base+2*i_, 2)}, {R('v', base+2*i_, 2)}, s[52:53]", "valu",
                        regs("v", base + 2 * i_, 2) + ["s52", "s53"], regs("v", base + 2 * i_, 2)) for i_ in range(12)]
            return o

        def pack(j):
            o = []
            for s_ in range(6):
                r0 = RAW + 24 * (j % 2) + 4 * s_
                dst = r0 if s_ < 5 else Q5 + 4 * (j % 2)
                o += [valu("v_cvt_pk_bf16_f32", f"v{dst+i_}", f"v{LO+4*s_+i_}", f"v{r0+i_}") for i_ in range(4)]
                if s_ < 5:
                    o += [valu("v_accvgpr_write_b32", f"a{QA0+4*(j*5+s_)+i_}", f"v{dst+i_}") for i_ in range(4)]
                else:
                    o.append(ds_write("ds_write_b128", V_QA, R("v", dst, 4), j * 1024))
            return o

        def clear(file, lo, hi):
            o = []
            while hi - lo >= 16:
                o.append(mfma32(R(file, lo, 16), ZERO, ZERO, "0"))
                lo += 16
            while lo < hi:
                o.append(mfma(R(file, lo, 4), ZERO, ZERO, "0"))
                lo += 4
            return o

        def chains(j):
            o = []
            for kb in range(2):
                d = R("v", S0 + 4 * kb, 4)
                for s_ in range(6):
                    a_ = Kreg(s_) if kb == 0 else R("v", KB + 4 * s_, 4)
                    q_ = Qreg(j, s_) if s_ < 5 else R("v", Q5 + 4 * (j % 2), 4)
                    o.append(mfma(d, a_, q_, self.cinit if s_ == 0 else d))
            return o

        def soft(j, kb):
            sreg = S0 + 4 * kb
            p = Preg(0, j) + 2 * kb
            e = [valu("v_exp_f32", f"v{sreg+i_}", f"v{sreg+i_}") for i_ in range(4)]
            a_ = [valu("v_add_f32", f"v{L0+j}", f"v{sreg+i_}", f"v{L0+j}") for i_ in range(4)]
            c = [valu("v_cvt_pk_bf16_f32", f"v{p+i_}", f"v{sreg+2*i_}", f"v{sreg+2*i_+1}") for i_ in range(2)]
            return e + ([] if self.dot else a_) + c

        def weave(ms, ops, per=2):
            o = []
            ops = list(ops)
            for m in ms:
                o.append(m)
                o += ops[:per]
                ops = ops[per:]
            return o, ops

        plan = [int(c) for c in self.provar]
        queue = []

        def issue(name, ops):
            queue.append((name, sum(1 for x in ops if x.kind == "dma")))
            return ops

        def landed(name, **kw):
            k = [n for n, _ in queue].index(name)
            return wait(vm=sum(c for _, c in queue[k + 1:]), **kw)

        def extras(u):
            o = []
            if plan[0] == u:
                o += issue("KV0", group(1, 0))
            if plan[1] == u:
                o += issue("G4", group(2, 1))
            if plan[2] == u and self.D >= 4:
                o += issue("G3", group(3, 2))
            return o

        if self.early:
            return b + self.early_start(locals())
        b += issue("K0", group(0, None)) + issue("U0", qunit(0)) + issue("U1", qunit(1))
        b += late + [salu("s_mov_b32", "s52", S_C), salu("s_mov_b32", "s53", S_C)]
        b += [valu("v_accvgpr_write_b32", f"a{r}", 0) for r in range(252, 256)]
        b += [valu("v_mov_b32", f"v{r}", 0) for r in range(L0, L0 + 6)]
        b += [valu("v_mov_b32", "v14", self.FLAG), valu("v_mov_b32", "v15", 0), ds_write("ds_write_b32", "v14", "v15", 0)]
        b += clear("a", OA0, 252) + clear("v", LAST, 256)
        A = self.ahead
        for u in range(2, A):
            b += issue(f"U{u}", qunit(u))
        b += [landed("U0")] + qraw(0) + [barrier()]
        b += [self.kread(0, s_) for s_ in range(6)]
        b += [ds_read("ds_read_b128", R("v", KB + 4 * s_, 4), V_KA, (s_ >> 1) * TAU + (s_ & 1) * 64 + 512) for s_ in range(6)]
        b += issue(f"U{A}", qunit(A))
        b += unpack(0) + scale(0) + pack(0)
        for u in range(1, 6):
            b += self.stamp() if self.touch == 2 and u in (1, 2, 4) else []
            b += [landed(f"U{u}")] + (self.stamp() if (self.touch == 1 and u >= 4) or (self.touch == 2 and u in (1, 2, 4)) else []) + qraw(u)
            if u == 3:
                b += [wait(lgkm=0), barrier()]
            ex = (issue(f"U{u+A}", qunit(u + A)) if u + A < 6 else []) + extras(u)
            sa, sb = soft(u - 1, 0), soft(u - 1, 1)
            b += sched(chains(u - 1), [[Op(x) for x in ex], [Op(x, 4) for x in unpack(u)]])
            b += sa[:4] + sb[:4] + scale(u) + sa[4:] + sb[4:]
            pk_ = pack(u)
            if u == 5:
                z = clear("v", RAW, RAW + 16) + clear("v", OV0 + 80, LAST)
                pk_ = pk_[:8] + z[:1] + pk_[8:16] + z[1:] + pk_[16:]
            b += pk_
        b += [valu("v_add_u32", V_KA, TILE_L, V_KA), valu("v_add_u32", V_VA, TILE_L, V_VA),
              salu("s_mov_b32", S_SLOT, TILE_L), salu("s_add_u32", S_DMA, S_WOFF, (self.D % 5) * TILE_L),
              salu("s_add_u32", S_DLIM, S_WOFF, self.R * TILE_L),
              salu("s_mov_b32", S_KOFF, self.D * TILE_G), salu("s_mov_b32", S_VOFF, (self.D - 1) * TILE_G)]
        st_ = self.stamp if self.touch == 1 else list
        b += st_() + [landed("KV0", lgkm=0)] + st_() + [barrier()]
        ch = chains(5)
        for s_ in range(6):
            b += [ch[s_], self.kread(0, s_)]
        b += [ch[6], self.qread(0), ch[7], self.vread(0, 0, VA0), ch[8], self.vread(0, 1, VA0)] + ch[9:]
        z = clear("v", RAW + 16, OV0 + 80)
        sa = soft(5, 0)
        rest = extras(6) + (group(4, 3) if self.D == 5 else [])
        b += [z[0]] + sa[:3] + [z[1]] + sa[3:5] + [z[2]] + sa[5:] + rest + [z[3]] + soft(5, 1)[:2]
        return b

    def early_start(self, c):
        group, qunit, qraw, unpack, scale, pack = (c[k] for k in ("group", "qunit", "qraw", "unpack", "scale", "pack"))
        issue, landed, late, Q5 = c["issue"], c["landed"], c["late"], c["Q5"]
        assert self.D == 3
        S2 = OV0 + 88
        KT = OV0 + 96
        plan = [int(x) for x in self.provar]

        def kreg(tile, kb, s):
            return Kreg(s) if (tile, kb) == (0, 0) else R("v", KT + 24 * (2 * tile + kb - 1) + 4 * s, 4)

        def sreg(tile, kb):
            return (S2 if tile == 0 else S0) + 4 * kb

        def chains(j):
            o = []
            for tile in range(2):
                for kb in range(2):
                    d = R("v", sreg(tile, kb), 4)
                    for s in range(6):
                        q_ = Qreg(j, s) if s < 5 else R("v", Q5 + 4 * (j % 2), 4)
                        o.append(mfma(d, kreg(tile, kb, s), q_, self.cinit if s == 0 else d))
            return o

        def soft(j, tile, kb):
            r, p = sreg(tile, kb), Preg(tile, j) + 2 * kb
            e = [valu("v_exp_f32", f"v{r+i}", f"v{r+i}") for i in range(4)]
            a = [valu("v_add_f32", f"v{L0+j}", f"v{r+i}", f"v{L0+j}") for i in range(4)]
            cv = [valu("v_cvt_pk_bf16_f32", f"v{p+i}", f"v{r+2*i}", f"v{r+2*i+1}") for i in range(2)]
            return e + [cv[0], a[0], cv[1], a[1], a[2], a[3]]

        def extras(u):
            o = []
            if plan[0] == u:
                o += issue("V0", group(None, 0))
            if plan[1] == u:
                o += issue("G2", group(2, 1))
            return o
        A = self.ahead
        b = issue("K0", group(0, None)) + issue("K1", group(1, None)) + issue("U0", qunit(0))
        b += late + [salu("s_mov_b32", "s52", S_C), salu("s_mov_b32", "s53", S_C)]
        b += [valu("v_mov_b32", f"v{r}", 0) for r in range(L0, L0 + 6)]
        b += [valu("v_mov_b32", "v14", self.FLAG), valu("v_mov_b32", "v15", 0), ds_write("ds_write_b32", "v14", "v15", 0)]
        for u in range(1, A):
            b += issue(f"U{u}", qunit(u))
        b += [landed("U0")] + qraw(0) + [barrier()]
        for tile in range(2):
            for kb in range(2):
                b += [ds_read("ds_read_b128", kreg(tile, kb, s), V_KA,
                              tile * TILE_L + (s >> 1) * TAU + (s & 1) * 64 + kb * 512) for s in range(6)]
        b += extras(0)
        if A < 4:
            b += issue(f"U{A}", qunit(A)) + unpack(0)
        else:
            b += unpack(0) + issue("U4", qunit(4))
        b += scale(0) + pack(0)
        for u in range(1, 6):
            b += (self.stamp() if self.touch == 3 and u == 5 else []) + [landed(f"U{u}")]
            b += (self.stamp() if self.touch == 3 and u == 5 else []) + qraw(u)
            if u == 3:
                b += [landed("V0", lgkm=0) if self.lite >= 2 else wait(lgkm=0), barrier()]
            ex = extras(u) if self.lite >= 2 else []
            ex += issue(f"U{u+A}", qunit(u + A)) if u + A < 6 and A < 4 else []
            ex += extras(u) if self.lite < 2 else []
            sm = [Op(x, 8) for x in soft(u - 1, 0, 0)] + [Op(x, 14) for x in soft(u - 1, 0, 1)]
            sa, sb = soft(u - 1, 1, 0), soft(u - 1, 1, 1)
            mf, vst = chains(u - 1), []
            if u == 3 and self.lite >= 2:
                vb2 = [VA0, VA0 + 4, QBUF]
                for db in range(12):
                    lo = 24 + 2 * (db - 3) + 1 if db >= 3 else 8
                    vst += [Op(self.vread(db, h_, vb2[db % 3], 1), lo, max(lo, 24 + 2 * db - 4)) for h_ in range(2)]
                    mf += [self.pv(db, j, 0, vb2[db % 3], c="0") for j in range(2)]
            b += sched(mf, [[Op(x) for x in ex], sm, [Op(x, 4) for x in unpack(u)], vst])
            if A == 4 and u == 1:
                b += issue("U5", qunit(5))
            b += sa[:4] + sb[:4] + scale(u) + sa[4:] + sb[4:] + pack(u)
        b += [valu("v_add_u32", V_KA, 2 * TILE_L, V_KA), valu("v_add_u32", V_VA, TILE_L, V_VA),
              salu("s_mov_b32", S_SLOT, 2 * TILE_L), salu("s_add_u32", S_DMA, S_WOFF, 4 * TILE_L),
              salu("s_add_u32", S_DLIM, S_WOFF, self.R * TILE_L),
              salu("s_mov_b32", S_KOFF, 4 * TILE_G), salu("s_mov_b32", S_VOFF, 3 * TILE_G)]
        if self.swap:
            b += [salu("s_sub_u32", S_DMAV, S_DMA, S_W16)]
        b += (self.stamp() if self.touch == 3 else []) + [landed("V0", lgkm=0), barrier()] + (self.stamp() if self.touch == 3 else [])
        vb = lambda i: KA0 + 4 * (i % 4) if i < 8 else VA0 + 4 * (i % 2)
        mf = chains(5)
        g0 = len(mf)
        jl = list(range(2 if self.lite >= 2 else 0, NQB))
        W = len(jl)
        for db in range(12):
            mf += [self.pv(db, j, 0, vb(db), c="0") for j in jl]
        sm = [Op(x, 8, g0 - 2) for x in soft(5, 0, 0)] + [Op(x, 14, g0 + W - 4) for x in soft(5, 0, 1)]
        sm += [Op(x, 20) for x in soft(5, 1, 0)] + [Op(x, 27) for x in soft(5, 1, 1)[:10 if self.zig else 2]]
        vst = []
        for db in range(12):
            lo = 6 if db < 4 else (g0 + W * (db - 3) - 1 if db < 8 else (g0 + 8 if db < 10 else g0 + W * (db - 1) - 1))
            vst += [Op(self.vread(db, h, vb(db)), lo, max(lo, g0 + W * db - 6)) for h in range(2)]
        ex = extras(6) + issue("G3", group(3, 2))
        sync = g0 + W * 8
        last = [Op(x, sync - 2, sync - 2) for x in (self.stamp() if self.touch == 3 else [])]
        last += [Op(landed("G2"), sync - 1, sync - 1), Op(barrier(), sync, sync)]
        last += [Op(x, sync + 1, sync + 1) for x in (self.stamp() if self.touch == 3 else [])]
        last += [Op(self.kread(0, s), sync + 1) for s in range(6)] + [Op(self.qread(0), sync + 1)]
        last += [Op(self.vread(0, h, VA0, 1), g0 + W * 11 - 1) for h in range(2)]
        last += [Op(valu("v_add_u32", V_VA, TILE_L, V_VA), g0 + W * 11 - 1)]
        b += sched(mf, [sm, vst, [Op(x, g0 + 2, sync - 2) for x in ex], last])
        return b

    def group_tail(self, js, bufs, first, carry=(), extra=(), fin=(), side=()):
        n = len(js)
        LAT = self.lat
        mf, cstart, gstart = [], [], []
        v = 0
        for c in range(4 * n):
            ph, k = divmod(c, 2 * n)
            jj = js[c % n]
            d = R("v", S0 + 4 * (c % 2), 4)
            cstart.append(len(mf))
            mf += [mfma(d, Kreg(s), Qreg(jj, s), self.cinit if s == 0 else d) for s in range(6)]
            upto = 12 * ph + (k + 1) * 12 // (2 * n)
            if ph == 1 and k < 2 * n - 1:
                upto -= (4 + n - 1) // n * (k + 1) // (2 * n - 1)
            if c == 4 * n - 1:
                upto = 36
            while v < upto:
                gstart.append(len(mf))
                f_, b_ = bufs[v % len(bufs)]
                mf += [self.pv(v % 12, x, (1, 0, 1)[v // 12], b_, f_) for x in (js[::-1] if self.zig and v < 12 else js)]
                v += 1
        sm = [Op(x, 0, gstart[0] + n - 3 if self.zig else cstart[1] - 1) for x in carry]
        dots = [Op(x, gstart[1], gstart[1]) for x in self.dot_ops(1, js)] if self.dot else []
        for c in range(4 * n):
            ph, kb, jj = c // (2 * n), (c // n) % 2, js[c % n]
            sreg = S0 + 4 * (c % 2)
            p = Preg(ph, jj) + 2 * kb
            hi = gstart[12 * (ph + 1)] + js.index(jj) - 2
            if c + 2 < 4 * n:
                hi = min(hi, cstart[c + 2] - 1)
            e = [valu("v_exp_f32", f"v{sreg+i}", f"v{sreg+i}") for i in range(4)]
            a = [valu("v_add_f32", f"v{L0+jj}", f"v{sreg+i}", f"v{L0+jj}") for i in range(4)]
            cv = [valu("v_cvt_pk_bf16_f32", f"v{p+i}", f"v{sreg+2*i}", f"v{sreg+2*i+1}") for i in range(2)]
            lo = cstart[c] + 5 + 3
            for k, x in enumerate(e + [cv[0], a[0], cv[1], a[1], a[2], a[3]]):
                last = c + 2 < 4 * n
                h = hi - (9 - k) // 2 if (last or k < 7) else 10 ** 9
                sm.append(Op(x, lo, max(h, lo)))
        lo = gstart[24] + n
        for x in fin:
            sm.append(Op(x, lo))
            if x.kind == "mfma" and x is [y for y in fin if y.kind == "mfma"][-1]:
                lo = gstart[24] + n + 8
        sync_gap = cstart[n] + 2 if first else -1
        sync, sync2 = [], sync_gap
        if first and self.D == 3:
            for k in range(3, 6):
                m_, d_ = self.dma_pair(k)
                sync += [Op(m_, 2 * k - 5, 2 * k - 5), Op(d_, 2 * k - 4, 2 * k - 4)]
            sync2 = gstart[24 - len(bufs)] - 2
            pf = []
            if self.pref == 2:
                pf = [salu("s_lshr_b32", S_T, "s2", 3), salu("s_lshl_b32", S_T, S_T, 2), salu("s_add_u32", S_T, S_T, S_W),
                      salu("s_min_u32", S_T, S_T, 7), salu("s_lshl_b32", S_T, S_T, 10),
                      salu("s_add_u32", S_T, S_T, "(L_end-L_pc-7168)"),
                      raw(f"v_mbcnt_lo_u32_b32 {T0}, -1, 0", "valu", [], [T0]),
                      raw(f"v_mbcnt_hi_u32_b32 {T0}, -1, {T0}", "valu", [T0], [T0]),
                      valu("v_lshl_add_u32", T0, T0, 4, S_T),
                      I(f"global_load_dword {T1}, {T0}, s[50:51]", "vm_ld", [T0, "s50", "s51"], [T1])]
            sync += [Op(wait(vm=3), sync_gap - 1, sync_gap - 1), Op(barrier(), sync_gap, sync_gap)]
            sync += [Op(x, sync_gap + 1) for x in pf]
            sync += [
                     Op(wait(vm=0), sync2 - 1, sync2 - 1), Op(barrier(), sync2, sync2)]
        elif first:
            sync = [Op(wait(vm=0), sync_gap - 1, sync_gap - 1), Op(barrier(), sync_gap, sync_gap)]
        kst = []
        for st_ in range(1, 4):
            for s in range(6):
                lo = max(cstart[st_ * n - 1] + s, sync_gap + 1 if st_ == 2 else 0)
                kst.append(Op(self.kread(st_ % 2, s, st_ // 2), lo, max(cstart[st_ * n] + s - LAT, lo)))
        qst = [Op(self.qread(js[c % n]), cstart[c - 1] + 5, cstart[c] + 5 - LAT) for c in range(1, 4 * n)]
        vst = []
        pre = []
        for v in range(36):
            f_, b_ = bufs[v % len(bufs)]
            rd = [self.vread(v % 12, h, b_, v // 12, f_) for h in range(2)]
            if v == 0 and first:
                continue
            if v < len(bufs) and not first:
                pre += rd
                continue
            lo = gstart[v - len(bufs)] + n - 1 if v >= len(bufs) else 0
            if v >= 12:
                lo = max(lo, (sync2 if v >= 24 else sync_gap) + 1)
            vst += [Op(x, lo, max(gstart[v] - LAT, lo)) for x in rd]
        if not first:
            pre = [self.kread(0, s) for s in range(6)] + [self.qread(js[0])] + pre
        return pre, sched(mf, [sm, kst, qst, vst, sync, list(extra), dots, [Op(x, gstart[24]) for x in side]])

    def row_sums(self, js, t0):
        b = []
        for op in ("v_permlane32_swap_b32", "v_permlane16_swap_b32"):
            b += [valu("v_mov_b32", f"v{t0+k}", f"v{L0+j}") for k, j in enumerate(js)]
            b += [valu(op, f"v{L0+j}", f"v{t0+k}") for k, j in enumerate(js)]
            b += [valu("v_add_f32", f"v{L0+j}", f"v{L0+j}", f"v{t0+k}") for k, j in enumerate(js)]
        return b

    def range_check(self, js, first):
        b = []
        if first:
            b += [salu("s_mov_b32", S_NEW, f32(2.0 ** 12)), salu("s_mov_b32", S_DELTA, f32(2.0 ** -20)),
                  salu("s_mov_b64", "s[44:45]", 0)]
        for j in js:
            b += [valu("v_cmp_nge_f32", "s[46:47]", S_NEW, f"v{L0+j}"), valu("v_cmp_nle_f32", "s[48:49]", S_DELTA, f"v{L0+j}")]
            b += [salu("s_or_b64", "s[44:45]", "s[44:45]", "s[46:47]"), salu("s_or_b64", "s[44:45]", "s[44:45]", "s[48:49]")]
        return b

    EW = [f"v{P0+i}" for i in range(4)]
    ER = [f"v{P0+4+i}" for i in range(3)]
    EG = f"v{P0+7}"

    def epi_addr_swap(self):
        lane, t = T0, T1
        ew, er, eg = (f"v{P0+i}" for i in range(3))
        b = [raw(f"v_mbcnt_lo_u32_b32 {lane}, -1, 0", "valu", [], [lane]),
             raw(f"v_mbcnt_hi_u32_b32 {lane}, -1, {lane}", "valu", [lane], [lane]),
             salu("s_lshr_b32", S_T, S_W, 1), salu("s_mul_i32", S_T, S_T, 6 * TILE_L),
             salu("s_and_b32", S_SLOT, S_W, 1), salu("s_mul_i32", S_SLOT, S_SLOT, 12288),
             salu("s_add_u32", S_T, S_T, S_SLOT), salu("s_add_u32", S_T, S_T, (2 * TILE_L + 127) // 128 * 128),
             salu("s_and_b32", S_T, S_T, "0xffffff80"),
             valu("v_and_b32", t, 48, lane), valu("v_mul_u32_u24", ew, 96, t), valu("v_lshl_add_u32", er, t, 4, S_T),
             valu("v_and_b32", t, 7, lane), valu("v_lshl_add_u32", ew, t, 4, ew),
             valu("v_and_b32", t, 8, lane), valu("v_add3_u32", ew, ew, t, S_T),
             valu("v_and_b32", t, 28, lane), valu("v_lshl_add_u32", er, t, 2, er),
             valu("v_and_b32", t, 2, lane), valu("v_lshl_add_u32", er, t, 6, er),
             valu("v_and_b32", t, 1, lane), valu("v_lshl_add_u32", er, t, 3, er),
             salu("s_mul_i32", S_T, S_W, 36864), valu("v_lshl_add_u32", eg, lane, 4, S_T)]
        return b

    @staticmethod
    def inv_reg(j):
        return S0 if j == 3 else P0 + 4 + 4 * (j % 4)

    VMAX, VMIN = V_DMA, f"v{P0+3}"

    def inv_rows(self, js, check=None):
        one = f"v{S0+4}"
        b = [valu("v_mov_b32", one, "1.0")]
        if check == "first":
            b += [valu("v_mov_b32", self.VMAX, 0), valu("v_mov_b32", self.VMIN, -1)]
        b += [mfma_f32(R("v", self.inv_reg(j), 4), f"v{L0+j}", one, "0") for j in js]
        for j in js:
            r = self.inv_reg(j)
            if check:
                for op, acc in (("v_max3_u32", self.VMAX), ("v_min3_u32", self.VMIN)):
                    b += [valu(op, acc, acc, f"v{r}", f"v{r+1}"), valu(op, acc, acc, f"v{r+2}", f"v{r+3}")]
            b += [valu("v_rcp_f32", f"v{r+i}", f"v{r+i}") for i in range(4)]
        return b

    def epi_block_swap(self, j, pend, first, step, pk, nxt):
        ew, er = (f"v{P0}", f"v{S0+6}"), (f"v{P0+1}", f"v{S0+7}")
        inv = self.inv_reg(j)
        lead = (2 if ROT_O else 0, self.groups[0])
        b = [valu("v_xor_b32", ew[1], 64, ew[0]), valu("v_xor_b32", er[1], 64, er[0])] if j in lead else []
        temps = [OV0 + 24 + 4 * i for i in range(6)] + [OV0 + 72 + 4 * i for i in range(2)]

        def scale(m):
            X, o = [], []
            for t in range(4):
                src = expand(Oreg(j, 4 * m + t))
                u = []
                if src[0][0] == "a":
                    tmp = temps[(4 * m + t) % 8]
                    u += [valu("v_accvgpr_read_b32", f"v{tmp+i}", src[i]) for i in range(4)]
                    src = regs("v", tmp, 4)
                r0 = int(src[0][1:])
                X.append(r0)
                if pk:
                    u += [I(f"v_pk_mul_f32 {R('v', r0+2*i, 2)}, {R('v', r0+2*i, 2)}, {R('v', inv+2*i, 2)}", "valu",
                            regs("v", r0 + 2 * i, 2) + regs("v", inv + 2 * i, 2), regs("v", r0 + 2 * i, 2)) for i in range(2)]
                else:
                    u += [valu("v_mul_f32", f"v{r0+i}", f"v{r0+i}", f"v{inv+i}") for i in range(4)]
                o.append(u)
            return X, o
        X, o = scale(0)
        b += [x for u in o for x in u]
        k = 0
        for m in range(3):
            Xn, on = scale(m + 1) if m < 2 else (None, [[]] * 4)
            for rq, dst in enumerate((int(T0[1:]), X[0], X[1], X[0] + 2)):
                b += [valu("v_cvt_pk_bf16_f32", f"v{dst}", f"v{X[0]+rq}", f"v{X[1]+rq}"),
                      valu("v_cvt_pk_bf16_f32", f"v{dst+1}", f"v{X[2]+rq}", f"v{X[3]+rq}"),
                      ds_write("ds_write_b64", ew[((3 * rq + m) >> 1) & 1], R("v", dst, 2), (j % 2) * 6144 + rq * 384 + m * 128)]
                if k >= first and (k - first) % step == 0 and pend:
                    b += pend.pop(0)
                b += on[rq]
                k += 1
            X = Xn
        for i in range(6):
            o = expand(Oreg(j, i))
            b += [ds_read("ds_read_b64_tr_b16", R(o[0][0], int(o[0][1:]) + 2 * h, 2), er[h], (j % 2) * 6144 + i * 1024)
                  for h in range(2)]
        return b

    def epi_addr(self):
        if self.swap:
            return self.epi_addr_swap()
        lane, t, u = T0, T1, V_DMA
        b = [raw(f"v_mbcnt_lo_u32_b32 {lane}, -1, 0", "valu", [], [lane]),
             raw(f"v_mbcnt_hi_u32_b32 {lane}, -1, {lane}", "valu", [lane], [lane]),
             salu("s_lshr_b32", S_T, S_W, 1), salu("s_mul_i32", S_T, S_T, 6 * TILE_L),
             salu("s_and_b32", S_SLOT, S_W, 1), salu("s_mul_i32", S_SLOT, S_SLOT, 12288),
             salu("s_add_u32", S_T, S_T, S_SLOT), salu("s_add_u32", S_T, S_T, (2 * TILE_L + 127) // 128 * 128),
             salu("s_and_b32", S_T, S_T, "0xffffff80"),
             valu("v_and_b32", t, 15, lane), valu("v_mul_u32_u24", u, 384, t), valu("v_add_u32", u, S_T, u),
             valu("v_bfe_u32", t, lane, 4, 1), valu("v_lshl_add_u32", u, t, 3, u),
             valu("v_lshrrev_b32", t, 5, lane), valu("v_xor_b32", t, t, lane), valu("v_and_b32", t, 7, t),
             valu("v_lshl_add_u32", self.EW[0], t, 4, u)]
        b += [valu("v_xor_b32", self.EW[i], 32 * i, self.EW[0]) for i in range(1, 4)]
        for i in range(3):
            r = self.ER[i]
            b += [valu("v_add_u32", r, 64 * i, lane), valu("v_mul_u32_u24", t, 2731, r),
                  valu("v_lshrrev_b32", t, 16, t), valu("v_xor_b32", r, r, t), valu("v_lshl_add_u32", r, r, 4, S_T)]
        b += [salu("s_mul_i32", S_T, S_W, 36864), valu("v_lshl_add_u32", self.EG, lane, 4, S_T)]
        return b

    def epi_stores(self, j):
        o = []
        for i in range(6):
            pre = [salu("s_mov_b32", S_T, j * 6144 + i * 1024)] if i % 4 == 0 else []
            o.append(pre + [buf_store(Oreg(j, i), f"v{P0+2}" if self.swap else self.EG, SRD_O, S_T, (i % 4) * 1024, self.opol if j < self.olast else self.opol2)])
        return o

    def epi_block(self, j, pend, first=3, step=1, pk=None, nxt=None):
        if self.swap:
            return self.epi_block_swap(j, pend, first, step, self.pk if pk is None else pk, nxt)
        b = []
        for db in range(12):
            src = expand(Oreg(j, db))
            if src[0][0] == "a":
                t = OV0 + 24 + 4 * (db % 6)
                b += [valu("v_accvgpr_read_b32", f"v{t+i}", src[i]) for i in range(4)]
                src = [f"v{t+i}" for i in range(4)]
            if self.pk if pk is None else pk:
                r0, lp = int(src[0][1:]), (L0 + j) & ~1
                sel = "op_sel:[0,1] op_sel_hi:[1,1]" if (L0 + j) & 1 else "op_sel_hi:[1,0]"
                b += [I(f"v_pk_mul_f32 {R('v', r0+2*i, 2)}, {R('v', r0+2*i, 2)}, {R('v', lp, 2)} {sel}", "valu",
                        regs("v", r0 + 2 * i, 2) + regs("v", lp, 2), regs("v", r0 + 2 * i, 2)) for i in range(2)]
            else:
                b += [valu("v_mul_f32", src[i], src[i], f"v{L0+j}") for i in range(4)]
            b += [valu("v_cvt_pk_bf16_f32", src[i], src[2 * i], src[2 * i + 1]) for i in range(2)]
            b += [ds_write("ds_write_b64", self.EW[db & 3], R("v", int(src[0][1:]), 2), (j % 2) * 6144 + (db >> 2) * 128)]
            if db >= first and (db - first) % step == 0 and pend:
                b += pend.pop(0)
        b += [ds_read("ds_read_b128", Oreg(j, i), self.ER[i % 3], (j % 2) * 6144 + (i // 3) * 3072) for i in range(6)]
        return b

    def epi_all(self, js, pend, fetch=False):
        b = []
        for j in js:
            b += self.epi_block(j, pend, nxt=j + 1 if fetch and j + 1 in js else None)
            b += [x for p in pend for x in p]
            pend = self.epi_stores(j)
        return b + [x for p in pend for x in p]

    def rcp(self, js):
        return [valu("v_rcp_f32", f"v{L0+j}", f"v{L0+j}") for j in js]

    def epilogue_plain(self):
        js = list(range(NQB))
        if not self.swap:
            return self.row_sums(js, S0) + self.rcp(js) + self.epi_addr() + self.epi_all(js, [])
        k = self.groups[0]
        b = self.epi_addr() + self.inv_rows(js[:k]) + self.epi_all([2, 3, 0, 1] if ROT_O else js[:k], [])
        return b + self.inv_rows(js[k:]) + self.epi_all(js[k:], [])

    def tail(self, carry):
        groups, k = [], 0
        for n in self.groups:
            groups.append(list(range(k, k + n)))
            k += n
        assert k == NQB and groups[0][-1] < 4 and len(groups[0]) >= 2
        assert not self.swap or self.groups == [4, 2]
        bufs0 = [("a", VA0), ("a", VA0 + 4), ("v", Preg(0, 4)), ("v", Preg(0, 5))]
        bufs1 = [("a", VA0), ("a", VA0 + 4), ("a", 0), ("a", 4)]
        def fin(gi):
            js = groups[gi]
            if not self.swap:
                o = self.row_sums(js, S0) + self.range_check(js, gi == 0) + self.rcp(js)
                return o + (self.epi_addr() if gi == 0 else [])
            return self.inv_rows(js, "more" if gi else "first")
        side = self.epi_addr() if self.swap else []
        side += [salu("s_mov_b32", S_NEW, f32(2.0 ** 12)), salu("s_mov_b32", S_DELTA, f32(2.0 ** -20))] if self.swap else []
        _, b = self.group_tail(groups[0], bufs0, True, carry, (), fin(0), side)
        left = []
        for gi, js in enumerate(groups):
            last = gi == len(groups) - 1
            b += self.stamp() if gi in (0, len(groups) - 1) and self.touch < 2 else []
            if last:
                b += self.epi_all(js, left)
                break
            nxt = groups[gi + 1]
            nb = min(self.eblock or len(js), len(js))
            if ROT_O and gi == 0:
                js = [2, 3, 0, 1]
            for x, j in enumerate(js[:nb]):
                if x == nb - 1:
                    pos = len(b)
                b += self.epi_block(j, left, 2, self.estep)
                left += self.epi_stores(j)
            nm = 60 * len(nxt)
            woven = []
            for j in js[nb:]:
                woven += self.epi_block(j, left, 2, self.estep, pk=0)
                left += self.epi_stores(j)
            g0 = nm * self.efrac // 100 if woven else 0
            extra = [Op(x, k * g0 // len(woven), k * g0 // len(woven)) for k, x in enumerate(woven)]
            take = min(len(left), max(0, (nm - g0 - 4) // self.espace))
            extra += [Op(x, g0 + 4 + self.espace * i, g0 + 4 + self.espace * i) for i, p in enumerate(left[:take]) for x in p]
            left = left[take:]
            pre, t1 = self.group_tail(nxt, bufs1, False, (), extra, fin(gi + 1))
            b[pos:pos] = pre
            b += t1
        if self.swap:
            b += [valu("v_cmp_lt_u32", "s[44:45]", S_NEW, self.VMAX), valu("v_cmp_gt_u32", "s[46:47]", S_DELTA, self.VMIN),
                  salu("s_or_b64", "s[44:45]", "s[44:45]", "s[46:47]")]
        b += [salu("s_cmp_eq_u64", "s[44:45]", 0), branch("s_cbranch_scc1", "L_inrange"),
              valu("v_mov_b32", T0, self.FLAG), valu("v_mov_b32", T1, 1), ds_write("ds_write_b32", T0, T1, 0),
              label("L_inrange")]
        b += [wait(lgkm=0), barrier(), valu("v_mov_b32", T1, self.FLAG), ds_read("ds_read_b32", T1, T1, 0),
              valu("v_readfirstlane_b32", S_T, T1), salu("s_cmp_lg_u32", S_T, 0), branch("s_cbranch_scc1", "L_slow")]
        return b

    def stamp_out(self):
        if not self.stamps:
            return ""
        n = 4 + 2 * self.nstamp
        s = "  s_waitcnt vmcnt(0)\n  s_barrier\n  s_memrealtime s[60:61]\n  s_memtime s[62:63]\n  s_waitcnt lgkmcnt(0)\n"
        s += f"  s_cmp_lg_u32 {S_W}, 0\n  s_cbranch_scc1 L_end\n  s_mov_b64 exec, 1\n"
        if self.stamps == "prof":
            s += f"  s_mov_b64 exec, 0xffffffff\n  v_mbcnt_lo_u32_b32 v1, -1, 0\n  v_lshlrev_b32 v1, 2, v1\n  v_add_u32 v2, {self.FLAG + 8}, v1\n  ds_read_b32 v2, v2\n"
            s += f"  s_lshl_b32 s3, s2, 7\n  v_add_u32 v1, s3, v1\n  v_add_u32 v1, 0x100000, v1\n  s_waitcnt lgkmcnt(0)\n  global_store_dword v1, v2, s[14:15]\n  s_mov_b64 exec, 1\n"
        if self.stamps == "dbg":
            s += "  v_mov_b32 v1, 0\n  v_mov_b32 v2, s60\n  global_atomic_umax v1, v2, s[12:13]\n"
            s += "  s_not_b32 s3, s56\n  v_mov_b32 v3, s3\n  global_atomic_umax v1, v3, s[12:13] offset:4\n"
            s += "  v_mov_b32 v4, s56\n  global_atomic_umax v1, v4, s[12:13] offset:8\n"
            s += "  s_cmp_lg_u32 s2, 100\n  s_cbranch_scc1 L_end\n"
            vals = [(66 + 4 * i, 56) for i in range(self.nstamp)] + [(60, 56)] + [(64 + 4 * i, 58) for i in range(self.nstamp)] + [(62, 58)]
            for i, (x, y) in enumerate(vals):
                s += f"  s_sub_u32 s3, s{x}, s{y}\n  v_mov_b32 v2, s3\n  global_store_dword v1, v2, s[12:13] offset:{16+4*i}\n"
            return s
        s += f"  s_mul_i32 s3, s2, {8*n}\n  v_mov_b32 v1, s3\n"
        for i in range(n):
            r = 56 + 2 * i
            s += f"  v_mov_b32 v2, s{r}\n  v_mov_b32 v3, s{r+1}\n  global_store_dwordx2 v1, v[2:3], s[14:15] offset:{8*i}\n  s_nop 1\n"
        return s

    def build(self, verbose=False):
        ROT = 8
        pro = self.prologue()
        mfE, gE, tailE = self.period(0)
        mfO, gO, _ = self.period(1)
        if self.stamps == "prof":
            for gg in (gE, gO):
                gg[12 * 2 + 7] += [valu("v_mov_b32", T0, "s52"), valu("v_add_u32", T1, 4, T1)]
                gg[12 * 2 + 8] += [raw("s_memrealtime s[52:53]"), ds_write("ds_write_b32", T1, T0, 0)]
            pro += [valu("v_mov_b32", T1, self.FLAG + 4), raw("s_memrealtime s[52:53]")]
        gE[12 * 11 + 7].append(salu("s_cmp_eq_u32", S_CNT, 0))
        exit_tail = gE[143] + tailE
        gE[143] = [branch("s_cbranch_scc1", "L_drain")] + gE[143]
        gO[12 * 11 + 7].append(salu("s_sub_u32", S_CNT, S_CNT, 1))
        fill = self.stamp()
        log = []
        pro, st = fix(pro + fill, State(), hoist=bool(self.early))
        if self.early:
            head = self.flat(mfO, gO, 0, ROT)
            if self.zig:
                head = [x for x in head if not (x.is_valu and x.rd & set(regs("v", S0 + 4, 4)))] + [nop(1)]
            body = self.flat(mfO, gO, ROT, 144) + self.flat(mfE, gE, 0, 144) + self.flat(mfO, gO, 0, ROT)
        else:
            head = self.flat(mfE, gE, 0, ROT)
            body = self.flat(mfE, gE, ROT, 144) + self.flat(mfO, gO, 0, 144) + self.flat(mfE, gE, 0, ROT)
        body.append(branch("s_branch", "L_top"))
        head1, st1 = fix(head, st, hoist=True)
        body1, st2 = fix(body, st1, hoist=True, log=log)
        body2, st3 = fix(body1, st2, hoist=True, log=log)
        errs, _ = verify(pro + head1 + body2 + body2 + body2)
        assert not errs, errs[:10]
        kx = next(i for i, x in enumerate(body2) if x.kind == "branch")
        _, stx = verify(pro + head1 + body2 + body2[:kx + 1])
        post = self.stamp() + self.tail(exit_tail)
        post, _ = fix(post, stx, hoist=True)
        errs, _ = verify(pro + head1 + body2[:kx + 1] + post)
        assert not errs, errs[:10]
        if verbose:
            tot, over = estimate(body2)
            print("loop estimate cycles (288 mfma, ideal 4608):", tot)
            for o in over:
                print("  over:", o)
            print("  inserted:", [x for x in log if x[0] == "nop"])
            print("  waits:", len([x for x in log if x[0] == "wait"]), "instrs:", len(body2))
            tot, over = estimate(post)
            print("tail estimate:", tot, "mfma:", sum(x.kind == "mfma" for x in post), "instrs:", len(post))
            print("  over:", [(o[0], o[1]) for o in over])
        self.njit = 0

        def jit(block):
            if not self.jitter:
                return block
            mask, where, amount = self.jitter.split(",")
            out = []
            for x in block:
                if x.kind != "barrier":
                    out.append(x)
                    continue
                self.njit += 1
                lab = f"L_jit{self.njit}"
                nap = [raw("s_cselect_b32 s99, 1, 0"), raw(f"s_lshl_b32 s98, 1, {S_W}"), raw(f"s_and_b32 s98, s98, {mask}"),
                       raw(f"s_cbranch_scc0 {lab}"), raw(f"s_sleep {amount}"), label(lab), raw("s_cmp_lg_u32 s99, 0")]
                out += nap + [x] if where == "b" else [x] + nap
            return out
        text = "  ; prologue: addresses, descriptors, Q staging and scaling, QK of tiles 0 and 1, PV of tile 0\n" + emit(jit(pro + head1))
        text += "  ; main loop: two periods per trip\n.p2align 6\nL_top:\n" + emit(jit(body2))
        text += "  ; last two tiles per group of query blocks, range check, output\nL_drain:\n" + emit(jit(post))
        text += self.stamp_out() + "L_end:\n  s_endpgm\n"
        setup, maxl, mid, main, epi = self.slow_path()
        st = State()
        blocks = []
        for blk, loop in ((setup, False), (maxl, True), (mid, False), (main, True), (epi, False)):
            blk, st = fix(blk, st)
            if loop:
                blk, st = fix(blk, st)
            blocks.append(blk)
        setup, maxl, mid, main, epi = blocks
        errs, _ = verify(post + setup + maxl + maxl + mid + main + main + epi)
        assert not errs, errs[:10]
        text += "  ; fallback: reload Q unscaled\nL_slow:\n" + emit(setup)
        text += "  ; fallback pass 1: true row maximum\nL_slow_max:\n" + emit(maxl) + emit(mid)
        text += "  ; fallback pass 2: P = exp2(c*S - c*max), O += P V\nL_slow_main:\n" + emit(main)
        text += emit(epi) + "  s_endpgm\n"
        return wrap(text, 256, 256, self.lds, 512, 256, extra_comment=DOC)


if __name__ == "__main__":
    ap = argparse.ArgumentParser()
    ap.add_argument("-o", default="k.s")
    ap.add_argument("--stamps", default="")
    ap.add_argument("--ring", type=int, default=5)
    ap.add_argument("--pol", default="nt")
    ap.add_argument("--opol", default="nt")
    ap.add_argument("--abl", default="")
    ap.add_argument("--pref", type=int, default=1)
    ap.add_argument("--qpol", default="nt")
    ap.add_argument("--dist", type=int, default=3)
    ap.add_argument("--dpos", default="s")
    ap.add_argument("--pk", type=int, default=1)
    ap.add_argument("--lat", type=int, default=7)
    ap.add_argument("--jitter", default="")
    ap.add_argument("--ahead", type=int, default=3)
    ap.add_argument("--dot", type=int, default=0)
    ap.add_argument("--early", type=int, default=1)
    ap.add_argument("--eblock", type=int, default=0)
    ap.add_argument("--efrac", type=int, default=80)
    ap.add_argument("--opol2", default="nt")
    ap.add_argument("--olast", type=int, default=4)
    ap.add_argument("--swap", type=int, default=1)
    ap.add_argument("--lite", type=int, default=0)
    ap.add_argument("--zig", type=int, default=0)
    ap.add_argument("--spread", type=int, default=0)
    ap.add_argument("--remap", type=int, default=1)
    ap.add_argument("--touch", type=int, default=0)
    ap.add_argument("--groups", default="42")
    ap.add_argument("--estep", type=int, default=2)
    ap.add_argument("--espace", type=int, default=9)
    ap.add_argument("--provar", default="45")
    ap.add_argument("-v", action="store_true")
    a = ap.parse_args()
    SPREAD = bool(a.spread)
    ROT_O = 4 if a.lite else 0
    g = Gen(ring=a.ring, pol=a.pol, opol=a.opol, stamps=a.stamps, abl=a.abl, provar=a.provar, groups=a.groups, estep=a.estep, espace=a.espace, pref=a.pref, remap=a.remap, touch=a.touch, qpol=a.qpol, dist=a.dist, dpos=a.dpos, pk=a.pk, lat=a.lat, jitter=a.jitter, ahead=a.ahead, dot=a.dot, early=a.early, eblock=a.eblock, efrac=a.efrac, opol2=a.opol2, olast=a.olast, swap=a.swap, lite=a.lite, zig=a.zig)
    open(a.o, "w").write(g.build(a.v))
```

```python
import argparse
import math
import struct
from fw import *
from asmlib import wrap

NQB = 6
TILE_G = 12288
TAU = 4192
TILE_L = 3 * TAU
HEAD_Q = 147456
HEAD_KV = 393216

V_KA, V_VA, V_DMA, V_QA = "v0", "v1", "v2", "v3"
L0 = 4
T0, T1 = "v10", "v11"
S0 = 12
P0 = 20
OV0, NOV = 68, 47
QA0 = 0
QBUF = 120
KA0 = 124
VA0 = 148
OA0 = 156
SRD_K, SRD_V, SRD_Q, SRD_O = "s[16:19]", "s[20:23]", "s[24:27]", "s[28:31]"
S_W, S_KOFF, S_VOFF, S_DMA, S_SLOT, S_NEW, S_DELTA, S_CNT, S_C, S_WOFF, S_T = (f"s{i}" for i in range(32, 43))
S_DLIM = "s54"
S_ONE = "s55"
S_DMAV, S_WOFFV, S_W16 = "s96", "s97", "s3"


def f32(x):
    return "0x%08x" % struct.unpack("<I", struct.pack("<f", x))[0]


SPREAD = False


ROT_O = 0


def Oreg(j, db):
    if not SPREAD:
        n = (j + ROT_O) % 6 * 12 + db
        return R("v", OV0 + 4 * n, 4) if n < NOV else R("a", OA0 + 4 * (n - NOV), 4)
    return Oreg2(j, db)


def Oreg2(j, db):
    if db >= 8:
        return R("a", OA0 + 4 * (j * 4 + db - 8), 4)
    n = j * 8 + db
    return R("v", OV0 + 4 * n, 4) if n < NOV else R("a", OA0 + 4 * 24, 4)


def Qreg(j, s):
    return R("a", QA0 + 4 * (j * 5 + s), 4) if s < 5 else R("a", QBUF, 4)


def Kreg(s):
    return R("a", KA0 + 4 * s, 4)


def Preg(par, j):
    return P0 + 24 * par + 4 * j


DOC = """;
; Matrix work is v_mfma_f32_16x16x32_bf16: S^T = K Q^T leaves one query per lane, which is the A-operand layout
;
;
; three tiles ahead, one barrier per period. The last two tiles run per group of query blocks (4, then 2) so
; the first output stores overlap the remaining matrix work. One f32 MFMA per query block adds the partial row
;
;
"""


class Gen:
    def __init__(self, ring=5, pol="nt", opol="", stamps=False, cinit="-4.0", abl="", provar="356", groups="42", estep=2, espace=9, pref=1, remap=1, touch=0, qpol="nt", dist=3, dpos="s", pk=1, lat=7, jitter="", ahead=3, dot=0, early=0, eblock=0, efrac=80, opol2="nt", olast=4, swap=0, lite=0, zig=0):
        self.zig = zig
        self.lite = lite
        self.swap = swap
        self.opol2, self.olast = opol2, olast
        self.eblock, self.efrac = eblock, efrac
        self.early = early
        self.dot = dot
        self.ahead = ahead
        self.jitter = jitter
        self.lat = lat
        self.pk = pk
        self.dpos = dpos
        self.D = dist
        self.qpol = qpol
        self.remap, self.touch = remap, touch
        self.pref = pref
        self.groups, self.estep, self.espace = [int(c) for c in groups], estep, espace
        self.provar = provar
        self.abl = abl
        self.R = ring
        self.pol, self.opol, self.stamps, self.cinit = pol, opol, stamps, cinit
        self.VBASE = ring * TILE_L
        assert ring == 5
        self.QBASE = (2 * ring + 1) * TILE_L
        self.FLAG = self.QBASE + 24576
        self.lds = self.FLAG + 256
        self.nstamp = 0

    def stamp(self):
        if not self.stamps:
            return []
        r = 64 + 4 * self.nstamp
        self.nstamp += 1
        return [raw(f"s_memtime s[{r}:{r+1}]", "salu"), raw(f"s_memrealtime s[{r+2}:{r+3}]", "salu")]

    def kread(self, kb, s, slot=0):
        return ds_read("ds_read_b128", Kreg(s), V_KA, slot * TILE_L + (s >> 1) * TAU + (s & 1) * 64 + kb * 512)

    def vread(self, db, half, base, slot=0, file="a"):
        return ds_read("ds_read_b64_tr_b16", R(file, base + 2 * half, 2), V_VA,
                       slot * TILE_L + (db >> 2) * TAU + (db & 3) * (16 if self.swap else 32) + half * 512)

    def qread(self, j):
        return ds_read("ds_read_b128", R("a", QBUF, 4), V_QA, j * 1024)

    def dma_pair(self, k, base_sgpr=S_DMA, koff=S_KOFF, voff=S_VOFF, slot_off=0):
        tau = k % 3
        isv = k >= 3
        imm = (self.VBASE if isv else 0) + slot_off + tau * TAU - tau * 128
        if isv and self.swap:
            base_sgpr = {S_DMA: S_DMAV, S_WOFF: S_WOFFV}[base_sgpr]
        return (salu("s_add_u32", "m0", base_sgpr, imm),
                buf_dma(V_DMA, SRD_V if isv else SRD_K, voff if isv else koff, tau * 128, self.pol))

    def jof(self, n):
        n %= 12
        return 11 - n if self.zig and n >= 6 else n % 6

    def softmax_ops(self, n, ppar):
        kb, j = (n % 12) // 6, self.jof(n)
        s = S0 + 4 * (n % 2)
        p = Preg(ppar, j) + 2 * kb
        e = [valu("v_exp_f32", f"v{s+i}", f"v{s+i}") for i in range(4)]
        a = [valu("v_add_f32", f"v{L0+j}", f"v{s+i}", f"v{L0+j}") for i in range(4)]
        c = [valu("v_cvt_pk_bf16_f32", f"v{p+i}", f"v{s+2*i}", f"v{s+2*i+1}") for i in range(2)]
        return e, a, c

    def dot_ops(self, par, js):
        return [I(f"v_dot2c_f32_bf16 v{L0+j}, {S_ONE}, v{Preg(par, j)+i}", "valu",
                  [S_ONE, f"v{Preg(par, j)+i}", f"v{L0+j}"], [f"v{L0+j}"]) for i in range(4) for j in js]

    def qk(self, n, s):
        j = self.jof(n)
        d = R("v", S0 + 4 * (n % 2), 4)
        return mfma(d, Kreg(s), Qreg(j, s), self.cinit if s == 0 else d)

    def pv(self, db, j, par, vbase, file="a", c=None):
        if self.swap:
            return mfma(Oreg(j, db), R("v", Preg(par, j), 4), R(file, vbase, 4), c or Oreg(j, db))
        if c:
            return mfma(Oreg(j, db), R(file, vbase, 4), R("v", Preg(par, j), 4), c)
        return mfma(Oreg(j, db), R(file, vbase, 4), R("v", Preg(par, j), 4), Oreg(j, db))

    def period(self, par, fill=False):
        N = 144
        sc = [[] for _ in range(N + 12)]
        mem = [[] for _ in range(N + 12)]
        va = [[] for _ in range(N + 12)]
        heavy = lambda n: n % 6 == 5
        for n in range(-1, 12):
            if n == -1 and fill:
                continue
            e, a, c = self.softmax_ops(n, par if n == -1 else 1 - par)
            g = 12 * n
            if heavy(n):
                plan = [(10, e[0]), (11, e[1]), (12, e[2]), (13, e[3]), (14, a[0]), (15, a[1]), (16, c[0]), (16, a[2]),
                        (17, a[3]), (18, c[1])]
            elif heavy(n + 1):
                plan = [(9, e[0]), (10, e[1]), (11, e[2]), (12, e[3]), (13, a[0]), (14, a[1]), (15, c[0]), (16, a[2]),
                        (17, a[3]), (18, c[1])]
            else:
                plan = [(9, e[0]), (10, e[1]), (11, e[2]), (12, e[3]), (13, a[0]), (14, a[1]), (15, c[0]), (16, a[2]),
                        (17, a[3]), (19, c[1])]
            for o, ins in plan:
                if g + o >= 0 and not (self.dot and ins.text.startswith("v_add_f32")):
                    va[g + o].append(ins)
        for n in range(12):
            g = 12 * n
            nv = (n + 1) % 12
            vb = VA0 + 4 * ((n + 1) % 2)
            tpos = (8, 9) if heavy(n) else ((2, 3) if heavy(n - 1) else (1, 2))
            if not fill or n == 11:
                for h in range(2):
                    mem[g + tpos[h]].append(self.vread(nv, h, vb))
            if self.jof(n + 1) != self.jof(n):
                mem[g + (7 if heavy(n) else 5)].append(self.qread(self.jof(n + 1)))
            if heavy(n):
                for s in range(6):
                    mem[g + 1 + s].append(self.kread(1 if n == 5 else 0, s))
        if not fill:
            pos = {"s": [(1, 6), (2, 6), (3, 6), (4, 6), (7, 6), (8, 6)],
                   "e": [(0, 8), (1, 6), (1, 8), (2, 6), (2, 8), (3, 6)],
                   "m": [(0, 8), (1, 6), (2, 6), (3, 6), (4, 6), (6, 8)],
                   "l": [(4, 6), (6, 8), (7, 6), (7, 8), (8, 6), (8, 8)]}[self.dpos]
            for k, (n, o) in enumerate(pos):
                m, d = self.dma_pair(k)
                sc[12 * n + o - 1].append(m)
                mem[12 * n + o].append(d)
        if self.dot:
            dots = self.dot_ops(par, range(NQB))
            k = len(dots) // self.dot
            for i_, n in enumerate({1: (3,), 2: (2, 8), 3: (2, 4, 8), 6: (1, 2, 3, 7, 8, 9)}[self.dot]):
                va[12 * n + 8] += dots[i_ * k:(i_ + 1) * k]
        g = 12 * 9
        book = [salu("s_add_u32", S_DMA, S_DMA, TILE_L),
                salu("s_cmp_eq_u32", S_DMA, S_DLIM),
                salu("s_cselect_b32", S_DMA, S_WOFF, S_DMA),
                salu("s_add_u32", S_NEW, S_SLOT, TILE_L),
                salu("s_cmp_eq_u32", S_NEW, self.R * TILE_L),
                salu("s_cselect_b32", S_NEW, 0, S_NEW),
                salu("s_sub_u32", S_DELTA, S_NEW, S_SLOT),
                salu("s_mov_b32", S_SLOT, S_NEW),
                salu("s_add_u32", S_KOFF, S_KOFF, TILE_G), salu("s_add_u32", S_VOFF, S_VOFF, TILE_G)]
        for o, ins in zip((0, 1, 2, 3, 6, 7, 8, 9, 10, 11), book):
            sc[g + o].append(ins)
        if self.swap:
            sc[g + 12].append(salu("s_sub_u32", S_DMAV, S_DMA, S_W16))
        g = 12 * 10
        va[g + 6] += [valu("v_add_u32", V_KA, S_DELTA, V_KA), valu("v_add_u32", V_VA, S_DELTA, V_VA)]
        sc[g + 7].append(wait(vm=6 * (self.D - 2), lgkm=1))
        sc[g + 8].append(barrier())
        mf = []
        for n in range(12):
            mf += [self.qk(n, s) for s in range(6)]
            mf += [self.pv(n, j, par, VA0 + 4 * (n % 2)) for j in ((5, 4, 3, 2, 1, 0) if self.zig else range(6))]
        if not fill and "z" in self.abl:
            for n in range(12):
                for k in range(6):
                    jj = 3 * (n % 2) + k // 2
                    h = ((k + 1) // 2) % 2
                    mf[12 * n + 6 + k] = mfma(Oreg(jj, (n & ~1) + h), R("a", VA0 + 4 * h, 4), R("v", Preg(par, jj), 4), Oreg(jj, (n & ~1) + h))
        if not fill and "s" in self.abl:
            for n in range(12):
                for k in range(6):
                    mf[12 * n + 6 + k] = mfma(Oreg(k, n), R("v", Preg(par, k), 4), R("a", VA0 + 4 * (n % 2), 4), Oreg(k, n))
        if not fill and self.abl:
            def keep(x):
                t = x.text
                if "e" in self.abl and t.startswith("v_exp"): return False
                if "a" in self.abl and t.startswith("v_add_f32"): return False
                if "c" in self.abl and t.startswith("v_cvt"): return False
                if "k" in self.abl and x.kind == "lds_rd" and V_KA in x.rd: return False
                if "v" in self.abl and x.kind == "lds_rd" and V_VA in x.rd: return False
                if "q" in self.abl and x.kind == "lds_rd" and V_QA in x.rd: return False
                if "d" in self.abl and x.kind == "dma": return False
                if "b" in self.abl and x.kind == "barrier": return False
                return True
            mem = [[x for x in g_ if keep(x)] for g_ in mem]
            va = [[x for x in g_ if keep(x)] for g_ in va]
            sc = [[x for x in g_ if keep(x)] for g_ in sc]
            if "c" in self.abl:
                mf = [m if (i % 12) < 6 else self.pv(i // 12, i % 12 - 6, 0, VA0 + 4 * ((i // 12) % 2)) for i, m in enumerate(mf)]
        gaps = [sc[i] + mem[i] + va[i] for i in range(N)]
        tail = [x for i in range(N, N + 12) for x in va[i]]
        return mf, gaps, tail

    @staticmethod
    def flat(mf, gaps, lo, hi):
        out = []
        for i in range(lo, hi):
            if mf[i] is not None:
                out.append(mf[i])
            out += gaps[i]
        return out

    def addr_setup(self, lane, w):
        b = [valu("v_lshrrev_b32", "v6", 4, lane), valu("v_lshlrev_b32", "v6", 3, "v6"),
             valu("v_bfe_u32", "v7", lane, 3, 1), valu("v_add_u32", "v6", "v6", "v7"),
             valu("v_lshl_add_u32", "v6", w, 1, "v6"), valu("v_mul_u32_u24", "v6", 384, "v6"),
             valu("v_and_b32", "v7", 7, lane), valu("v_lshl_add_u32", V_DMA, "v7", 4, "v6")]

        def lds_row(dst, key, pitch=1056):
            return [valu("v_bfe_u32", "v8", key, 1, 2), valu("v_mul_u32_u24", "v8", pitch, "v8"),
                    valu("v_lshrrev_b32", "v9", 3, key), valu("v_lshlrev_b32", "v9", 1, "v9"),
                    valu("v_and_b32", dst, 1, key), valu("v_add_u32", "v9", "v9", dst),
                    valu("v_lshl_add_u32", dst, "v9", 7, "v8")]
        b += [valu("v_and_b32", "v6", 15, lane), valu("v_lshrrev_b32", "v7", 4, lane)]
        b += lds_row(V_KA, "v6") + [valu("v_lshl_add_u32", V_KA, "v7", 4, V_KA)]
        b += [valu("v_lshrrev_b32", "v6", 2, lane)] + lds_row(V_VA, "v6", 1040 if self.swap else 1056)
        if self.swap:
            b += [valu("v_and_b32", "v6", 1, lane), valu("v_lshl_add_u32", V_VA, "v6", 3, V_VA),
                  valu("v_bfe_u32", "v6", lane, 1, 1), valu("v_lshl_add_u32", V_VA, "v6", 6, V_VA)]
        else:
            b += [valu("v_and_b32", "v6", 3, lane), valu("v_lshl_add_u32", V_VA, "v6", 3, V_VA)]
        b += [valu("v_add_u32", V_VA, self.VBASE, V_VA)]
        return b

    def slow_path(self):
        M = ["v16", "v17", "v18", "v19", T0, T1]
        S = S0
        SD = R("v", S, 4)
        QL = Preg(1, 0)
        lane, w, vq = "v4", "v5", V_QA

        def qreg(j, s):
            return Qreg(j, s) if s < 5 else R("v", QL + 4 * j, 4)
        setup = [wait(vm=0, lgkm=0), barrier(),
                 raw(f"v_mbcnt_lo_u32_b32 {lane}, -1, 0", "valu", [], [lane]),
                 raw(f"v_mbcnt_hi_u32_b32 {lane}, -1, {lane}", "valu", [lane], [lane]),
                 valu("v_mov_b32", w, S_W)]
        setup += self.addr_setup(lane, w)
        setup += [valu("v_mul_u32_u24", vq, 96, w), valu("v_and_b32", "v6", 15, lane), valu("v_add_u32", vq, vq, "v6"),
                  valu("v_mul_u32_u24", vq, 384, vq), valu("v_lshl_add_u32", vq, "v7", 4, vq)]
        for j in range(NQB):
            setup.append(salu("s_mov_b32", S_T, j * 16 * 384))
            setup += [buf_load(qreg(j, s), vq, SRD_Q, S_T, s * 64) for s in range(6)]
        setup += [wait(vm=0)]
        setup += [valu("v_mov_b32", m, "0xff800000") for m in M]
        setup += [salu("s_mov_b32", S_KOFF, 0)]

        def load(with_v):
            o = []
            for k in range(6 if with_v else 3):
                o += list(self.dma_pair(k, S_WOFF, S_KOFF, S_KOFF))
            return o + [wait(vm=0), barrier()]

        def chain(j):
            return [mfma(SD, Kreg(s), qreg(j, s), "0" if s == 0 else SD) for s in range(6)]

        def close(name):
            return [wait(lgkm=0), barrier(), salu("s_add_u32", S_KOFF, S_KOFF, TILE_G),
                    salu("s_cmp_lt_u32", S_KOFF, HEAD_KV), branch("s_cbranch_scc1", name)]
        maxl = load(False)
        for kb in range(2):
            maxl += [self.kread(kb, s) for s in range(6)]
            for j in range(NQB):
                maxl += chain(j) + [valu("v_max3_f32", M[j], M[j], f"v{S}", f"v{S+1}"),
                                    valu("v_max3_f32", M[j], M[j], f"v{S+2}", f"v{S+3}")]
        maxl += close("L_slow_max")
        mid = []
        for m in M:
            for op in ("v_permlane32_swap_b32", "v_permlane16_swap_b32"):
                mid += [valu("v_mov_b32", vq, m), valu(op, m, vq), valu("v_max_f32", m, m, vq)]
        mid += [valu("v_mul_f32", m, S_C, m) for m in M]
        mid += [valu("v_accvgpr_write_b32", f"a{r}", 0) for r in range(OA0, 256)]
        mid += [valu("v_mov_b32", f"v{r}", 0) for r in list(range(OV0, 256)) + list(range(L0, L0 + 6))]
        mid += [salu("s_mov_b32", S_KOFF, 0)]
        main = load(True)
        for kb in range(2):
            main += [self.kread(kb, s) for s in range(6)]
            for j in range(NQB):
                p = Preg(0, j) + 2 * kb
                main += chain(j)
                main += [valu("v_fma_f32", f"v{S+i}", f"v{S+i}", S_C, "-" + M[j]) for i in range(4)]
                main += [valu("v_exp_f32", f"v{S+i}", f"v{S+i}") for i in range(4)]
                main += [valu("v_add_f32", f"v{L0+j}", f"v{S+i}", f"v{L0+j}") for i in range(4)]
                main += [valu("v_cvt_pk_bf16_f32", f"v{p+i}", f"v{S+2*i}", f"v{S+2*i+1}") for i in range(2)]
        for db in range(12):
            vb = VA0 + 4 * (db % 2)
            main += [self.vread(db, h, vb) for h in range(2)]
            main += [self.pv(db, j, 0, vb) for j in range(NQB)]
        main += close("L_slow_main")
        return setup, maxl, mid, main, self.epilogue_plain()

    def prologue(self):
        b = []
        b += [salu("s_cmp_ge_u32", "s2", 256), branch("s_cbranch_scc1", "L_end"),
              raw("s_load_dwordx4 s[4:7], s[0:1], 0", "smem"), raw("s_load_dwordx4 s[8:11], s[0:1], 16", "smem")]
        if self.stamps:
            b += [raw("s_load_dwordx4 s[12:15], s[0:1], 32", "smem"),
                  raw("s_memrealtime s[56:57]"), raw("s_memtime s[58:59]")]
        lane, w = "v4", "v5"
        b += [valu("v_and_b32", lane, 63, "v0"), valu("v_lshrrev_b32", w, 6, "v0"),
              valu("v_readfirstlane_b32", S_W, w)]
        if self.pref:
            b += [raw("s_getpc_b64 s[50:51]", "salu", [], ["s50", "s51"]), label("L_pc"),
                  salu("s_lshr_b32", S_T, "s2", 3), salu("s_lshl_b32", S_T, S_T, 2), salu("s_add_u32", S_T, S_T, S_W),
                  salu("s_min_u32", S_T, S_T, "(L_end-L_pc)/1024"), salu("s_lshl_b32", S_T, S_T, 10),
                  valu("v_lshl_add_u32", "v6", lane, 4, S_T),
                  I(f"global_load_dwordx4 v[{OV0}:{OV0+3}], v6, s[50:51]", "vm_ld", ["v6", "s50", "s51"], regs("v", OV0, 4))]
        b += self.addr_setup(lane, w)
        g = "v7"
        b += [valu("v_mul_u32_u24", V_QA, 6144, w), valu("v_lshl_add_u32", V_QA, lane, 4, V_QA),
              valu("v_add_u32", V_QA, self.QBASE, V_QA)]
        for i_ in range(3):
            d = f"v{OV0+80+i_}"
            b += [valu("v_add_u32", d, 64 * i_, lane), valu("v_mul_u32_u24", "v6", 2731, d),
                  valu("v_lshrrev_b32", "v6", 16, "v6"), valu("v_and_b32", "v6", 6, "v6"),
                  valu("v_xor_b32", d, d, "v6"), valu("v_lshlrev_b32", d, 4, d)]
        b += [valu("v_and_b32", "v6", 15, lane), valu("v_and_b32", "v8", 6, lane), valu("v_xor_b32", "v8", "v8", g),
              valu("v_mul_u32_u24", "v6", 384, "v6"), valu("v_lshl_add_u32", f"v{OV0+83}", "v8", 4, "v6"),
              valu("v_xor_b32", f"v{OV0+84}", 64, f"v{OV0+83}")]
        head = "s2"
        if self.remap:
            head = "s3"
            b += [salu("s_and_b32", head, "s2", 7), salu("s_lshl_b32", head, head, 5),
                  salu("s_lshr_b32", S_T, "s2", 3), salu("s_add_u32", head, head, S_T)]
        S_SA, S_SB = "s43", "s44"
        VQ = [f"v{OV0+80+i_}" for i_ in range(3)]
        b += [salu("s_mul_i32", S_KOFF, head, HEAD_KV), salu("s_mul_i32", S_VOFF, head, HEAD_Q),
              salu("s_mov_b32", "s18", HEAD_KV), salu("s_mov_b32", "s19", "0x20000"),
              salu("s_mov_b32", "s26", HEAD_Q), salu("s_mov_b32", "s27", "0x20000"),
              salu("s_mul_i32", S_WOFF, S_W, 1056),
              salu("s_lshr_b32", S_T, S_W, 1), salu("s_mul_i32", S_T, S_T, 3), salu("s_add_u32", S_T, S_T, S_W),
              salu("s_add_u32", S_T, S_T, 2), salu("s_mul_i32", S_SB, S_T, TILE_L),
              salu("s_add_u32", S_SA, S_SB, 2 * TILE_L), salu("s_mul_i32", S_T, S_W, 36864)]
        b += [valu("v_add_u32", VQ[i_], S_T, VQ[i_]) for i_ in range(3)]
        b += [raw("s_waitcnt lgkmcnt(0)", "salu")]
        b += [salu("s_add_u32", "s16", "s6", S_KOFF), salu("s_addc_u32", "s17", "s7", 0),
              salu("s_add_u32", "s24", "s4", S_VOFF), salu("s_addc_u32", "s25", "s5", 0)]
        late = [salu("s_add_u32", "s20", "s8", S_KOFF), salu("s_addc_u32", "s21", "s9", 0),
                salu("s_mov_b32", "s22", HEAD_KV), salu("s_mov_b32", "s23", "0x20000"),
                salu("s_add_u32", "s28", "s10", S_VOFF), salu("s_addc_u32", "s29", "s11", 0),
                salu("s_mov_b32", "s30", HEAD_Q), salu("s_mov_b32", "s31", "0x20000"),
                salu("s_mov_b32", S_C, f32(math.log2(math.e) / math.sqrt(192.0))),
                salu("s_mov_b32", S_CNT, 14)]
        if self.dot:
            late += [salu("s_mov_b32", S_ONE, "0x3f803f80")]
        if self.swap:
            late += [salu("s_lshl_b32", S_W16, S_W, 4), salu("s_sub_u32", S_WOFFV, S_WOFF, S_W16)]

        def group(ktile, vtile):
            o = []
            for k in range(6):
                tile = vtile if k >= 3 else ktile
                if tile is None:
                    continue
                slot = (tile + 1) % self.R if k >= 3 else tile % self.R
                if k % 3 == 0:
                    o.append(salu("s_mov_b32", S_T, tile * TILE_G))
                o += list(self.dma_pair(k, S_WOFF, S_T, S_T, slot * TILE_L))
            return o
        RAW = OV0
        LO = OV0 + 48
        Q5 = OV0 + 72
        VR = [f"v{OV0+83+i_}" for i_ in range(2)]
        LAST = OV0 + 96
        ZERO = "a[252:255]"
        CV = T0
        KB = Preg(1, 0)

        def ubase(u):
            return (S_SB if u in (2, 3) else S_SA), (u & 1) * 6144

        def qunit(u):
            sb, off = ubase(u)
            o = []
            for i_ in range(3):
                o += [salu("s_add_u32", "m0", sb, off + i_ * 1024)]
                o += [salu("s_mov_b32", S_T, u * 6144)] if i_ == 0 else [nop(0)]
                o += [buf_dma(VQ[i_], SRD_Q, S_T, h * 3072, self.qpol) for h in range(2)]
            return o

        def qraw(u):
            sb, off = ubase(u)
            o = [valu("v_add_u32", T0, sb, VR[0]), valu("v_add_u32", T1, sb, VR[1])]
            for s_ in range(6):
                o.append(ds_read("ds_read_b128", R("v", RAW + 4 * ((u % 2) * 6 + s_), 4), (T0, T1)[s_ & 1],
                                 off + (s_ >> 1) * 128))
            return o

        def unpack(j):
            r0 = RAW + 24 * (j % 2)
            o = []
            for i_ in range(24):
                o += [valu("v_lshlrev_b32", f"v{LO+i_}", 16, f"v{r0+i_}"),
                      valu("v_and_b32", f"v{r0+i_}", "0xffff0000", f"v{r0+i_}")]
            return o

        def scale(j):
            o = []
            for base in (LO, RAW + 24 * (j % 2)):
                o += [I(f"v_pk_mul_f32 {R('v', base+2*i_, 2)}, {R('v', base+2*i_, 2)}, s[52:53]", "valu",
                        regs("v", base + 2 * i_, 2) + ["s52", "s53"], regs("v", base + 2 * i_, 2)) for i_ in range(12)]
            return o

        def pack(j):
            o = []
            for s_ in range(6):
                r0 = RAW + 24 * (j % 2) + 4 * s_
                dst = r0 if s_ < 5 else Q5 + 4 * (j % 2)
                o += [valu("v_cvt_pk_bf16_f32", f"v{dst+i_}", f"v{LO+4*s_+i_}", f"v{r0+i_}") for i_ in range(4)]
                if s_ < 5:
                    o += [valu("v_accvgpr_write_b32", f"a{QA0+4*(j*5+s_)+i_}", f"v{dst+i_}") for i_ in range(4)]
                else:
                    o.append(ds_write("ds_write_b128", V_QA, R("v", dst, 4), j * 1024))
            return o

        def clear(file, lo, hi):
            o = []
            while hi - lo >= 16:
                o.append(mfma32(R(file, lo, 16), ZERO, ZERO, "0"))
                lo += 16
            while lo < hi:
                o.append(mfma(R(file, lo, 4), ZERO, ZERO, "0"))
                lo += 4
            return o

        def chains(j):
            o = []
            for kb in range(2):
                d = R("v", S0 + 4 * kb, 4)
                for s_ in range(6):
                    a_ = Kreg(s_) if kb == 0 else R("v", KB + 4 * s_, 4)
                    q_ = Qreg(j, s_) if s_ < 5 else R("v", Q5 + 4 * (j % 2), 4)
                    o.append(mfma(d, a_, q_, self.cinit if s_ == 0 else d))
            return o

        def soft(j, kb):
            sreg = S0 + 4 * kb
            p = Preg(0, j) + 2 * kb
            e = [valu("v_exp_f32", f"v{sreg+i_}", f"v{sreg+i_}") for i_ in range(4)]
            a_ = [valu("v_add_f32", f"v{L0+j}", f"v{sreg+i_}", f"v{L0+j}") for i_ in range(4)]
            c = [valu("v_cvt_pk_bf16_f32", f"v{p+i_}", f"v{sreg+2*i_}", f"v{sreg+2*i_+1}") for i_ in range(2)]
            return e + ([] if self.dot else a_) + c

        def weave(ms, ops, per=2):
            o = []
            ops = list(ops)
            for m in ms:
                o.append(m)
                o += ops[:per]
                ops = ops[per:]
            return o, ops

        plan = [int(c) for c in self.provar]
        queue = []

        def issue(name, ops):
            queue.append((name, sum(1 for x in ops if x.kind == "dma")))
            return ops

        def landed(name, **kw):
            k = [n for n, _ in queue].index(name)
            return wait(vm=sum(c for _, c in queue[k + 1:]), **kw)

        def extras(u):
            o = []
            if plan[0] == u:
                o += issue("KV0", group(1, 0))
            if plan[1] == u:
                o += issue("G4", group(2, 1))
            if plan[2] == u and self.D >= 4:
                o += issue("G3", group(3, 2))
            return o

        if self.early:
            return b + self.early_start(locals())
        b += issue("K0", group(0, None)) + issue("U0", qunit(0)) + issue("U1", qunit(1))
        b += late + [salu("s_mov_b32", "s52", S_C), salu("s_mov_b32", "s53", S_C)]
        b += [valu("v_accvgpr_write_b32", f"a{r}", 0) for r in range(252, 256)]
        b += [valu("v_mov_b32", f"v{r}", 0) for r in range(L0, L0 + 6)]
        b += [valu("v_mov_b32", "v14", self.FLAG), valu("v_mov_b32", "v15", 0), ds_write("ds_write_b32", "v14", "v15", 0)]
        b += clear("a", OA0, 252) + clear("v", LAST, 256)
        A = self.ahead
        for u in range(2, A):
            b += issue(f"U{u}", qunit(u))
        b += [landed("U0")] + qraw(0) + [barrier()]
        b += [self.kread(0, s_) for s_ in range(6)]
        b += [ds_read("ds_read_b128", R("v", KB + 4 * s_, 4), V_KA, (s_ >> 1) * TAU + (s_ & 1) * 64 + 512) for s_ in range(6)]
        b += issue(f"U{A}", qunit(A))
        b += unpack(0) + scale(0) + pack(0)
        for u in range(1, 6):
            b += self.stamp() if self.touch == 2 and u in (1, 2, 4) else []
            b += [landed(f"U{u}")] + (self.stamp() if (self.touch == 1 and u >= 4) or (self.touch == 2 and u in (1, 2, 4)) else []) + qraw(u)
            if u == 3:
                b += [wait(lgkm=0), barrier()]
            ex = (issue(f"U{u+A}", qunit(u + A)) if u + A < 6 else []) + extras(u)
            sa, sb = soft(u - 1, 0), soft(u - 1, 1)
            b += sched(chains(u - 1), [[Op(x) for x in ex], [Op(x, 4) for x in unpack(u)]])
            b += sa[:4] + sb[:4] + scale(u) + sa[4:] + sb[4:]
            pk_ = pack(u)
            if u == 5:
                z = clear("v", RAW, RAW + 16) + clear("v", OV0 + 80, LAST)
                pk_ = pk_[:8] + z[:1] + pk_[8:16] + z[1:] + pk_[16:]
            b += pk_
        b += [valu("v_add_u32", V_KA, TILE_L, V_KA), valu("v_add_u32", V_VA, TILE_L, V_VA),
              salu("s_mov_b32", S_SLOT, TILE_L), salu("s_add_u32", S_DMA, S_WOFF, (self.D % 5) * TILE_L),
              salu("s_add_u32", S_DLIM, S_WOFF, self.R * TILE_L),
              salu("s_mov_b32", S_KOFF, self.D * TILE_G), salu("s_mov_b32", S_VOFF, (self.D - 1) * TILE_G)]
        st_ = self.stamp if self.touch == 1 else list
        b += st_() + [landed("KV0", lgkm=0)] + st_() + [barrier()]
        ch = chains(5)
        for s_ in range(6):
            b += [ch[s_], self.kread(0, s_)]
        b += [ch[6], self.qread(0), ch[7], self.vread(0, 0, VA0), ch[8], self.vread(0, 1, VA0)] + ch[9:]
        z = clear("v", RAW + 16, OV0 + 80)
        sa = soft(5, 0)
        rest = extras(6) + (group(4, 3) if self.D == 5 else [])
        b += [z[0]] + sa[:3] + [z[1]] + sa[3:5] + [z[2]] + sa[5:] + rest + [z[3]] + soft(5, 1)[:2]
        return b

    def early_start(self, c):
        group, qunit, qraw, unpack, scale, pack = (c[k] for k in ("group", "qunit", "qraw", "unpack", "scale", "pack"))
        issue, landed, late, Q5 = c["issue"], c["landed"], c["late"], c["Q5"]
        assert self.D == 3
        S2 = OV0 + 88
        KT = OV0 + 96
        plan = [int(x) for x in self.provar]

        def kreg(tile, kb, s):
            return Kreg(s) if (tile, kb) == (0, 0) else R("v", KT + 24 * (2 * tile + kb - 1) + 4 * s, 4)

        def sreg(tile, kb):
            return (S2 if tile == 0 else S0) + 4 * kb

        def chains(j):
            o = []
            for tile in range(2):
                for kb in range(2):
                    d = R("v", sreg(tile, kb), 4)
                    for s in range(6):
                        q_ = Qreg(j, s) if s < 5 else R("v", Q5 + 4 * (j % 2), 4)
                        o.append(mfma(d, kreg(tile, kb, s), q_, self.cinit if s == 0 else d))
            return o

        def soft(j, tile, kb):
            r, p = sreg(tile, kb), Preg(tile, j) + 2 * kb
            e = [valu("v_exp_f32", f"v{r+i}", f"v{r+i}") for i in range(4)]
            a = [valu("v_add_f32", f"v{L0+j}", f"v{r+i}", f"v{L0+j}") for i in range(4)]
            cv = [valu("v_cvt_pk_bf16_f32", f"v{p+i}", f"v{r+2*i}", f"v{r+2*i+1}") for i in range(2)]
            return e + [cv[0], a[0], cv[1], a[1], a[2], a[3]]

        def extras(u):
            o = []
            if plan[0] == u:
                o += issue("V0", group(None, 0))
            if plan[1] == u:
                o += issue("G2", group(2, 1))
            return o
        A = self.ahead
        b = issue("K0", group(0, None)) + issue("K1", group(1, None)) + issue("U0", qunit(0))
        b += late + [salu("s_mov_b32", "s52", S_C), salu("s_mov_b32", "s53", S_C)]
        b += [valu("v_mov_b32", f"v{r}", 0) for r in range(L0, L0 + 6)]
        b += [valu("v_mov_b32", "v14", self.FLAG), valu("v_mov_b32", "v15", 0), ds_write("ds_write_b32", "v14", "v15", 0)]
        for u in range(1, A):
            b += issue(f"U{u}", qunit(u))
        b += [landed("U0")] + qraw(0) + [barrier()]
        for tile in range(2):
            for kb in range(2):
                b += [ds_read("ds_read_b128", kreg(tile, kb, s), V_KA,
                              tile * TILE_L + (s >> 1) * TAU + (s & 1) * 64 + kb * 512) for s in range(6)]
        b += extras(0)
        if A < 4:
            b += issue(f"U{A}", qunit(A)) + unpack(0)
        else:
            b += unpack(0) + issue("U4", qunit(4))
        b += scale(0) + pack(0)
        for u in range(1, 6):
            b += (self.stamp() if self.touch == 3 and u == 5 else []) + [landed(f"U{u}")]
            b += (self.stamp() if self.touch == 3 and u == 5 else []) + qraw(u)
            if u == 3:
                b += [landed("V0", lgkm=0) if self.lite >= 2 else wait(lgkm=0), barrier()]
            ex = extras(u) if self.lite >= 2 else []
            ex += issue(f"U{u+A}", qunit(u + A)) if u + A < 6 and A < 4 else []
            ex += extras(u) if self.lite < 2 else []
            sm = [Op(x, 8) for x in soft(u - 1, 0, 0)] + [Op(x, 14) for x in soft(u - 1, 0, 1)]
            sa, sb = soft(u - 1, 1, 0), soft(u - 1, 1, 1)
            mf, vst = chains(u - 1), []
            if u == 3 and self.lite >= 2:
                vb2 = [VA0, VA0 + 4, QBUF]
                for db in range(12):
                    lo = 24 + 2 * (db - 3) + 1 if db >= 3 else 8
                    vst += [Op(self.vread(db, h_, vb2[db % 3], 1), lo, max(lo, 24 + 2 * db - 4)) for h_ in range(2)]
                    mf += [self.pv(db, j, 0, vb2[db % 3], c="0") for j in range(2)]
            b += sched(mf, [[Op(x) for x in ex], sm, [Op(x, 4) for x in unpack(u)], vst])
            if A == 4 and u == 1:
                b += issue("U5", qunit(5))
            b += sa[:4] + sb[:4] + scale(u) + sa[4:] + sb[4:] + pack(u)
        b += [valu("v_add_u32", V_KA, 2 * TILE_L, V_KA), valu("v_add_u32", V_VA, TILE_L, V_VA),
              salu("s_mov_b32", S_SLOT, 2 * TILE_L), salu("s_add_u32", S_DMA, S_WOFF, 4 * TILE_L),
              salu("s_add_u32", S_DLIM, S_WOFF, self.R * TILE_L),
              salu("s_mov_b32", S_KOFF, 4 * TILE_G), salu("s_mov_b32", S_VOFF, 3 * TILE_G)]
        if self.swap:
            b += [salu("s_sub_u32", S_DMAV, S_DMA, S_W16)]
        b += (self.stamp() if self.touch == 3 else []) + [landed("V0", lgkm=0), barrier()] + (self.stamp() if self.touch == 3 else [])
        vb = lambda i: KA0 + 4 * (i % 4) if i < 8 else VA0 + 4 * (i % 2)
        mf = chains(5)
        g0 = len(mf)
        jl = list(range(2 if self.lite >= 2 else 0, NQB))
        W = len(jl)
        for db in range(12):
            mf += [self.pv(db, j, 0, vb(db), c="0") for j in jl]
        sm = [Op(x, 8, g0 - 2) for x in soft(5, 0, 0)] + [Op(x, 14, g0 + W - 4) for x in soft(5, 0, 1)]
        sm += [Op(x, 20) for x in soft(5, 1, 0)] + [Op(x, 27) for x in soft(5, 1, 1)[:10 if self.zig else 2]]
        vst = []
        for db in range(12):
            lo = 6 if db < 4 else (g0 + W * (db - 3) - 1 if db < 8 else (g0 + 8 if db < 10 else g0 + W * (db - 1) - 1))
            vst += [Op(self.vread(db, h, vb(db)), lo, max(lo, g0 + W * db - 6)) for h in range(2)]
        ex = extras(6) + issue("G3", group(3, 2))
        sync = g0 + W * 8
        last = [Op(x, sync - 2, sync - 2) for x in (self.stamp() if self.touch == 3 else [])]
        last += [Op(landed("G2"), sync - 1, sync - 1), Op(barrier(), sync, sync)]
        last += [Op(x, sync + 1, sync + 1) for x in (self.stamp() if self.touch == 3 else [])]
        last += [Op(self.kread(0, s), sync + 1) for s in range(6)] + [Op(self.qread(0), sync + 1)]
        last += [Op(self.vread(0, h, VA0, 1), g0 + W * 11 - 1) for h in range(2)]
        last += [Op(valu("v_add_u32", V_VA, TILE_L, V_VA), g0 + W * 11 - 1)]
        b += sched(mf, [sm, vst, [Op(x, g0 + 2, sync - 2) for x in ex], last])
        return b

    def group_tail(self, js, bufs, first, carry=(), extra=(), fin=(), side=()):
        n = len(js)
        LAT = self.lat
        mf, cstart, gstart = [], [], []
        v = 0
        for c in range(4 * n):
            ph, k = divmod(c, 2 * n)
            jj = js[c % n]
            d = R("v", S0 + 4 * (c % 2), 4)
            cstart.append(len(mf))
            mf += [mfma(d, Kreg(s), Qreg(jj, s), self.cinit if s == 0 else d) for s in range(6)]
            upto = 12 * ph + (k + 1) * 12 // (2 * n)
            if ph == 1 and k < 2 * n - 1:
                upto -= (4 + n - 1) // n * (k + 1) // (2 * n - 1)
            if c == 4 * n - 1:
                upto = 36
            while v < upto:
                gstart.append(len(mf))
                f_, b_ = bufs[v % len(bufs)]
                mf += [self.pv(v % 12, x, (1, 0, 1)[v // 12], b_, f_) for x in (js[::-1] if self.zig and v < 12 else js)]
                v += 1
        sm = [Op(x, 0, gstart[0] + n - 3 if self.zig else cstart[1] - 1) for x in carry]
        dots = [Op(x, gstart[1], gstart[1]) for x in self.dot_ops(1, js)] if self.dot else []
        for c in range(4 * n):
            ph, kb, jj = c // (2 * n), (c // n) % 2, js[c % n]
            sreg = S0 + 4 * (c % 2)
            p = Preg(ph, jj) + 2 * kb
            hi = gstart[12 * (ph + 1)] + js.index(jj) - 2
            if c + 2 < 4 * n:
                hi = min(hi, cstart[c + 2] - 1)
            e = [valu("v_exp_f32", f"v{sreg+i}", f"v{sreg+i}") for i in range(4)]
            a = [valu("v_add_f32", f"v{L0+jj}", f"v{sreg+i}", f"v{L0+jj}") for i in range(4)]
            cv = [valu("v_cvt_pk_bf16_f32", f"v{p+i}", f"v{sreg+2*i}", f"v{sreg+2*i+1}") for i in range(2)]
            lo = cstart[c] + 5 + 3
            for k, x in enumerate(e + [cv[0], a[0], cv[1], a[1], a[2], a[3]]):
                last = c + 2 < 4 * n
                h = hi - (9 - k) // 2 if (last or k < 7) else 10 ** 9
                sm.append(Op(x, lo, max(h, lo)))
        lo = gstart[24] + n
        for x in fin:
            sm.append(Op(x, lo))
            if x.kind == "mfma" and x is [y for y in fin if y.kind == "mfma"][-1]:
                lo = gstart[24] + n + 8
        sync_gap = cstart[n] + 2 if first else -1
        sync, sync2 = [], sync_gap
        if first and self.D == 3:
            for k in range(3, 6):
                m_, d_ = self.dma_pair(k)
                sync += [Op(m_, 2 * k - 5, 2 * k - 5), Op(d_, 2 * k - 4, 2 * k - 4)]
            sync2 = gstart[24 - len(bufs)] - 2
            sync += [Op(wait(vm=3), sync_gap - 1, sync_gap - 1), Op(barrier(), sync_gap, sync_gap),
                     Op(wait(vm=0), sync2 - 1, sync2 - 1), Op(barrier(), sync2, sync2)]
        elif first:
            sync = [Op(wait(vm=0), sync_gap - 1, sync_gap - 1), Op(barrier(), sync_gap, sync_gap)]
        kst = []
        for st_ in range(1, 4):
            for s in range(6):
                lo = max(cstart[st_ * n - 1] + s, sync_gap + 1 if st_ == 2 else 0)
                kst.append(Op(self.kread(st_ % 2, s, st_ // 2), lo, max(cstart[st_ * n] + s - LAT, lo)))
        qst = [Op(self.qread(js[c % n]), cstart[c - 1] + 5, cstart[c] + 5 - LAT) for c in range(1, 4 * n)]
        vst = []
        pre = []
        for v in range(36):
            f_, b_ = bufs[v % len(bufs)]
            rd = [self.vread(v % 12, h, b_, v // 12, f_) for h in range(2)]
            if v == 0 and first:
                continue
            if v < len(bufs) and not first:
                pre += rd
                continue
            lo = gstart[v - len(bufs)] + n - 1 if v >= len(bufs) else 0
            if v >= 12:
                lo = max(lo, (sync2 if v >= 24 else sync_gap) + 1)
            vst += [Op(x, lo, max(gstart[v] - LAT, lo)) for x in rd]
        if not first:
            pre = [self.kread(0, s) for s in range(6)] + [self.qread(js[0])] + pre
        return pre, sched(mf, [sm, kst, qst, vst, sync, list(extra), dots, [Op(x, gstart[24]) for x in side]])

    def row_sums(self, js, t0):
        b = []
        for op in ("v_permlane32_swap_b32", "v_permlane16_swap_b32"):
            b += [valu("v_mov_b32", f"v{t0+k}", f"v{L0+j}") for k, j in enumerate(js)]
            b += [valu(op, f"v{L0+j}", f"v{t0+k}") for k, j in enumerate(js)]
            b += [valu("v_add_f32", f"v{L0+j}", f"v{L0+j}", f"v{t0+k}") for k, j in enumerate(js)]
        return b

    def range_check(self, js, first):
        b = []
        if first:
            b += [salu("s_mov_b32", S_NEW, f32(2.0 ** 12)), salu("s_mov_b32", S_DELTA, f32(2.0 ** -20)),
                  salu("s_mov_b64", "s[44:45]", 0)]
        for j in js:
            b += [valu("v_cmp_nge_f32", "s[46:47]", S_NEW, f"v{L0+j}"), valu("v_cmp_nle_f32", "s[48:49]", S_DELTA, f"v{L0+j}")]
            b += [salu("s_or_b64", "s[44:45]", "s[44:45]", "s[46:47]"), salu("s_or_b64", "s[44:45]", "s[44:45]", "s[48:49]")]
        return b

    EW = [f"v{P0+i}" for i in range(4)]
    ER = [f"v{P0+4+i}" for i in range(3)]
    EG = f"v{P0+7}"

    def epi_addr_swap(self):
        lane, t = T0, T1
        ew, er, eg = (f"v{P0+i}" for i in range(3))
        b = [raw(f"v_mbcnt_lo_u32_b32 {lane}, -1, 0", "valu", [], [lane]),
             raw(f"v_mbcnt_hi_u32_b32 {lane}, -1, {lane}", "valu", [lane], [lane]),
             salu("s_lshr_b32", S_T, S_W, 1), salu("s_mul_i32", S_T, S_T, 6 * TILE_L),
             salu("s_and_b32", S_SLOT, S_W, 1), salu("s_mul_i32", S_SLOT, S_SLOT, 12288),
             salu("s_add_u32", S_T, S_T, S_SLOT), salu("s_add_u32", S_T, S_T, (2 * TILE_L + 127) // 128 * 128),
             salu("s_and_b32", S_T, S_T, "0xffffff80"),
             valu("v_and_b32", t, 48, lane), valu("v_mul_u32_u24", ew, 96, t), valu("v_lshl_add_u32", er, t, 4, S_T),
             valu("v_and_b32", t, 7, lane), valu("v_lshl_add_u32", ew, t, 4, ew),
             valu("v_and_b32", t, 8, lane), valu("v_add3_u32", ew, ew, t, S_T),
             valu("v_and_b32", t, 28, lane), valu("v_lshl_add_u32", er, t, 2, er),
             valu("v_and_b32", t, 2, lane), valu("v_lshl_add_u32", er, t, 6, er),
             valu("v_and_b32", t, 1, lane), valu("v_lshl_add_u32", er, t, 3, er),
             salu("s_mul_i32", S_T, S_W, 36864), valu("v_lshl_add_u32", eg, lane, 4, S_T)]
        return b

    @staticmethod
    def inv_reg(j):
        return S0 if j == 3 else P0 + 4 + 4 * (j % 4)

    VMAX, VMIN = V_DMA, f"v{P0+3}"

    def inv_rows(self, js, check=None):
        one = f"v{S0+4}"
        b = [valu("v_mov_b32", one, "1.0")]
        if check == "first":
            b += [valu("v_mov_b32", self.VMAX, 0), valu("v_mov_b32", self.VMIN, -1)]
        b += [mfma_f32(R("v", self.inv_reg(j), 4), f"v{L0+j}", one, "0") for j in js]
        for j in js:
            r = self.inv_reg(j)
            if check:
                for op, acc in (("v_max3_u32", self.VMAX), ("v_min3_u32", self.VMIN)):
                    b += [valu(op, acc, acc, f"v{r}", f"v{r+1}"), valu(op, acc, acc, f"v{r+2}", f"v{r+3}")]
            b += [valu("v_rcp_f32", f"v{r+i}", f"v{r+i}") for i in range(4)]
        return b

    def epi_block_swap(self, j, pend, first, step, pk, nxt):
        ew, er = (f"v{P0}", f"v{S0+6}"), (f"v{P0+1}", f"v{S0+7}")
        inv = self.inv_reg(j)
        lead = (2 if ROT_O else 0, self.groups[0])
        b = [valu("v_xor_b32", ew[1], 64, ew[0]), valu("v_xor_b32", er[1], 64, er[0])] if j in lead else []
        temps = [OV0 + 24 + 4 * i for i in range(6)] + [OV0 + 72 + 4 * i for i in range(2)]

        def scale(m):
            X, o = [], []
            for t in range(4):
                src = expand(Oreg(j, 4 * m + t))
                u = []
                if src[0][0] == "a":
                    tmp = temps[(4 * m + t) % 8]
                    u += [valu("v_accvgpr_read_b32", f"v{tmp+i}", src[i]) for i in range(4)]
                    src = regs("v", tmp, 4)
                r0 = int(src[0][1:])
                X.append(r0)
                if pk:
                    u += [I(f"v_pk_mul_f32 {R('v', r0+2*i, 2)}, {R('v', r0+2*i, 2)}, {R('v', inv+2*i, 2)}", "valu",
                            regs("v", r0 + 2 * i, 2) + regs("v", inv + 2 * i, 2), regs("v", r0 + 2 * i, 2)) for i in range(2)]
                else:
                    u += [valu("v_mul_f32", f"v{r0+i}", f"v{r0+i}", f"v{inv+i}") for i in range(4)]
                o.append(u)
            return X, o
        X, o = scale(0)
        b += [x for u in o for x in u]
        k = 0
        for m in range(3):
            Xn, on = scale(m + 1) if m < 2 else (None, [[]] * 4)
            for rq, dst in enumerate((int(T0[1:]), X[0], X[1], X[0] + 2)):
                b += [valu("v_cvt_pk_bf16_f32", f"v{dst}", f"v{X[0]+rq}", f"v{X[1]+rq}"),
                      valu("v_cvt_pk_bf16_f32", f"v{dst+1}", f"v{X[2]+rq}", f"v{X[3]+rq}"),
                      ds_write("ds_write_b64", ew[((3 * rq + m) >> 1) & 1], R("v", dst, 2), (j % 2) * 6144 + rq * 384 + m * 128)]
                if k >= first and (k - first) % step == 0 and pend:
                    b += pend.pop(0)
                b += on[rq]
                k += 1
            X = Xn
        for i in range(6):
            o = expand(Oreg(j, i))
            b += [ds_read("ds_read_b64_tr_b16", R(o[0][0], int(o[0][1:]) + 2 * h, 2), er[h], (j % 2) * 6144 + i * 1024)
                  for h in range(2)]
        return b

    def epi_addr(self):
        if self.swap:
            return self.epi_addr_swap()
        lane, t, u = T0, T1, V_DMA
        b = [raw(f"v_mbcnt_lo_u32_b32 {lane}, -1, 0", "valu", [], [lane]),
             raw(f"v_mbcnt_hi_u32_b32 {lane}, -1, {lane}", "valu", [lane], [lane]),
             salu("s_lshr_b32", S_T, S_W, 1), salu("s_mul_i32", S_T, S_T, 6 * TILE_L),
             salu("s_and_b32", S_SLOT, S_W, 1), salu("s_mul_i32", S_SLOT, S_SLOT, 12288),
             salu("s_add_u32", S_T, S_T, S_SLOT), salu("s_add_u32", S_T, S_T, (2 * TILE_L + 127) // 128 * 128),
             salu("s_and_b32", S_T, S_T, "0xffffff80"),
             valu("v_and_b32", t, 15, lane), valu("v_mul_u32_u24", u, 384, t), valu("v_add_u32", u, S_T, u),
             valu("v_bfe_u32", t, lane, 4, 1), valu("v_lshl_add_u32", u, t, 3, u),
             valu("v_lshrrev_b32", t, 5, lane), valu("v_xor_b32", t, t, lane), valu("v_and_b32", t, 7, t),
             valu("v_lshl_add_u32", self.EW[0], t, 4, u)]
        b += [valu("v_xor_b32", self.EW[i], 32 * i, self.EW[0]) for i in range(1, 4)]
        for i in range(3):
            r = self.ER[i]
            b += [valu("v_add_u32", r, 64 * i, lane), valu("v_mul_u32_u24", t, 2731, r),
                  valu("v_lshrrev_b32", t, 16, t), valu("v_xor_b32", r, r, t), valu("v_lshl_add_u32", r, r, 4, S_T)]
        b += [salu("s_mul_i32", S_T, S_W, 36864), valu("v_lshl_add_u32", self.EG, lane, 4, S_T)]
        return b

    def epi_stores(self, j):
        o = []
        for i in range(6):
            pre = [salu("s_mov_b32", S_T, j * 6144 + i * 1024)] if i % 4 == 0 else []
            o.append(pre + [buf_store(Oreg(j, i), f"v{P0+2}" if self.swap else self.EG, SRD_O, S_T, (i % 4) * 1024, self.opol if j < self.olast else self.opol2)])
        return o

    def epi_block(self, j, pend, first=3, step=1, pk=None, nxt=None):
        if self.swap:
            return self.epi_block_swap(j, pend, first, step, self.pk if pk is None else pk, nxt)
        b = []
        for db in range(12):
            src = expand(Oreg(j, db))
            if src[0][0] == "a":
                t = OV0 + 24 + 4 * (db % 6)
                b += [valu("v_accvgpr_read_b32", f"v{t+i}", src[i]) for i in range(4)]
                src = [f"v{t+i}" for i in range(4)]
            if self.pk if pk is None else pk:
                r0, lp = int(src[0][1:]), (L0 + j) & ~1
                sel = "op_sel:[0,1] op_sel_hi:[1,1]" if (L0 + j) & 1 else "op_sel_hi:[1,0]"
                b += [I(f"v_pk_mul_f32 {R('v', r0+2*i, 2)}, {R('v', r0+2*i, 2)}, {R('v', lp, 2)} {sel}", "valu",
                        regs("v", r0 + 2 * i, 2) + regs("v", lp, 2), regs("v", r0 + 2 * i, 2)) for i in range(2)]
            else:
                b += [valu("v_mul_f32", src[i], src[i], f"v{L0+j}") for i in range(4)]
            b += [valu("v_cvt_pk_bf16_f32", src[i], src[2 * i], src[2 * i + 1]) for i in range(2)]
            b += [ds_write("ds_write_b64", self.EW[db & 3], R("v", int(src[0][1:]), 2), (j % 2) * 6144 + (db >> 2) * 128)]
            if db >= first and (db - first) % step == 0 and pend:
                b += pend.pop(0)
        b += [ds_read("ds_read_b128", Oreg(j, i), self.ER[i % 3], (j % 2) * 6144 + (i // 3) * 3072) for i in range(6)]
        return b

    def epi_all(self, js, pend, fetch=False):
        b = []
        for j in js:
            b += self.epi_block(j, pend, nxt=j + 1 if fetch and j + 1 in js else None)
            b += [x for p in pend for x in p]
            pend = self.epi_stores(j)
        return b + [x for p in pend for x in p]

    def rcp(self, js):
        return [valu("v_rcp_f32", f"v{L0+j}", f"v{L0+j}") for j in js]

    def epilogue_plain(self):
        js = list(range(NQB))
        if not self.swap:
            return self.row_sums(js, S0) + self.rcp(js) + self.epi_addr() + self.epi_all(js, [])
        k = self.groups[0]
        b = self.epi_addr() + self.inv_rows(js[:k]) + self.epi_all([2, 3, 0, 1] if ROT_O else js[:k], [])
        return b + self.inv_rows(js[k:]) + self.epi_all(js[k:], [])

    def tail(self, carry):
        groups, k = [], 0
        for n in self.groups:
            groups.append(list(range(k, k + n)))
            k += n
        assert k == NQB and groups[0][-1] < 4 and len(groups[0]) >= 2
        assert not self.swap or self.groups == [4, 2]
        bufs0 = [("a", VA0), ("a", VA0 + 4), ("v", Preg(0, 4)), ("v", Preg(0, 5))]
        bufs1 = [("a", VA0), ("a", VA0 + 4), ("a", 0), ("a", 4)]
        def fin(gi):
            js = groups[gi]
            if not self.swap:
                o = self.row_sums(js, S0) + self.range_check(js, gi == 0) + self.rcp(js)
                return o + (self.epi_addr() if gi == 0 else [])
            return self.inv_rows(js, "more" if gi else "first")
        side = self.epi_addr() if self.swap else []
        side += [salu("s_mov_b32", S_NEW, f32(2.0 ** 12)), salu("s_mov_b32", S_DELTA, f32(2.0 ** -20))] if self.swap else []
        _, b = self.group_tail(groups[0], bufs0, True, carry, (), fin(0), side)
        left = []
        for gi, js in enumerate(groups):
            last = gi == len(groups) - 1
            b += self.stamp() if gi in (0, len(groups) - 1) and self.touch < 2 else []
            if last:
                b += self.epi_all(js, left)
                break
            nxt = groups[gi + 1]
            nb = min(self.eblock or len(js), len(js))
            if ROT_O and gi == 0:
                js = [2, 3, 0, 1]
            for x, j in enumerate(js[:nb]):
                if x == nb - 1:
                    pos = len(b)
                b += self.epi_block(j, left, 2, self.estep)
                left += self.epi_stores(j)
            nm = 60 * len(nxt)
            woven = []
            for j in js[nb:]:
                woven += self.epi_block(j, left, 2, self.estep, pk=0)
                left += self.epi_stores(j)
            g0 = nm * self.efrac // 100 if woven else 0
            extra = [Op(x, k * g0 // len(woven), k * g0 // len(woven)) for k, x in enumerate(woven)]
            take = min(len(left), max(0, (nm - g0 - 4) // self.espace))
            extra += [Op(x, g0 + 4 + self.espace * i, g0 + 4 + self.espace * i) for i, p in enumerate(left[:take]) for x in p]
            left = left[take:]
            pre, t1 = self.group_tail(nxt, bufs1, False, (), extra, fin(gi + 1))
            b[pos:pos] = pre
            b += t1
        if self.swap:
            b += [valu("v_cmp_lt_u32", "s[44:45]", S_NEW, self.VMAX), valu("v_cmp_gt_u32", "s[46:47]", S_DELTA, self.VMIN),
                  salu("s_or_b64", "s[44:45]", "s[44:45]", "s[46:47]")]
        b += [salu("s_cmp_eq_u64", "s[44:45]", 0), branch("s_cbranch_scc1", "L_inrange"),
              valu("v_mov_b32", T0, self.FLAG), valu("v_mov_b32", T1, 1), ds_write("ds_write_b32", T0, T1, 0),
              label("L_inrange")]
        b += [wait(lgkm=0), barrier(), valu("v_mov_b32", T1, self.FLAG), ds_read("ds_read_b32", T1, T1, 0),
              valu("v_readfirstlane_b32", S_T, T1), salu("s_cmp_lg_u32", S_T, 0), branch("s_cbranch_scc1", "L_slow")]
        return b

    def stamp_out(self):
        if not self.stamps:
            return ""
        n = 4 + 2 * self.nstamp
        s = "  s_waitcnt vmcnt(0)\n  s_barrier\n  s_memrealtime s[60:61]\n  s_memtime s[62:63]\n  s_waitcnt lgkmcnt(0)\n"
        s += f"  s_cmp_lg_u32 {S_W}, 0\n  s_cbranch_scc1 L_end\n  s_mov_b64 exec, 1\n"
        if self.stamps == "prof":
            s += f"  s_mov_b64 exec, 0xffffffff\n  v_mbcnt_lo_u32_b32 v1, -1, 0\n  v_lshlrev_b32 v1, 2, v1\n  v_add_u32 v2, {self.FLAG + 8}, v1\n  ds_read_b32 v2, v2\n"
            s += f"  s_lshl_b32 s3, s2, 7\n  v_add_u32 v1, s3, v1\n  v_add_u32 v1, 0x100000, v1\n  s_waitcnt lgkmcnt(0)\n  global_store_dword v1, v2, s[14:15]\n  s_mov_b64 exec, 1\n"
        if self.stamps == "dbg":
            s += "  v_mov_b32 v1, 0\n  v_mov_b32 v2, s60\n  global_atomic_umax v1, v2, s[12:13]\n"
            s += "  s_not_b32 s3, s56\n  v_mov_b32 v3, s3\n  global_atomic_umax v1, v3, s[12:13] offset:4\n"
            s += "  v_mov_b32 v4, s56\n  global_atomic_umax v1, v4, s[12:13] offset:8\n"
            s += "  s_cmp_lg_u32 s2, 100\n  s_cbranch_scc1 L_end\n"
            vals = [(66 + 4 * i, 56) for i in range(self.nstamp)] + [(60, 56)] + [(64 + 4 * i, 58) for i in range(self.nstamp)] + [(62, 58)]
            for i, (x, y) in enumerate(vals):
                s += f"  s_sub_u32 s3, s{x}, s{y}\n  v_mov_b32 v2, s3\n  global_store_dword v1, v2, s[12:13] offset:{16+4*i}\n"
            return s
        s += f"  s_mul_i32 s3, s2, {8*n}\n  v_mov_b32 v1, s3\n"
        for i in range(n):
            r = 56 + 2 * i
            s += f"  v_mov_b32 v2, s{r}\n  v_mov_b32 v3, s{r+1}\n  global_store_dwordx2 v1, v[2:3], s[14:15] offset:{8*i}\n  s_nop 1\n"
        return s

    def build(self, verbose=False):
        ROT = 8
        pro = self.prologue()
        mfE, gE, tailE = self.period(0)
        mfO, gO, _ = self.period(1)
        if self.stamps == "prof":
            for gg in (gE, gO):
                gg[12 * 2 + 7] += [valu("v_mov_b32", T0, "s52"), valu("v_add_u32", T1, 4, T1)]
                gg[12 * 2 + 8] += [raw("s_memrealtime s[52:53]"), ds_write("ds_write_b32", T1, T0, 0)]
            pro += [valu("v_mov_b32", T1, self.FLAG + 4), raw("s_memrealtime s[52:53]")]
        gE[12 * 11 + 7].append(salu("s_cmp_eq_u32", S_CNT, 0))
        exit_tail = gE[143] + tailE
        gE[143] = [branch("s_cbranch_scc1", "L_drain")] + gE[143]
        gO[12 * 11 + 7].append(salu("s_sub_u32", S_CNT, S_CNT, 1))
        fill = self.stamp()
        log = []
        pro, st = fix(pro + fill, State(), hoist=bool(self.early))
        if self.early:
            head = self.flat(mfO, gO, 0, ROT)
            if self.zig:
                head = [x for x in head if not (x.is_valu and x.rd & set(regs("v", S0 + 4, 4)))] + [nop(1)]
            body = self.flat(mfO, gO, ROT, 144) + self.flat(mfE, gE, 0, 144) + self.flat(mfO, gO, 0, ROT)
        else:
            head = self.flat(mfE, gE, 0, ROT)
            body = self.flat(mfE, gE, ROT, 144) + self.flat(mfO, gO, 0, 144) + self.flat(mfE, gE, 0, ROT)
        body.append(branch("s_branch", "L_top"))
        head1, st1 = fix(head, st, hoist=True)
        body1, st2 = fix(body, st1, hoist=True, log=log)
        body2, st3 = fix(body1, st2, hoist=True, log=log)
        errs, _ = verify(pro + head1 + body2 + body2 + body2)
        assert not errs, errs[:10]
        kx = next(i for i, x in enumerate(body2) if x.kind == "branch")
        _, stx = verify(pro + head1 + body2 + body2[:kx + 1])
        post = self.stamp() + self.tail(exit_tail)
        post, _ = fix(post, stx, hoist=True)
        errs, _ = verify(pro + head1 + body2[:kx + 1] + post)
        assert not errs, errs[:10]
        if verbose:
            tot, over = estimate(body2)
            print("loop estimate cycles (288 mfma, ideal 4608):", tot)
            for o in over:
                print("  over:", o)
            print("  inserted:", [x for x in log if x[0] == "nop"])
            print("  waits:", len([x for x in log if x[0] == "wait"]), "instrs:", len(body2))
            tot, over = estimate(post)
            print("tail estimate:", tot, "mfma:", sum(x.kind == "mfma" for x in post), "instrs:", len(post))
            print("  over:", [(o[0], o[1]) for o in over])
        self.njit = 0

        def jit(block):
            if not self.jitter:
                return block
            mask, where, amount = self.jitter.split(",")
            out = []
            for x in block:
                if x.kind != "barrier":
                    out.append(x)
                    continue
                self.njit += 1
                lab = f"L_jit{self.njit}"
                nap = [raw("s_cselect_b32 s99, 1, 0"), raw(f"s_lshl_b32 s98, 1, {S_W}"), raw(f"s_and_b32 s98, s98, {mask}"),
                       raw(f"s_cbranch_scc0 {lab}"), raw(f"s_sleep {amount}"), label(lab), raw("s_cmp_lg_u32 s99, 0")]
                out += nap + [x] if where == "b" else [x] + nap
            return out
        text = "  ; prologue: addresses, descriptors, Q staging and scaling, QK of tiles 0 and 1, PV of tile 0\n" + emit(jit(pro + head1))
        text += "  ; main loop: two periods per trip\n.p2align 6\nL_top:\n" + emit(jit(body2))
        text += "  ; last two tiles per group of query blocks, range check, output\nL_drain:\n" + emit(jit(post))
        text += self.stamp_out() + "L_end:\n  s_endpgm\n"
        setup, maxl, mid, main, epi = self.slow_path()
        st = State()
        blocks = []
        for blk, loop in ((setup, False), (maxl, True), (mid, False), (main, True), (epi, False)):
            blk, st = fix(blk, st)
            if loop:
                blk, st = fix(blk, st)
            blocks.append(blk)
        setup, maxl, mid, main, epi = blocks
        errs, _ = verify(post + setup + maxl + maxl + mid + main + main + epi)
        assert not errs, errs[:10]
        text += "  ; fallback: reload Q unscaled\nL_slow:\n" + emit(setup)
        text += "  ; fallback pass 1: true row maximum\nL_slow_max:\n" + emit(maxl) + emit(mid)
        text += "  ; fallback pass 2: P = exp2(c*S - c*max), O += P V\nL_slow_main:\n" + emit(main)
        text += emit(epi) + "  s_endpgm\n"
        return wrap(text, 256, 256, self.lds, 512, 256, extra_comment=DOC)


if __name__ == "__main__":
    ap = argparse.ArgumentParser()
    ap.add_argument("-o", default="k.s")
    ap.add_argument("--stamps", default="")
    ap.add_argument("--ring", type=int, default=5)
    ap.add_argument("--pol", default="nt")
    ap.add_argument("--opol", default="nt")
    ap.add_argument("--abl", default="")
    ap.add_argument("--pref", type=int, default=1)
    ap.add_argument("--qpol", default="nt")
    ap.add_argument("--dist", type=int, default=3)
    ap.add_argument("--dpos", default="s")
    ap.add_argument("--pk", type=int, default=1)
    ap.add_argument("--lat", type=int, default=7)
    ap.add_argument("--jitter", default="")
    ap.add_argument("--ahead", type=int, default=3)
    ap.add_argument("--dot", type=int, default=0)
    ap.add_argument("--early", type=int, default=1)
    ap.add_argument("--eblock", type=int, default=0)
    ap.add_argument("--efrac", type=int, default=80)
    ap.add_argument("--opol2", default="nt")
    ap.add_argument("--olast", type=int, default=4)
    ap.add_argument("--swap", type=int, default=1)
    ap.add_argument("--lite", type=int, default=0)
    ap.add_argument("--zig", type=int, default=0)
    ap.add_argument("--spread", type=int, default=0)
    ap.add_argument("--remap", type=int, default=1)
    ap.add_argument("--touch", type=int, default=0)
    ap.add_argument("--groups", default="42")
    ap.add_argument("--estep", type=int, default=2)
    ap.add_argument("--espace", type=int, default=9)
    ap.add_argument("--provar", default="45")
    ap.add_argument("-v", action="store_true")
    a = ap.parse_args()
    SPREAD = bool(a.spread)
    ROT_O = 4 if a.lite else 0
    g = Gen(ring=a.ring, pol=a.pol, opol=a.opol, stamps=a.stamps, abl=a.abl, provar=a.provar, groups=a.groups, estep=a.estep, espace=a.espace, pref=a.pref, remap=a.remap, touch=a.touch, qpol=a.qpol, dist=a.dist, dpos=a.dpos, pk=a.pk, lat=a.lat, jitter=a.jitter, ahead=a.ahead, dot=a.dot, early=a.early, eblock=a.eblock, efrac=a.efrac, opol2=a.opol2, olast=a.olast, swap=a.swap, lite=a.lite, zig=a.zig)
    open(a.o, "w").write(g.build(a.v))
```
